```python
import torch

def _softmax(x, axis=-1):
    return torch.softmax(x, dim=axis)

def _gelu(x):
    return torch.nn.functional.gelu(x, approximate='tanh')

def _silu(x):
    return torch.nn.functional.silu(x)

def _sigmoid(x):
    return torch.sigmoid(x)

def _layernorm(x, axis=-1, eps=1e-05):
    m = x.mean(dim=axis, keepdim=True)
    v = x.var(dim=axis, keepdim=True, unbiased=False)
    return (x - m) / torch.sqrt(v + eps)

def _scatter_add(tgt, idx, src, axis=0):
    return tgt.clone().index_add_(axis, idx, src)

def _segment_sum(src, seg, n):
    out = torch.zeros((n,) + src.shape[1:], dtype=src.dtype)
    return out.index_add_(0, seg, src)

def _pad(x, pw):
    flat = tuple((v for pair in reversed(pw) for v in pair))
    return torch.nn.functional.pad(x, flat)
kernel_name = 'interleave_layers__memory_aug_recurrent_mem_tr__softmax_full_mha__prompt'

def setup_inputs():

    _w = lambda a: (lambda t: t.to(torch.bfloat16) if t.is_floating_point() else t)(torch.as_tensor(a))

    def _A_setup():
        B, S, Dm = (1, 2048, 576)
        H, Dh = (32, 128)
        M, seg = (8, 32)
        seg = min(seg, S)
        S = S // seg * seg
        return {'x': _w((lambda *s: torch.randn(*s, dtype=torch.bfloat16) * 0.05)(B, S, Dm)), 'mem0': _w((lambda *s: torch.randn(*s, dtype=torch.bfloat16) * 0.2)(B, M, Dm)), 'Wq': _w((lambda *s: torch.randn(*s, dtype=torch.bfloat16) * 1.6)(Dm, H, Dh) * Dm ** (-0.5)), 'Wk': _w((lambda *s: torch.randn(*s, dtype=torch.bfloat16) * 1.6)(Dm, H, Dh) * Dm ** (-0.5)), 'Wv': _w((lambda *s: torch.randn(*s, dtype=torch.bfloat16) * 0.2)(Dm, H, Dh) * Dm ** (-0.5)), 'Wo': _w((lambda *s: torch.randn(*s, dtype=torch.bfloat16) * 0.2)(H, Dh, Dm) * (H * Dh) ** (-0.5)), 'seg_len': seg}
    _A_in = _A_setup()

    def _B_setup():
        B, S, D = (1, 2048, 576)
        return {'x': _w((lambda *s: torch.randn(*s, dtype=torch.bfloat16) * 0.05)(B, S, D)), 'wqkv': _w((lambda *s: torch.randn(*s, dtype=torch.bfloat16) * 0.05)(D, 3 * D)), 'wo': _w((lambda *s: torch.randn(*s, dtype=torch.bfloat16) * 0.05)(D, D))}
    _B_in = _B_setup()
    return {'A_x': _A_in['x'], 'A_mem0': _A_in['mem0'], 'A_Wq': _A_in['Wq'], 'A_Wk': _A_in['Wk'], 'A_Wv': _A_in['Wv'], 'A_Wo': _A_in['Wo'], 'A_seg_len': _A_in['seg_len'], 'B_x': _B_in['x'], 'B_wqkv': _B_in['wqkv'], 'B_wo': _B_in['wo']}

def reference(A_x, A_mem0, A_Wq, A_Wk, A_Wv, A_Wo, A_seg_len, B_x, B_wqkv, B_wo):

    def _A_ref(x, mem0, Wq, Wk, Wv, Wo, seg_len):
        B, S, Dm = x.shape
        H, Dh = (Wq.shape[1], Wq.shape[2])
        M = mem0.shape[1]
        scale = Dh ** (-0.5)
        n_seg = S // seg_len
        L = M + seg_len
        idx = torch.arange(L)
        mask = (idx[:, None] < M) | (idx[:, None] >= idx[None, :])
        mem = mem0
        outs = []
        for s in range(n_seg):
            xs = x[:, s * seg_len:(s + 1) * seg_len, :].clone()
            h = torch.concatenate([mem, xs], axis=1)
            q = torch.einsum('btd,dhe->bhte', h, Wq)
            k = torch.einsum('btd,dhe->bhte', h, Wk)
            v = torch.einsum('btd,dhe->bhte', h, Wv)
            scores = torch.einsum('bhqe,bhke->bhqk', q, k) * scale
            scores = torch.where(mask[None, None], scores, -1000000000.0)
            p = _softmax(scores, axis=-1)
            o = torch.einsum('bhqk,bhke->bhqe', p, v)
            o = torch.einsum('bhte,hed->btd', o, Wo)
            mem = o[:, :M, :].clone()
            outs.append(o[:, M:, :])
        return torch.concatenate(outs, axis=1)

    def _B_ref(x, wqkv, wo):
        B, S, D = x.shape
        H = 32
        Dh = D // H
        qkv = (lambda x, *d: x.permute(*d))((x @ wqkv).reshape(B, S, 3, H, Dh), 2, 0, 3, 1, 4)
        q, k, v = (qkv[0], qkv[1], qkv[2])
        scale = Dh ** (-0.5)
        scores = torch.einsum('bhqd,bhkd->bhqk', q, k) * scale
        p = _softmax(scores, axis=-1)
        o = torch.einsum('bhqk,bhkd->bhqd', p, v)
        return (lambda x, *d: x.permute(*d))(o, 0, 2, 1, 3).reshape(B, S, D) @ wo
    x = A_x
    x = x + _A_ref(_layernorm(x, axis=-1), A_mem0, A_Wq, A_Wk, A_Wv, A_Wo, A_seg_len)
    x = x + _B_ref(_layernorm(x, axis=-1), B_wqkv, B_wo)
    x = x + _A_ref(_layernorm(x, axis=-1), A_mem0, A_Wq, A_Wk, A_Wv, A_Wo, A_seg_len)
    x = x + _B_ref(_layernorm(x, axis=-1), B_wqkv, B_wo)
    return x
```

```python
import re

def R(i, n=1):
    p = 'v'
    if i >= 256:
        p = 'a'; i -= 256
        assert i + n <= 256
    else:
        assert i + n <= 256, (i, n)
    return f'{p}{i}' if n == 1 else f'{p}[{i}:{i+n-1}]'

def S(i, n=1):
    return f's{i}' if n == 1 else f's[{i}:{i+n-1}]'

_reg_re = re.compile(r'^(-|abs\(|\|)?([vas])(\d+|\[(\d+):(\d+)\])')

def parse_reg(tok):
    tok = tok.strip()
    if tok in ('vcc',): return {('s', 'vcc')}
    if tok in ('vcc_lo', 'vcc_hi'): return {('s', 'vcc')}
    if tok in ('exec', 'exec_lo', 'exec_hi'): return {('s', 'exec')}
    if tok == 'm0': return {('s', 'm0')}
    t = tok
    while t[:1] in ('-', '|'): t = t[1:]
    if t.startswith('abs('): t = t[4:]
    if t.startswith('neg('): t = t[4:]
    m = re.match(r'^([vas])(?:(\d+)|\[(\d+):(\d+)\])', t)
    if not m: return set()
    k = m.group(1)
    if m.group(2) is not None: lo = hi = int(m.group(2))
    else: lo, hi = int(m.group(3)), int(m.group(4))
    if k == 's': return {('s', i) for i in range(lo, hi + 1)}
    off = 256 if k == 'a' else 0
    return {('v', i + off) for i in range(lo, hi + 1)}

TRANS = ('v_exp_f32', 'v_log_f32', 'v_rcp_f32', 'v_rsq_f32', 'v_sqrt_f32', 'v_sin_f32', 'v_cos_f32', 'v_rcp_iflag_f32')

class Ins:
    __slots__ = ('text', 'op', 'ops', 'kind', 'wr', 'rd', 'passes', 'srcC', 'srcAB', 'target', 'label', 'states', 'data', 'dpp', 'vdst')
    def __init__(self, text):
        self.text = text
        self.label = None; self.target = None; self.kind = 'other'; self.wr = set(); self.rd = set()
        self.passes = 0; self.srcC = set(); self.srcAB = set(); self.states = 1; self.data = set(); self.dpp = False
        t = text.split(';')[0].strip()
        self.op = ''; self.ops = []
        if not t: self.kind = 'blank'; self.states = 0; return
        if t.endswith(':'): self.label = t[:-1]; self.kind = 'label'; self.states = 0; return
        if t.startswith('.'): self.kind = 'dir'; self.states = 0; return
        sp = t.split(None, 1)
        op = sp[0]; rest = sp[1] if len(sp) > 1 else ''
        for suf in ('_e32', '_e64', '_dpp', '_sdwa'):
            if op.endswith(suf):
                if suf == '_dpp': self.dpp = True
                op = op[:-len(suf)]
        self.op = op
        ops = []; cur = ''; depth = 0
        for ch in rest:
            if ch in '[(': depth += 1
            if ch in '])': depth -= 1
            if ch == ',' and depth == 0: ops.append(cur.strip()); cur = ''
            else: cur += ch
        if cur.strip(): ops.append(cur.strip())
        mods = ''
        if ops:
            last = ops[-1].split(None, 1)
            ops[-1] = last[0]; mods = last[1] if len(last) > 1 else ''
        if re.search(r'row_|quad_perm|wave_|row_bcast', mods): self.dpp = True
        self.ops = ops
        P = [parse_reg(o) for o in ops]
        U = lambda l: set().union(*l) if l else set()
        if op.startswith('v_mfma') or op.startswith('v_smfmac'):
            self.kind = 'mfma'
            self.passes = 8 if '32x32' in op else 4
            self.wr = P[0]
            if op.startswith('v_smfmac'):
                self.srcC = P[0]; self.srcAB = P[1] | P[2] | P[3]
            else:
                self.srcC = P[3]; self.srcAB = P[1] | P[2]
            self.rd = self.srcC | self.srcAB
        elif op.startswith('v_'):
            self.kind = 'valu'
            if op.startswith('v_cmp'):
                self.wr = P[0]; self.rd = U(P[1:])
                assert not op.startswith('v_cmpx')
            elif op in ('v_permlane32_swap_b32', 'v_permlane16_swap_b32', 'v_swap_b32'):
                self.wr = P[0] | P[1]; self.rd = P[0] | P[1]
            elif op in ('v_add_co_u32', 'v_sub_co_u32', 'v_addc_co_u32', 'v_subb_co_u32', 'v_mad_u64_u32'):
                self.wr = P[0] | P[1]; self.rd = U(P[2:])
            elif op == 'v_nop':
                pass
            else:
                self.wr = P[0]; self.rd = U(P[1:])
                if op in ('v_fmac_f32', 'v_dot2c_f32_bf16', 'v_writelane_b32', 'v_pk_fmac_f16') or self.dpp:
                    self.rd |= P[0]
        elif op.startswith('buffer_') or op.startswith('global_'):
            self.kind = 'vmem'
            if op in ('buffer_wbl2', 'buffer_inv'): return
            lds = ' lds' in (' ' + mods) or 'load_lds' in op
            if 'load' in op:
                if lds:
                    self.rd = U(P) | {('s', 'm0')}; self.kind = 'vmemlds'
                else:
                    self.wr = P[0]; self.rd = U(P[1:])
            elif 'atomic' in op:
                self.rd = U(P)
                if 'sc0' in mods: self.wr = P[0]
            else:
                self.rd = U(P)
                if op.endswith('x4') or op.endswith('x3'):
                    self.data = P[0] if op.startswith('buffer_') else P[1]
        elif op.startswith('ds_'):
            self.kind = 'ds'
            if op.startswith('ds_read') or op.startswith('ds_bpermute') or op.startswith('ds_swizzle') or op.startswith('ds_permute'):
                self.wr = P[0]; self.rd = U(P[1:])
            else:
                self.rd = U(P)
        elif op.startswith('s_'):
            self.kind = 'salu'
            if op == 's_nop': self.states = int(ops[0], 0) + 1
            elif op in ('s_branch',) or op.startswith('s_cbranch'):
                self.kind = 'branch'; self.target = ops[0]
            elif op == 's_endpgm': self.kind = 'end'
            elif op.startswith('s_cmp') or op in ('s_waitcnt', 's_barrier', 's_sleep', 's_setprio', 's_bitcmp0_b32', 's_bitcmp1_b32'):
                self.rd = U(P)
            else:
                self.wr = P[0] if P else set(); self.rd = U(P[1:])
                if 'saveexec' in op: self.wr = self.wr | {('s', 'exec')}
        else:
            raise ValueError('unknown instr ' + text)

def need(p, c):
    n = 0
    vw = {r for r in p.wr if r[0] == 'v'}
    sw = {r for r in p.wr if r[0] == 's'}
    if p.kind == 'valu':
        isdot = p.op.startswith('v_dot')
        if c.kind == 'mfma' and vw & c.rd: n = max(n, 3 if isdot else 2)
        if c.kind == 'valu':
            if p.op in TRANS and vw & c.rd and c.op not in TRANS: n = max(n, 1)
            if p.op in TRANS and vw & c.rd: n = max(n, 1)
            if c.op.startswith('v_permlane') and vw & c.rd: n = max(n, 2)
            if c.dpp and vw & c.rd: n = max(n, 2)
            if c.op in ('v_readlane_b32', 'v_readfirstlane_b32') and vw & c.rd: n = max(n, 1)
            if sw & c.rd:
                n = max(n, 4 if c.op in ('v_readlane_b32', 'v_writelane_b32') else 2)
            if isdot and (vw & (c.rd | c.wr)):
                if c.op == p.op:
                    ab = parse_reg(c.ops[1]) | parse_reg(c.ops[2])
                    if vw & ab: n = max(n, 3)
                else: n = max(n, 3)
        if c.kind in ('vmem', 'vmemlds', 'ds'):
            if c.kind != 'ds' and sw & c.rd: n = max(n, 5)
            if isdot and vw & c.rd: n = max(n, 3)
            if p.op in TRANS and vw & c.rd: n = max(n, 1)
        if c.kind == 'salu' and sw & c.rd: n = max(n, 1)
    if p.kind == 'mfma':
        big = {4: 8, 8: 12}[p.passes]
        if c.kind == 'mfma':
            if vw & c.srcAB: n = max(n, big)
            if vw & c.srcC:
                if not (vw == c.srcC and p.op == c.op): n = max(n, {4: 6, 8: 10}[p.passes])
            elif vw & c.wr: n = max(n, {4: 6, 8: 10}[p.passes])
        elif c.kind in ('valu', 'vmem', 'vmemlds', 'ds'):
            if vw & (c.rd | c.wr): n = max(n, big)
            if c.kind == 'valu' and p.srcC & c.wr: n = max(n, {4: 3, 8: 7}[p.passes])
    if p.kind == 'salu':
        if ('s', 'm0') in p.wr and c.kind == 'vmemlds': n = max(n, 1)
    if p.kind == 'vmem' and p.data:
        if p.data & c.wr: n = max(n, 2 if c.kind in ('valu', 'mfma') else 1)
    return n

MAXD = 12

def insert_nops_fast(lines, verbose=False, mfma_time=True):
    ins = [Ins(l) for l in lines]
    total = 0
    NEG = -99
    for _ in range(10):
        labels = {x.label: i for i, x in enumerate(ins) if x.label}
        jumps = {}
        for i, x in enumerate(ins):
            if x.kind == 'branch': jumps.setdefault(labels[x.target], []).append(i)
        extra = [0] * len(ins)
        any_ = False
        for i, c in enumerate(ins):
            if c.kind in ('valu', 'mfma', 'vmem', 'vmemlds', 'ds', 'salu') and (c.rd or c.wr):
                worst = 0
                stack = [(i - 1, 0, 0 if c.kind == 'mfma' else NEG, True)]
                seen = set()
                while stack:
                    j, d, e, fall = stack.pop()
                    if j < 0 or d >= MAXD: continue
                    if (j, d, e) in seen: continue
                    p = ins[j]
                    if fall and (p.kind == 'end' or p.op in ('s_branch', 's_setpc_b64')): continue
                    seen.add((j, d, e))
                    if p.kind == 'label':
                        for b in jumps.get(j, []): stack.append((b, d, e, False))
                    else:
                        if p.kind == 'mfma' and mfma_time:
                            d = max(d, p.passes + e - 1)
                            e = d + 1
                        k = need(p, c)
                        if k > d: worst = max(worst, k - d)
                    stack.append((j - 1, d + p.states + extra[j], e, True))
                if worst:
                    extra[i] = worst; any_ = True; total += worst
                    if verbose: print('nop', worst, 'before', c.text)
        if not any_: break
        out = []
        for i, c in enumerate(ins):
            if extra[i]: out.append(Ins(f'  s_nop {extra[i]-1}'))
            out.append(c)
        ins = out
    return [x.text for x in ins], total

class Asm:
    def __init__(self): self.l = []; self.uid = 0
    def __call__(self, s):
        for x in s.split('\n'):
            x = x.strip()
            if x: self.l.append(x if x.endswith(':') else '  ' + x)
    def lab(self, base):
        self.uid += 1; return f'{base}_{self.uid}'
    def text(self, verbose=False, mfma_time=True):
        lines, n = insert_nops_fast(self.l, verbose, mfma_time)
        self.nops = n
        return '\n'.join(lines) + '\n'
```

```python
from asmdsl import *
import layout as L
import struct
def fbits(x): return struct.unpack('<I', struct.pack('<f', x))[0]
SCALE_LOG2E = (128 ** -0.5) * 1.4426950408889634
OOB = 0x40000000

LD_MEM = 0
LD_Q   = 9216
LD_K   = LD_Q + 2048 + 32
LD_O   = LD_K + 2048
LD_PX  = LD_O + 2048
LD_PM  = LD_PX + 512
LD_Z   = LD_PM + 128
LD_ONE = LD_Z + 16
LD_SEL = LD_ONE + 16
LD_W   = 16384
NT   = [4, 4, 5, 5]
NLDS = [17, 17, 19, 19]
WBASE = [LD_W + 2048 * sum(NLDS[:w]) for w in range(4)]
def tile_of(w, slot):
    if slot == 4: return w - 2
    return 14 - 4 * slot + w

sWS = 8
sT  = 12
sH = 16; sW = 17; sStep = 18; sBud = 19
sKX = 20; sVX = 21; sKM = 22; sVM = 23
sP = 24
sRed = 29; sPo = 30; sRing = 31; sRingPo = 32; sGat = 33
sMask = 34
sRc = 36
sPf = 37
sTmp = 38
sPar = 46
sLay = 49
sCs = 50
sSt = 52
sKMn = 64; sVMn = 65; sKX2 = 66; sUnit = 67; sKmask = 68; sHn = 44; sHv = 45; sHc = 47; sLv = 48; sFh = 70; sPfe = 71; sNd = 72; sFast = 73

vL16 = 0; vWl = 1; vA = 2; vIdx = 3; vQW = 4; vTR = 5; vP = 6; vPRx = 7; vPRm = 8; vTO = 9; vVp = 10
vM = 12; vKX = 13
vPW = 14; vZ = 15
vHA = vP
T0 = 16
def WREG(w): return list(range(88 if w < 2 else 72, 512, 8))
GATH = [(5, 4), (4, 1), (0, 2), (2, 2)]

class ChainCfg:
    deferred = [15, 16, 17, 14, 13, 11, 10, 9, 7, 6, 5, 3, 2, 1]
    sh = [2, 4, 2, 2]
    nmain_lds = 10
    stamps = False
    nsteps = 64
    d_red = 6; d_redC = 8; d_redA = 0; d_gat = 16; d_gatA = 40; d_idle = 0
    hint = True; hrep = 4; hdepth = 6; hgap = 0; hpos = 3; htry = 60; hgaps = [6, 8, 10, 12, 14]; hsp = 8; hun = 2; rsets = 1; rsetsA = 1; gsets = 2; vdirect = False; pfd = 1; rgap = 0; ggap = 40
    pf = True
    pfmod = 'sc1'
    xmod = 'sc1'
    pub = True
    noexch = False
    integ = False
    trace = False
    fine = []
    novm = False
    stampsel = None

def main_seq(cfg):
    seq = []
    for c in range(18):
        seq += [('q', c), ('k', c)]
        if c not in cfg.deferred: seq.append(('v', c))
    return seq

def frag_plan(cfg, w):
    plan = {}; r = iter(WREG(w)); slot = 0
    seq = main_seq(cfg)
    nm = cfg.nmain_lds
    span = len(seq) - 2
    pos = sorted(set(int(round(i * span / (nm - 1))) for i in range(nm)))
    assert len(pos) == nm
    for i, key in enumerate(seq):
        if i in pos: plan[key] = ('l', slot); slot += 1
        else: plan[key] = ('r', next(r))
    for c in cfg.deferred: plan[('v', c)] = ('r', next(r))
    no = NLDS[w] - nm
    n = 4 * NT[w]
    opos = sorted(set(int(round(1 + i * (n - 2) / (no - 1))) for i in range(no)))
    assert len(opos) == no
    for i in range(n):
        key = ('o', i // 4, i % 4)
        if i in opos: plan[key] = ('l', slot); slot += 1
        else: plan[key] = ('r', next(r))
    assert slot == NLDS[w], slot
    return plan

def srd(a, s, lo, size):
    a(f's_mov_b32 s{s}, s{lo}\ns_and_b32 s{s+1}, s{lo+1}, 0xffff\ns_mov_b32 s{s+2}, {size}\ns_mov_b32 s{s+3}, 0x20000')

def emit_setup(a, cfg, w):
    t = T0
    a(f'''
    v_and_b32 v{t+1}, 63, v0          ; lane
    v_and_b32 v{t+2}, 15, v{t+1}      ; n
    v_lshrrev_b32 v{t+3}, 4, v{t+1}   ; g
    v_and_b32 v{t+4}, 1, v{t+3}       ; g&1
    v_lshrrev_b32 v{t+5}, 1, v{t+3}   ; g>>1
    v_lshlrev_b32 v{vL16}, 4, v{t+1}
    v_add_u32 v{vWl}, {WBASE[w]}, v{vL16}
    v_mov_b32 v{vZ}, 0
    v_and_b32 v{t+6}, 3, v{t+1}
    v_lshlrev_b32 v{t+6}, 4, v{t+6}
    v_lshl_add_u32 v{t+6}, v{t+4}, 6, v{t+6}
    v_lshl_add_u32 v{t+6}, v{t+5}, 8, v{t+6}
    v_bfe_u32 v{t+7}, v{t+1}, 2, 1
    v_lshl_add_u32 v{vA}, v{t+7}, 7, v{t+6}
    v_and_b32 v{t+6}, 8, v{t+1}
    v_cmp_eq_u32 vcc, 0, v{t+6}
    v_mov_b32 v{t+7}, 0xEEEEDDDD
    v_mov_b32 v{t+8}, 0x44448888
    v_cndmask_b32 v{vIdx}, v{t+7}, v{t+8}, vcc
    v_lshlrev_b32 v{t+6}, 4, v{t+2}
    v_lshl_add_u32 v{t+6}, v{t+4}, 3, v{t+6}
    v_lshl_add_u32 v{t+6}, v{t+5}, 2, v{t+6}
    v_mov_b32 v{t+7}, {OOB}
    v_cndmask_b32 v{vM}, v{t+7}, v{t+6}, vcc
    v_lshlrev_b32 v{t+6}, 3, v{t+5}
    v_xor_b32 v{t+6}, v{t+6}, v{t+2}
    v_lshlrev_b32 v{t+6}, 3, v{t+6}
    v_lshl_add_u32 v{t+6}, v{t+3}, 7, v{t+6}
    v_add_u32 v{vQW}, {512*w}, v{t+6}
    v_bfe_u32 v{t+6}, v{t+1}, 2, 1
    v_xor_b32 v{t+7}, v{t+6}, v{t+5}
    v_lshlrev_b32 v{t+6}, 8, v{t+6}
    v_lshl_add_u32 v{t+6}, v{t+7}, 6, v{t+6}
    v_and_b32 v{t+7}, 1, v{t+1}
    v_lshl_add_u32 v{t+6}, v{t+7}, 7, v{t+6}
    v_lshl_add_u32 v{t+6}, v{t+4}, 4, v{t+6}
    v_bfe_u32 v{t+7}, v{t+1}, 3, 1
    v_lshl_add_u32 v{vTO}, v{t+7}, 3, v{t+6}
    v_bfe_u32 v{t+7}, v{t+1}, 1, 1
    v_mul_u32_u24 v{t+7}, {LD_K - LD_Q}, v{t+7}
    v_add_u32 v{vTR}, v{vTO}, v{t+7}
    v_mul_u32_u24 v{t+6}, {L.PB_UNIT}, v{t+3}
    v_lshl_add_u32 v{vP}, v{t+2}, 3, v{t+6}
    v_bfe_u32 v{t+6}, v{t+2}, 2, 1
    v_lshlrev_b32 v{t+6}, 8, v{t+6}
    v_lshrrev_b32 v{t+7}, 3, v{t+2}
    v_lshl_add_u32 v{t+6}, v{t+7}, 7, v{t+6}
    v_and_b32 v{t+8}, 3, v{t+2}
    v_lshl_add_u32 v{t+6}, v{t+8}, 4, v{t+6}
    v_lshl_add_u32 v{vKX}, v{t+3}, 9, v{t+6}
    v_and_b32 v{t+8}, 7, v{t+1}
    v_lshl_add_u32 v{t+9}, v{t+3}, 3, v{t+8}
    v_lshlrev_b32 v{vPRx}, 4, v{t+9}                ; (g*8+q)*16
    v_lshl_add_u32 v{t+9}, v{t+4}, 3, v{t+8}
    v_lshlrev_b32 v{t+9}, 3, v{t+9}                 ; ((g&1)*8+q)*8
    v_cmp_eq_u32 vcc, v{t+7}, v{t+5}
    v_mov_b32 v{t+10}, 128
    v_cndmask_b32 v{vPRm}, v{t+10}, v{t+9}, vcc
    ''')
    if w < 2: a(f'v_add_u32 v{vPW}, {LD_PX + 8*w}, v{vPRx}\ns_mov_b32 s{sMask}, 0x00ff00ff\ns_mov_b32 s{sMask+1}, 0x00ff00ff')
    elif w == 2: a(f'v_add_u32 v{vPW}, {LD_PM}, v{t+9}\ns_mov_b32 s{sMask}, 0\ns_mov_b32 s{sMask+1}, 0x00ff00ff')
    else: a(f'v_mov_b32 v{vPW}, 0\ns_mov_b32 s{sMask}, 0x00010001\ns_mov_b32 s{sMask+1}, 0x00010001')
    a(f'''
    v_mov_b64 {R(t+12,2)}, 0
    v_mov_b64 {R(t+14,2)}, 0
    ds_write_b128 v{vZ}, {R(t+12,4)} offset:{LD_Z}
    v_lshlrev_b32 v{t}, 4, v{t+8}
    ds_write_b128 v{t}, {R(t+12,4)} offset:{LD_SEL}
    v_mov_b32 v{t+16}, 0x3f803f80
    v_mov_b32 v{t+17}, 0x3f803f80
    ds_write_b64 v{vZ}, {R(t+16,2)} offset:{LD_ONE}
    ds_write_b64 v{vZ}, {R(t+16,2)} offset:{LD_ONE+8}
    s_waitcnt lgkmcnt(0)
    s_barrier
    v_mul_u32_u24 v{t}, 18, v{t+8}
    ds_write_b16 v{t}, v{t+16} offset:{LD_SEL}
    s_mov_b32 s{sCs}, {fbits(SCALE_LOG2E)}
    s_lshl_b32 s{sTmp+2}, s{sH}, 7
    ''')
    for i in range(NT[w]): a(f's_add_u32 s{sP+i}, s{sTmp+2}, {L.PB + tile_of(w, i)*4*L.PB_UNIT}')
    a(f'''
    s_add_u32 s{sUnit}, s{sH}, {[40, 0, 8, 0][w]}
    s_mul_i32 s{sRed}, s{sUnit}, {L.PB_UNIT}
    s_add_u32 s{sRed}, s{sRed}, {L.PB}
    s_add_u32 s{sHn}, s{sH}, {L.HN}
    s_lshl_b32 s{sUnit}, s{sUnit}, 7
    s_mov_b32 s{sPar}, {L.PB_PAR}
    s_mov_b32 s{sRc}, 0
    s_mov_b32 s{sPo}, {OOB}
    {f's_and_b32 s{sHn}, s{sH}, {cfg.hrep-1}' if w == 1 else ''}
    {f's_mul_i32 s{sHn}, s{sHn}, {L.PB_UNIT}' if w == 1 else ''}
    {f's_add_u32 s{sHn}, s{sHn}, {L.HN}' if w == 1 else ''}
    s_mov_b32 s{sRingPo}, {OOB}
    s_waitcnt lgkmcnt(0)
    ''')

def emit_load_weights(a, cfg, w):
    plan = frag_plan(cfg, w)
    t = T0
    a(f'''
    v_bfe_u32 v{t+2}, v{vL16}, 4, 4           ; n
    v_bfe_u32 v{t+4}, v{vL16}, 8, 1           ; gB&1
    v_bfe_u32 v{t+5}, v{vL16}, 9, 1           ; gB>>1
    v_lshlrev_b32 v{t+3}, 17, v{t+4}
    v_lshl_add_u32 v{t+3}, v{t+5}, 14, v{t+3}
    v_lshl_add_u32 v{t+3}, v{t+2}, 2, v{t+3}
    s_lshl_b32 s{sTmp}, s{sH}, 8
    s_add_u32 s{sTmp}, s{sTmp}, {64*w}
    v_add_u32 v{t}, s{sTmp}, v{t+3}
    v_lshl_add_u32 v{t+4}, v{t+4}, 1, v{t+5}
    v_mul_u32_u24 v{t+4}, {4*1152}, v{t+4}
    v_lshl_add_u32 v{t+4}, v{t+2}, 2, v{t+4}
    s_mul_i32 s{sTmp}, s{sH}, {128*1152}
    v_add_u32 v{t+1}, s{sTmp}, v{t+4}
    ''')
    stage = [t + 8 + 8 * i for i in range(6)]
    pend = []; nload = 0; si = 0
    def flush(upto):
        while pend and len(pend) > upto:
            reg, slot, last = pend.pop(0)
            a(f's_waitcnt vmcnt({min(nload - last - 1, 63)})')
            a(f'ds_write_b128 v{vWl}, {R(reg,4)} offset:{slot*2048}\nds_write_b128 v{vWl}, {R(reg+4,4)} offset:{slot*2048+1024}')
            a('s_waitcnt lgkmcnt(0)')
    def load_frag(dst, voff, offs):
        nonlocal nload, si
        kind, x = dst
        if kind == 'l':
            flush(len(stage) - 1); reg = stage[si % len(stage)]; si += 1
        else: reg = x
        cur = None
        for rho in range(8):
            o = offs[rho]
            if cur is None or not (0 <= o - cur < 4096):
                cur = o; a(f's_mov_b32 s{sTmp+3}, {o}')
            a(f'buffer_load_dword {R(reg+rho)}, v{voff}, s[{sT}:{sT+3}], s{sTmp+3} offen offset:{o-cur}')
            nload += 1
        if kind == 'l': pend.append((reg, x, nload - 1))
        a('s_waitcnt vmcnt(48)')
    for m, karg in (('q', 16), ('k', 24), ('v', 32)):
        a(f's_load_dwordx2 s[{sTmp+4}:{sTmp+5}], s[0:1], {karg}\ns_waitcnt lgkmcnt(0)')
        srd(a, sT, sTmp + 4, 576 * 8192)
        for c in range(18):
            load_frag(plan[(m, c)], t, [(32*c + 4*(r & 3) + (r >> 2)) * 8192 for r in range(8)])
    a(f's_load_dwordx2 s[{sTmp+4}:{sTmp+5}], s[0:1], 40\ns_waitcnt lgkmcnt(0)')
    srd(a, sT, sTmp + 4, 4096 * 1152)
    for sl in range(NT[w]):
        for c in range(4):
            load_frag(plan[('o', sl, c)], t + 1, [(32*c + 16*(r >> 2) + (r & 3)) * 1152 + 64*tile_of(w, sl) for r in range(8)])
    flush(0)
    a('s_waitcnt vmcnt(0)')

def emit_poison_init(a, red, w=None):
    t = T0
    WS = f's[{sWS}:{sWS+3}]'
    if w == 3:
        a(f's_mov_b64 exec, s[{sMask}:{sMask+1}]\nbuffer_store_byte v{vPW}, v{vHA}, {WS}, s{sHn} offen sc1\ns_mov_b64 exec, -1\ns_waitcnt vmcnt(0)')
    if not red: return
    a(f'v_mov_b64 {R(t,2)}, -1\nv_mov_b64 {R(t+2,2)}, -1\ns_add_u32 s{sTmp}, s{sRed}, {L.PB_PAR}')
    for s in (sRed, sTmp):
        for i in range(4): a(f'buffer_store_dwordx4 {R(t,4)}, v{vL16}, {WS}, s{s} offen offset:{i*1024} sc1')
    for i in range(4):
        a(f's_add_u32 s{sTmp+1}, s{sUnit}, {L.MR + i*9216}\nbuffer_store_dword v{t}, v{vM}, {WS}, s{sTmp+1} offen sc1')
    a('s_waitcnt vmcnt(0)')

def stamp(a, cfg, i):
    if not cfg.stamps or (cfg.stampsel is not None and i not in cfg.stampsel): return
    a(f'''
    s_memtime s[{sTmp+4}:{sTmp+5}]
    s_waitcnt lgkmcnt(0)
    s_sub_u32 s{sTmp+5}, s{sTmp+4}, s{sSt}
    s_mov_b32 s{sSt}, s{sTmp+4}
    s_add_u32 s{sSt+2+i}, s{sSt+2+i}, s{sTmp+5}
    ''')

def mark(a, cfg, name):
    if name in cfg.fine:
        i = cfg.fine.index(name)
        a(f's_memtime s[{80+2*i}:{81+2*i}]')

class Q:
    def __init__(self, a, cnt, cap): self.a = a; self.q = []; self.cnt = cnt; self.cap = cap
    def issue(self, tag, text):
        for x in text.split('\n'):
            self.a(x); self.q.append(tag)
        assert len(self.q) <= self.cap, self.q
    def wait(self, *tags):
        idx = [i for i, x in enumerate(self.q) if x in tags]
        if not idx: return
        last = idx[-1]
        self.a(f's_waitcnt {self.cnt}({len(self.q)-last-1})')
        del self.q[:last + 1]
    def clear(self): self.q = []

def delay(a, n):
    while n > 0:
        k = min(n, 16); a(f's_nop {k-1}'); n -= k

def emit_layer(a, cfg, w, red, exit_label, st=''):
    plan = frag_plan(cfg, w)
    WS = f's[{sWS}:{sWS+3}]'
    t = T0
    ds = Q(a, 'lgkmcnt', 15); vm = Q(a, 'vmcnt', 63)
    accq, acck, accv = t, t + 4, t + 8
    Abuf = [t + 12 + 4 * i for i in range(3)]
    X0 = t + 24; X1 = t + 28
    Wbuf = [t + 32, t + 40]
    VXr = t + 48
    KXr = [t + 56 + 4 * i for i in range(4)]
    SM = 'v_smfmac_f32_16x16x64_bf16'
    g0, gn = GATH[w]
    a(f's_load_dwordx2 s[{sTmp+4}:{sTmp+5}], s[0:1], 8\ns_waitcnt lgkmcnt(0)')
    srd(a, sT, sTmp + 4, 9216)
    a(f"""
    v_bfe_u32 v{t}, v{vL16}, 4, 2            ; i
    v_bfe_u32 v{t+1}, v{vL16}, 7, 1          ; rh
    v_lshl_add_u32 v{t}, v{t+1}, 2, v{t}
    v_mul_u32_u24 v{t}, 1152, v{t}
    v_bfe_u32 v{t+1}, v{vL16}, 9, 1
    v_lshl_add_u32 v{t}, v{t+1}, 6, v{t}
    v_bfe_u32 v{t+1}, v{vL16}, 6, 1          ; b
    v_lshl_add_u32 v{t}, v{t+1}, 2, v{t}
    v_bfe_u32 v{t+1}, v{vL16}, 8, 1          ; par
    v_lshl_add_u32 v{t}, v{t+1}, 1, v{t}
    """)
    for it in range(gn):
        for j in range(8):
            a(f'buffer_load_ushort v{t+4+8*it+j}, v{t}, s[{sT}:{sT+3}], 0 offen offset:{(g0+it)*128 + j*8}')
    a('s_waitcnt vmcnt(0)')
    for it in range(gn):
        for j in range(4):
            a(f'v_lshl_or_b32 v{t+36+4*it+j}, v{t+4+8*it+2*j+1}, 16, v{t+4+8*it+2*j}')
        a(f'ds_write_b128 v{vL16}, {R(t+36+4*it,4)} offset:{LD_MEM + (g0+it)*1024}')
    a(f"""
    s_waitcnt lgkmcnt(0)
    s_mov_b32 s{sStep}, 0
    s_lshl_b32 s{sTmp}, s{sH}, 13
    s_add_u32 s{sTmp}, s{sTmp}, s{sLay}
    s_add_u32 s{sPf}, s{sTmp}, {L.KX + cfg.pfd*262144}
    s_add_u32 s{sKX}, s{sTmp}, {L.KX + 64*w}
    s_add_u32 s{sVX}, s{sTmp}, {L.VX + 2048*w}
    s_lshl_b32 s{sTmp}, s{sH}, 11
    s_lshl_b32 s{sTmp+1}, s{sH}, 12
    s_add_u32 s{sTmp}, s{sTmp}, s{sLay}
    s_add_u32 s{sTmp+1}, s{sTmp+1}, s{sLay}
    s_add_u32 s{sKMn}, s{sTmp+1}, {L.KM + 1024*w}
    s_add_u32 s{sVMn}, s{sTmp}, {L.VM + 512*w}
    s_mov_b32 s{sKM}, {OOB}
    s_mov_b32 s{sVM}, {OOB}
    s_mov_b32 s{sKmask}, 0xff00ff00
    s_mov_b32 s{sKmask+1}, 0xff00ff00
    """)
    seq = main_seq(cfg)
    ldsm = [k for k in seq if plan[k][0] == 'l']
    def wr(buf, slot, half): return f'ds_read_b128 {R(buf+4*half,4)}, v{vWl} offset:{slot*2048+1024*half}'
    def tr2(dst, base, c, vreg): return '\n'.join(f'ds_read_b64_tr_b16 {R(dst+2*hf,2)}, v{vreg} offset:{base + c*512 + 32*hf}' for hf in range(2))
    def cst(dst, off): return f'ds_read_b128 {R(dst,4)}, v{vZ} offset:{off}'
    def pre_step():
        for i in range(2):
            for hf in range(2): a(wr(Wbuf[i], plan[ldsm[i]][1], hf))
        for i in range(0, 12, 2): a(f'v_mov_b64 {R(t+i,2)}, 0')
        a(f'v_lshlrev_b32 v{X1+2}, 1, v{vL16}\nv_lshrrev_b32 v{X1+3}, 1, v{vL16}\nv_lshlrev_b32 v{X1+1}, 2, v{vL16}')
        if red: a(f'v_mov_b32 v{X1}, -1')
        if w < 2: a(f's_add_u32 s{sKX2}, s{sKX}, 4096')
        if w == 3:
            if not cfg.integ: a(f's_mov_b32 s{sPfe}, s{sPf}')
            else: a(f's_max_u32 s{sTmp+2}, s{sStep}, 1\ns_add_u32 s{sTmp+2}, s{sTmp+2}, s{sLv}\ns_sub_u32 s{sTmp+2}, s{sTmp+2}, 1\nv_mov_b32 v{X1}, s{sTmp+2}')
            a(f's_add_u32 s{sKX2}, s{sPfe}, 4096\ns_add_u32 s{sKX}, s{sPfe}, {L.VX - L.KX}\ns_add_u32 s{sRed}, s{sPfe}, {L.VX - L.KX + 4096}')
    fload = f'buffer_load_dwordx2 {R(vM,2)}, v{X1+3}, {WS}, s{sFh} offen offset:16 sc1'
    def avail(first):
        lp = a.lab('L_av'); ck_ = a.lab('L_avc'); ok = a.lab('L_avok')
        a(f'v_lshrrev_b32 v{X1+3}, 1, v{vL16}\ns_add_u32 s{sNd}, s{sStep}, s{sLv}\ns_add_u32 s{sNd}, s{sNd}, 1\ns_mov_b64 exec, 15')
        if not first: a(f's_waitcnt vmcnt({NT[w] + (1 if cfg.hint else 0)})\ns_branch {ck_}')
        a(f'{lp}:\n{fload}\ns_sub_u32 s{sBud}, s{sBud}, 1\ns_cbranch_scc1 {exit_label}\ns_waitcnt vmcnt(0)\n{ck_}:')
        a(f'v_min_u32 v{vM}, v{vM}, v{vM+1}\nv_cmp_gt_u32 vcc, s{sNd}, v{vM}\ns_cbranch_vccnz {lp}')
        a(f'v_cmp_ge_u32 vcc, s{sNd}, v{vM}\ns_mov_b64 exec, -1\ns_cmp_eq_u64 vcc, 0\ns_cselect_b32 s{sPfe}, s{sPf}, {OOB}')
    if cfg.integ and w == 3:
        a(f's_lshl_b32 s{sFh}, s{sH}, 7\ns_add_u32 s{sFh}, s{sFh}, {L.F_HEAD}')
        avail(True)
    pre_step()
    loop = a.lab('L_step')
    abuf_of = {}
    def aread(c, buf):
        abuf_of[c] = buf
        ds.issue(('A', c), f'ds_read_b128 {R(buf,4)}, v{vA} offset:{LD_MEM + c*512}')
    def head():
        a('s_barrier')
        stamp(a, cfg, 0); mark(a, cfg, 'B1')
        for c in range(3): aread(c, Abuf[c])
    a('s_waitcnt vmcnt(0) lgkmcnt(0)')
    head()
    a(f'{loop}:')
    F = [Wbuf[0], Wbuf[0] + 4, Wbuf[1], Wbuf[1] + 4]
    vxl = [('VX', f'buffer_load_dwordx4 {R(VXr+4*i,4)}, v{X1+2}, {WS}, s{sVX} offen offset:{16*i} {cfg.xmod}') for i in range(2)]
    kxl = [('KX', f'buffer_load_dwordx4 {R(KXr[c],4)}, v{vKX}, {WS}, s{sKX if c < 2 else sKX2} offen offset:{2048*(c&1)} {cfg.xmod}') for c in range(4)]
    pub = [('pub', f's_mov_b64 exec, s[{sKmask}:{sKmask+1}]|buffer_store_dwordx4 {R(X0,4)}, v{vL16}, {WS}, s{sKM} offen sc1|s_mov_b64 exec, -1'),
           ('pub', f'buffer_store_dwordx2 {R(vVp,2)}, v{X1+3}, {WS}, s{sVM} offen sc1')]
    po = [('po', f'buffer_store_dword v{X1}, v{X1+1}, {WS}, s{sPo} offen {st}'), ('po', f'buffer_store_dword v{X1}, v{vM}, {WS}, s{sRingPo} offen {st}')]
    pf = [('pf', f'buffer_load_dwordx2 {R(vM,2)}, v{X1+1}, {WS}, s{[sPfe, sKX2, sKX, sRed][i]} offen {cfg.pfmod}') for i in range(4)]
    if cfg.vdirect: pf = pf[:2]
    vq = []
    if w < 2:
        if cfg.vdirect: vq += [(g, *x) for g, x in zip([-1, -1, 1, 3, 5, 8], kxl + vxl)]
        else: vq += [(g, *x) for g, x in zip([-1, 1, 4, 6, 8, 10], kxl + vxl)]
    else:
        vq += [(g, *x) for g, x in zip([5, 8] if cfg.vdirect else [-1, 1], vxl)]
        if w == 3 and cfg.pf: vq += [(13 + 2 * i, *x) for i, x in enumerate(pf)]
    if cfg.pub: vq += [(21 + w, *pub[0]), (26 + w, *pub[1])]
    if red: vq += [(30 + 3 * w, *po[0]), (36 + w, *po[1])]
    if cfg.integ and w == 3:
        vq += [(31, 'fl', f's_mov_b64 exec, 15|{fload}|s_mov_b64 exec, -1'),
               (33, 'fl', f's_mov_b64 exec, 1|buffer_store_dword v{X1}, v{vZ}, {WS}, s{sFh} offen offset:48 sc1|s_mov_b64 exec, -1')]
    if cfg.novm: vq = []
    def vissue():
        _, tag, x = vq.pop(0)
        for y in x.split('|'):
            if y.startswith('s_'): a(y)
            else: vm.issue(tag, y)
    while vq and vq[0][0] < 0: vissue()
    tmp = X1 + 2
    vmov = [(tmp, VXr+1), (VXr+1, VXr+4), (VXr+4, VXr+2), (VXr+2, tmp), (tmp, VXr+3), (VXr+3, VXr+5), (VXr+5, VXr+6), (VXr+6, tmp)]
    vmov = [f'v_mov_b32 v{d}, v{s_}' for d, s_ in vmov]
    nl = len(ldsm)
    pendW = []; nextw = 2
    lastuse = {}
    for i, key in enumerate(seq): lastuse[key[1]] = i
    ds.wait(('A', 0)); mark(a, cfg, 'A0')
    for i, key in enumerate(seq):
        m, c = key
        B = R(plan[key][1], 8) if plan[key][0] == 'r' else R(Wbuf[ldsm.index(key) % 2], 8)
        acc = {'q': accq, 'k': acck, 'v': accv}[m]
        a(f'{SM} {R(acc,4)}, {R(abuf_of[c],4)}, {B}, v{vIdx}')
        if i + 1 < len(seq): ds.wait(('A', seq[i+1][1]), ('W', seq[i+1]))
        if plan[key][0] == 'l' and nextw < nl:
            for hf in range(2): pendW.append((('W', ldsm[nextw]), wr(Wbuf[nextw % 2], plan[ldsm[nextw]][1], hf)))
            nextw += 1
        if lastuse[c] == i and c + 3 < 18: aread(c + 3, abuf_of[c])
        elif pendW: ds.issue(*pendW.pop(0))
        if vq and vq[0][0] <= i: vissue()
        mark(a, cfg, f'm{i}')
    assert not pendW and not vq, (pendW, vq)
    mark(a, cfg, 'mainend')
    dq = list(cfg.deferred); nxt = 3
    def defer(n, valu=(), other=()):
        nonlocal nxt
        valu = list(valu); other = list(other)
        for k in range(n):
            c = dq.pop(0)
            ds.wait(('A', c))
            a(f'{SM} {R(accv,4)}, {R(abuf_of[c],4)}, {R(plan[("v",c)][1],8)}, v{vIdx}')
            if k + 1 < n: ds.wait(('A', dq[0]))
            if nxt < len(cfg.deferred): aread(cfg.deferred[nxt], abuf_of[c]); nxt += 1
            elif other: other.pop(0)()
            if valu: a(valu.pop(0))
        for x in other: x()
        for x in valu: a(x)
    sh = cfg.sh
    defer(sh[0], [f'v_cvt_pk_bf16_f32 v{accq}, v{accq}, v{accq+1}', f'v_cvt_pk_bf16_f32 v{accq+1}, v{accq+2}, v{accq+3}'])
    a(f'v_cvt_pk_bf16_f32 v{acck}, v{acck}, v{acck+1}\nv_cvt_pk_bf16_f32 v{acck+1}, v{acck+2}, v{acck+3}')
    ds.issue('wq', f'ds_write_b64 v{vQW}, {R(accq,2)} offset:{LD_Q}')
    ds.issue('wk', f'ds_write_b64 v{vQW}, {R(acck,2)} offset:{LD_K}')
    mark(a, cfg, 'wk')
    if not cfg.vdirect:
        vm.wait('VX'); defer(sh[1], vmov[:4]); vmov = vmov[4:]
    else: defer(sh[1])
    ds.wait('wk'); mark(a, cfg, 'preB2')
    a('s_barrier')
    stamp(a, cfg, 1); mark(a, cfg, 'B2')
    Sc, E = accq, acck
    ones = X0; O = X1
    if w < 3:
        for c in range(4): ds.issue(('F', c), tr2(F[c], LD_Q, c, vTR))
        defer(sh[2])
        vm.wait('KX'); mark(a, cfg, 'kx')
        ds.wait(('F', 0))
        for c in range(4):
            a(f'v_mfma_f32_16x16x32_bf16 {R(Sc,4)}, {R(KXr[c] if w < 2 else F[c],4)}, {R(F[c],4)}, {"0" if c == 0 else R(Sc,4)}')
            if c < 3: ds.wait(('F', c + 1))
            if not cfg.vdirect: a(vmov.pop(0))
        defer(sh[3])
        mark(a, cfg, 'sc')
        if w == 2:
            for i in range(4): a(f'v_mul_f32 v{Sc+i}, s{sCs}, v{Sc+i}')
        for i in range(4): a(f'v_exp_f32 v{E+i}, v{Sc+i}')
        a(f's_mov_b64 exec, s[{sMask}:{sMask+1}]')
        a(f'v_cvt_pk_bf16_f32 v{E}, v{E}, v{E+1}\nv_cvt_pk_bf16_f32 v{E+1}, v{E+2}, v{E+3}')
        ds.issue('wp', f'ds_write_b64 v{vPW}, {R(E,2)}')
        a('s_mov_b64 exec, -1')
        mark(a, cfg, 'wp')
    else:
        defer(sh[2] + sh[3], [] if cfg.vdirect else vmov)
        if not cfg.vdirect: vmov = []
    Obuf = Wbuf + ([KXr[0], KXr[2]] if w < 2 else [VXr])
    npre = 4 if w < 2 else 2
    ldso = [k for k in plan if k[0] == 'o' and plan[k][0] == 'l']
    opre = [lambda i=i, hf=hf: ds.issue(ldso[i], wr(Obuf[i], plan[ldso[i]][1], hf)) for i in range(npre) for hf in range(2)]
    other = [lambda: ds.issue('one', cst(ones, LD_ONE))] + opre[:2]
    opre = opre[2:]
    defer(len(dq), other=other)
    ds.wait('wp'); mark(a, cfg, 'preB2b')
    lab_fb = a.lab('L_fallback'); lab_back = a.lab('L_fbret'); lab_last = a.lab('L_last')
    a('s_barrier')
    stamp(a, cfg, 2); mark(a, cfg, 'B2b')
    Px = Abuf[0]; Ls = Abuf[1]; Pm = Abuf[2]
    acc = [accv, acck, Ls, accq, accv]
    def pv(first):
        nonlocal opre
        ds.issue('pm', f'ds_read_b64 {R(Pm,2)}, v{vPRm} offset:{LD_PM}')
        ds.issue('px', f'ds_read_b128 {R(Px,4)}, v{vPRx} offset:{LD_PX}')
        if first and cfg.integ: a(f's_cmp_eq_u32 s{sStep}, 63\ns_cbranch_scc1 {lab_last}')
        if first:
            if vmov:
                vm.wait('VX')
                for x in vmov: a(x)
        a(f'v_mov_b64 {R(acck,2)}, 0\nv_mov_b64 {R(acck+2,2)}, 0')
        if first: a(f'v_cvt_pk_bf16_f32 v{vVp}, v{accv}, v{accv+1}\nv_cvt_pk_bf16_f32 v{vVp+1}, v{accv+2}, v{accv+3}')
        op = opre if first else []
        def fill(n):
            for _ in range(n):
                if op: op.pop(0)()
        ds.wait('pm'); mark(a, cfg, 'px')
        a(f'v_mfma_f32_16x16x16_bf16 {R(Ls,4)}, {R(Pm,2)}, {R(ones,2)}, 0')
        ds.wait('px'); fill(1)
        a(f'v_mfma_f32_16x16x16_bf16 {R(O,4)}, {R(Pm,2)}, {R(vVp,2)}, 0')
        fill(1)
        a(f'v_mfma_f32_16x16x32_bf16 {R(Ls,4)}, {R(Px,4)}, {R(ones,4)}, {R(Ls,4)}')
        fill(1)
        a(f'{SM} {R(O,4)}, {R(Px,4)}, {R(VXr,8)}, v{vIdx} abid:1')
        fill(8)
        a(f'v_mov_b64 {R(accv,2)}, 0\nv_mov_b64 {R(accv+2,2)}, 0')
        for i in range(4): a(f'v_rcp_f32 v{Ls+i}, v{Ls+i}')
        mark(a, cfg, 'rcp')
        for i in range(4): a(f'v_mul_f32 v{O+i}, v{O+i}, v{Ls+i}')
        a(f'v_cvt_pk_bf16_f32 v{Pm}, v{O}, v{O+1}\nv_cvt_pk_bf16_f32 v{Pm+1}, v{O+2}, v{O+3}')
        ds.issue('wo', f'ds_write_b64 v{vQW}, {R(Pm,2)} offset:{LD_O}')
        mark(a, cfg, 'wo')
    pv(True)
    lo, hi = fbits(2.0 ** -60), fbits(2.0 ** 60)
    a(f"""
    v_min3_f32 v{Pm+2}, v{Ls}, v{Ls+1}, v{Ls+2}
    v_max3_u32 v{Pm+3}, v{Ls}, v{Ls+1}, v{Ls+2}
    v_min_f32 v{Pm+2}, v{Pm+2}, v{Ls+3}
    v_max_u32 v{Pm+3}, v{Pm+3}, v{Ls+3}
    v_cmp_gt_f32 vcc, {hex(lo)}, v{Pm+2}
    s_mov_b64 s[{sTmp}:{sTmp+1}], vcc
    v_cmp_lt_u32 vcc, {hex(hi)}, v{Pm+3}
    """)
    a('s_waitcnt lgkmcnt(0)\ns_barrier'); ds.clear()
    stamp(a, cfg, 3); mark(a, cfg, 'B3')
    Fo = [Abuf[0], Abuf[2], X0, X1]
    def foreads():
        for c in range(4): ds.issue(('F', c), tr2(Fo[c], LD_O, c, vTO))
    foreads()
    a(f's_or_b64 vcc, vcc, s[{sTmp}:{sTmp+1}]\ns_cbranch_scc1 {lab_fb}\n{lab_back}:')
    nexto = npre; gapq = []; pendW = []
    nb = len(Obuf)
    if npre < nb:
        for hf in range(2): pendW.append((ldso[nexto], wr(Obuf[nexto % nb], plan[ldso[nexto]][1], hf)))
        nexto += 1
    def finish(sl):
        ac = acc[sl]
        return [[f'v_cvt_pk_bf16_f32 v{ac}, v{ac}, v{ac+1}'], [f'v_cvt_pk_bf16_f32 v{ac+1}, v{ac+2}, v{ac+3}'],
                [f'buffer_store_dwordx2 {R(ac,2)}, v{vP}, {WS}, s{sP+sl} offen {st}']]
    zero = {0: [f'v_mov_b64 {R(acc[2],2)}, 0'], 1: [f'v_mov_b64 {R(acc[2]+2,2)}, 0'], 2: [f'v_mov_b64 {R(acc[3],2)}, 0'], 3: [f'v_mov_b64 {R(acc[3]+2,2)}, 0']}
    if NT[w] == 5: zero[8] = [f'v_mov_b64 {R(acc[4]+2,2)}, 0']; zero[12] = [f'v_mov_b64 {R(acc[4],2)}, 0']
    oseq = [('o', sl, c) for sl in range(NT[w]) for c in range(4)]
    hint = cfg.hint and not cfg.noexch
    hr = [VXr] * 16; ha = VXr + 7
    hload = lambda k: f'buffer_load_dword v{hr[k]}, v{ha}, {WS}, s{sHn} offen sc1'
    hq = {}
    if hint and w == 3:
        hq[cfg.hpos] = [f's_mov_b64 exec, s[{sMask}:{sMask+1}]', f'buffer_store_byte v{vPW}, v{vHA}, {WS}, s{sHn} offen {st}', 's_mov_b64 exec, -1']
        a(f'v_add_u32 v{vPW}, 1, v{vPW}')
    if hint and w == 1:
        zero[4] = [f'v_bfe_u32 v{ha}, v{vL16}, 2, 5']
        a(f'v_mov_b32 v{VXr}, 0x00ff00ff')
        for k, gp in enumerate(cfg.hgaps): hq[gp] = [hload(k)]
    vm.clear()
    def emit_vm(x):
        if x.startswith('buffer_load_dword v'): vm.issue(('h', int(x.split()[1][1:-1]) - VXr), x)
        elif x.startswith('buffer_'): vm.issue('P', x)
        else: a(x)
    ds.wait(('F', 0), oseq[0]); mark(a, cfg, 'F0')
    for i, key in enumerate(oseq):
        _, sl, c = key
        B = R(Obuf[ldso.index(key) % nb], 8) if plan[key][0] == 'l' else R(plan[key][1], 8)
        a(f'{SM} {R(acc[sl],4)}, {R(Fo[c],4)}, {B}, v{vIdx}')
        if i + 1 < len(oseq):
            assert oseq[i+1] not in [p[0] for p in pendW], (w, i)
            ds.wait(('F', oseq[i+1][2]), oseq[i+1])
        if plan[key][0] == 'l' and nexto < len(ldso):
            for hf in range(2): pendW.append((ldso[nexto], wr(Obuf[nexto % nb], plan[ldso[nexto]][1], hf)))
            nexto += 1
        if pendW: ds.issue(*pendW.pop(0))
        if c == 1 and sl >= 1: gapq += finish(sl - 1)
        for x in hq.get(i, []): emit_vm(x)
        if gapq:
            for x in gapq.pop(0): emit_vm(x)
        for x in zero.get(i, []): a(x)
    assert not pendW and not gapq
    mark(a, cfg, 'woend')
    Sel = X0; D = X1; ck = Abuf[2]
    a(f"""
    s_add_u32 s{sStep}, s{sStep}, 1
    s_add_u32 s{sRc}, s{sRc}, 1
    s_and_b32 s{sTmp}, s{sRc}, 3
    s_mul_i32 s{sGat}, s{sTmp}, 9216
    s_add_u32 s{sGat}, s{sGat}, {L.MR}
    s_add_u32 s{sRing}, s{sGat}, s{sUnit}
    s_add_u32 s{sGat}, s{sGat}, {g0*1024}
    """)
    if red: a(f'v_and_b32 v{ck}, 127, v{vPRx}')
    nh = len(cfg.hgaps)
    if hint and w == 1: emit_vm(hload(nh)); nh += 1
    for g in finish(NT[w] - 1):
        for x in g: emit_vm(x)
    stamp(a, cfg, 4); mark(a, cfg, 'pst')
    def scalars():
        if red:
            a(f"""
            s_xor_b32 s{sTmp}, s{sTmp}, 2
            s_mul_i32 s{sTmp}, s{sTmp}, 9216
            s_add_u32 s{sTmp}, s{sTmp}, {L.MR}
            s_add_u32 s{sRingPo}, s{sTmp}, s{sUnit}
            s_mov_b32 s{sPo}, s{sRed}
            """)
        for i in range(NT[w]): a(f's_add_u32 s{sP+i}, s{sP+i}, s{sPar}')
        a(f"""
        s_add_u32 s{sVX}, s{sVX}, 262144
        s_add_u32 s{sKX if w < 2 else sPf}, s{sKX if w < 2 else sPf}, 262144
        s_mov_b32 s{sKM}, s{sKMn}
        s_mov_b32 s{sVM}, s{sVMn}
        s_add_u32 s{sKMn}, s{sKMn}, 131072
        s_add_u32 s{sVMn}, s{sVMn}, 65536
        """)
    def budget(): a(f's_sub_u32 s{sBud}, s{sBud}, 1\ns_cbranch_scc1 {exit_label}')
    cold = []
    def attempts(ns, nld, loads, consume, gap, between=None):
        ok = a.lab('L_ok'); nx = a.lab('L_next')
        for k in range(ns):
            loads(k)
            if k + 1 < ns: delay(a, gap)
        if between: between()
        consume(0, nld * (ns - 1))
        a(f's_cbranch_vccnz {nx}\n{ok}:')
        def rest():
            a(f'{nx}:')
            for k in range(1, ns):
                consume(k, nld * (ns - 1 - k))
                a(f's_cbranch_vccz {ok}')
            for k in range(ns):
                loads(k)
                if k + 1 < ns: delay(a, gap)
            budget()
            consume(0, nld * (ns - 1))
            a(f's_cbranch_vccz {ok}\ns_branch {nx}')
        cold.append(rest)
    def prep():
        a(f's_sub_u32 s{sPar}, 0, s{sPar}')
        pre_step()
        a(tr2(X0, LD_Q, w, vTR))
    if red and not cfg.noexch:
        ns = cfg.rsetsA if w == 0 else cfg.rsets
        W4 = [Wbuf[0] + 4*i for i in range(4)]
        sets = [W4, KXr, [VXr, VXr + 4, Abuf[0], Abuf[1]]] if w < 2 else [W4, [VXr, VXr + 4, Abuf[0], Abuf[1]]]
        ns = min(ns, len(sets))
        def loads(k):
            for i in range(4): a(f'buffer_load_dwordx4 {R(sets[k][i],4)}, v{vL16}, {WS}, s{sRed} offen offset:{i*1024} sc1')
        def consume(k, nafter):
            S_ = sets[k]
            for i in range(4):
                a(f's_waitcnt vmcnt({3-i+nafter})' + (' lgkmcnt(0)' if i == 0 else ''))
                mark(a, cfg, f'r{i}')
                a(f'v_mfma_f32_16x16x32_bf16 {R(D,4)}, {R(S_[i],4)}, {R(Sel,4)}, {"0" if i == 0 else R(D,4)}')
                if i == 2: a(f'v_max3_u32 v{ck}, v{S_[0]}, v{S_[1]}, v{S_[2]}')
                if i == 3: a(f'v_max_u32 v{ck}, v{ck}, v{S_[3]}')
            a(f"""
            v_cmp_eq_u32 vcc, -1, v{ck}
            v_permlane32_swap_b32 v{D}, v{D+2}
            v_permlane32_swap_b32 v{D+1}, v{D+3}
            v_add_f32 v{D}, v{D}, v{D+2}
            v_add_f32 v{D+1}, v{D+1}, v{D+3}
            v_cvt_pk_bf16_f32 v{ck}, v{D}, v{D+1}
            """)
        a(f'ds_read_b128 {R(Sel,4)}, v{ck} offset:{LD_SEL}')
        if hint and w == 1:
            go = a.lab('L_go'); hl = a.lab('L_hint')
            A_, B_ = f's[{sTmp+2}:{sTmp+3}]', f's[{sTmp+4}:{sTmp+5}]'
            a(f's_and_b32 s{sHv}, s{sRc}, 255\ns_mul_i32 s{sHv}, s{sHv}, 0x01010101\ns_mov_b32 s{sHc}, {cfg.htry}\ns_mov_b64 {B_}, -1\n{hl}:')
            for k in range(8):
                if k % cfg.hun == 0: a(hload(0))
                else: a('s_nop 0')
                a(f'v_cmp_ne_u32 {A_}, s{sHv}, v{VXr}\ns_cmp_eq_u64 {B_}, 0\ns_cbranch_scc1 {go}')
                A_, B_ = B_, A_
            a(f's_sub_u32 s{sHc}, s{sHc}, 1\ns_cbranch_scc0 {hl}\n{go}:\ns_barrier')
            mark(a, cfg, 'go')
            scalars()
        else:
            scalars()
            if hint: a('s_barrier')
        delay(a, [cfg.d_redA, cfg.d_red, cfg.d_redC][w])
        mark(a, cfg, 'rstart')
        attempts(ns, 4, loads, consume, cfg.rgap)
        a(f'buffer_store_dword v{ck}, v{vM}, {WS}, s{sRing} offen {st}')
        stamp(a, cfg, 5); mark(a, cfg, 'ring')
        a(f's_add_u32 s{sRed}, s{sRed}, s{sPar}')
    else:
        if hint: a('s_barrier')
        scalars()
        if cfg.integ and w == 3: avail(False)
    prep()
    lab_join = a.lab('L_join')
    if not cfg.noexch:
        gs = [[KXr], [[KXr[0]], [KXr[1]], [KXr[2]]], [Abuf[:2], [VXr, VXr + 4]], [Abuf[:2], [VXr, VXr + 4]]][w][:cfg.gsets]
        gck = Abuf[2]
        def gloads(k):
            for i in range(gn): a(f'buffer_load_dwordx4 {R(gs[k][i],4)}, v{vL16}, {WS}, s{sGat} offen offset:{i*1024} sc1')
        def gcheck(k, nafter):
            for i in range(gn):
                a(f's_waitcnt vmcnt({gn-1-i+nafter})')
                G = gs[k][i]
                a(f'ds_write_b128 v{vL16}, {R(G,4)} offset:{LD_MEM + (g0+i)*1024}')
                if i == 0: a(f'v_max3_u32 v{gck}, v{G}, v{G+1}, v{G+2}\nv_max_u32 v{gck}, v{gck}, v{G+3}')
                else: a(f'v_max3_u32 v{gck}, v{gck}, v{G}, v{G+1}\nv_max3_u32 v{gck}, v{gck}, v{G+2}, v{G+3}')
            a(f'v_cmp_eq_u32 vcc, -1, v{gck}\ns_waitcnt lgkmcnt(0)')
        if w == 0:
            delay(a, cfg.d_gatA)
            mark(a, cfg, 'gstart')
            attempts(1, gn, gloads, gcheck, 0, lambda: a('s_barrier'))
        else:
            if w == 1: delay(a, cfg.d_gat)
            a('s_barrier')
            mark(a, cfg, 'gstart')
            attempts(len(gs), gn, gloads, gcheck, cfg.ggap)
        mark(a, cfg, 'gok')
    else: a('s_waitcnt lgkmcnt(0)')
    ds.clear(); vm.clear()
    head()
    ds.clear()
    if cfg.trace and w == 3:
        a(f's_memtime s[{sTmp+4}:{sTmp+5}]\ns_waitcnt lgkmcnt(0)\nv_writelane_b32 v{vPW}, s{sTmp+4}, 1\ns_lshl_b32 s{sTmp+5}, s{sH}, 8\ns_lshl_b32 s{sTmp+4}, s{sStep}, 2\ns_add_u32 s{sTmp+4}, s{sTmp+4}, s{sTmp+5}\ns_add_u32 s{sTmp+4}, s{sTmp+4}, {L.STAMP+16384-4}')
        a(f's_mov_b64 exec, 2\nbuffer_store_dword v{vPW}, v{vZ}, {WS}, s{sTmp+4} offen\ns_mov_b64 exec, -1')
    if cfg.integ: a(f's_branch {loop}')
    else: a(f's_cmp_lt_u32 s{sStep}, {cfg.nsteps}\ns_cbranch_scc1 {loop}\ns_branch {lab_join}')
    for f in cold: f()
    a(f'{lab_fb}:\ns_waitcnt lgkmcnt(0)\ns_barrier')
    saved = list(ds.q); ds.clear()
    m0, m1 = E, E + 1
    if w < 3:
        a(f"""
        v_max3_f32 v{m0}, v{Sc}, v{Sc+1}, v{Sc+2}
        v_max_f32 v{m0}, v{m0}, v{Sc+3}
        v_mov_b32 v{m1}, v{m0}
        s_mov_b64 exec, s[{sMask}:{sMask+1}]
        ds_write_b64 v{vPW}, {R(m0,2)}
        s_mov_b64 exec, -1
        """)
    a('s_waitcnt lgkmcnt(0)\ns_barrier')
    if w < 3:
        a(f"""
        v_lshrrev_b32 v{m0}, 1, v{vPRx}
        v_and_b32 v{m0}, 127, v{m0}
        ds_read_b128 {R(Px,4)}, v{vPRx} offset:{LD_PX}
        ds_read_b64 {R(Pm,2)}, v{m0} offset:{LD_PM}
        s_waitcnt lgkmcnt(0)
        v_max3_f32 v{m0}, v{Px}, v{Px+2}, v{Pm}
        v_mov_b32 v{m1}, v{m0}
        v_permlane32_swap_b32 v{m0}, v{m1}
        v_max_f32 v{m0}, v{m0}, v{m1}
        v_mov_b32 v{m1}, v{m0}
        v_permlane16_swap_b32 v{m0}, v{m1}
        v_max_f32 v{Px}, v{m0}, v{m1}
        """)
        for i in range(4): a(f'v_sub_f32 v{E+i}, v{Sc+i}, v{Px}')
        for i in range(4): a(f'v_exp_f32 v{E+i}, v{E+i}')
        a(f'v_cvt_pk_bf16_f32 v{E}, v{E}, v{E+1}\nv_cvt_pk_bf16_f32 v{E+1}, v{E+2}, v{E+3}')
    a('s_barrier')
    if w < 3: a(f's_mov_b64 exec, s[{sMask}:{sMask+1}]\nds_write_b64 v{vPW}, {R(E,2)}\ns_mov_b64 exec, -1')
    a(cst(ones, LD_ONE))
    a('s_waitcnt lgkmcnt(0)\ns_barrier')
    fine_save = cfg.fine; cfg.fine = []
    pv(False)
    cfg.fine = fine_save
    a('s_waitcnt lgkmcnt(0)\ns_barrier'); ds.clear()
    foreads(); ds.clear()
    a(f's_branch {lab_back}')
    if cfg.integ:
        a(f"""
        {lab_last}:
        s_waitcnt lgkmcnt(0)
        {tr2(X0, LD_Q, w, vTR)}
        v_cvt_pk_bf16_f32 v{vVp}, v{accv}, v{accv+1}
        v_cvt_pk_bf16_f32 v{vVp+1}, v{accv+2}, v{accv+3}
        v_lshrrev_b32 v{X1+3}, 1, v{vL16}
        buffer_store_dwordx2 {R(vVp,2)}, v{X1+3}, {WS}, s{sVMn} offen sc1
        s_waitcnt lgkmcnt(0)
        s_mov_b64 exec, s[{sKmask}:{sKmask+1}]
        buffer_store_dwordx4 {R(X0,4)}, v{vL16}, {WS}, s{sKMn} offen sc1
        s_mov_b64 exec, -1
        s_waitcnt vmcnt(0)
        s_barrier
        """)
        if w == 3: a(f's_add_u32 s{sTmp}, s{sLv}, 64\nv_mov_b32 v{X1}, s{sTmp}\ns_mov_b64 exec, 1\nbuffer_store_dword v{X1}, v{vZ}, {WS}, s{sFh} offen offset:48 sc1\ns_mov_b64 exec, -1')
    else:
        a(f"""
        {lab_join}:
        s_waitcnt lgkmcnt(0)
        buffer_store_dwordx4 {R(X0,4)}, v{vL16}, {WS}, s{sKM} offen sc1
        buffer_store_dwordx2 {R(vVp,2)}, v{X1+3}, {WS}, s{sVM} offen sc1
        s_waitcnt vmcnt(0)
        s_barrier
        """)

VARIANTS = [(0, True), (1, True), (2, True), (2, False), (3, False)]

def emit_dispatch(a, labels):
    a(f'''
    s_cmp_eq_u32 s{sW}, 0
    s_cbranch_scc1 {labels[0]}
    s_cmp_eq_u32 s{sW}, 1
    s_cbranch_scc1 {labels[1]}
    s_cmp_eq_u32 s{sW}, 3
    s_cbranch_scc1 {labels[4]}
    s_cmp_ge_u32 s{sH}, 24
    s_cbranch_scc1 {labels[2]}
    s_branch {labels[3]}
    ''')
```

```python
MB = 1 << 20
KX   = 0
VX   = 16 * MB
QX   = 32 * MB
OA   = 48 * MB
KM   = 64 * MB
X1   = 72 * MB
X2   = 75 * MB
QB   = 78 * MB
KB   = 81 * MB
VB   = 84 * MB
OB   = 88 * MB
VM   = 92 * MB
LSTRIDE = 96 * MB
PB   = 200 * MB
PB_UNIT = 4224
PB_PAR = 80 * PB_UNIT
MR   = 201 * MB
HN = 201 * MB + 65536
FLAGS = 202 * MB
F_HEAD = FLAGS
F_ATT  = FLAGS + 4096
F_WO   = FLAGS + 4096 + 256
F_FO   = FLAGS + 4096 + 512
F_BQ   = FLAGS + 4096 + 1024
F_BA   = FLAGS + 4096 + 1792
STAMP = 203 * MB
WS_BYTES = 268435456
XBYTES = 2048 * 1152
```

```python
from asmdsl import *
import layout as L
from chain import Q, srd, fbits, SCALE_LOG2E, OOB

SCALE_B = (18 ** -0.5) * 1.4426950408889634
sWS = 8; sT = 12; sRole = 16; sW = 17; sBud = 19
sLv = 48
sLay = 49
sX = 20
sY = 24
sS = 28; sNeed = 29; sKnown = 30; sOut = 31; sSig = 32; sPoll = 33; sSrc = 34; sM0 = 35; sDel = 36; sFv = 37
sTmp = 38
sId = 50; sPar = 51; sMul = 52; sStride = 53; sA = 54; sB = 55; sC = 56; sD = 57; sTeam = 58; sSigPrev = 59
sE = 60
sFlag = 62; sN = 63; sJ = 64; sI = 65
WS = f's[{sWS}:{sWS+3}]'
vL16 = 0; vLane = 1; vF = 2; vFa = 3

def base_regs(a):
    a(f'v_mbcnt_lo_u32_b32 v{vLane}, -1, 0\nv_mbcnt_hi_u32_b32 v{vLane}, -1, v{vLane}\nv_lshlrev_b32 v{vL16}, 4, v{vLane}')

def budget(a, ex): a(f's_sub_u32 s{sBud}, s{sBud}, 1\ns_cbranch_scc1 {ex}')

def poll(a, ex, mask, vaddr, soff, need, x2=False, sleep=2, vtmp=vF):
    lp = a.lab('L_poll'); dn = a.lab('L_polled')
    if isinstance(mask, int): a(f's_mov_b32 exec_lo, {hex(mask & 0xffffffff)}\ns_mov_b32 exec_hi, {hex(mask >> 32)}')
    else: a(f's_mov_b64 exec, {mask}')
    a(f'{lp}:')
    if x2:
        a(f'buffer_load_dwordx2 {R(vtmp,2)}, v{vaddr}, {WS}, s{soff} offen sc1\ns_waitcnt vmcnt(0)\nv_min_u32 v{vtmp}, v{vtmp}, v{vtmp+1}')
    else:
        a(f'buffer_load_dword v{vtmp}, v{vaddr}, {WS}, s{soff} offen sc1\ns_waitcnt vmcnt(0)')
    a(f'v_cmp_gt_u32 vcc, s{need}, v{vtmp}\ns_cbranch_vccz {dn}\ns_sleep {sleep}')
    budget(a, ex)
    a(f's_branch {lp}\n{dn}:\ns_mov_b64 exec, -1')

def signal(a, soff, sval, vtmp=vF):
    a(f'v_mov_b32 v{vtmp}, s{sval}\ns_mov_b64 exec, 1\nbuffer_store_dword v{vtmp}, v{vL16}, {WS}, s{soff} offen sc1\ns_mov_b64 exec, -1')

def load_ptr_srd(a, s, karg, size):
    a(f's_load_dwordx2 s[{sTmp+6}:{sTmp+7}], s[0:1], {karg}\ns_waitcnt lgkmcnt(0)')
    srd(a, s, sTmp + 6, size)

def ws_srd(a, s, off_sgpr, off_const, size):
    a(f's_add_u32 s{sTmp+6}, s{off_sgpr}, {off_const}\ns_add_u32 s{s}, s{sWS}, s{sTmp+6}\ns_addc_u32 s{s+1}, s{sWS+1}, 0\ns_mov_b32 s{s+2}, {size}\ns_mov_b32 s{s+3}, 0x20000')

WA = 256
CS = 240
LD_ST = 0
LD_PV = 1024
LD_X = 2048

def gemm_load_weights(a, kind, rowstride):
    t = 4
    a(f'''
    v_lshrrev_b32 v{t}, 2, v{vLane}
    v_mul_u32_u24 v{t}, {rowstride}, v{t}
    v_and_b32 v{t+1}, 3, v{vLane}
    v_lshl_add_u32 v{t}, v{t+1}, 4, v{t}
    s_mul_i32 s{sM0}, s{sW}, 36864
    s_mov_b32 s{sB}, s{sM0}
    s_mov_b32 s{sC}, 36
    ''')
    lp = a.lab('L_wl')
    a(f'''
    {lp}:
    s_mov_b32 m0, s{sM0}
    s_add_u32 s{sM0}, s{sM0}, 1024
    buffer_load_dwordx4 v{t}, s[{sT}:{sT+3}], s{sA} offen lds
    s_add_u32 s{sA}, s{sA}, {16*rowstride}
    s_sub_u32 s{sC}, s{sC}, 1
    s_cmp_lg_u32 s{sC}, 0
    s_cbranch_scc1 {lp}
    v_lshrrev_b32 v{t+2}, 5, v{vLane}
    v_bfe_u32 v{t+3}, v{vLane}, 2, 2
    v_lshl_add_u32 v{t+2}, v{t+2}, 3, v{t+3}
    v_lshlrev_b32 v{t+2}, 6, v{t+2}
    v_bfe_u32 v{t+3}, v{vLane}, 4, 1
    v_lshl_add_u32 v{t+2}, v{t+3}, 5, v{t+2}
    v_lshl_add_u32 v{t+2}, v{t+1}, 3, v{t+2}
    ''')
    for q in range(4):
        a(f's_add_u32 s{sC}, s{sW}, {q}\ns_and_b32 s{sC}, s{sC}, 3\ns_lshl_b32 s{sC}, s{sC}, 10\ns_add_u32 s{sC}, s{sC}, s{sB}\nv_add_u32 v{t+4+q}, s{sC}, v{t+2}')
    a('s_waitcnt vmcnt(0)')
    for ks in range(36):
        for hf in range(2):
            a(f'ds_read_b64_tr_b16 {R(WA+4*ks+2*hf,2)}, v{t+4+(ks&3)} offset:{(ks>>2)*4096 + 256*hf}')
        if ks % 4 == 3: a('s_waitcnt lgkmcnt(0)')
    if kind != 'FO':
        for i in range(4): a(f'v_mov_b32 v{t+8+i}, 0x3f803f80')
        for ks in range(36):
            W_, O_ = R(WA + 4 * ks, 4), R(t + 8, 4)
            x, y = (W_, O_) if kind in ('T', 'BT') else (O_, W_)
            a(f'v_mfma_f32_32x32x16_bf16 {R(CS,16)}, {x}, {y}, {"0" if ks == 0 else R(CS,16)}')
    a('s_barrier')

def gemm_phase(a, kind, ex, pipelined):
    vD = 4; vR = 13; vSt = 17; sum_, sq = 18, 19; vRow = 20
    FB = [24 + 4 * i for i in range(6)]
    ACC = 48; TMP = 64; RES = 96
    ln = kind != 'FO'
    X = f's[{sX}:{sX+3}]'
    for i in range(9):
        a(f'''
        s_mul_i32 s{sTmp}, s{sW}, 576
        s_add_u32 s{sTmp}, s{sTmp}, {64*i}
        v_add_u32 v{TMP}, s{sTmp}, v{vLane}
        v_lshrrev_b32 v{TMP+1}, 3, v{TMP}
        v_mul_u32_u24 v{TMP+1}, 7282, v{TMP+1}
        v_bfe_u32 v{TMP+1}, v{TMP+1}, 17, 3
        v_xor_b32 v{TMP}, v{TMP}, v{TMP+1}
        v_lshlrev_b32 v{vD+i}, 4, v{TMP}
        ''')
    a(f'''
    v_and_b32 v{TMP}, 31, v{vLane}
    v_lshrrev_b32 v{TMP+1}, 5, v{vLane}
    v_bfe_u32 v{TMP+2}, v{vLane}, 1, 3
    v_mul_u32_u24 v{TMP+3}, 1152, v{TMP}
    v_lshl_add_u32 v{vRow}, v{TMP+1}, 3, v{TMP+3}
    s_lshl_b32 s{sTmp}, s{sW}, 2
    v_add_u32 v{vSt}, s{sTmp}, v{vL16}
    v_lshlrev_b32 v{vFa}, 2, v{vLane}
    ''')
    for q in range(4):
        a(f'''
        s_add_u32 s{sTmp}, s{sW}, {q}
        s_and_b32 s{sTmp}, s{sTmp}, 3
        s_lshl_b32 s{sTmp}, s{sTmp}, 1
        v_add_u32 v{TMP+4}, s{sTmp}, v{TMP+1}
        v_xor_b32 v{TMP+4}, v{TMP+4}, v{TMP+2}
        v_lshl_add_u32 v{vR+q}, v{TMP+4}, 4, v{TMP+3}
        v_add_u32 v{vR+q}, {LD_X}, v{vR+q}
        ''')
    if kind == 'FO': a(f'v_lshlrev_b32 v{vFa}, 3, v{vLane}')
    if kind in ('T', 'N'):
        a(f'v_mul_u32_u24 v{TMP}, 3641, v{vLane}\nv_lshrrev_b32 v{TMP}, 16, v{TMP}\nv_mul_u32_u24 v{TMP}, 56, v{TMP}\nv_add_u32 v{vFa}, v{vFa}, v{TMP}')
    a(f's_mul_i32 s{sM0}, s{sW}, 9216\ns_add_u32 s{sM0}, s{sM0}, {LD_X}\ns_mov_b32 s{sDel}, 36864\ns_mov_b32 s{sSigPrev}, {OOB}')
    def dma(i): return [f's_add_u32 m0, s{sM0}, {1024*i}', f'buffer_load_dwordx4 v{vD+i}, {X}, s{sSrc} offen sc1 lds']
    def wait_input(seg):
        if pipelined:
            skip = a.lab('L_have')
            a(f's_add_u32 s{sNeed}, s{seg}, 1\ns_cmp_le_u32 s{sNeed}, s{sKnown}\ns_cbranch_scc1 {skip}')
            a('s_waitcnt vmcnt(0)'); signal(a, sSigPrev, sFv)
            a(f'''
            s_mul_i32 s{sTmp}, s{seg}, 43
            s_lshr_b32 s{sTmp}, s{sTmp}, 7
            s_mul_i32 s{sTmp}, s{sTmp}, 3
            s_sub_u32 s{sTmp}, s{seg}, s{sTmp}
            s_mul_i32 s{sTmp}, s{sTmp}, 18
            s_mov_b64 s[{sE}:{sE+1}], 0x3ffff
            s_lshl_b64 s[{sE}:{sE+1}], s[{sE}:{sE+1}], s{sTmp}
            ''')
            poll(a, ex, f's[{sE}:{sE+1}]', vFa, sPoll, sNeed)
            a(f's_mov_b32 s{sKnown}, s{sNeed}')
            a(f's_mov_b32 exec_lo, -1\ns_mov_b32 exec_hi, 0x3fffff\nbuffer_load_dword v{vF}, v{vFa}, {WS}, s{sPoll} offen sc1\ns_waitcnt vmcnt(0)')
            for d in (2, 5, 11):
                a(f's_add_u32 s{sTmp}, s{sNeed}, {d}\nv_cmp_gt_u32 vcc, s{sTmp}, v{vF}\ns_cmp_eq_u64 vcc, 0\ns_cselect_b32 s{sKnown}, s{sTmp}, s{sKnown}')
            a(f'v_cmp_gt_u32 vcc, 62, v{vF}\ns_cmp_eq_u64 vcc, 0\ns_cselect_b32 s{sKnown}, 64, s{sKnown}\ns_mov_b64 exec, -1\n{skip}:')
        else:
            a(f's_add_u32 s{sNeed}, s{seg}, s{sLv}\ns_add_u32 s{sNeed}, s{sNeed}, 1')
            if kind == 'FO':
                a(f's_mul_i32 s{sTmp}, s{seg}, s{sA}\ns_lshr_b32 s{sTmp}, s{sTmp}, 8\ns_mul_i32 s{sTmp}, s{sTmp}, s{sN}\ns_sub_u32 s{sTmp}, s{seg}, s{sTmp}\ns_mul_i32 s{sTmp}, s{sTmp}, 384\ns_add_u32 s{sTmp}, s{sTmp}, {L.F_BA}')
                poll(a, ex, (1 << 48) - 1, vFa, sTmp, sNeed, x2=True, vtmp=TMP)
            else:
                poll(a, ex, (1 << 24) - 1, vFa, sPoll, sNeed)
    loop = a.lab('L_seg'); done = a.lab('L_segdone')
    nst = {'T': 2, 'N': 2, 'BT': 2, 'BN': 2, 'FO': 4}[kind]
    if pipelined:
        wait_input(sS)
        a(f's_mul_i32 s{sSrc}, s{sS}, 36864')
        for i in range(9): a('\n'.join(dma(i)))
        a(f's_waitcnt vmcnt(0)\n{loop}:\ns_add_u32 s{sTmp+1}, s{sS}, 1\ns_min_u32 s{sD}, s{sTmp+1}, 63')
        wait_input(sD)
        a(f's_mul_i32 s{sSrc}, s{sD}, 36864\ns_add_u32 s{sM0}, s{sM0}, s{sDel}\ns_waitcnt vmcnt({nst+1})\ns_barrier')
    else:
        a(f'{loop}:')
        wait_input(sS)
        a(f's_mul_i32 s{sSrc}, s{sS}, 36864')
        for i in range(9): a('\n'.join(dma(i)))
        if kind == 'FO':
            a(f's_add_u32 s{sD}, s{sSrc}, s{sOut}')
            for g in range(4): a(f'buffer_load_dwordx2 {R(RES+2*g,2)}, v{vRow}, s[{sT}:{sT+3}], s{sD} offen offset:{16*g} sc1')
        a(f's_waitcnt vmcnt({4 if kind == "FO" else 0})\ns_barrier')
    ds = Q(a, 'lgkmcnt', 15)
    def rd(ks): ds.issue(ks, f'ds_read_b128 {R(FB[ks%6],4)}, v{vR+(ks&3)} offset:{(ks>>2)*128}')
    for ks in range(3): rd(ks)
    if ln: a(f'v_mov_b32 v{sum_}, 0\nv_mov_b32 v{sq}, 0\ns_mov_b32 s{sTmp}, 0x3f803f80')
    dots = []
    ds.wait(0)
    for ks in range(36):
        W_, F_ = R(WA + 4 * ks, 4), R(FB[ks % 6], 4)
        x, y = (W_, F_) if kind in ('T', 'BT', 'FO') else (F_, W_)
        a(f'v_mfma_f32_32x32x16_bf16 {R(ACC,16)}, {x}, {y}, {"0" if ks == 0 else R(ACC,16)}')
        if ks + 1 < 36: ds.wait(ks + 1)
        if ks + 3 < 36: rd(ks + 3)
        if ln and ks % 4 == 0:
            for i in range(4):
                dots.append(f'v_dot2_f32_bf16 v{sum_}, v{FB[ks%6]+i}, s{sTmp}, v{sum_}')
                dots.append(f'v_dot2_f32_bf16 v{sq}, v{FB[ks%6]+i}, v{FB[ks%6]+i}, v{sq}')
        for _ in range(3):
            if dots: a(dots.pop(0))
        if pipelined:
            if ks % 4 == 3 and ks // 4 < 5:
                for i in (2 * (ks // 4), 2 * (ks // 4) + 1):
                    if i < 9: a('\n'.join(dma(i)))
            if ks == 27:
                a('s_waitcnt vmcnt(9)'); signal(a, sSigPrev, sFv)
    if ln:
        mean, rs = TMP + 8, TMP + 9
        a(f"""
        v_permlane32_swap_b32 v{sum_}, v{sq}
        v_add_f32 v{sum_}, v{sum_}, v{sq}
        v_and_b32 v{TMP+8}, 0x1f0, v{vL16}
        ds_write_b32 v{vSt}, v{sum_} offset:{LD_ST}
        s_waitcnt lgkmcnt(0)
        s_barrier
        ds_read_b128 {R(TMP,4)}, v{TMP+8} offset:{LD_ST}
        ds_read_b128 {R(TMP+4,4)}, v{TMP+8} offset:{LD_ST+512}
        s_mov_b32 s{sTmp}, {fbits(1.0/576)}
        s_waitcnt lgkmcnt(0)
        v_add_f32 v{TMP}, v{TMP}, v{TMP+1}
        v_add_f32 v{TMP+2}, v{TMP+2}, v{TMP+3}
        v_add_f32 v{TMP+4}, v{TMP+4}, v{TMP+5}
        v_add_f32 v{TMP+6}, v{TMP+6}, v{TMP+7}
        v_add_f32 v{TMP}, v{TMP}, v{TMP+2}
        v_add_f32 v{TMP+4}, v{TMP+4}, v{TMP+6}
        v_mul_f32 v{mean}, s{sTmp}, v{TMP}
        v_mul_f32 v{TMP+4}, s{sTmp}, v{TMP+4}
        v_fma_f32 v{TMP+4}, -v{mean}, v{mean}, v{TMP+4}
        v_max_f32 v{TMP+4}, 0, v{TMP+4}
        v_add_f32 v{TMP+4}, {fbits(1e-5)}, v{TMP+4}
        v_rsq_f32 v{rs}, v{TMP+4}
        """)
    else: a('s_barrier')
    a(f's_mul_i32 s{sD}, s{sS}, s{sMul}\ns_add_u32 s{sD}, s{sD}, s{sOut}')
    PK = TMP + 40
    if kind in ('T', 'BT'):
        n = 16 if kind == 'T' else 10
        a(f'v_mul_f32 v{rs}, s{sC}, v{rs}')
        for r in range(n): a(f'v_fma_f32 v{ACC+r}, -v{mean}, v{CS+r}, v{ACC+r}')
        for r in range(n): a(f'v_mul_f32 v{ACC+r}, v{rs}, v{ACC+r}')
        for r in range(0, n, 2): a(f'v_cvt_pk_bf16_f32 v{PK+r//2}, v{ACC+r}, v{ACC+r+1}')
        a(f'buffer_store_dwordx4 {R(PK,4)}, v{vL16}, {WS}, s{sD} offen sc1')
        if kind == 'T': a(f'buffer_store_dwordx4 {R(PK+4,4)}, v{vL16}, {WS}, s{sD} offen offset:1024 sc1')
        else: a(f's_mov_b32 exec_hi, 0\nbuffer_store_dword v{PK+4}, v{vFa}, {WS}, s{sD} offen offset:1024 sc1\ns_mov_b64 exec, -1')
    elif kind in ('N', 'BN'):
        a(f"""
        v_mul_f32 v{mean}, v{mean}, v{rs}
        v_cmp_gt_u32 vcc, 32, v{vLane}
        s_lshl_b32 s{sTmp}, s{sW}, 8
        v_lshl_add_u32 v{TMP}, v{vLane}, 2, s{sTmp}
        v_cndmask_b32 v{mean}, v{mean}, v{rs}, vcc
        v_lshrrev_b32 v{TMP+1}, 5, v{vLane}
        v_lshl_add_u32 v{sum_}, v{TMP+1}, 4, s{sTmp}
        ds_write_b32 v{TMP}, v{mean} offset:{LD_PV}
        """)
        for g in range(4): a(f'ds_read_b128 {R(TMP+4*g,4)}, v{sum_} offset:{LD_PV + 32*g}')
        for g in range(4): a(f'ds_read_b128 {R(TMP+16+4*g,4)}, v{sum_} offset:{LD_PV + 128 + 32*g}')
        a('s_waitcnt lgkmcnt(4)')
        for r in range(16): a(f'v_mul_f32 v{ACC+r}, v{TMP+r}, v{ACC+r}')
        a('s_waitcnt lgkmcnt(0)')
        for r in range(16): a(f'v_fma_f32 v{ACC+r}, -v{TMP+16+r}, v{CS}, v{ACC+r}')
        for r in range(0, 16, 2): a(f'v_cvt_pk_bf16_f32 v{PK+r//2}, v{ACC+r}, v{ACC+r+1}')
        if kind == 'BN':
            a(f's_mov_b32 exec_lo, {1 << 18}\ns_mov_b32 exec_hi, {1 << 18}')
            for i in range(8): a(f'v_mov_b32 v{PK+i}, 0x3f803f80')
            a('s_mov_b64 exec, -1')
        a(f'buffer_store_dwordx4 {R(PK,4)}, v{vL16}, {WS}, s{sD} offen sc1\nbuffer_store_dwordx4 {R(PK+4,4)}, v{vL16}, {WS}, s{sD} offen offset:1024 sc1')
    else:
        a('s_waitcnt vmcnt(0)')
        residual_add(a, ACC, RES, PK, 8, TMP)
        for g in range(4): a(f'buffer_store_dwordx2 {R(PK+2*g,2)}, v{vRow}, s[{sY}:{sY+3}], s{sD} offen offset:{16*g} sc1')
    a(f's_add_u32 s{sFv}, s{sS}, s{sLv}\ns_add_u32 s{sFv}, s{sFv}, 1')
    if pipelined:
        for q in range(4): a(f'v_add_u32 v{vR+q}, s{sDel}, v{vR+q}')
        a(f's_sub_u32 s{sDel}, 0, s{sDel}\ns_mov_b32 s{sSigPrev}, s{sSig}')
    else:
        a('s_waitcnt vmcnt(0)'); signal(a, sSig, sFv)
    a(f's_add_u32 s{sS}, s{sS}, s{sStride}\ns_cmp_lt_u32 s{sS}, 64\ns_cbranch_scc1 {loop}')
    if pipelined:
        a('s_waitcnt vmcnt(0)'); signal(a, sSig, sFv)
    a('s_waitcnt vmcnt(0)\ns_barrier')

def residual_add(a, ACC, RES, PK, n, TMP):
    for i in range(n):
        a(f"""
        v_cvt_pk_bf16_f32 v{PK+i}, v{ACC+2*i}, v{ACC+2*i+1}
        v_lshlrev_b32 v{TMP}, 16, v{RES+i}
        v_and_b32 v{TMP+1}, 0xffff0000, v{RES+i}
        v_lshlrev_b32 v{TMP+2}, 16, v{PK+i}
        v_and_b32 v{TMP+3}, 0xffff0000, v{PK+i}
        v_add_f32 v{TMP}, v{TMP}, v{TMP+2}
        v_add_f32 v{TMP+1}, v{TMP+1}, v{TMP+3}
        v_cvt_pk_bf16_f32 v{PK+i}, v{TMP}, v{TMP+1}
        """)

def att_phase(a, ex):
    vKa = 4; vVa = 5; m0 = 6; m1 = 7
    MK = 8; Qr = 24; Kr = 56; Vr = 88; KMr = 120; VMr = 152; Sx = 160; Sm = 176; Px = 192; Pm = 200
    O = [24, 40, 56, 72]; PKo = 120
    a(f"""
    v_lshlrev_b32 v{vFa}, 2, v{vLane}
    v_lshrrev_b32 v{m0}, 5, v{vLane}
    v_and_b32 v{m1}, 7, v{vLane}
    v_lshlrev_b32 v{m1}, 4, v{m1}
    v_lshl_add_u32 v{vKa}, v{m0}, 8, v{m1}
    v_add_u32 v{vKa}, 128, v{vKa}
    v_and_b32 v{m1}, 1, v{vLane}
    v_lshl_add_u32 v{m1}, v{m1}, 1, v{m0}
    v_lshlrev_b32 v{m1}, 4, v{m1}
    v_bfe_u32 v{vVa}, v{vLane}, 1, 4
    v_add_lshl_u32 v{vVa}, v{vVa}, v{m1}, 3
    v_and_b32 v{m1}, 31, v{vLane}
    v_lshlrev_b32 v{m0}, 2, v{m0}
    v_sub_u32 v{m1}, v{m1}, v{m0}
    v_mov_b32 v{m0}, 0xff800000
    """)
    for r in range(16):
        a(f'v_cmp_le_i32 vcc, {8*(r>>2) + (r&3)}, v{m1}\nv_cndmask_b32 v{MK+r}, v{m0}, 0, vcc')
    a(f"""
    s_mov_b32 s{sS}, s{sPar}
    s_lshl_b32 s{sPoll}, s{sId}, 7
    s_add_u32 s{sPoll}, s{sPoll}, {L.F_HEAD}
    s_lshl_b32 s{sSig}, s{sPar}, 5
    s_add_u32 s{sSig}, s{sSig}, s{sId}
    s_lshl_b32 s{sSig}, s{sSig}, 2
    s_add_u32 s{sSig}, s{sSig}, {L.F_ATT}
    s_mov_b32 s{sC}, {fbits(SCALE_LOG2E)}
    """)
    loop = a.lab('L_att')
    a(f'{loop}:\ns_add_u32 s{sNeed}, s{sS}, s{sLv}\ns_add_u32 s{sNeed}, s{sNeed}, 1')
    poll(a, ex, 0xfff, vFa, sPoll, sNeed)
    a(f"""
    s_lshl_b32 s{sTmp}, s{sS}, 5
    s_add_u32 s{sTmp}, s{sTmp}, s{sId}
    s_lshl_b32 s{sA}, s{sTmp}, 13
    s_add_u32 s{sA}, s{sA}, s{sLay}
    s_lshl_b32 s{sB}, s{sTmp}, 12
    s_add_u32 s{sB}, s{sB}, s{sLay}
    s_add_u32 s{sB}, s{sB}, {L.KM}
    s_lshl_b32 s{sD}, s{sTmp}, 11
    s_add_u32 s{sD}, s{sD}, s{sLay}
    s_add_u32 s{sD}, s{sD}, {L.VM}
    """)
    for base, reg in ((L.QX, Qr), (L.KX, Kr), (L.VX, Vr)):
        for hf in range(2):
            a(f's_add_u32 s{sTmp}, s{sA}, {base + 4096*hf}')
            for i in range(4): a(f'buffer_load_dwordx4 {R(reg+16*hf+4*i,4)}, v{vL16}, {WS}, s{sTmp} offen offset:{1024*i} sc1')
    a('s_waitcnt vmcnt(8)')
    for f in range(8): a(f'v_mfma_f32_32x32x16_bf16 {R(Sx,16)}, {R(Kr+4*f,4)}, {R(Qr+4*f,4)}, {R(MK,16) if f == 0 else R(Sx,16)}')
    poll(a, ex, 0x1000, vFa, sPoll, sNeed, sleep=1)
    for f in range(8): a(f'buffer_load_dwordx4 {R(KMr+4*f,4)}, v{vKa}, {WS}, s{sB} offen offset:{512*f} sc1')
    for e in range(4): a(f'buffer_load_dwordx2 {R(VMr+2*e,2)}, v{vVa}, {WS}, s{sD} offen offset:{512*e} sc1')
    a(f'v_max3_f32 v{m0}, v{Sx}, v{Sx+1}, v{Sx+2}')
    for r in range(3, 15, 2): a(f'v_max3_f32 v{m0}, v{m0}, v{Sx+r}, v{Sx+r+1}')
    a(f'v_max_f32 v{m0}, v{m0}, v{Sx+15}')
    for f in range(8):
        a(f's_waitcnt vmcnt({11-f})\nv_mfma_f32_32x32x16_bf16 {R(Sm,16)}, {R(KMr+4*f,4)}, {R(Qr+4*f,4)}, {"0" if f == 0 else R(Sm,16)}')
    for i in range(4): a(f'v_mul_f32 v{Sm+i}, s{sC}, v{Sm+i}')
    a(f"""
    v_max3_f32 v{m0}, v{m0}, v{Sm}, v{Sm+1}
    v_max3_f32 v{m0}, v{m0}, v{Sm+2}, v{Sm+3}
    v_mov_b32 v{m1}, v{m0}
    v_permlane32_swap_b32 v{m0}, v{m1}
    v_max_f32 v{m0}, v{m0}, v{m1}
    """)
    for r in range(20): a(f'v_sub_f32 v{Sx+r}, v{Sx+r}, v{m0}')
    for r in range(20): a(f'v_exp_f32 v{Sx+r}, v{Sx+r}')
    a(f'v_add_f32 v{m0}, v{Sx}, v{Sx+1}\nv_add_f32 v{m1}, v{Sx+2}, v{Sx+3}')
    for r in range(4, 20, 2): a(f'v_add_f32 v{m0}, v{m0}, v{Sx+r}\nv_add_f32 v{m1}, v{m1}, v{Sx+r+1}')
    a(f"""
    v_add_f32 v{m0}, v{m0}, v{m1}
    v_mov_b32 v{m1}, v{m0}
    v_permlane32_swap_b32 v{m0}, v{m1}
    v_add_f32 v{m0}, v{m0}, v{m1}
    v_rcp_f32 v{m0}, v{m0}
    """)
    for r in range(20): a(f'v_mul_f32 v{Sx+r}, v{m0}, v{Sx+r}')
    for r in range(0, 20, 2): a(f'v_cvt_pk_bf16_f32 v{Px+r//2}, v{Sx+r}, v{Sx+r+1}')
    a('s_waitcnt vmcnt(0)')
    for e in range(4): a(f'v_mfma_f32_32x32x8_bf16 {R(O[e],16)}, {R(VMr+2*e,2)}, {R(Pm,2)}, 0')
    a(f's_add_u32 s{sA}, s{sA}, {L.OA}\ns_add_u32 s{sB}, s{sA}, 4096')
    def out(e):
        for r in range(0, 16, 2): a(f'v_cvt_pk_bf16_f32 v{PKo+8*e+r//2}, v{O[e]+r}, v{O[e]+r+1}')
        for G in range(2): a(f'buffer_store_dwordx4 {R(PKo+8*e+4*G,4)}, v{vL16}, {WS}, s{sA if e < 2 else sB} offen offset:{2048*(e&1) + 1024*G} sc1')
    for e in range(4):
        for G in range(2): a(f'v_mfma_f32_32x32x16_bf16 {R(O[e],16)}, {R(Vr+8*e+4*G,4)}, {R(Px+4*G,4)}, {R(O[e],16)}')
        if e >= 1: out(e - 1)
    out(3)
    a('s_waitcnt vmcnt(0)'); signal(a, sSig, sNeed)
    a(f's_add_u32 s{sS}, s{sS}, 2\ns_cmp_lt_u32 s{sS}, 64\ns_cbranch_scc1 {loop}\ns_waitcnt vmcnt(0)\ns_barrier')

def wo_reg(f, ct):
    i = ct * 32 + f
    return 256 + 4 * i if i < 64 else 128 + 4 * (i - 64)

def wo_load_weights(a):
    t = 4
    a(f"""
    v_lshrrev_b32 v{t}, 1, v{vLane}
    v_mul_u32_u24 v{t}, 1152, v{t}
    v_and_b32 v{t+1}, 1, v{vLane}
    v_lshl_add_u32 v{t}, v{t+1}, 4, v{t}
    v_lshrrev_b32 v{t+2}, 5, v{vLane}
    v_bfe_u32 v{t+3}, v{vLane}, 4, 1
    v_lshl_add_u32 v{t+2}, v{t+2}, 2, v{t+3}
    v_bfe_u32 v{t+3}, v{vLane}, 2, 2
    v_lshl_add_u32 v{t+2}, v{t+2}, 2, v{t+3}
    v_and_b32 v{t+3}, 3, v{vLane}
    v_lshlrev_b32 v{t+3}, 3, v{t+3}
    v_lshl_add_u32 v{t+2}, v{t+2}, 5, v{t+3}
    s_lshl_b32 s{sB}, s{sW}, 15
    v_add_u32 v{t+2}, s{sB}, v{t+2}
    """)
    for ct in range(3):
        lp = a.lab('L_wol')
        a(f"""
        s_mul_i32 s{sA}, s{sW}, {1024*1152}
        s_mul_i32 s{sC}, s{sId}, 96
        s_add_u32 s{sA}, s{sA}, s{sC}
        s_add_u32 s{sA}, s{sA}, {32*ct}
        s_mov_b32 s{sM0}, s{sB}
        s_mov_b32 s{sC}, 32
        {lp}:
        s_mov_b32 m0, s{sM0}
        s_add_u32 s{sM0}, s{sM0}, 1024
        buffer_load_dwordx4 v{t}, s[{sT}:{sT+3}], s{sA} offen lds
        s_add_u32 s{sA}, s{sA}, {32*1152}
        s_sub_u32 s{sC}, s{sC}, 1
        s_cmp_lg_u32 s{sC}, 0
        s_cbranch_scc1 {lp}
        s_waitcnt vmcnt(0)
        """)
        for f in range(32):
            for hf in range(2): a(f'ds_read_b64_tr_b16 {R(wo_reg(f,ct)+2*hf,2)}, v{t+2} offset:{f*1024 + 256*hf}')
            if f % 4 == 3: a('s_waitcnt lgkmcnt(0)')
    a('s_barrier')

def wo_phase(a, ex):
    ACC = 4; LB = [16 + 4 * i for i in range(26)]; vOa = 120; vRow = 121; RES = 122; vWr = 124; vRd = 125
    NB = len(LB)
    a(f"""
    v_lshlrev_b32 v{vFa}, 2, v{vLane}
    v_and_b32 v{vRow}, 15, v{vLane}
    v_lshrrev_b32 v{vWr}, 4, v{vLane}
    s_lshl_b32 s{sTmp}, s{sTeam}, 4
    v_add_u32 v{vRow}, s{sTmp}, v{vRow}
    v_lshlrev_b32 v{vOa}, 4, v{vRow}
    v_lshl_add_u32 v{vOa}, v{vWr}, 9, v{vOa}
    v_mul_u32_u24 v{vRow}, 1152, v{vRow}
    v_lshl_add_u32 v{vRow}, v{vWr}, 3, v{vRow}
    s_mul_i32 s{sTmp}, s{sW}, 3072
    v_add_u32 v{vWr}, s{sTmp}, v{vL16}
    s_lshl_b32 s{sTmp}, s{sW}, 10
    v_add_u32 v{vRd}, s{sTmp}, v{vL16}
    s_mul_i32 s{sOut}, s{sId}, 96
    s_lshl_b32 s{sTmp}, s{sW}, 5
    s_add_u32 s{sOut}, s{sOut}, s{sTmp}
    s_cmp_eq_u32 s{sW}, 3
    s_cselect_b32 s{sOut}, {OOB}, s{sOut}
    s_mov_b32 s{sS}, s{sPar}
    s_lshl_b32 s{sPoll}, s{sPar}, 7
    s_lshl_b32 s{sTmp}, s{sW}, 5
    s_add_u32 s{sPoll}, s{sPoll}, s{sTmp}
    s_add_u32 s{sPoll}, s{sPoll}, {L.F_ATT}
    s_mul_i32 s{sSig}, s{sTeam}, 12
    s_add_u32 s{sSig}, s{sSig}, s{sId}
    s_lshl_b32 s{sTmp}, s{sPar}, 5
    s_add_u32 s{sSig}, s{sSig}, s{sTmp}
    s_lshl_b32 s{sSig}, s{sSig}, 2
    s_add_u32 s{sSig}, s{sSig}, {L.F_WO}
    s_cmp_eq_u32 s{sW}, 0
    s_cselect_b32 s{sSig}, s{sSig}, {OOB}
    """)
    loop = a.lab('L_wo')
    a(f'{loop}:\ns_add_u32 s{sNeed}, s{sS}, s{sLv}\ns_add_u32 s{sNeed}, s{sNeed}, 1')
    poll(a, ex, 0xff, vFa, sPoll, sNeed, sleep=1)
    a(f"""
    s_lshl_b32 s{sA}, s{sS}, 18
    s_lshl_b32 s{sTmp}, s{sW}, 16
    s_add_u32 s{sA}, s{sA}, s{sTmp}
    s_add_u32 s{sA}, s{sA}, s{sLay}
    s_add_u32 s{sA}, s{sA}, {L.OA}
    s_mul_i32 s{sD}, s{sS}, 36864
    s_add_u32 s{sD}, s{sD}, s{sOut}
    """)
    vm = Q(a, 'vmcnt', 63)
    def ld(f):
        vm.issue(f, f'buffer_load_dwordx4 {R(LB[f%NB],4)}, v{vOa}, {WS}, s{sA} offen offset:{2048*(f&1)} sc1')
        if f & 1: a(f's_add_u32 s{sA}, s{sA}, 4096')
    for f in range(NB): ld(f)
    for f in range(32):
        vm.wait(f)
        for ct in range(3):
            a(f'v_mfma_f32_16x16x32_bf16 {R(ACC+4*ct,4)}, {R(wo_reg(f,ct),4)}, {R(LB[f%NB],4)}, {"0" if f == 0 else R(ACC+4*ct,4)}')
        if f + NB < 32: ld(f + NB)
        if f + NB == 32: vm.issue('r', f'buffer_load_dwordx2 {R(RES,2)}, v{vRow}, s[{sX}:{sX+3}], s{sD} offen sc1')
    for ct in range(3): a(f'ds_write_b128 v{vWr}, {R(ACC+4*ct,4)} offset:{1024*ct}')
    a('s_waitcnt lgkmcnt(0)\ns_barrier')
    for ww in range(4): a(f'ds_read_b128 {R(16+4*ww,4)}, v{vRd} offset:{3072*ww}')
    a('s_waitcnt vmcnt(0) lgkmcnt(0)')
    for i in range(4): a(f'v_add_f32 v{16+i}, v{16+i}, v{20+i}\nv_add_f32 v{24+i}, v{24+i}, v{28+i}')
    for i in range(4): a(f'v_add_f32 v{16+i}, v{16+i}, v{24+i}')
    residual_add(a, 16, RES, 32, 2, 36)
    a(f'buffer_store_dwordx2 {R(32,2)}, v{vRow}, s[{sY}:{sY+3}], s{sD} offen sc1\ns_waitcnt vmcnt(0)\ns_barrier')
    signal(a, sSig, sNeed)
    a(f's_add_u32 s{sS}, s{sS}, 2\ns_cmp_lt_u32 s{sS}, 64\ns_cbranch_scc1 {loop}\ns_waitcnt vmcnt(0)\ns_barrier')

def ba_phase(a, ex):
    K0 = lambda k: 4 + 4 * k
    K1 = 68
    def Vf(k, G):
        i = 2 * k + G
        return 256 + 144 + 4 * i if i < 28 else 84 + 4 * (i - 28)
    S = [100, 116]; P = 132; O = 140; CI = 156; Q0 = 172; QW = 176; QN = 188; T = 196
    vH = 194; vOut = 195; vWr = 220; vRd = 221; vLr = 222
    Q1 = lambda p: QW + {2: 0, 0: 2, 3: 6, 1: 8}[p]
    a(f"""
    v_lshlrev_b32 v{vFa}, 2, v{vLane}
    v_mov_b32 v{T}, {OOB}
    v_cmp_gt_u32 vcc, 32, v{vLane}
    v_cndmask_b32 v{vH}, v{T}, v{vFa}, vcc
    v_and_b32 v{T+1}, 31, v{vLane}
    v_lshrrev_b32 v{T+2}, 5, v{vLane}
    v_mul_u32_u24 v{vOut}, 1152, v{T+1}
    v_lshl_add_u32 v{vOut}, v{T+2}, 3, v{vOut}
    v_lshlrev_b32 v{vLr}, 4, v{T+1}
    s_mul_i32 s{sTmp}, s{sW}, 3072
    v_add_u32 v{vWr}, s{sTmp}, v{vL16}
    s_lshl_b32 s{sTmp}, s{sW}, 10
    s_min_u32 s{sTmp}, s{sTmp}, 2048
    v_add_u32 v{vRd}, s{sTmp}, v{vL16}
    v_mul_u32_u24 v{T+3}, 128, v{vLane}
    v_mov_b32 v{vFa}, v{T+3}
    s_lshl_b32 s{sPoll}, s{sJ}, 2
    s_add_u32 s{sPoll}, s{sPoll}, {L.F_BQ}
    s_mul_i32 s{sSig}, s{sI}, 96
    s_lshl_b32 s{sTmp}, s{sW}, 5
    s_add_u32 s{sSig}, s{sSig}, s{sTmp}
    s_add_u32 s{sSig}, s{sSig}, s{sJ}
    s_lshl_b32 s{sSig}, s{sSig}, 2
    s_add_u32 s{sSig}, s{sSig}, {L.F_BA}
    s_mul_i32 s{sOut}, s{sJ}, 36
    s_lshl_b32 s{sTmp}, s{sW}, 4
    s_add_u32 s{sOut}, s{sOut}, s{sTmp}
    s_add_u32 s{sOut}, s{sOut}, s{sLay}
    s_add_u32 s{sOut}, s{sOut}, {L.OB}
    s_cmp_eq_u32 s{sW}, 3
    s_cselect_b32 s{sSig}, {OOB}, s{sSig}
    s_mov_b32 s{sSigPrev}, {OOB}
    s_lshl_b32 s{sTmp}, s{sJ}, 6
    s_add_u32 s{sTmp+1}, s{sTmp}, s{sW}
    s_mul_i32 s{sA}, s{sTmp+1}, 1152
    s_add_u32 s{sA}, s{sA}, s{sLay}
    s_add_u32 s{sA}, s{sA}, {L.KB}
    s_lshl_b32 s{sB}, s{sTmp+1}, 11
    s_add_u32 s{sB}, s{sB}, s{sLay}
    s_add_u32 s{sB}, s{sB}, {L.VB}
    s_add_u32 s{sTmp}, s{sTmp}, s{sI}
    s_mul_i32 s{sSrc}, s{sTmp}, 1152
    s_add_u32 s{sSrc}, s{sSrc}, s{sLay}
    s_add_u32 s{sSrc}, s{sSrc}, {L.QB}
    s_mul_i32 s{sMul}, s{sN}, 1152
    s_mov_b32 s{sS}, s{sI}
    s_mov_b32 s{sDel}, 12288
    s_mov_b32 s{sFlag}, 0
    """)
    for i in range(12): a(f'v_mov_b32 v{QW+i}, 0')
    for i in range(16): a(f'v_mov_b32 v{CI+i}, 0')
    def qload(): a(f'buffer_load_dwordx4 {R(QN,4)}, v{vL16}, {WS}, s{sSrc} offen sc1\nbuffer_load_dword v{QN+4}, v{vH}, {WS}, s{sSrc} offen offset:1024 sc1\ns_add_u32 s{sSrc}, s{sSrc}, s{sMul}')
    for k0, k1 in ((0, 14), (14, 16)):
        a(f's_add_u32 s{sNeed}, s{sLv}, {4*k1 - 1}')
        poll(a, ex, 0x3f, vFa, sPoll, sNeed, sleep=4 if k0 == 0 else 1)
        if k0 == 0: qload()
        for k in range(k0, k1):
            a(f"""
            buffer_load_dwordx4 {R(K0(k),4)}, v{vL16}, {WS}, s{sA} offen sc1
            buffer_load_dword v{K1+k}, v{vH}, {WS}, s{sA} offen offset:1024 sc1
            buffer_load_dwordx4 {R(Vf(k,0),4)}, v{vL16}, {WS}, s{sB} offen sc1
            buffer_load_dwordx4 {R(Vf(k,1),4)}, v{vL16}, {WS}, s{sB} offen offset:1024 sc1
            s_add_u32 s{sA}, s{sA}, {4*1152}
            s_add_u32 s{sB}, s{sB}, {4*2048}
            """)
    loop = a.lab('L_ba'); redo = a.lab('L_baredo'); fb = a.lab('L_bafb'); okl = a.lab('L_baok')
    a(f's_waitcnt vmcnt(0)\n{loop}:')
    a(f'v_mov_b64 {R(Q0,2)}, {R(QN,2)}\nv_mov_b64 {R(Q0+2,2)}, {R(QN+2,2)}\nv_mov_b32 v{QW+2}, v{QN+4}\nv_mov_b32 v{QW+9}, v{QN+4}')
    qload()
    a(f'{redo}:')
    M = 'v_mfma_f32_32x32x16_bf16'
    def qk0(k): return f'{M} {R(S[k&1],16)}, {R(K0(k),4)}, {R(Q0,4)}, {R(CI,16)}'
    def qk1(k): return f'{M} {R(S[k&1],16)}, {R(K1+(k&~3),4)}, {R(Q1(k&3),4)}, {R(S[k&1],16)}'
    def pv(k, G): return f'{M} {R(O,16)}, {R(Vf(k,G),4)}, {R(P+4*G,4)}, {"0" if (k, G) == (0, 0) else R(O,16)}'
    a(qk0(0)); a(qk1(0))
    for k in range(16):
        s_ = S[k & 1]
        ms = [qk0(k + 1) if k < 15 else None, qk1(k + 1) if k < 15 else None, pv(k - 1, 1) if k > 0 else None, pv(k, 0)]
        for g in range(4):
            if ms[g]: a(ms[g])
            for i in range(4): a(f'v_exp_f32 v{s_+4*g+i}, v{s_+4*g+i}')
            a(f'v_cvt_pk_bf16_f32 v{P+2*g}, v{s_+4*g}, v{s_+4*g+1}\nv_cvt_pk_bf16_f32 v{P+2*g+1}, v{s_+4*g+2}, v{s_+4*g+3}')
        if k == 5:
            a('s_waitcnt vmcnt(0)'); signal(a, sSigPrev, sFv)
    a(pv(15, 1))
    for g in range(3): a(f'ds_write_b128 v{vWr}, {R(O+4*g,4)} offset:{1024*g}')
    a('s_waitcnt lgkmcnt(0)\ns_barrier')
    for ww in range(4): a(f'ds_read_b32 v{T+16+ww}, v{vLr} offset:{3072*ww + 2048 + 8}')
    for ww in range(4): a(f'ds_read_b128 {R(T+4*ww,4)}, v{vRd} offset:{3072*ww}')
    lo, hi = fbits(2.0 ** -60), fbits(2.0 ** 60)
    a(f"""
    v_add_u32 v{vWr}, s{sDel}, v{vWr}
    v_add_u32 v{vRd}, s{sDel}, v{vRd}
    v_add_u32 v{vLr}, s{sDel}, v{vLr}
    s_sub_u32 s{sDel}, 0, s{sDel}
    s_mul_i32 s{sD}, s{sS}, 36864
    s_add_u32 s{sD}, s{sD}, s{sOut}
    s_waitcnt lgkmcnt(4)
    v_add_f32 v{T+16}, v{T+16}, v{T+17}
    v_add_f32 v{T+18}, v{T+18}, v{T+19}
    v_add_f32 v{T+16}, v{T+16}, v{T+18}
    v_subrev_u32 v{T+17}, {hex(lo)}, v{T+16}
    v_rcp_f32 v{T+16}, v{T+16}
    v_cmp_lt_u32 vcc, {hex(hi - lo)}, v{T+17}
    s_waitcnt lgkmcnt(0)
    s_cbranch_vccnz {fb}
    {okl}:
    """)
    for i in range(4): a(f'v_add_f32 v{T+i}, v{T+i}, v{T+4+i}\nv_add_f32 v{T+8+i}, v{T+8+i}, v{T+12+i}')
    for i in range(4): a(f'v_add_f32 v{T+i}, v{T+i}, v{T+8+i}')
    for i in range(4): a(f'v_mul_f32 v{T+i}, v{T+16}, v{T+i}')
    small = a.lab('L_basm'); sd = a.lab('L_basd'); nz = a.lab('L_banz')
    a(f"""
    v_cvt_pk_bf16_f32 v{T}, v{T}, v{T+1}
    v_cvt_pk_bf16_f32 v{T+1}, v{T+2}, v{T+3}
    s_cmp_ge_u32 s{sW}, 2
    s_cbranch_scc1 {small}
    buffer_store_dwordx2 {R(T,2)}, v{vOut}, {WS}, s{sD} offen sc1
    s_branch {sd}
    {small}:
    s_cmp_eq_u32 s{sW}, 3
    s_cbranch_scc1 {sd}
    s_mov_b32 exec_hi, 0
    buffer_store_dword v{T}, v{vOut}, {WS}, s{sD} offen sc1
    s_mov_b64 exec, -1
    {sd}:
    s_add_u32 s{sFv}, s{sS}, s{sLv}
    s_add_u32 s{sFv}, s{sFv}, 1
    s_mov_b32 s{sSigPrev}, s{sSig}
    s_cmp_eq_u32 s{sFlag}, 0
    s_cbranch_scc1 {nz}
    s_mov_b32 s{sFlag}, 0
    """)
    for i in range(16): a(f'v_mov_b32 v{CI+i}, 0')
    end = a.lab('L_baend')
    a(f'{nz}:\ns_add_u32 s{sS}, s{sS}, s{sN}\ns_cmp_lt_u32 s{sS}, 64\ns_cbranch_scc1 {loop}\ns_waitcnt vmcnt(0)')
    signal(a, sSig, sFv)
    a(f's_branch {end}')
    a(f'{fb}:\ns_cmp_lg_u32 s{sFlag}, 0\ns_cbranch_scc1 {okl}\ns_mov_b32 s{sFlag}, 1\nv_mov_b32 v{T}, 0xff800000')
    for k in range(16):
        a(qk0(k)); a(qk1(k))
        for r in range(0, 16, 2): a(f'v_max3_f32 v{T}, v{T}, v{S[k&1]+r}, v{S[k&1]+r+1}')
    a(f"""
    v_mov_b32 v{T+1}, v{T}
    v_permlane32_swap_b32 v{T}, v{T+1}
    v_max_f32 v{T}, v{T}, v{T+1}
    s_lshl_b32 s{sTmp}, s{sW}, 2
    v_add_u32 v{T+1}, s{sTmp}, v{vL16}
    ds_write_b32 v{T+1}, v{T} offset:24576
    s_waitcnt lgkmcnt(0)
    s_barrier
    ds_read_b128 {R(T,4)}, v{vL16} offset:24576
    s_waitcnt lgkmcnt(0)
    v_max_f32 v{T}, v{T}, v{T+1}
    v_max3_f32 v{T}, v{T}, v{T+2}, v{T+3}
    """)
    for i in range(16): a(f'v_sub_f32 v{CI+i}, 0, v{T}')
    a(f's_branch {redo}\n{end}:\ns_waitcnt vmcnt(0)\ns_barrier')

C_PT, C_PN, C_WO, C_AF, C_BT, C_BN, C_SP = range(7)
sCls = 66; sM = 67; sB1 = 68; sB2 = 69

def worker_program(a):
    ex = 'L_wexit'
    base_regs(a)
    lab = {c: f'L_init{c}' for c in range(7)}
    X = sTmp; r5 = sTmp + 1
    a(f"""
    s_lshr_b32 s{X}, s{sRole}, 5
    s_and_b32 s{r5}, s{sRole}, 31
    s_and_b32 s{sPar}, s{X}, 1
    s_mov_b32 s{sId}, s{r5}
    s_mov_b32 s{sTeam}, 0
    s_mov_b32 s{sM}, 0
    s_mov_b32 s{sB1}, -1
    s_sub_u32 s{sB2}, s{sRole}, 32
    s_cmp_ge_u32 s{X}, 6
    s_cbranch_scc1 L_cls67
    s_cmp_ge_u32 s{X}, 4
    s_cbranch_scc1 L_cls45
    s_cmp_eq_u32 s{X}, 3
    s_cselect_b32 s{sB1}, s{r5}, -1
    s_cselect_b32 s{sM}, 0, s{X}
    s_cmp_eq_u32 s{X}, 2
    s_cbranch_scc1 {lab[C_PN]}
    s_branch {lab[C_PT]}
    L_cls45:
    s_lshl_b32 s{sB2}, s{sPar}, 4
    s_add_u32 s{sB2}, s{sB2}, s{r5}
    s_add_u32 s{sB2}, s{sB2}, 160
    s_cmp_lt_u32 s{r5}, 16
    s_cselect_b32 s{sB2}, s{sB2}, -1
    s_cmp_lt_u32 s{r5}, 24
    s_cbranch_scc1 {lab[C_WO]}
    s_branch {lab[C_AF]}
    L_cls67:
    s_sub_u32 s{sB1}, s{sRole}, 160
    s_sub_u32 s{sB2}, s{sRole}, 96
    s_cmp_ge_u32 s{r5}, 24
    s_cbranch_scc1 {lab[C_SP]}
    s_lshr_b32 s{sM}, s{r5}, 3
    s_and_b32 s{sId}, s{r5}, 7
    s_lshl_b32 s{sId}, s{sId}, 2
    s_add_u32 s{sId}, s{sId}, s{sW}
    s_cmp_ge_u32 s{r5}, 16
    s_cbranch_scc1 {lab[C_BN]}
    s_branch {lab[C_BT]}
    """)
    for c, kind in ((C_PT, 'T'), (C_PN, 'N')):
        a(f'{lab[c]}:\ns_mov_b32 s{sCls}, {c}')
        if c == C_PT:
            a(f's_load_dwordx4 s[{sTmp+2}:{sTmp+5}], s[0:1], 16\ns_waitcnt lgkmcnt(0)\ns_cmp_eq_u32 s{sM}, 0\ns_cselect_b32 s{sTmp+6}, s{sTmp+2}, s{sTmp+4}\ns_cselect_b32 s{sTmp+7}, s{sTmp+3}, s{sTmp+5}')
            srd(a, sT, sTmp + 6, 576 * 8192)
        else: load_ptr_srd(a, sT, 32, 576 * 8192)
        a(f's_lshl_b32 s{sA}, s{sId}, 8\ns_lshl_b32 s{sTmp}, s{sW}, 6\ns_add_u32 s{sA}, s{sA}, s{sTmp}')
        gemm_load_weights(a, kind, 8192)
        a('s_branch L_layer')
    for c, kind in ((C_BT, 'BT'), (C_BN, 'BN')):
        a(f'{lab[c]}:\ns_mov_b32 s{sCls}, {c}')
        load_ptr_srd(a, sT, 64, 576 * 3456)
        a(f's_mul_i32 s{sA}, s{sM}, 1152\ns_mul_i32 s{sTmp}, s{sId}, 36\ns_add_u32 s{sA}, s{sA}, s{sTmp}')
        gemm_load_weights(a, kind, 3456)
        a('s_branch L_layer')
    a(f'{lab[C_WO]}:\ns_mov_b32 s{sCls}, {C_WO}\ns_cmp_ge_u32 s{sId}, 12\ns_cselect_b32 s{sTeam}, 1, 0\ns_mul_i32 s{sTmp}, s{sTeam}, 12\ns_sub_u32 s{sId}, s{sId}, s{sTmp}')
    load_ptr_srd(a, sT, 40, 4096 * 1152)
    wo_load_weights(a)
    a('s_branch L_layer')
    a(f"""
    {lab[C_AF]}:
    s_mov_b32 s{sCls}, {C_AF}
    s_sub_u32 s{sTmp}, s{sId}, 24
    s_lshl_b32 s{sId}, s{sTmp}, 2
    s_add_u32 s{sId}, s{sId}, s{sW}
    s_lshl_b32 s{sTmp+1}, s{sPar}, 3
    s_add_u32 s{sTmp}, s{sTmp}, s{sTmp+1}
    s_mul_i32 s{sTeam}, s{sTmp}, 52
    s_lshr_b32 s{sTeam}, s{sTeam}, 8
    s_mul_i32 s{sTmp+1}, s{sTeam}, 5
    s_sub_u32 s{sTmp}, s{sTmp}, s{sTmp+1}
    s_lshl_b32 s{sM}, s{sTmp}, 2
    s_add_u32 s{sM}, s{sM}, s{sW}
    """)
    load_ptr_srd(a, sT, 72, 576 * 1152)
    a(f's_lshl_b32 s{sA}, s{sM}, 6')
    gemm_load_weights(a, 'FO', 1152)
    a(f's_branch L_layer\n{lab[C_SP]}:\ns_mov_b32 s{sCls}, {C_SP}')
    a('L_layer:')
    base_regs(a)
    for c in range(6): a(f's_cmp_eq_u32 s{sCls}, {c}\ns_cbranch_scc1 L_run{c}')
    a('s_branch L_second')
    def xin(s):
        a(f"""
        s_load_dwordx2 s[{sTmp+6}:{sTmp+7}], s[0:1], 0
        s_add_u32 s{sTmp+4}, s{sWS}, {L.X2}
        s_addc_u32 s{sTmp+5}, s{sWS+1}, 0
        s_waitcnt lgkmcnt(0)
        s_cmp_eq_u32 s{sLv}, 0
        s_cselect_b32 s{sTmp+6}, s{sTmp+6}, s{sTmp+4}
        s_cselect_b32 s{sTmp+7}, s{sTmp+7}, s{sTmp+5}
        """)
        srd(a, s, sTmp + 6, L.XBYTES)
    for c, kind in ((C_PT, 'T'), (C_PN, 'N')):
        a(f'L_run{c}:'); xin(sX)
        a(f"""
        s_sub_u32 s{sKnown}, 64, s{sLv}
        s_mov_b32 s{sS}, 0
        s_mov_b32 s{sStride}, 1
        s_mov_b32 s{sMul}, 262144
        s_mov_b32 s{sPoll}, {L.F_FO}
        s_lshl_b32 s{sOut}, s{sId}, 13
        s_lshl_b32 s{sTmp}, s{sW}, 11
        s_add_u32 s{sOut}, s{sOut}, s{sTmp}
        s_add_u32 s{sOut}, s{sOut}, s{sLay}
        s_lshl_b32 s{sSig}, s{sId}, 5
        s_lshl_b32 s{sTmp}, s{sM}, 2
        s_add_u32 s{sSig}, s{sSig}, s{sTmp}
        s_add_u32 s{sSig}, s{sSig}, s{sW}
        s_lshl_b32 s{sSig}, s{sSig}, 2
        s_add_u32 s{sSig}, s{sSig}, {L.F_HEAD}
        s_mov_b32 s{sFv}, 0
        """)
        if c == C_PT:
            a(f's_cmp_eq_u32 s{sM}, 0\ns_cselect_b32 s{sTmp}, {L.QX}, {L.KX}\ns_cselect_b32 s{sC}, 1.0, {fbits(SCALE_LOG2E)}\ns_add_u32 s{sOut}, s{sOut}, s{sTmp}')
        else: a(f's_add_u32 s{sOut}, s{sOut}, {L.VX}')
        gemm_phase(a, kind, ex, True)
        a('s_branch L_second')
    for c, kind in ((C_BT, 'BT'), (C_BN, 'BN')):
        a(f'L_run{c}:'); ws_srd(a, sX, sLay, L.X1, L.XBYTES)
        mul = 1152 if c == C_BT else 2048
        a(f"""
        s_mov_b32 s{sS}, s{sPar}
        s_mov_b32 s{sStride}, 2
        s_mov_b32 s{sMul}, {mul}
        s_lshl_b32 s{sPoll}, s{sPar}, 7
        s_add_u32 s{sPoll}, s{sPoll}, {L.F_WO}
        s_mul_i32 s{sOut}, s{sId}, {64*mul}
        s_add_u32 s{sOut}, s{sOut}, s{sLay}
        s_mul_i32 s{sSig}, s{sPar}, 3
        s_add_u32 s{sSig}, s{sSig}, s{sM}
        s_lshl_b32 s{sSig}, s{sSig}, 5
        s_add_u32 s{sSig}, s{sSig}, s{sId}
        s_lshl_b32 s{sSig}, s{sSig}, 2
        s_add_u32 s{sSig}, s{sSig}, {L.F_BQ}
        """)
        if c == C_BT:
            a(f's_mul_i32 s{sTmp}, s{sM}, {L.KB - L.QB}\ns_add_u32 s{sOut}, s{sOut}, s{sTmp}\ns_add_u32 s{sOut}, s{sOut}, {L.QB}\ns_cmp_eq_u32 s{sM}, 0\ns_cselect_b32 s{sC}, 1.0, {fbits(SCALE_B)}')
        else: a(f's_add_u32 s{sOut}, s{sOut}, {L.VB}')
        gemm_phase(a, kind, ex, False)
        a('s_branch L_second')
    a(f'L_run{C_WO}:'); xin(sX); ws_srd(a, sY, sLay, L.X1, L.XBYTES)
    wo_phase(a, ex)
    a('s_branch L_second')
    a(f'L_run{C_AF}:')
    att_phase(a, ex)
    a(f's_cmp_ge_u32 s{sTeam}, 3\ns_cbranch_scc1 L_next')
    ws_srd(a, sX, sLay, L.OB, L.XBYTES); ws_srd(a, sT, sLay, L.X1, L.XBYTES)
    a(f"""
    s_load_dwordx2 s[{sTmp+6}:{sTmp+7}], s[0:1], 80
    s_add_u32 s{sTmp+4}, s{sWS}, {L.X2}
    s_addc_u32 s{sTmp+5}, s{sWS+1}, 0
    s_waitcnt lgkmcnt(0)
    s_cmp_eq_u32 s{sLv}, 0
    s_cselect_b32 s{sTmp+6}, s{sTmp+4}, s{sTmp+6}
    s_cselect_b32 s{sTmp+7}, s{sTmp+5}, s{sTmp+7}
    s_cselect_b32 s{sN}, 3, 6
    s_cselect_b32 s{sA}, 86, 43
    """)
    srd(a, sY, sTmp + 6, L.XBYTES)
    a(f"""
    s_mov_b32 s{sS}, s{sTeam}
    s_mov_b32 s{sStride}, 3
    s_mov_b32 s{sMul}, 36864
    s_lshl_b32 s{sOut}, s{sM}, 6
    s_lshl_b32 s{sSig}, s{sTeam}, 5
    s_add_u32 s{sSig}, s{sSig}, s{sM}
    s_lshl_b32 s{sSig}, s{sSig}, 2
    s_add_u32 s{sSig}, s{sSig}, {L.F_FO}
    s_cmp_ge_u32 s{sM}, 18
    s_cselect_b32 s{sOut}, {OOB}, s{sOut}
    s_cselect_b32 s{sSig}, {OOB}, s{sSig}
    """)
    gemm_phase(a, 'FO', ex, False)
    a(f"""
    s_branch L_next
    L_second:
    s_cmp_eq_u32 s{sLv}, 0
    s_cselect_b32 s{sTmp}, s{sB1}, s{sB2}
    s_cselect_b32 s{sN}, 3, 6
    s_cselect_b32 s{sTmp+1}, 9, 10
    s_cmp_eq_u32 s{sTmp}, -1
    s_cbranch_scc1 L_next
    s_mul_i32 s{sJ}, s{sTmp}, 171
    s_lshr_b32 s{sJ}, s{sJ}, s{sTmp+1}
    s_mul_i32 s{sI}, s{sJ}, s{sN}
    s_sub_u32 s{sI}, s{sTmp}, s{sI}
    """)
    ba_phase(a, ex)
    a(f"""
    L_next:
    s_add_u32 s{sLv}, s{sLv}, 64
    s_add_u32 s{sLay}, s{sLay}, {L.LSTRIDE}
    s_cmp_lt_u32 s{sLv}, 128
    s_cbranch_scc1 L_layer
    {ex}:
    s_endpgm
    """)
```

```python
import sys, re
sys.path.insert(0, 'gen')
from asmdsl import *
import layout as L, chain as C, workers as W

NAME = 'interleave_layers__memory_aug_recurrent_mem_tr__softmax_full_mha__prompt'
BUDGET = 1500000

def prologue(a, force=None):
    a(f'''
    s_cmp_ge_u32 s2, 256
    s_cbranch_scc1 L_exit0
    s_load_dwordx4 s[4:7], s[0:1], 88
    s_getreg_b32 s20, hwreg(HW_REG_XCC_ID, 0, 4)
    v_lshrrev_b32 v1, 6, v0
    v_and_b32 v2, 63, v0
    v_readfirstlane_b32 s{C.sW}, v1
    s_mov_b32 s{C.sBud}, {BUDGET}
    s_mov_b32 s{C.sLv}, 0
    s_mov_b32 s{C.sLay}, 0
    s_waitcnt lgkmcnt(0)
    ''')
    if force == 'spread': a('s_lshr_b32 s20, s2, 4\ns_and_b32 s20, s20, 15')
    C.srd(a, C.sWS, 6, L.WS_BYTES)
    C.srd(a, C.sT, 4, 256)
    C.srd(a, W.sY, 6, L.WS_BYTES)
    D = f's[{C.sT}:{C.sT+3}]'
    a(f'''
    s_cmp_lg_u32 s{C.sW}, 0
    s_cbranch_scc1 L_p1
    s_lshl_b32 s21, s20, 2
    v_mov_b32 v3, 1
    v_mov_b32 v4, 0
    v_lshlrev_b32 v5, 2, v2
    s_lshl_b32 s22, s2, 5
    s_add_u32 s22, s22, {L.FLAGS}
    s_mov_b64 exec, 1
    buffer_atomic_add v3, v4, {D}, s21 offen sc0
    s_mov_b64 exec, 0xff
    buffer_store_dword v4, v5, s[{C.sWS}:{C.sWS+3}], s22 offen sc1
    s_mov_b64 exec, 1
    s_waitcnt vmcnt(1)
    ds_write_b32 v4, v3
    s_waitcnt lgkmcnt(0)
    s_mov_b64 exec, -1
    L_p1:
    s_barrier
    v_mov_b32 v4, 0
    ds_read_b32 v3, v4
    s_waitcnt lgkmcnt(0)
    v_readfirstlane_b32 s{C.sH}, v3
    s_barrier
    s_cmp_lg_u32 s{C.sW}, 0
    s_cbranch_scc1 L_p2
    v_mov_b32 v3, 1
    s_mov_b64 exec, 1
    s_waitcnt vmcnt(0)
    buffer_atomic_add v3, v4, {D}, 0 offen offset:64
    s_mov_b64 exec, -1
    L_p2:
    s_cmp_lg_u32 s20, 0
    s_cbranch_scc1 L_p3
    s_cmp_lt_u32 s{C.sH}, 32
    s_cbranch_scc1 L_chain
    L_p3:
    v_lshlrev_b32 v5, 2, v2
    L_p4:
    buffer_load_dword v3, v5, {D}, 0 offen sc1
    s_sub_u32 s{C.sBud}, s{C.sBud}, 1
    s_cbranch_scc1 L_exit0
    s_waitcnt vmcnt(0)
    v_readlane_b32 s21, v3, 16
    s_cmp_lt_u32 s21, 256
    s_cbranch_scc0 L_p5
    s_sleep 4
    s_branch L_p4
    L_p5:
    buffer_load_dword v3, v5, {D}, 0 offen sc1
    s_waitcnt vmcnt(0)
    ''')
    for i in range(15):
        a(f'v_readlane_b32 s21, v3, {i}\ns_cmp_gt_u32 s20, {i}\ns_cselect_b32 s21, s21, 0\ns_add_u32 s{C.sH}, s{C.sH}, s21')
    C.srd(a, W.sX, 6, L.WS_BYTES)
    a(f'''
    s_cmp_lt_u32 s{C.sH}, 32
    s_cbranch_scc1 L_chain
    s_branch L_worker
    L_exit0:
    s_endpgm
    ''')

def chain_program(cfg):
    out = []
    a = Asm(); a.uid = 1000
    a('L_chain:')
    for w in range(3): a(f's_cmp_eq_u32 s{C.sW}, {w}\ns_cbranch_scc1 L_cw{w}')
    a('s_branch L_cw3')
    for lab in ('L_cw0', 'L_cw1', 'L_cw2', 'L_cw3'): a.l.append(None)
    a.l = [x for x in a.l if x]
    out.append('\n'.join(a.l) + '\n')
    macros = []
    for w in range(4):
        a = Asm(); a.uid = 2000 + 1000 * w
        ex = f'L_cx{w}'
        a(f'L_cw{w}:')
        C.emit_setup(a, cfg, w)
        if w == 2:
            a(f's_cmp_lt_u32 s{C.sH}, 24\ns_cbranch_scc1 L_cnp')
            C.emit_poison_init(a, True, w)
            a('L_cnp:')
        else: C.emit_poison_init(a, w < 2, w)
        D = f's[{C.sT}:{C.sT+3}]'
        t = C.T0
        a(f'v_mov_b32 v{t}, 1\ns_mov_b64 exec, 1\nbuffer_atomic_add v{t}, v{C.vZ}, {D}, 0 offen offset:68\ns_mov_b64 exec, -1')
        C.emit_load_weights(a, cfg, w)
        C.srd(a, C.sT, 4, 256)
        a(f'''
        v_lshrrev_b32 v{t+1}, 2, v{C.vL16}
        L_ca{w}:
        buffer_load_dword v{t}, v{t+1}, {D}, 0 offen sc1
        s_sub_u32 s{C.sBud}, s{C.sBud}, 1
        s_cbranch_scc1 {ex}
        s_waitcnt vmcnt(0)
        v_readlane_b32 s{C.sTmp}, v{t}, 16
        v_readlane_b32 s{C.sTmp+1}, v{t}, 17
        s_add_u32 s{C.sTmp}, s{C.sTmp}, s{C.sTmp+1}
        s_cmp_lt_u32 s{C.sTmp}, 384
        s_cbranch_scc1 L_ca{w}
        buffer_load_dword v{t}, v{t+1}, {D}, 0 offen sc1
        s_waitcnt vmcnt(0)
        v_readlane_b32 s{C.sFast}, v{t}, 0
        s_barrier
        ''')
        names = [(f'{w}', w < 2)] if w != 2 else [('2r', True), ('2n', False)]
        tail = []
        if w == 2: tail.append(f's_cmp_lt_u32 s{C.sH}, 24\ns_cbranch_scc1 L_sel2n')
        for nm, red in names:
            tail.append(f'L_sel{nm}:\ns_cmp_ge_u32 s{C.sFast}, 32\ns_cbranch_scc1 L_run{nm}f\ns_branch L_run{nm}s')
        a(f's_branch L_ct{w}\n{ex}:\ns_endpgm\nL_ct{w}:')
        out.append(a.text() + '\n'.join(tail) + '\n')
        for nm, red in names:
            b = Asm(); b.uid = 0
            b('L_run:')
            C.emit_layer(b, cfg, w, red, 'L_x', '@ST@')
            b(f'''
            s_add_u32 s{C.sLv}, s{C.sLv}, 64
            s_add_u32 s{C.sLay}, s{C.sLay}, {L.LSTRIDE}
            s_cmp_lt_u32 s{C.sLv}, 128
            s_cbranch_scc1 L_run
            L_x:
            s_endpgm
            ''')
            body = b.text()
            body = re.sub(r'\b(L_\w+)', lambda m: m.group(1) + nm + '\\id', body).replace('@ST@', '\\st')
            macros.append((nm, body))
    for nm, body in macros: out.append(f'.macro chain{nm} id, st\n{body}.endm\n')
    for nm, _ in macros: out.append(f'chain{nm} f\n')
    for nm, _ in macros: out.append(f'chain{nm} s, sc1\n')
    return ''.join(out)

def build(cfg=None, force=None, name=NAME + '_kernel'):
    cfg = cfg or C.ChainCfg(); cfg.integ = True
    a = Asm(); prologue(a, force)
    a('L_chain:\nL_worker:')
    pro = a.text().replace('L_chain:\n', '').replace('L_worker:\n', '')
    w = Asm(); w.uid = 10000
    w('L_worker:'); W.worker_program(w)
    ref = open('cdna_kernels/' + NAME + '.s.ref').read()
    hdr = ''.join(l + '\n' for l in ref.split('\n') if l.startswith(';') and '@launch' not in l and 'Override' not in l and 'grid=ceil' not in l)
    txt = hdr + f'''; @launch grid=(256,1,1) block=(256,1,1) lds=163840
; One persistent workgroup per CU.  32 CUs run the recurrent memory chain (one head each, weights resident in
; registers and LDS); the other 224 run the projections and attentions around it, linked by progress words.
.amdgcn_target "amdgcn-amd-amdhsa--gfx950"
.text
.globl {name}
.p2align 8
.type {name},@function
{name}:
''' + pro + w.text() + chain_program(cfg) + f'''.section .rodata,"a"
.p2align 6
.amdhsa_kernel {name}
  .amdhsa_next_free_vgpr 512
  .amdhsa_next_free_sgpr 102
  .amdhsa_accum_offset 256
  .amdhsa_group_segment_fixed_size 0
  .amdhsa_kernarg_size 104
  .amdhsa_user_sgpr_count 2
  .amdhsa_user_sgpr_kernarg_segment_ptr 1
  .amdhsa_system_sgpr_workgroup_id_x 1
.end_amdhsa_kernel
'''
    txt = '\n'.join(l.strip() if not l.startswith(';') else l for l in txt.split('\n'))
    return txt

if __name__ == '__main__':
    t = build()
    p = sys.argv[1] if len(sys.argv) > 1 else 'cdna_kernels/' + NAME + '.s'
    open(p, 'w').write(t)
    print(len(t), 'bytes')
```

```python
from asmdsl import *
import layout as L
import struct
def fbits(x): return struct.unpack('<I', struct.pack('<f', x))[0]
SCALE_LOG2E = (128 ** -0.5) * 1.4426950408889634
OOB = 0x40000000

LD_MEM = 0
LD_Q   = 9216
LD_K   = LD_Q + 2048 + 32
LD_O   = LD_K + 2048
LD_PX  = LD_O + 2048 + 16
LD_PM  = LD_PX + 512
LD_Z   = LD_PM + 128
LD_ONE = LD_Z + 16
LD_SEL = LD_ONE + 16
LD_W   = 16384
NT   = [4, 4, 5, 5]
NLDS = [17, 17, 19, 19]
WBASE = [LD_W + 2048 * sum(NLDS[:w]) for w in range(4)]
def tile_of(w, slot):
    if slot == 4: return 14 + w
    return 4 * slot + w

sWS = 8
sT  = 12
sH = 16; sW = 17; sStep = 18; sBud = 19
sKX = 20; sVX = 21; sKM = 22; sVM = 23
sP = 24
sRed = 29; sPo = 30; sRing = 31; sRingPo = 32; sGat = 33
sMask = 34
sRc = 36
sPf = 37
sTmp = 38
sPar = 46
sLay = 49
sCs = 50
sSt = 52
sKMn = 64; sVMn = 65; sKX2 = 66; sUnit = 67; sKmask = 68; sHn = 44; sHv = 45; sHc = 47; sLv = 48; sFh = 70; sPfe = 71; sNd = 72; sFast = 73; sHm = 74; sKn = 76; sFc = 77; sFl = 51

vL16 = 0; vWl = 1; vA = 2; vIdx = 3; vQW = 4; vTR = 5; vP = 6; vPRx = 7; vPRm = 8; vTO = 9; vVp = 10
vM = 12; vKX = 13
vPW = 14; vZ = 15
vHv = vPW
vHA = vP
T0 = 16
def WREG(w): return list(range(88 if w < 2 else 72, 512, 8))
GATH = [(0, 4), (4, 1), (5, 2), (7, 2)]

class ChainCfg:
    deferred = [15, 16, 17, 14, 13, 11, 10, 8, 7, 5, 4, 2]
    sh = [2, 3, 2, 2]
    nmain_lds = 12; nm5 = 0; ostart = 2
    stamps = False
    nsteps = 64
    d_redA = 0; d_red = 6; d_redC = 8
    d_gat = 16; d_gatA = 40
    gdep = 2; ggap = 40; gdepA = 1
    hpos = 3; htry = 60; hgaps = [6, 8, 10, 12, 14]; hun = 2
    vdirect = True
    fills = [0, 0, 0, 0, 0]; nfo = 4; npw = 2
    novm = False
    gpo = 29
    hrep = 4; pfd = 1
    perm = [0, 1, 2, 3]
    pf = True
    pub = True
    noexch = False
    log = False
    integ = False
    trace = False
    fine = []
    stampsel = None

def main_seq(cfg):
    seq = []
    for c in range(18):
        seq += [('q', c), ('k', c)]
        if c not in cfg.deferred: seq.append(('v', c))
    return seq

def frag_plan(cfg, w):
    plan = {}; r = iter(WREG(w)); slot = 0
    seq = main_seq(cfg)
    nm = cfg.nmain_lds + (cfg.nm5 if NT[w] == 5 else 0)
    span = len(seq) - 2
    pos = sorted(set(int(round(i * span / (nm - 1))) for i in range(nm)))
    assert len(pos) == nm
    for i, key in enumerate(seq):
        if i in pos: plan[key] = ('l', slot); slot += 1
        else: plan[key] = ('r', next(r))
    for c in cfg.deferred: plan[('v', c)] = ('r', next(r))
    no = NLDS[w] - nm
    n = 4 * NT[w]
    opos = sorted(set(int(round(cfg.ostart + i * (n - 1 - cfg.ostart) / (no - 1))) for i in range(no)))
    assert len(opos) == no
    for i in range(n):
        key = ('o', i // 4, i % 4)
        if i in opos: plan[key] = ('l', slot); slot += 1
        else: plan[key] = ('r', next(r))
    assert slot == NLDS[w], slot
    return plan

def srd(a, s, lo, size):
    a(f's_mov_b32 s{s}, s{lo}\ns_and_b32 s{s+1}, s{lo+1}, 0xffff\ns_mov_b32 s{s+2}, {size}\ns_mov_b32 s{s+3}, 0x20000')

def emit_setup(a, cfg, w):
    t = T0
    a(f'''
    v_and_b32 v{t+1}, 63, v0          ; lane
    v_and_b32 v{t+2}, 15, v{t+1}      ; n
    v_lshrrev_b32 v{t+3}, 4, v{t+1}   ; g
    v_and_b32 v{t+4}, 1, v{t+3}       ; g&1
    v_lshrrev_b32 v{t+5}, 1, v{t+3}   ; g>>1
    v_lshlrev_b32 v{vL16}, 4, v{t+1}
    v_add_u32 v{vWl}, {WBASE[w]}, v{vL16}
    v_mov_b32 v{vZ}, 0
    v_and_b32 v{t+6}, 3, v{t+1}
    v_lshlrev_b32 v{t+6}, 4, v{t+6}
    v_lshl_add_u32 v{t+6}, v{t+4}, 6, v{t+6}
    v_lshl_add_u32 v{t+6}, v{t+5}, 8, v{t+6}
    v_bfe_u32 v{t+7}, v{t+1}, 2, 1
    v_lshl_add_u32 v{vA}, v{t+7}, 7, v{t+6}
    v_and_b32 v{t+6}, 8, v{t+1}
    v_cmp_eq_u32 vcc, 0, v{t+6}
    v_mov_b32 v{t+7}, 0xEEEEDDDD
    v_mov_b32 v{t+8}, 0x44448888
    v_cndmask_b32 v{vIdx}, v{t+7}, v{t+8}, vcc
    v_lshlrev_b32 v{t+6}, 4, v{t+2}
    v_lshl_add_u32 v{t+6}, v{t+4}, 3, v{t+6}
    v_lshl_add_u32 v{t+6}, v{t+5}, 2, v{t+6}
    v_mov_b32 v{t+7}, {OOB}
    v_cndmask_b32 v{vM}, v{t+7}, v{t+6}, vcc
    v_lshlrev_b32 v{t+6}, 3, v{t+5}
    v_xor_b32 v{t+6}, v{t+6}, v{t+2}
    v_lshlrev_b32 v{t+6}, 3, v{t+6}
    v_lshl_add_u32 v{t+6}, v{t+3}, 7, v{t+6}
    v_add_u32 v{vQW}, {512*w}, v{t+6}
    v_bfe_u32 v{t+6}, v{t+1}, 2, 1
    v_xor_b32 v{t+7}, v{t+6}, v{t+5}
    v_lshlrev_b32 v{t+6}, 8, v{t+6}
    v_lshl_add_u32 v{t+6}, v{t+7}, 6, v{t+6}
    v_and_b32 v{t+7}, 1, v{t+1}
    v_lshl_add_u32 v{t+6}, v{t+7}, 7, v{t+6}
    v_lshl_add_u32 v{t+6}, v{t+4}, 4, v{t+6}
    v_bfe_u32 v{t+7}, v{t+1}, 3, 1
    v_lshl_add_u32 v{vTO}, v{t+7}, 3, v{t+6}
    v_bfe_u32 v{t+7}, v{t+1}, 1, 1
    v_mul_u32_u24 v{t+7}, {LD_K - LD_Q}, v{t+7}
    v_add_u32 v{vTR}, v{vTO}, v{t+7}
    v_mul_u32_u24 v{t+6}, {L.PB_UNIT}, v{t+3}
    v_lshl_add_u32 v{vP}, v{t+2}, 3, v{t+6}
    v_lshrrev_b32 v{t+7}, 3, v{t+2}
    v_lshlrev_b32 v{t+6}, 8, v{t+7}
    v_and_b32 v{t+8}, 7, v{t+2}
    v_lshl_add_u32 v{t+6}, v{t+8}, 4, v{t+6}
    v_lshl_add_u32 v{vKX}, v{t+3}, 9, v{t+6}
    v_and_b32 v{t+8}, 7, v{t+1}
    v_lshl_add_u32 v{t+9}, v{t+3}, 3, v{t+8}
    v_lshlrev_b32 v{vPRx}, 4, v{t+9}                ; (g*8+q)*16
    v_lshl_add_u32 v{vTO}, v{t+7}, 3, v{vPRx}
    v_lshl_add_u32 v{t+9}, v{t+4}, 3, v{t+8}
    v_lshlrev_b32 v{t+9}, 3, v{t+9}                 ; ((g&1)*8+q)*8
    v_cmp_eq_u32 vcc, v{t+7}, v{t+5}
    v_mov_b32 v{t+10}, 128
    v_cndmask_b32 v{vPRm}, v{t+10}, v{t+9}, vcc
    ''')
    if w < 2: a(f'v_add_u32 v{vPW}, {LD_PX + 8*w}, v{vPRx}\ns_mov_b32 s{sMask}, 0x00ff00ff\ns_mov_b32 s{sMask+1}, 0x00ff00ff')
    elif w == 2: a(f'v_add_u32 v{vPW}, {LD_PM}, v{t+9}\ns_mov_b32 s{sMask}, 0\ns_mov_b32 s{sMask+1}, 0x00ff00ff')
    else: a(f'v_mov_b32 v{vHv}, 0')
    a(f's_mov_b32 s{sHm}, 0x00010001\ns_mov_b32 s{sHm+1}, 0x00010001')
    a(f'''
    v_mov_b64 {R(t+12,2)}, 0
    v_mov_b64 {R(t+14,2)}, 0
    ds_write_b128 v{vZ}, {R(t+12,4)} offset:{LD_Z}
    ds_write_b128 v{vZ}, {R(t+12,4)} offset:{LD_PX - 16}
    v_add_u32 v{vPRx}, 16, v{vPRx}
    v_lshlrev_b32 v{t}, 4, v{t+8}
    ds_write_b128 v{t}, {R(t+12,4)} offset:{LD_SEL}
    v_mov_b32 v{t+16}, 0x3f803f80
    v_mov_b32 v{t+17}, 0x3f803f80
    ds_write_b64 v{vZ}, {R(t+16,2)} offset:{LD_ONE}
    ds_write_b64 v{vZ}, {R(t+16,2)} offset:{LD_ONE+8}
    s_waitcnt lgkmcnt(0)
    s_barrier
    v_mul_u32_u24 v{t}, 18, v{t+8}
    ds_write_b16 v{t}, v{t+16} offset:{LD_SEL}
    s_mov_b32 s{sCs}, {fbits(SCALE_LOG2E)}
    s_lshl_b32 s{sTmp+2}, s{sH}, 7
    ''')
    for i in range(NT[w]): a(f's_add_u32 s{sP+i}, s{sTmp+2}, {L.PB + tile_of(w, i)*4*L.PB_UNIT}')
    a(f'''
    s_add_u32 s{sUnit}, s{sH}, {[0, 40, 32, 0][w]}
    s_mul_i32 s{sRed}, s{sUnit}, {L.PB_UNIT}
    s_add_u32 s{sRed}, s{sRed}, {L.PB}
    s_add_u32 s{sHn}, s{sH}, {L.HN}
    s_lshl_b32 s{sUnit}, s{sUnit}, 7
    s_mov_b32 s{sPar}, {L.PB_PAR}
    s_mov_b32 s{sRc}, 0
    s_mov_b32 s{sPo}, {OOB}
    {f's_and_b32 s{sHn}, s{sH}, {cfg.hrep-1}' if w == 1 else ''}
    {f's_mul_i32 s{sHn}, s{sHn}, {L.PB_UNIT}' if w == 1 else ''}
    {f's_add_u32 s{sHn}, s{sHn}, {L.HN}' if w == 1 else ''}
    s_mov_b32 s{sRingPo}, {OOB}
    s_waitcnt lgkmcnt(0)
    ''')

def emit_load_weights(a, cfg, w):
    plan = frag_plan(cfg, w)
    t = T0
    a(f'''
    v_bfe_u32 v{t+2}, v{vL16}, 4, 4           ; n
    v_bfe_u32 v{t+4}, v{vL16}, 8, 1           ; gB&1
    v_bfe_u32 v{t+5}, v{vL16}, 9, 1           ; gB>>1
    v_lshlrev_b32 v{t+3}, 17, v{t+4}
    v_lshl_add_u32 v{t+3}, v{t+5}, 14, v{t+3}
    v_lshl_add_u32 v{t+3}, v{t+2}, 2, v{t+3}
    s_lshl_b32 s{sTmp}, s{sH}, 8
    s_add_u32 s{sTmp}, s{sTmp}, {64*w}
    v_add_u32 v{t}, s{sTmp}, v{t+3}
    v_lshl_add_u32 v{t+4}, v{t+5}, 3, v{t+4}
    v_mul_u32_u24 v{t+4}, 1152, v{t+4}
    v_lshl_add_u32 v{t+4}, v{t+2}, 2, v{t+4}
    s_mul_i32 s{sTmp}, s{sH}, {128*1152}
    v_add_u32 v{t+1}, s{sTmp}, v{t+4}
    ''')
    stage = [t + 8 + 8 * i for i in range(6)]
    pend = []; nload = 0; si = 0
    def flush(upto):
        while pend and len(pend) > upto:
            reg, slot, last = pend.pop(0)
            a(f's_waitcnt vmcnt({min(nload - last - 1, 63)})')
            a(f'ds_write_b128 v{vWl}, {R(reg,4)} offset:{slot*2048}\nds_write_b128 v{vWl}, {R(reg+4,4)} offset:{slot*2048+1024}')
            a('s_waitcnt lgkmcnt(0)')
    def load_frag(dst, voff, offs):
        nonlocal nload, si
        kind, x = dst
        if kind == 'l':
            flush(len(stage) - 1); reg = stage[si % len(stage)]; si += 1
        else: reg = x
        cur = None
        for rho in range(8):
            o = offs[rho]
            if cur is None or not (0 <= o - cur < 4096):
                cur = o; a(f's_mov_b32 s{sTmp+3}, {o}')
            a(f'buffer_load_dword {R(reg+rho)}, v{voff}, s[{sT}:{sT+3}], s{sTmp+3} offen offset:{o-cur}')
            nload += 1
        if kind == 'l': pend.append((reg, x, nload - 1))
        a('s_waitcnt vmcnt(48)')
    for m, karg in (('q', 16), ('k', 24), ('v', 32)):
        a(f's_load_dwordx2 s[{sTmp+4}:{sTmp+5}], s[0:1], {karg}\ns_waitcnt lgkmcnt(0)')
        srd(a, sT, sTmp + 4, 576 * 8192)
        for c in range(18):
            load_frag(plan[(m, c)], t, [(32*c + 4*(r & 3) + (r >> 2)) * 8192 for r in range(8)])
    a(f's_load_dwordx2 s[{sTmp+4}:{sTmp+5}], s[0:1], 40\ns_waitcnt lgkmcnt(0)')
    srd(a, sT, sTmp + 4, 4096 * 1152)
    for sl in range(NT[w]):
        for c in range(4):
            load_frag(plan[('o', sl, c)], t + 1, [(32*c + 16*(r >> 2) + 2*(r & 3)) * 1152 + 64*tile_of(w, sl) for r in range(8)])
    flush(0)
    a('s_waitcnt vmcnt(0)')

def emit_poison_init(a, red, w=None):
    t = T0
    WS = f's[{sWS}:{sWS+3}]'
    if w == 3:
        a(f's_mov_b64 exec, s[{sHm}:{sHm+1}]\nbuffer_store_byte v{vZ}, v{vHA}, {WS}, s{sHn} offen sc1\ns_mov_b64 exec, -1\ns_waitcnt vmcnt(0)')
    if not red: return
    a(f'v_mov_b64 {R(t,2)}, -1\nv_mov_b64 {R(t+2,2)}, -1\ns_add_u32 s{sTmp}, s{sRed}, {L.PB_PAR}')
    for s in (sRed, sTmp):
        for i in range(4): a(f'buffer_store_dwordx4 {R(t,4)}, v{vL16}, {WS}, s{s} offen offset:{i*1024} sc1')
    for i in range(4):
        a(f's_add_u32 s{sTmp+1}, s{sUnit}, {L.MR + i*9216}\nbuffer_store_dword v{t}, v{vM}, {WS}, s{sTmp+1} offen sc1')
    a('s_waitcnt vmcnt(0)')

def stamp(a, cfg, i):
    if not cfg.stamps or (cfg.stampsel is not None and i not in cfg.stampsel): return
    a(f'''
    s_memtime s[{sTmp+4}:{sTmp+5}]
    s_waitcnt lgkmcnt(0)
    s_sub_u32 s{sTmp+5}, s{sTmp+4}, s{sSt}
    s_mov_b32 s{sSt}, s{sTmp+4}
    s_add_u32 s{sSt+2+i}, s{sSt+2+i}, s{sTmp+5}
    ''')

def mark(a, cfg, name):
    if name in cfg.fine:
        i = cfg.fine.index(name)
        a(f's_memtime s[{80+2*i}:{81+2*i}]')

class Q:
    def __init__(self, a, cnt, cap): self.a = a; self.q = []; self.cnt = cnt; self.cap = cap
    def issue(self, tag, text):
        for x in text.split('\n'):
            self.a(x); self.q.append(tag)
        assert len(self.q) <= self.cap, self.q
    def wait(self, *tags):
        idx = [i for i, x in enumerate(self.q) if x in tags]
        if not idx: return
        last = idx[-1]
        self.a(f's_waitcnt {self.cnt}({len(self.q)-last-1})')
        del self.q[:last + 1]
    def clear(self): self.q = []

def delay(a, n):
    while n > 0:
        k = min(n, 16); a(f's_nop {k-1}'); n -= k

def emit_layer(a, cfg, w, red, exit_label, st=''):
    plan = frag_plan(cfg, w)
    WS = f's[{sWS}:{sWS+3}]'
    t = T0
    ds = Q(a, 'lgkmcnt', 15); vm = Q(a, 'vmcnt', 63)
    accq, acck, accv = t, t + 4, t + 8
    Abuf = [t + 12 + 4 * i for i in range(3)]
    X0 = t + 24; X1 = t + 28
    Wbuf = [t + 32, t + 40]
    VXr = t + 48
    KXr = [t + 56 + 4 * i for i in range(4)]
    SM = 'v_smfmac_f32_16x16x64_bf16'
    g0, gn = GATH[w]
    GL = KXr[:gn] if w < 2 else [VXr, VXr + 4]
    cold = []
    def budget(): a(f's_sub_u32 s{sBud}, s{sBud}, 1\ns_cbranch_scc1 {exit_label}')
    def gloads():
        for i in range(gn): a(f'buffer_load_dwordx4 {R(GL[i],4)}, v{vL16}, {WS}, s{sGat} offen offset:{i*1024} sc1')
    def gwrite(i): return f'ds_write_b128 v{vL16}, {R(GL[i],4)} offset:{LD_MEM + (g0+i)*1024}'
    fload = f'v_lshrrev_b32 v{X1+3}, 1, v{vL16}\nbuffer_load_dwordx2 {R(vM,2)}, v{X1+3}, {WS}, s{sFh} offen offset:16 sc1'
    def level():
        a(f'v_min_u32 v{vM}, v{vM}, v{vM+1}\ns_mov_b64 exec, -1')
        for i in range(4): a(f'v_readlane_b32 s{sTmp+i}, v{vM}, {i}')
        a(f's_min_u32 s{sTmp}, s{sTmp}, s{sTmp+1}\ns_min_u32 s{sTmp+2}, s{sTmp+2}, s{sTmp+3}\ns_min_u32 s{sKn}, s{sTmp}, s{sTmp+2}')
    def avail(ahead):
        lp = a.lab('L_av'); ok = a.lab('L_avok')
        a(f's_add_u32 s{sNd}, s{sStep}, {ahead + 1}\ns_min_u32 s{sNd}, s{sNd}, 64\ns_add_u32 s{sNd}, s{sNd}, s{sLv}\ns_cmp_lt_u32 s{sKn}, s{sNd}\ns_cbranch_scc1 {lp}\n{ok}:')
        def rest():
            a(f'{lp}:\ns_mov_b64 exec, 15\n{fload}'); budget(); a('s_waitcnt vmcnt(0)'); level()
            a(f's_cmp_lt_u32 s{sKn}, s{sNd}\ns_cbranch_scc1 {lp}\ns_branch {ok}')
        cold.append(rest)
    a(f's_load_dwordx2 s[{sTmp+4}:{sTmp+5}], s[0:1], 8\ns_waitcnt lgkmcnt(0)')
    srd(a, sT, sTmp + 4, 9216)
    a(f"""
    v_bfe_u32 v{t}, v{vL16}, 4, 2            ; i
    v_bfe_u32 v{t+1}, v{vL16}, 7, 1          ; rh
    v_lshl_add_u32 v{t}, v{t+1}, 2, v{t}
    v_mul_u32_u24 v{t}, 1152, v{t}
    v_bfe_u32 v{t+1}, v{vL16}, 9, 1
    v_lshl_add_u32 v{t}, v{t+1}, 6, v{t}
    v_bfe_u32 v{t+1}, v{vL16}, 6, 1          ; b
    v_lshl_add_u32 v{t}, v{t+1}, 2, v{t}
    v_bfe_u32 v{t+1}, v{vL16}, 8, 1          ; par
    v_lshl_add_u32 v{t}, v{t+1}, 1, v{t}
    """)
    for i0 in range(0, gn, 2):
        for it in range(i0, min(i0 + 2, gn)):
            for j in range(8): a(f'buffer_load_ushort v{Wbuf[it&1]+j}, v{t}, s[{sT}:{sT+3}], 0 offen offset:{(g0+it)*128 + j*8}')
        a('s_waitcnt vmcnt(0)')
        for it in range(i0, min(i0 + 2, gn)):
            for j in range(4): a(f'v_lshl_or_b32 v{GL[it]+j}, v{Wbuf[it&1]+2*j+1}, 16, v{Wbuf[it&1]+2*j}')
            a(gwrite(it))
    a(f"""
    s_mov_b32 s{sStep}, 0
    s_lshl_b32 s{sTmp}, s{sH}, 13
    s_add_u32 s{sTmp}, s{sTmp}, s{sLay}
    s_add_u32 s{sPf}, s{sTmp}, {L.KX + cfg.pfd*262144}
    s_add_u32 s{sKX}, s{sTmp}, {L.KX + 128*w}
    s_add_u32 s{sVX}, s{sTmp}, {L.VX + 2048*w}
    s_lshl_b32 s{sTmp+1}, s{sH}, 12
    s_add_u32 s{sTmp+1}, s{sTmp+1}, s{sLay}
    s_add_u32 s{sKMn}, s{sTmp+1}, {L.KM + 512*w - 16}
    s_mov_b32 s{sKM}, {OOB}
    s_mov_b32 s{sKmask}, 0xff00ff00
    s_mov_b32 s{sKmask+1}, 0xff00ff00
    """)
    seq = main_seq(cfg)
    ldsm = [k for k in seq if plan[k][0] == 'l']
    def wr(buf, slot, half): return f'ds_read_b128 {R(buf+4*half,4)}, v{vWl} offset:{slot*2048+1024*half}'
    def tr2(dst, base, c, vreg): return '\n'.join(f'ds_read_b64_tr_b16 {R(dst+2*hf,2)}, v{vreg} offset:{base + c*512 + 32*hf}' for hf in range(2))
    def cst(dst, off): return f'ds_read_b128 {R(dst,4)}, v{vZ} offset:{off}'
    def pre_step():
        for i in range(2):
            for hf in range(2): a(wr(Wbuf[i], plan[ldsm[i]][1], hf))
        for i in range(0, 12, 2): a(f'v_mov_b64 {R(t+i,2)}, 0')
        a(f'v_lshlrev_b32 v{X1+2}, 1, v{vL16}\nv_lshrrev_b32 v{X1+3}, 1, v{vL16}')
        if w < 2: a(f's_add_u32 s{sKX2}, s{sKX}, 4096')
        if w == 3:
            a(f'v_lshlrev_b32 v{X1+1}, 2, v{vL16}')
            if not cfg.integ: a(f's_mov_b32 s{sPfe}, s{sPf}')
            else:
                a(f"""
                s_add_u32 s{sTmp+2}, s{sStep}, s{sLv}
                s_add_u32 s{sTmp+3}, s{sTmp+2}, 2
                s_cmp_ge_u32 s{sKn}, s{sTmp+3}
                s_cselect_b32 s{sPfe}, s{sPf}, {OOB}
                s_add_u32 s{sTmp+2}, s{sTmp+2}, 6
                s_add_u32 s{sTmp+3}, s{sLv}, 64
                s_min_u32 s{sTmp+2}, s{sTmp+2}, s{sTmp+3}
                s_cmp_lt_u32 s{sKn}, s{sTmp+2}
                s_cselect_b32 s{sFl}, 1, 0
                """)
            a(f's_add_u32 s{sKX2}, s{sPfe}, 4096\ns_add_u32 s{sKX}, s{sPfe}, {L.VX - L.KX}\ns_add_u32 s{sRed}, s{sPfe}, {L.VX - L.KX + 4096}\ns_add_u32 s{sPf}, s{sPf}, 262144')
    if cfg.integ:
        if w == 3:
            a(f's_lshl_b32 s{sFh}, s{sH}, 7\ns_add_u32 s{sFh}, s{sFh}, {L.F_HEAD}\ns_mov_b32 s{sKn}, 0')
            avail(0)
    pre_step()
    loop = a.lab('L_step')
    abuf_of = {}
    def aread(c, buf):
        abuf_of[c] = buf
        ds.issue(('A', c), f'ds_read_b128 {R(buf,4)}, v{vA} offset:{LD_MEM + c*512}')
    def head():
        a('s_barrier')
        stamp(a, cfg, 0); mark(a, cfg, 'B1')
        for c in range(3): aread(c, Abuf[c])
    a('s_waitcnt vmcnt(0) lgkmcnt(0)')
    if cfg.log and w == 3:
        import workers
        workers.logtime(a, sFh, sLv, vM, vZ, 52)
    head()
    a(f'{loop}:')
    F = [Wbuf[0], Wbuf[0] + 4, Wbuf[1], Wbuf[1] + 4]
    lastuse = {}
    for i, key in enumerate(seq): lastuse[key[1]] = i
    pre = {}; mem = {}; val = {}
    def put(d, g, x):
        while d is not pre and g in d and g >= 0: g += 1
        d.setdefault(g, []).append(x); return g
    def vmem(x, tag='m'):
        def f():
            for y in x.split('|'):
                if y.startswith('buffer'): vm.issue(tag, y)
                else: a(y)
        return f
    vxl = [vmem(f'buffer_load_dwordx4 {R(VXr+4*i,4)}, v{X1+2}, {WS}, s{sVX} offen offset:{16*i} sc1', 'VX') for i in range(2)]
    kxl = [vmem(f'buffer_load_dwordx4 {R(KXr[c],4)}, v{vKX}, {WS}, s{sKX if c < 2 else sKX2} offen offset:{2048*(c&1)} sc1', 'KX') for c in range(4)]
    if w < 2:
        for g, x in zip([-1, -1, 1, 3, 5, 8] if cfg.vdirect else [-1, 1, 4, 6, 8, 10], kxl + vxl): put(mem, g, x)
    else:
        for g, x in zip([5, 8] if cfg.vdirect else [-1, 1], vxl): put(mem, g, x)
    g = 11 if cfg.vdirect else 13
    if w == 3:
        if cfg.pf:
            for i in range(2 if cfg.vdirect else 4): put(mem, g, vmem(f'buffer_load_dwordx2 {R(vM,2)}, v{X1+1}, {WS}, s{[sPfe, sKX2, sKX, sRed][i]} offen sc1')); g += 2
        if cfg.integ:
            sk = a.lab('L_nofl'); nf = a.lab('L_fl')
            put(mem, g, vmem(f's_cmp_lg_u32 s{sFl}, 0|s_cbranch_scc1 {nf}|{sk}:'))
            cold.append(lambda nf=nf, sk=sk: a(f'{nf}:\ns_mov_b64 exec, 15\n{fload}\ns_mov_b64 exec, -1\ns_branch {sk}'))
    gp = 15 if cfg.vdirect else 21
    if cfg.pub:
        put(mem, gp + w, vmem(f's_mov_b64 exec, s[{sKmask}:{sKmask+1}]|buffer_store_dwordx4 {R(X0,4)}, v{vPRx}, {WS}, s{sKM} offen sc1|s_mov_b64 exec, -1'))
        put(mem, gp + 4 + w, vmem(f'buffer_store_dwordx2 {R(vVp,2)}, v{X1+3}, {WS}, s{sKM} offen offset:2064 sc1'))
    if red:
        put(val, 2, f'v_mov_b32 v{X1}, -1'); put(val, 4, f'v_lshlrev_b32 v{X1+1}, 2, v{vL16}')
        put(mem, cfg.gpo + 3 * w, vmem(f'buffer_store_dword v{X1}, v{X1+1}, {WS}, s{sPo} offen {st}'))
        put(mem, cfg.gpo + 7 + w, vmem(f'buffer_store_dword v{X1}, v{vM}, {WS}, s{sRingPo} offen {st}'))
    if cfg.novm: mem = {}
    nl = len(ldsm)
    pendW = []; nextw = 2
    for f in mem.pop(-1, []): f()
    ds.wait(('A', 0)); mark(a, cfg, 'A0')
    for i, key in enumerate(seq):
        m, c = key
        B = R(plan[key][1], 8) if plan[key][0] == 'r' else R(Wbuf[ldsm.index(key) % 2], 8)
        acc = {'q': accq, 'k': acck, 'v': accv}[m]
        a(f'{SM} {R(acc,4)}, {R(abuf_of[c],4)}, {B}, v{vIdx}')
        if i + 1 < len(seq):
            assert ('W', seq[i+1]) not in [p[0] for p in pendW], (w, i)
            ds.wait(('A', seq[i+1][1]), ('W', seq[i+1]))
        for f in pre.pop(i, []): f()
        if plan[key][0] == 'l' and nextw < nl:
            for hf in range(2): pendW.append((('W', ldsm[nextw]), wr(Wbuf[nextw % 2], plan[ldsm[nextw]][1], hf)))
            nextw += 1
        if lastuse[c] == i and c + 3 < 18: aread(c + 3, abuf_of[c])
        elif pendW: ds.issue(*pendW.pop(0))
        for f in mem.pop(i, []): f()
        for x in val.pop(i, []): a(x)
        mark(a, cfg, f'm{i}')
    assert not pendW and not pre and not mem and not val, (pendW, pre, mem, val)
    mark(a, cfg, 'mainend')
    dq = list(cfg.deferred); nxt = 3
    def defer(n, valu=(), other=()):
        nonlocal nxt
        valu = list(valu); other = list(other)
        for k in range(n):
            c = dq.pop(0)
            ds.wait(('A', c))
            a(f'{SM} {R(accv,4)}, {R(abuf_of[c],4)}, {R(plan[("v",c)][1],8)}, v{vIdx}')
            if k + 1 < n: ds.wait(('A', dq[0]))
            if nxt < len(cfg.deferred): aread(cfg.deferred[nxt], abuf_of[c]); nxt += 1
            elif other: other.pop(0)()
            if valu: a(valu.pop(0))
        for x in other: x()
        for x in valu: a(x)
    sh = cfg.sh
    defer(sh[0], [f'v_cvt_pk_bf16_f32 v{accq}, v{accq}, v{accq+1}', f'v_cvt_pk_bf16_f32 v{accq+1}, v{accq+2}, v{accq+3}'])
    a(f'v_cvt_pk_bf16_f32 v{acck}, v{acck}, v{acck+1}\nv_cvt_pk_bf16_f32 v{acck+1}, v{acck+2}, v{acck+3}')
    ds.issue('wq', f'ds_write_b64 v{vQW}, {R(accq,2)} offset:{LD_Q}')
    ds.issue('wk', f'ds_write_b64 v{vQW}, {R(acck,2)} offset:{LD_K}')
    mark(a, cfg, 'wk')
    defer(sh[1])
    ds.wait('wk'); mark(a, cfg, 'preB2')
    a('s_barrier')
    stamp(a, cfg, 1); mark(a, cfg, 'B2')
    Sc, E = accq, acck
    ones = X0; O = X1
    if w < 3:
        for c in range(4): ds.issue(('F', c), tr2(F[c], LD_Q, c, vTR))
        defer(sh[2])
        vm.wait('KX'); mark(a, cfg, 'kx')
        ds.wait(('F', 0))
        for c in range(4):
            a(f'v_mfma_f32_16x16x32_bf16 {R(Sc,4)}, {R(KXr[c] if w < 2 else F[c],4)}, {R(F[c],4)}, {"0" if c == 0 else R(Sc,4)}')
            if c < 3: ds.wait(('F', c + 1))
        defer(sh[3])
        mark(a, cfg, 'sc')
        if w == 2:
            for i in range(4): a(f'v_mul_f32 v{Sc+i}, s{sCs}, v{Sc+i}')
        for i in range(4): a(f'v_exp_f32 v{E+i}, v{Sc+i}')
        a(f's_mov_b64 exec, s[{sMask}:{sMask+1}]')
        a(f'v_cvt_pk_bf16_f32 v{E}, v{E}, v{E+1}\nv_cvt_pk_bf16_f32 v{E+1}, v{E+2}, v{E+3}')
        ds.issue('wp', f'ds_write_b64 v{vPW}, {R(E,2)}')
        a('s_mov_b64 exec, -1')
        mark(a, cfg, 'wp')
    else:
        defer(sh[2] + sh[3])
        if cfg.integ: avail(1)
    Obuf = Wbuf + ([KXr[0], KXr[2]] if w < 2 else [VXr])
    npre = 4 if w < 2 else 2
    ldso = [k for k in plan if k[0] == 'o' and plan[k][0] == 'l']
    opre = [lambda i=i, hf=hf: ds.issue(ldso[i], wr(Obuf[i], plan[ldso[i]][1], hf)) for i in range(npre) for hf in range(2)]
    other = [lambda: ds.issue('one', cst(ones, LD_ONE))] + opre[:cfg.npw]
    opre = opre[cfg.npw:]
    defer(len(dq), other=other)
    ds.wait('wp'); mark(a, cfg, 'preB2b')
    lab_fb = a.lab('L_fallback'); lab_back = a.lab('L_fbret'); lab_last = a.lab('L_last')
    a('s_barrier')
    stamp(a, cfg, 2); mark(a, cfg, 'B2b')
    Px = Abuf[0]; Ls = Abuf[1]; Pm = Abuf[2]
    acc = [accv, acck, Ls, accq, accv]
    def pv(first):
        nonlocal opre
        M16 = 'v_mfma_f32_16x16x16_bf16'; M32_ = 'v_mfma_f32_16x16x32_bf16'
        ds.issue('pm', f'ds_read_b64 {R(Pm,2)}, v{vPRm} offset:{LD_PM}')
        ds.issue('px', f'ds_read_b128 {R(Px,4)}, v{vPRx} offset:{LD_PX - 16}')
        a(f'v_cndmask_b32 v{Pm+2}, v{vPRx}, 0, s[{sKmask}:{sKmask+1}]')
        ds.issue('pe', f'ds_read_b128 {R(acck,4)}, v{Pm+2} offset:{LD_PX - 16}')
        a(f'v_cndmask_b32 v{Pm+3}, 0, v{vPRx}, s[{sKmask}:{sKmask+1}]')
        if first:
            a(f'v_cvt_pk_bf16_f32 v{vVp}, v{accv}, v{accv+1}\nv_cvt_pk_bf16_f32 v{vVp+1}, v{accv+2}, v{accv+3}')
        ds.issue('po', f'ds_read_b128 {R(accv,4)}, v{Pm+3} offset:{LD_PX - 16}')
        if first and cfg.integ: a(f's_cmp_eq_u32 s{sStep}, 63\ns_cbranch_scc1 {lab_last}')
        op = opre if first else []
        def fill(n):
            for _ in range(n):
                if op: op.pop(0)()
        ds.wait('pm'); mark(a, cfg, 'px')
        a(f'{M16} {R(Ls,4)}, {R(ones,2)}, {R(Pm,2)}, 0')
        a(f'{M16} {R(O,4)}, {R(vVp,2)}, {R(Pm,2)}, 0')
        ds.wait('px'); fill(cfg.fills[0])
        a(f'{M32_} {R(Ls,4)}, {R(ones,4)}, {R(Px,4)}, {R(Ls,4)}')
        if first: vm.wait('VX')
        ds.wait('pe'); fill(cfg.fills[1])
        a(f'{M32_} {R(O,4)}, {R(VXr,4)}, {R(acck,4)}, {R(O,4)}')
        ds.wait('po'); fill(cfg.fills[2])
        a(f'{M32_} {R(O,4)}, {R(VXr+4,4)}, {R(accv,4)}, {R(O,4)}')
        a(f'v_rcp_f32 v{Ls}, v{Ls}')
        for r in (acck, accv): a(f'v_mov_b64 {R(r,2)}, 0\nv_mov_b64 {R(r+2,2)}, 0')
        fill(cfg.fills[3])
        mark(a, cfg, 'rcp')
        for i in range(4): a(f'v_mul_f32 v{O+i}, v{O+i}, v{Ls}')
        a(f'v_cvt_pk_bf16_f32 v{Pm}, v{O}, v{O+1}\nv_cvt_pk_bf16_f32 v{Pm+1}, v{O+2}, v{O+3}')
        ds.issue('wo', f'ds_write_b64 v{vTO}, {R(Pm,2)} offset:{LD_O + 512*w}')
        mark(a, cfg, 'wo')
        fill(cfg.fills[4])
    pv(True)
    lo, hi = fbits(2.0 ** -60), fbits(2.0 ** 60)
    a(f'v_subrev_u32 v{Ls+1}, {hex(lo)}, v{Ls+1}\nv_cmp_lt_u32 vcc, {hex(hi - lo)}, v{Ls+1}')
    a(f'v_mov_b64 {R(Ls,2)}, 0\nv_mov_b64 {R(Ls+2,2)}, 0\ns_cbranch_vccnz {lab_fb}\n{lab_back}:')
    a(f'v_mov_b64 {R(accq,2)}, 0\nv_mov_b64 {R(accq+2,2)}, 0')
    ds.wait('wo'); a('s_barrier')
    stamp(a, cfg, 3); mark(a, cfg, 'B3')
    Fo = [Abuf[0], Abuf[2], X0, X1]
    def fo(c): return (('F', c), f'ds_read_b128 {R(Fo[c],4)}, v{vPRx} offset:{LD_O + 512*c - 16}')
    for c in range(cfg.nfo): ds.issue(*fo(c))
    nexto = npre; gapq = []; pendW = [fo(c) for c in range(cfg.nfo, 4)]
    ndone = 2 * npre - len(opre)
    pendW += [(ldso[i // 2], wr(Obuf[i // 2], plan[ldso[i // 2]][1], i & 1)) for i in range(ndone, 2 * npre)]
    nb = len(Obuf)
    if npre < nb:
        for hf in range(2): pendW.append((ldso[nexto], wr(Obuf[nexto % nb], plan[ldso[nexto]][1], hf)))
        nexto += 1
    def finish(sl):
        ac = acc[sl]
        return [[f'v_cvt_pk_bf16_f32 v{ac}, v{ac}, v{ac+1}'], [f'v_cvt_pk_bf16_f32 v{ac+1}, v{ac+2}, v{ac+3}'],
                [f'buffer_store_dwordx2 {R(ac,2)}, v{vP}, {WS}, s{sP+sl} offen {st}']]
    zero = {}
    if NT[w] == 5: zero[8] = [f'v_mov_b64 {R(acc[4]+2,2)}, 0']; zero[12] = [f'v_mov_b64 {R(acc[4],2)}, 0']
    oseq = [('o', sl, c) for sl in range(NT[w]) for c in range(4)]
    hint = not cfg.noexch
    hr = VXr; ha = VXr + 7
    hload = f'buffer_load_dword v{hr}, v{ha}, {WS}, s{sHn} offen sc1'
    hq = {}
    if hint and w == 3:
        hq[cfg.hpos] = [f's_mov_b64 exec, s[{sHm}:{sHm+1}]', f'buffer_store_byte v{vHv}, v{vHA}, {WS}, s{sHn} offen {st}', 's_mov_b64 exec, -1']
        a(f'v_add_u32 v{vHv}, 1, v{vHv}')
    if hint and w == 1:
        zero[4] = [f'v_bfe_u32 v{ha}, v{vL16}, 2, 5']
        a(f'v_mov_b32 v{hr}, 0x00ff00ff')
        for gp_ in cfg.hgaps: hq[gp_] = [hload]
    ds.wait(('F', 0), oseq[0]); mark(a, cfg, 'F0')
    for i, key in enumerate(oseq):
        _, sl, c = key
        B = R(Obuf[ldso.index(key) % nb], 8) if plan[key][0] == 'l' else R(plan[key][1], 8)
        a(f'{SM} {R(acc[sl],4)}, {R(Fo[c],4)}, {B}, v{vIdx}')
        if i + 1 < len(oseq):
            assert oseq[i+1] not in [p[0] for p in pendW], (w, i)
            ds.wait(('F', oseq[i+1][2]), oseq[i+1])
        if plan[key][0] == 'l' and nexto < len(ldso):
            for hf in range(2): pendW.append((ldso[nexto], wr(Obuf[nexto % nb], plan[ldso[nexto]][1], hf)))
            nexto += 1
        if pendW: ds.issue(*pendW.pop(0))
        if c == 1 and sl >= 1: gapq += finish(sl - 1)
        for x in hq.get(i, []): a(x)
        if gapq:
            for x in gapq.pop(0): a(x)
        for x in zero.get(i, []): a(x)
        mark(a, cfg, f'o{i}')
    assert not pendW and not gapq
    mark(a, cfg, 'woend')
    Sel = X0; D = X1; ck = Abuf[2]
    a(f"""
    s_add_u32 s{sStep}, s{sStep}, 1
    s_add_u32 s{sRc}, s{sRc}, 1
    s_and_b32 s{sTmp}, s{sRc}, 3
    s_mul_i32 s{sGat}, s{sTmp}, 9216
    s_add_u32 s{sGat}, s{sGat}, {L.MR}
    s_add_u32 s{sRing}, s{sGat}, s{sUnit}
    s_add_u32 s{sGat}, s{sGat}, {g0*1024}
    """)
    if red: a(f'v_and_b32 v{ck}, 127, v{vL16}')
    if hint and w == 1: a(hload)
    for g in finish(NT[w] - 1):
        for x in g: a(x)
    stamp(a, cfg, 4); mark(a, cfg, 'pst')
    def scalars():
        if red:
            a(f"""
            s_xor_b32 s{sTmp}, s{sTmp}, 2
            s_mul_i32 s{sTmp}, s{sTmp}, 9216
            s_add_u32 s{sTmp}, s{sTmp}, {L.MR}
            s_add_u32 s{sRingPo}, s{sTmp}, s{sUnit}
            s_mov_b32 s{sPo}, s{sRed}
            """)
        for i in range(NT[w]): a(f's_add_u32 s{sP+i}, s{sP+i}, s{sPar}')
        a(f"""
        s_mov_b32 s{sKM}, s{sKMn}
        s_add_u32 s{sKMn}, s{sKMn}, 131072
        """)
    def rolling(dep, nld, loads, consume, gap, between=None):
        ok = a.lab('L_ok'); nx = a.lab('L_next')
        for k in range(dep):
            loads()
            if k == 0 and between: between()
            elif k + 1 < dep: delay(a, gap)
        consume(nld * (dep - 1))
        a(f's_cbranch_vccnz {nx}\n{ok}:')
        def rest():
            a(f'{nx}:'); loads(); budget(); consume(nld * (dep - 1)); a(f's_cbranch_vccz {ok}\ns_branch {nx}')
        cold.append(rest)
    def prep():
        a(f's_sub_u32 s{sPar}, 0, s{sPar}\ns_add_u32 s{sVX}, s{sVX}, 262144')
        if w < 2: a(f's_add_u32 s{sKX}, s{sKX}, 262144')
        pre_step()
        a(tr2(X0, LD_Q, w, vTR))
    if red and not cfg.noexch:
        S_ = [Wbuf[0] + 4*i for i in range(4)]
        def loads():
            for i in range(4): a(f'buffer_load_dwordx4 {R(S_[i],4)}, v{vL16}, {WS}, s{sRed} offen offset:{i*1024} sc1')
        def consume(nafter):
            for i in range(4):
                a(f's_waitcnt vmcnt({3-i+nafter})' + (' lgkmcnt(0)' if i == 0 else ''))
                mark(a, cfg, f'r{i}')
                a(f'v_mfma_f32_16x16x32_bf16 {R(D,4)}, {R(S_[i],4)}, {R(Sel,4)}, {"0" if i == 0 else R(D,4)}')
                if i == 2: a(f'v_max3_u32 v{ck}, v{S_[0]}, v{S_[1]}, v{S_[2]}')
                if i == 3: a(f'v_max_u32 v{ck}, v{ck}, v{S_[3]}')
            a(f"""
            v_cmp_eq_u32 vcc, -1, v{ck}
            v_permlane32_swap_b32 v{D}, v{D+2}
            v_permlane32_swap_b32 v{D+1}, v{D+3}
            v_add_f32 v{D}, v{D}, v{D+2}
            v_add_f32 v{D+1}, v{D+1}, v{D+3}
            v_cvt_pk_bf16_f32 v{ck}, v{D}, v{D+1}
            """)
        a(f'ds_read_b128 {R(Sel,4)}, v{ck} offset:{LD_SEL}')
        if w == 1:
            go = a.lab('L_go'); hl = a.lab('L_hint')
            A_, B_ = f's[{sTmp+2}:{sTmp+3}]', f's[{sTmp+4}:{sTmp+5}]'
            a(f's_and_b32 s{sHv}, s{sRc}, 255\ns_mul_i32 s{sHv}, s{sHv}, 0x01010101\ns_mov_b32 s{sHc}, {cfg.htry}\ns_mov_b64 {B_}, -1\n{hl}:')
            for k in range(8):
                a(hload if k % cfg.hun == 0 else 's_nop 0')
                a(f'v_cmp_ne_u32 {A_}, s{sHv}, v{hr}\ns_cmp_eq_u64 {B_}, 0\ns_cbranch_scc1 {go}')
                A_, B_ = B_, A_
            a(f's_sub_u32 s{sHc}, s{sHc}, 1\ns_cbranch_scc0 {hl}\n{go}:\ns_barrier')
            mark(a, cfg, 'go')
            scalars()
        else:
            scalars(); a('s_barrier')
        delay(a, [cfg.d_redA, cfg.d_red, cfg.d_redC][w])
        mark(a, cfg, 'rstart')
        rolling(1, 4, loads, consume, 0)
        a(f'buffer_store_dword v{ck}, v{vM}, {WS}, s{sRing} offen {st}')
        stamp(a, cfg, 5); mark(a, cfg, 'ring')
        a(f's_add_u32 s{sRed}, s{sRed}, s{sPar}')
    else:
        if hint: a('s_barrier')
        scalars()
        if cfg.integ and w == 3:
            sk = a.lab('L_nolv')
            a(f's_cmp_eq_u32 s{sFl}, 0\ns_cbranch_scc1 {sk}\ns_waitcnt vmcnt({NT[w] + 1})'); level(); a(f'{sk}:')
    prep()
    lab_join = a.lab('L_join')
    if not cfg.noexch:
        gck = Abuf[2]
        def gcheck(nafter):
            for i in range(gn):
                G = GL[i]
                a(f's_waitcnt vmcnt({gn-1-i+nafter})')
                if i == 0: a(f'v_max3_u32 v{gck}, v{G}, v{G+1}, v{G+2}\nv_max_u32 v{gck}, v{gck}, v{G+3}')
                else: a(f'v_max3_u32 v{gck}, v{gck}, v{G}, v{G+1}\nv_max3_u32 v{gck}, v{gck}, v{G+2}, v{G+3}')
                a(gwrite(i))
            a(f'v_cmp_eq_u32 vcc, -1, v{gck}\ns_waitcnt lgkmcnt(0)')
        if w == 0:
            delay(a, cfg.d_gatA)
            mark(a, cfg, 'gstart')
            rolling(cfg.gdepA, gn, gloads, gcheck, cfg.ggap, lambda: a('s_barrier'))
        else:
            if w == 1: delay(a, cfg.d_gat)
            a('s_barrier')
            mark(a, cfg, 'gstart')
            rolling(cfg.gdep, gn, gloads, gcheck, cfg.ggap)
        mark(a, cfg, 'gok')
    else: a('s_waitcnt lgkmcnt(0)')
    ds.clear(); vm.clear()
    head()
    ds.clear()
    if cfg.log and w == 3:
        import workers
        a(f's_add_u32 s99, s{sStep}, s{sLv}')
        lab_ = a.lab('L_nolog')
        a(f's_and_b32 s98, s{sStep}, 7\ns_cmp_ge_u32 s{sStep}, 60\ns_cselect_b32 s98, 0, s98\ns_cmp_le_u32 s{sStep}, 2\ns_cselect_b32 s98, 0, s98\ns_cmp_lg_u32 s98, 0\ns_cbranch_scc1 {lab_}')
        workers.logtime(a, sFh, 99, vM, vZ, 52)
        workers.logtime(a, sFh, 99, vM, vZ, 56, 's_memtime')
        a(f'{lab_}:')
    if cfg.trace and w == 3:
        a(f's_memtime s[{sTmp+4}:{sTmp+5}]\ns_waitcnt lgkmcnt(0)\nv_writelane_b32 v{vM}, s{sTmp+4}, 1\ns_lshl_b32 s{sTmp+5}, s{sH}, 8\ns_lshl_b32 s{sTmp+4}, s{sStep}, 2\ns_add_u32 s{sTmp+4}, s{sTmp+4}, s{sTmp+5}\ns_add_u32 s{sTmp+4}, s{sTmp+4}, {L.STAMP+16384-4}')
        a(f's_mov_b64 exec, 2\nbuffer_store_dword v{vM}, v{vZ}, {WS}, s{sTmp+4} offen\ns_mov_b64 exec, -1')
    if cfg.integ: a(f's_sub_u32 s{sBud}, s{sBud}, 1\ns_cbranch_scc0 {loop}\ns_branch {exit_label}')
    else: a(f's_cmp_lt_u32 s{sStep}, {cfg.nsteps}\ns_cbranch_scc1 {loop}\ns_branch {lab_join}')
    for f in cold: f()
    a(f'{lab_fb}:\ns_waitcnt lgkmcnt(0)\ns_barrier')
    saved = list(ds.q); ds.clear()
    m0, m1 = E, E + 1
    if w < 3:
        a(f"""
        v_max3_f32 v{m0}, v{Sc}, v{Sc+1}, v{Sc+2}
        v_max_f32 v{m0}, v{m0}, v{Sc+3}
        v_mov_b32 v{m1}, v{m0}
        s_mov_b64 exec, s[{sMask}:{sMask+1}]
        ds_write_b64 v{vPW}, {R(m0,2)}
        s_mov_b64 exec, -1
        """)
    a('s_waitcnt lgkmcnt(0)\ns_barrier')
    if w < 3:
        a(f"""
        v_subrev_u32 v{m0}, 16, v{vPRx}
        v_lshrrev_b32 v{m0}, 1, v{m0}
        v_and_b32 v{m0}, 127, v{m0}
        ds_read_b128 {R(Px,4)}, v{vPRx} offset:{LD_PX - 16}
        ds_read_b64 {R(Pm,2)}, v{m0} offset:{LD_PM}
        s_waitcnt lgkmcnt(0)
        v_max3_f32 v{m0}, v{Px}, v{Px+2}, v{Pm}
        v_mov_b32 v{m1}, v{m0}
        v_permlane32_swap_b32 v{m0}, v{m1}
        v_max_f32 v{m0}, v{m0}, v{m1}
        v_mov_b32 v{m1}, v{m0}
        v_permlane16_swap_b32 v{m0}, v{m1}
        v_max_f32 v{Px}, v{m0}, v{m1}
        """)
        for i in range(4): a(f'v_sub_f32 v{E+i}, v{Sc+i}, v{Px}')
        for i in range(4): a(f'v_exp_f32 v{E+i}, v{E+i}')
        a(f'v_cvt_pk_bf16_f32 v{E}, v{E}, v{E+1}\nv_cvt_pk_bf16_f32 v{E+1}, v{E+2}, v{E+3}')
    a('s_barrier')
    if w < 3: a(f's_mov_b64 exec, s[{sMask}:{sMask+1}]\nds_write_b64 v{vPW}, {R(E,2)}\ns_mov_b64 exec, -1')
    a(cst(ones, LD_ONE))
    a('s_waitcnt lgkmcnt(0)\ns_barrier')
    fine_save = cfg.fine; cfg.fine = []
    pv(False)
    cfg.fine = fine_save
    ds.clear()
    a(f'v_mov_b64 {R(Ls,2)}, 0\nv_mov_b64 {R(Ls+2,2)}, 0\ns_waitcnt lgkmcnt(0)\ns_branch {lab_back}')
    if cfg.integ:
        a(f"""
        {lab_last}:
        s_waitcnt lgkmcnt(0)
        {tr2(X0, LD_Q, w, vTR)}
        v_lshrrev_b32 v{X1+3}, 1, v{vL16}
        buffer_store_dwordx2 {R(vVp,2)}, v{X1+3}, {WS}, s{sKMn} offen offset:2064 sc1
        s_waitcnt lgkmcnt(0)
        s_mov_b64 exec, s[{sKmask}:{sKmask+1}]
        buffer_store_dwordx4 {R(X0,4)}, v{vPRx}, {WS}, s{sKMn} offen sc1
        s_mov_b64 exec, -1
        s_waitcnt vmcnt(0)
        s_barrier
        """)
    else:
        a(f"""
        {lab_join}:
        s_waitcnt vmcnt(0) lgkmcnt(0)
        {tr2(X0, LD_Q, w, vTR)}
        v_lshrrev_b32 v{X1+3}, 1, v{vL16}
        s_waitcnt lgkmcnt(0)
        s_mov_b64 exec, s[{sKmask}:{sKmask+1}]
        buffer_store_dwordx4 {R(X0,4)}, v{vPRx}, {WS}, s{sKM} offen sc1
        s_mov_b64 exec, -1
        buffer_store_dwordx2 {R(vVp,2)}, v{X1+3}, {WS}, s{sKM} offen offset:2064 sc1
        s_waitcnt vmcnt(0)
        s_barrier
        """)

VARIANTS = [(0, True), (1, True), (2, True), (2, False), (3, False)]

def emit_dispatch(a, labels):
    a(f'''
    s_cmp_eq_u32 s{sW}, 0
    s_cbranch_scc1 {labels[0]}
    s_cmp_eq_u32 s{sW}, 1
    s_cbranch_scc1 {labels[1]}
    s_cmp_eq_u32 s{sW}, 3
    s_cbranch_scc1 {labels[4]}
    s_cmp_lt_u32 s{sH}, 8
    s_cbranch_scc1 {labels[2]}
    s_branch {labels[3]}
    ''')
```

```python
MB = 1 << 20
KX   = 0
VX   = 16 * MB
QX   = 32 * MB
OA   = 48 * MB
KM   = 64 * MB
XSEG = 49152
X0   = 72 * MB
X1   = 75 * MB
QB   = 78 * MB
KVB  = 81 * MB
KVT  = 3200
OB   = 88 * MB
VM   = 92 * MB
LSTRIDE = 96 * MB
PB   = 200 * MB
PB_UNIT = 4224
PB_PAR = 80 * PB_UNIT
MR   = 201 * MB
HN = 201 * MB + 65536
FLAGS = 202 * MB
F_HEAD = FLAGS
F_ATT  = FLAGS + 4096
F_WO   = FLAGS + 4096 + 256
F_BQ   = FLAGS + 4096 + 1024
F_X    = FLAGS + 4096 + 2048
F_OB   = FLAGS + 8192
F_POI  = FLAGS + 4096 + 512
F_HINT = FLAGS + 16384
FLAG_BYTES = 32768
STAMP = 203 * MB
WS_BYTES = 268435456
XBYTES = 2048 * 1152
D_RANK0 = 0; D_TEAM = 4; D_POI = 8; D_CNT = 128
```

```python
from asmdsl import *
import layout as L
from chain import Q, srd, fbits, SCALE_LOG2E, OOB

SCALE_B = (18 ** -0.5) * 1.4426950408889634
sWS = 8; sT = 12; sRole = 16; sW = 17; sBud = 19
sLv = 48
sLay = 49
sX = 20
sY = 24
sS = 28; sNeed = 29; sKnown = 30; sOut = 31; sSig = 32; sPoll = 33; sSrc = 34; sM0 = 35; sDel = 36; sFv = 37
sTmp = 38
sId = 50; sPar = 51; sMul = 52; sStride = 53; sA = 54; sB = 55; sC = 56; sD = 57; sTeam = 58; sSigPrev = 59
sE = 60
sFlag = 62; sN = 63; sJ = 64; sI = 65
sL1 = 70
sKd = 71; sLev = 72; sAct = 73; sTile = 74; sFoT = 75
WS = f's[{sWS}:{sWS+3}]'
vL16 = 0; vLane = 1; vF = 2; vFa = 3

def base_regs(a):
    a(f'v_mbcnt_lo_u32_b32 v{vLane}, -1, 0\nv_mbcnt_hi_u32_b32 v{vLane}, -1, v{vLane}\nv_lshlrev_b32 v{vL16}, 4, v{vLane}')

def budget(a, ex): a(f's_sub_u32 s{sBud}, s{sBud}, 1\ns_cbranch_scc1 {ex}')

def poll(a, ex, mask, vaddr, soff, need, x2=False, sleep=2, vtmp=vF):
    lp = a.lab('L_poll'); dn = a.lab('L_polled')
    if isinstance(mask, int): a(f's_mov_b32 exec_lo, {hex(mask & 0xffffffff)}\ns_mov_b32 exec_hi, {hex(mask >> 32)}')
    else: a(f's_mov_b64 exec, {mask}')
    a(f'{lp}:')
    if x2:
        a(f'buffer_load_dwordx2 {R(vtmp,2)}, v{vaddr}, {WS}, s{soff} offen sc1\ns_waitcnt vmcnt(0)\nv_min_u32 v{vtmp}, v{vtmp}, v{vtmp+1}')
    else:
        a(f'buffer_load_dword v{vtmp}, v{vaddr}, {WS}, s{soff} offen sc1\ns_waitcnt vmcnt(0)')
    a(f'v_cmp_gt_u32 vcc, s{need}, v{vtmp}\ns_cbranch_vccz {dn}\ns_sleep {sleep}')
    budget(a, ex)
    a(f's_branch {lp}\n{dn}:\ns_mov_b64 exec, -1')

def signal(a, soff, sval, vtmp=vF):
    a(f'v_mov_b32 v{vtmp}, s{sval}\ns_mov_b64 exec, 1\nbuffer_store_dword v{vtmp}, v{vL16}, {WS}, s{soff} offen sc1\ns_mov_b64 exec, -1')
    if DEBUG: logtime(a, soff, sval, vtmp, vL16)

DEBUG = False
PROF = False
def prof(a, i):
    if PROF: a(f's_memtime s[94:95]\ns_waitcnt lgkmcnt(0)\ns_sub_u32 s95, s94, s79\ns_mov_b32 s79, s94\ns_add_u32 s{80+i}, s{80+i}, s95')
def prof_dump(a, slot):
    if not PROF: return
    for i in range(12): a(f'v_writelane_b32 v2, s{80+i}, {i}\ns_mov_b32 s{80+i}, 0')
    a(f'''
    s_lshl_b32 s94, s{sRole}, 2
    s_add_u32 s94, s94, s{sW}
    s_lshl_b32 s94, s94, 2
    s_lshr_b32 s95, s{sLv}, 5
    s_add_u32 s94, s94, s95
    s_add_u32 s94, s94, {slot}
    s_lshl_b32 s94, s94, 6
    s_add_u32 s94, s94, {L.STAMP + 8*1024*1024}
    v_lshlrev_b32 v3, 2, v{vLane}
    s_mov_b64 exec, 0xfff
    buffer_store_dword v2, v3, {WS}, s94 offen
    s_mov_b64 exec, -1
    s_waitcnt vmcnt(0)
    ''')
def logtime(a, soff, sval, vtmp, vzero, extra=0, clk='s_memrealtime'):
    a(f'''
    {clk} s[96:97]
    s_sub_u32 s98, s{soff}, {L.FLAGS - extra}
    s_cmp_lt_u32 s98, 16384
    s_cselect_b32 s98, s98, 16384
    s_lshl_b32 s98, s98, 6
    s_add_u32 s98, s98, s{sval}
    s_lshl_b32 s98, s98, 2
    s_add_u32 s98, s98, {L.STAMP}
    s_waitcnt lgkmcnt(0)
    v_mov_b32 v{vtmp}, s96
    s_mov_b64 exec, 1
    buffer_store_dword v{vtmp}, v{vzero}, {WS}, s98 offen
    s_mov_b64 exec, -1
    ''')

def load_ptr_srd(a, s, karg, size):
    a(f's_load_dwordx2 s[{sTmp+6}:{sTmp+7}], s[0:1], {karg}\ns_waitcnt lgkmcnt(0)')
    srd(a, s, sTmp + 6, size)

def ws_srd(a, s, off_sgpr, off_const, size):
    a(f's_add_u32 s{sTmp+6}, s{off_sgpr}, {off_const}\ns_add_u32 s{s}, s{sWS}, s{sTmp+6}\ns_addc_u32 s{s+1}, s{sWS+1}, 0\ns_mov_b32 s{s+2}, {size}\ns_mov_b32 s{s+3}, 0x20000')

WA = lambda ks: 256 + 4 * ks
WF = lambda ks: 400 + 4 * ks if ks < 28 else 224 + 4 * (ks - 28)
CS = 208
LD_PV = 0
LD_X = 1024
M32 = 'v_mfma_f32_32x32x16_bf16'

def one_wave(a, fn):
    sk = a.lab('L_ow')
    a(f's_cmp_lg_u32 s{sW}, 0\ns_cbranch_scc1 {sk}'); fn(); a(f'{sk}:\ns_barrier')

def gemm_load_weights(a, fo, rowstride):
    t = 4
    lp = a.lab('L_wl')
    a(f"""
    v_lshrrev_b32 v{t}, 2, v{vLane}
    v_mul_u32_u24 v{t}, {rowstride}, v{t}
    v_and_b32 v{t+1}, 3, v{vLane}
    v_lshl_add_u32 v{t}, v{t+1}, 4, v{t}
    s_mul_i32 s{sM0}, s{sW}, 36864
    s_mov_b32 s{sB}, s{sM0}
    s_mov_b32 s{sC}, 36
    {lp}:
    s_mov_b32 m0, s{sM0}
    s_add_u32 s{sM0}, s{sM0}, 1024
    buffer_load_dwordx4 v{t}, s[{sT}:{sT+3}], s{sA} offen lds
    s_add_u32 s{sA}, s{sA}, {16*rowstride}
    s_sub_u32 s{sC}, s{sC}, 1
    s_cmp_lg_u32 s{sC}, 0
    s_cbranch_scc1 {lp}
    v_bfe_u32 v{t+3}, v{vLane}, 4, 1
    v_lshlrev_b32 v{t+3}, 5, v{t+3}
    v_lshl_add_u32 v{t+3}, v{t+1}, 3, v{t+3}
    v_add_u32 v{t+3}, s{sB}, v{t+3}
    v_lshrrev_b32 v{t+2}, 5, v{vLane}           ; kh
    v_bfe_u32 v{t+4}, v{vLane}, 2, 2            ; r'
    v_lshl_add_u32 v{t+5}, v{t+2}, {2 if fo else 3}, v{t+4}
    v_lshl_add_u32 v{t+5}, v{t+5}, 6, v{t+3}
    """)
    if fo:
        a(f"""
        v_lshrrev_b32 v{t+6}, 1, v{t+4}
        v_lshl_add_u32 v{t+6}, v{t+2}, 2, v{t+6}
        v_mul_u32_u24 v{t+6}, 18, v{t+6}
        v_and_b32 v{t+4}, 1, v{t+4}
        v_add3_u32 v{t+6}, v{t+6}, v{t+4}, 16
        v_lshl_add_u32 v{t+6}, v{t+6}, 6, v{t+3}
        """)
    a('s_waitcnt vmcnt(0)')
    for ks in range(36):
        for hf in range(2):
            if not fo: dst, va, off = WA(ks), t + 5, (16*ks + 4*hf) * 64
            elif ks < 32: dst, va, off = WF(ks), t + 5, (18*ks + 8*hf) * 64
            else: dst, va, off = WF(ks), t + 6, 18 * (8*(ks-32) + 2*hf) * 64
            a(f'ds_read_b64_tr_b16 {R(dst+2*hf,2)}, v{va} offset:{off}')
        if ks % 4 == 3: a('s_waitcnt lgkmcnt(0)')
    a('s_barrier')

def stat_addr(a, dst, tmp):
    a(f'v_bfe_u32 v{tmp}, v{vLane}, 4, 1\nv_lshrrev_b32 v{dst}, 5, v{vLane}\nv_lshl_add_u32 v{dst}, v{tmp}, 1, v{dst}\nv_and_b32 v{tmp}, 15, v{vLane}\nv_lshlrev_b32 v{tmp}, 2, v{tmp}\nv_lshl_add_u32 v{dst}, v{dst}, 6, v{tmp}')

def add_residual(a, PK, RES, n, T):
    for i in range(n):
        a(f"""
        v_lshlrev_b32 v{T}, 16, v{RES+i}
        v_and_b32 v{T+1}, 0xffff0000, v{RES+i}
        v_lshlrev_b32 v{T+2}, 16, v{PK+i}
        v_and_b32 v{T+3}, 0xffff0000, v{PK+i}
        v_add_f32 v{T}, v{T}, v{T+2}
        v_add_f32 v{T+1}, v{T+1}, v{T+3}
        v_cvt_pk_bf16_f32 v{PK+i}, v{T}, v{T+1}
        """)

def row_stats(a, PK, n, T):
    a(f's_mov_b32 s{sTmp}, 0x3f803f80')
    for i in range(n):
        a(f'v_dot2_f32_bf16 v{T}, v{PK+i}, s{sTmp}, {"0" if i == 0 else f"v{T}"}\nv_dot2_f32_bf16 v{T+1}, v{PK+i}, v{PK+i}, {"0" if i == 0 else f"v{T+1}"}')
    a(f'v_permlane32_swap_b32 v{T}, v{T+1}\nv_add_f32 v{T}, v{T}, v{T+1}')

vR = 4; vSt = 5; vSa = 6; vPo = 7; vTl = 8; vOut = 9
FB = [12 + 4 * i for i in range(4)]
ACC = 28; TMP = 44; PKR = 84; RES = 92; SP = 100

def mfma_loop(a, kind, wreg, gap):
    ds = Q(a, 'lgkmcnt', 15)
    def rd(ks):
        if kind == 'FO' and ks >= 32:
            for hf in range(2): ds.issue(ks, f'ds_read2_b32 {R(FB[ks%4]+2*hf,2)}, v{vTl} offset0:{64*hf} offset1:{64*hf+32}')
            if ks < 35: a(f'v_add_u32 v{vTl}, 1024, v{vTl}')
        else: ds.issue(ks, f'ds_read_b128 {R(FB[ks%4],4)}, v{vR} offset:{ks*1024}')
    for ks in range(3): rd(ks)
    ds.wait(0)
    for ks in range(36):
        W_, F_ = R(wreg(ks), 4), R(FB[ks % 4], 4)
        x, y = (W_, F_) if kind in ('T', 'BT', 'FO') else (F_, W_)
        a(f'{M32} {R(ACC,16)}, {x}, {y}, {"0" if ks == 0 else R(ACC,16)}')
        if ks + 1 < 36: ds.wait(ks + 1)
        if ks + 3 < 36: rd(ks + 3)
        gap(ks, ds)

def ln_phase(a, kind, ex):
    lead = kind in ('T', 'N')
    nd = 11 if lead else 12
    npart = 18 if lead else 36
    mean, rs = TMP + 32, TMP + 33
    for i in range(4): a(f'v_mov_b32 v{FB[0]+i}, 0x3f803f80')
    for ks in range(36):
        W_, O_ = R(WA(ks), 4), R(FB[0], 4)
        x, y = (W_, O_) if kind in ('T', 'BT') else (O_, W_)
        a(f'{M32} {R(CS,16)}, {x}, {y}, {"0" if ks == 0 else R(CS,16)}')
    stat_addr(a, vSt, TMP)
    a(f"""
    v_add_u32 v{vSt}, {LD_X + 36864}, v{vSt}
    v_add_u32 v{vR}, {LD_X}, v{vL16}
    v_lshlrev_b32 v{vFa}, 2, v{vLane}
    s_lshl_b32 s{sTmp}, s{sW}, 8
    v_add_u32 v{vSa}, s{sTmp}, v{vFa}
    v_lshrrev_b32 v{TMP}, 5, v{vLane}
    v_lshl_add_u32 v{vPo}, v{TMP}, 4, s{sTmp}
    s_lshl_b32 s{sTmp}, s{sW}, 10
    v_add_u32 v{vTl}, s{sTmp}, v{vL16}
    s_add_u32 s{sM0}, s{sTmp}, {LD_X}
    s_mov_b32 s{sX+2}, {36864 + 256*npart}
    s_mov_b32 s{sX+3}, 0x20000
    s_mov_b32 s{sDel}, {4*nd*1024}
    s_mov_b32 s{sSigPrev}, {OOB}
    s_mov_b32 s{sS}, 0
    s_mov_b32 s{sKnown}, 0
    s_mov_b32 s{sFv}, 0
    """)
    order = list(range(9, nd)) + list(range(9))
    def dma(i):
        i = order[i]
        return [f's_add_u32 m0, s{sM0}, {4096*i}', f's_movk_i32 s{sA}, {4096*i}' if i < 8 else f's_mov_b32 s{sA}, {4096*i}', f'buffer_load_dwordx4 v{vTl}, s[{sX}:{sX+3}], s{sA} offen sc1 lds']
    def seg_srd(seg): a(f's_mul_i32 s{sD}, s{seg}, {L.XSEG}\ns_add_u32 s{sD}, s{sD}, s{sSrc}\ns_add_u32 s{sX}, s{sWS}, s{sD}\ns_addc_u32 s{sX+1}, s{sWS+1}, 0')
    def wait_x(seg, once=False):
        skip = a.lab('L_have'); lp = a.lab('L_px')
        a(f's_cmp_lt_u32 s{seg}, s{sKnown}\ns_cbranch_scc1 {skip}\ns_waitcnt vmcnt(0)')
        signal(a, sSigPrev, sFv)
        a(f"""
        s_lshl_b32 s{sPoll}, s{seg}, 5
        s_add_u32 s{sPoll}, s{sPoll}, {L.F_X}
        s_mov_b32 exec_lo, 0x1f1f1f1f
        s_mov_b32 exec_hi, 0x1f1f1f1f
        {lp}:
        buffer_load_dword v{vF}, v{vFa}, {WS}, s{sPoll} offen sc1
        """)
        budget(a, ex)
        a(f"""
        s_waitcnt vmcnt(0)
        v_cmp_gt_u32 vcc, s{sL1}, v{vF}
        s_ff1_i32_b64 s{sTmp}, vcc
        s_lshr_b32 s{sTmp}, s{sTmp}, 3
        s_min_u32 s{sTmp}, s{sTmp}, 8
        s_add_u32 s{sKnown}, s{seg}, s{sTmp}
        s_cmp_lg_u32 s{sTmp}, 0
        s_cbranch_scc1 {skip}
        {f's_mov_b32 s{sX+2}, 0' if once else 's_sleep 2'}
        {'' if once else f's_branch {lp}'}
        {skip}:
        s_mov_b64 exec, -1
        """)
    loop = a.lab('L_seg')
    if lead:
        wait_x(sS)
        seg_srd(sS)
        for i in range(nd): a('\n'.join(dma(i)))
        a(f's_waitcnt vmcnt(0)\n{loop}:\ns_add_u32 s{sN}, s{sS}, 1\ns_min_u32 s{sN}, s{sN}, 63')
        prof(a, 0); wait_x(sN, True); prof(a, 1)
        seg_srd(sN)
        a(f's_add_u32 s{sM0}, s{sM0}, s{sDel}\ns_waitcnt vmcnt({3+(1 if DEBUG else 0)})\ns_barrier')
    else:
        have = a.lab('L_have')
        a(f'{loop}:'); prof(a, 0)
        seg_srd(sS)
        a(f's_cmp_lt_u32 s{sS}, s{sKnown}\ns_cbranch_scc1 {have}\ns_waitcnt vmcnt(0)\ns_barrier')
        signal(a, sSigPrev, sFv)
        def w0():
            a(f's_add_u32 s{sNeed}, s{sS}, s{sLv}\ns_mov_b32 s{sPoll}, {L.F_WO}')
            first = a.lab('L_f0'); go = a.lab('L_f1')
            a(f's_cmp_eq_u32 s{sS}, 0\ns_cbranch_scc1 {first}')
            poll(a, ex, 0x00ffffff00ffffff, vFa, sPoll, sNeed, sleep=1)
            a(f's_add_u32 s{sKnown}, s{sS}, 1\ns_mov_b32 exec_lo, 0xffffff\ns_mov_b32 exec_hi, 0xffffff')
            for d in (1, 2, 4, 8):
                a(f's_add_u32 s{sTmp}, s{sNeed}, {d}\nv_cmp_gt_u32 vcc, s{sTmp}, v{vF}\ns_add_u32 s{sTmp}, s{sS}, {d+1}\ns_cmp_eq_u64 vcc, 0\ns_cselect_b32 s{sKnown}, s{sTmp}, s{sKnown}')
            a(f's_mov_b64 exec, -1\ns_branch {go}\n{first}:\ns_add_u32 s{sNeed}, s{sNeed}, 1')
            poll(a, ex, 0xffffff, vFa, sPoll, sNeed, sleep=1)
            a(f's_mov_b32 s{sKnown}, 1\n{go}:\nv_mov_b32 v{vF}, s{sKnown}\nds_write_b32 v{vSa}, v{vF} offset:{LD_PV}\ns_waitcnt lgkmcnt(0)')
        one_wave(a, w0)
        a(f'ds_read_b32 v{vF}, v{vFa} offset:{LD_PV}\ns_mov_b32 s{sSigPrev}, {OOB}\ns_waitcnt lgkmcnt(0)\nv_readfirstlane_b32 s{sKnown}, v{vF}\n{have}:\ns_barrier')
        prof(a, 1)
        for i in range(nd): a('\n'.join(dma(i)))
        a('s_waitcnt vmcnt(6)\ns_barrier')
        signal(a, sSigPrev, sFv)
        a(f's_cmp_eq_u32 s{sW}, 0\ns_cselect_b32 s{sPoll}, {L.F_WO}, s{sSig}')
    prof(a, 2)
    nr = npart // 2
    fin = f"""v_add_f32 v{mean}, v{mean}, v{rs}
        v_mul_f32 v{mean}, {hex(fbits(1.0/576))}, v{mean}
        v_mov_b32 v{rs}, v{mean}
        -
        v_permlane32_swap_b32 v{mean}, v{rs}
        v_fma_f32 v{rs}, -v{mean}, v{mean}, v{rs}
        v_max_f32 v{rs}, 0, v{rs}
        v_add_f32 v{rs}, {hex(fbits(1e-5))}, v{rs}
        -
        v_rsq_f32 v{rs}, v{rs}
        -""".split('\n')
    if kind in ('T', 'BT'): fin += [f'v_mul_f32 v{rs}, s{sC}, v{rs}']
    else:
        fin += [f'v_mul_f32 v{mean}, v{mean}, v{rs}', f'v_cmp_gt_u32 vcc, 32, v{vLane}', '-', f'v_cndmask_b32 v{mean}, v{mean}, v{rs}, vcc', f'*ds_write_b32 v{vSa}, v{mean} offset:{LD_PV}']
        for g in range(8): fin += (['-'] if g % 2 == 0 else []) + [f'*ds_read_b128 {R(TMP+4*g,4)}, v{vPo} offset:{LD_PV + 32*g}']
    fin = [x.strip() for x in fin]
    def gap(ks, ds):
        if ks < nr: ds.issue(('s', ks), f'ds_read2st64_b32 {R(SP+2*(ks%4),2)}, v{vSt} offset0:{2*ks} offset1:{2*ks+1}')
        k = ks - 2
        if 0 <= k < nr:
            ds.wait(('s', k))
            if k == 0: a(f'v_mov_b64 {R(mean,2)}, {R(SP,2)}')
            else: a(f'v_add_f32 v{mean}, v{mean}, v{SP+2*(k%4)}\nv_add_f32 v{rs}, v{rs}, v{SP+2*(k%4)+1}')
        if k >= nr:
            while fin:
                x = fin.pop(0)
                if x == '-': break
                if x[0] == '*': ds.issue('pv', x[1:])
                else: a(x)
        if not lead and ks in (8, 20):
            a(f's_waitcnt vmcnt({(3 if ks == 8 else 0) + (2 if DEBUG else 1)})\ns_barrier')
        if not lead and ks == 21: a(f'buffer_load_dword v{vOut}, v{vFa}, {WS}, s{sPoll} offen sc1')
        if lead:
            if ks % 2 == 1 and ks // 2 < nd: a('\n'.join(dma(ks // 2)))
            if ks == 28:
                prof(a, 3); a(f's_waitcnt vmcnt({nd})'); prof(a, 4); signal(a, sSigPrev, sFv)
    mfma_loop(a, kind, WA, gap)
    assert not fin
    prof(a, 5)
    a(f's_mul_i32 s{sD}, s{sS}, s{sMul}\ns_add_u32 s{sD}, s{sD}, s{sOut}\ns_add_u32 s{sA}, s{sD}, s{sB}')
    a(f's_add_u32 s{sFv}, s{sS}, s{sLv}\ns_add_u32 s{sFv}, s{sFv}, 1\ns_add_u32 s{sS}, s{sS}, 1')
    if lead: a(f'v_add_u32 v{vR}, s{sDel}, v{vR}\nv_add_u32 v{vSt}, s{sDel}, v{vSt}\ns_sub_u32 s{sDel}, 0, s{sDel}')
    a(f's_mov_b32 s{sSigPrev}, s{sSig}')
    a('s_waitcnt lgkmcnt(0)')
    for G in range(2):
        n = 2 if (kind == 'BT' and G == 1) else 8
        rr = range(8 * G, 8 * G + n)
        if kind in ('T', 'BT'):
            for r in rr: a(f'v_fma_f32 v{ACC+r}, -v{mean}, v{CS+r}, v{ACC+r}')
            for r in rr: a(f'v_mul_f32 v{ACC+r}, v{rs}, v{ACC+r}')
        else:
            for r in rr: a(f'v_mul_f32 v{ACC+r}, v{TMP+r}, v{ACC+r}')
            for r in rr: a(f'v_fma_f32 v{ACC+r}, -v{TMP+16+r}, v{CS}, v{ACC+r}')
        for r in rr[::2]: a(f'v_cvt_pk_bf16_f32 v{PKR+r//2}, v{ACC+r}, v{ACC+r+1}')
        if kind == 'BN':
            a(f's_mov_b32 exec_lo, {1 << 18}\ns_mov_b32 exec_hi, {1 << 18}')
            for i in range(4): a(f'v_mov_b32 v{PKR+4*G+i}, 0x3f803f80')
            a('s_mov_b64 exec, -1')
        if n == 8: a(f'buffer_store_dwordx4 {R(PKR+4*G,4)}, v{vL16}, {WS}, s{sA if G else sD} offen sc1')
        else: a(f's_mov_b32 exec_hi, 0\nbuffer_store_dword v{PKR+4}, v{vFa}, {WS}, s{sA} offen sc1\ns_mov_b64 exec, -1')
    if not lead:
        def peek():
            a(f's_waitcnt vmcnt(2)\ns_add_u32 s{sNeed}, s{sS}, s{sLv}\ns_mov_b32 exec_lo, 0xffffff\ns_mov_b32 exec_hi, 0xffffff')
            a(f'v_cmp_gt_u32 vcc, s{sNeed}, v{vOut}\ns_add_u32 s{sTmp}, s{sS}, 1\ns_cmp_eq_u64 vcc, 0\ns_cselect_b32 s{sTmp}, s{sTmp}, 0\ns_max_u32 s{sKnown}, s{sKnown}, s{sTmp}')
            a(f's_mov_b64 exec, -1\nv_mov_b32 v{vF}, s{sKnown}\nds_write_b32 v{vSa}, v{vF} offset:{LD_PV}\ns_waitcnt lgkmcnt(0)')
        one_wave(a, peek)
        a(f'ds_read_b32 v{vF}, v{vFa} offset:{LD_PV}\ns_waitcnt lgkmcnt(0)\nv_readfirstlane_b32 s{sKnown}, v{vF}')
    if lead:
        got = a.lab('L_got')
        a(f's_cmp_lg_u32 s{sX+2}, 0\ns_cbranch_scc1 {got}')
        wait_x(sN)
        a(f's_mov_b32 s{sX+2}, {36864 + 256*npart}')
        for i in range(nd): a('\n'.join(dma(i)))
        a(f's_waitcnt vmcnt(0)\n{got}:')
    a(f's_cmp_lt_u32 s{sS}, 64\ns_cbranch_scc1 {loop}')
    a('s_waitcnt vmcnt(0)\ns_barrier'); signal(a, sSig, sFv)
    a('s_waitcnt vmcnt(0)\ns_barrier')

def natural_order(a, PK):
    for G in range(2):
        for i in range(2): a(f'v_permlane32_swap_b32 v{PK+4*G+i}, v{PK+4*G+2+i}')

def fo_phase(a, ex):
    stat_addr(a, vSt, TMP)
    a(f"""
    v_add_u32 v{vR}, {LD_X}, v{vL16}
    v_and_b32 v{TMP}, 31, v{vLane}
    v_lshrrev_b32 v{TMP+1}, 5, v{vLane}
    v_lshlrev_b32 v{vSa}, 2, v{TMP}
    v_lshl_add_u32 v{vSa}, v{TMP+1}, 9, v{vSa}
    v_add_u32 v{vSa}, {LD_X + 32768}, v{vSa}
    v_mul_u32_u24 v{vOut}, 1152, v{TMP}
    v_lshl_add_u32 v{vOut}, v{TMP+1}, 4, v{vOut}
    v_and_b32 v{TMP}, 15, v{vLane}
    v_lshrrev_b32 v{TMP+1}, 4, v{vLane}
    v_lshlrev_b32 v{vFa}, 3, v{TMP}
    v_lshl_add_u32 v{vFa}, v{TMP+1}, 11, v{vFa}
    s_lshl_b32 s{sPoll}, s{sTeam}, 7
    s_add_u32 s{sPoll}, s{sPoll}, {L.F_OB}
    s_mul_i32 s{sTmp}, s{sW}, 9216
    s_add_u32 s{sM0}, s{sTmp}, {LD_X}
    s_mul_i32 s{sSrc}, s{sTeam}, 36864
    s_add_u32 s{sOut}, s{sSrc}, 0
    s_add_u32 s{sSrc}, s{sSrc}, s{sTmp}
    s_add_u32 s{sSrc}, s{sSrc}, s{sLay}
    s_add_u32 s{sSrc}, s{sSrc}, {L.OB}
    s_lshl_b32 s{sTmp}, s{sFoT}, 6
    s_add_u32 s{sOut}, s{sOut}, s{sTmp}
    s_mul_i32 s{sB}, s{sTeam}, {L.XSEG}
    s_lshl_b32 s{sTmp}, s{sFoT}, 8
    s_add_u32 s{sC}, s{sB}, s{sTmp}
    s_lshl_b32 s{sTmp}, s{sFoT}, 11
    s_add_u32 s{sB}, s{sB}, s{sTmp}
    s_cmp_ge_u32 s{sFoT}, 18
    s_cselect_b32 s{sOut}, {OOB}, s{sOut}
    s_cselect_b32 s{sB}, {OOB}, s{sB}
    s_cselect_b32 s{sC}, {OOB}, s{sC}
    s_lshl_b32 s{sSig}, s{sTeam}, 3
    s_lshr_b32 s{sTmp}, s{sFoT}, 2
    s_add_u32 s{sSig}, s{sSig}, s{sTmp}
    s_lshl_b32 s{sSig}, s{sSig}, 2
    s_add_u32 s{sSig}, s{sSig}, {L.F_X}
    s_cmp_eq_u32 s{sW}, 0
    s_cselect_b32 s{sSig}, s{sSig}, {OOB}
    s_add_u32 s{sFv}, s{sL1}, 1
    """)
    vm = Q(a, 'vmcnt', 63)
    def dma(r):
        for i in range(9):
            if i % 4 == 0: a(f's_add_u32 m0, s{sM0}, {36864*r + 1024*i}\ns_add_u32 s{sA}, s{sSrc}, {16*36864*r + 1024*i}')
            vm.issue(('d', r), f'buffer_load_dwordx4 v{vL16}, {WS}, s{sA} offen offset:{1024*(i%4)} sc1 lds')
    def res(r):
        a(f's_add_u32 s{sA}, s{sB}, s{sLay}\ns_add_u32 s{sA}, s{sA}, {L.X1 + 16*L.XSEG*r}')
        for G in range(2): vm.issue(('r', r), f'buffer_load_dwordx4 {R(RES+4*G,4)}, v{vL16}, {WS}, s{sA} offen offset:{1024*G} sc1')
    def sig(r):
        a('s_waitcnt vmcnt(0)\ns_barrier'); vm.clear()
        a(f's_add_u32 s{sTmp+1}, s{sSig}, {16*32*r}'); signal(a, sTmp + 1, sFv)
        vm.q += ['s'] * (2 if DEBUG else 1)
    for r in range(4):
        prof(a, 0)
        if r == 0:
            one_wave(a, lambda: poll(a, ex, (1 << 48) - 1, vFa, sPoll, sL1, x2=True, sleep=1, vtmp=TMP))
            prof(a, 1)
            dma(0); res(0); dma(1); dma(2)
        elif r == 3:
            sig(2)
            one_wave(a, lambda: poll(a, ex, 0xffff << 48, vFa, sPoll, sL1, x2=True, sleep=1, vtmp=TMP))
            prof(a, 1)
            dma(3); res(3)
        else: res(r)
        vm.wait(('d', r)); a(f's_barrier\nv_mov_b32 v{vTl}, v{vSa}')
        prof(a, 2)
        def gap(ks, ds):
            if ks == 26 and r in (1, 2): sig(r - 1)
        mfma_loop(a, 'FO', WF, gap)
        prof(a, 5)
        a(f'v_add_u32 v{vR}, 36864, v{vR}\nv_add_u32 v{vSa}, 36864, v{vSa}')
        for i in range(8): a(f'v_cvt_pk_bf16_f32 v{PKR+i}, v{ACC+2*i}, v{ACC+2*i+1}')
        natural_order(a, PKR)
        vm.wait(('r', r))
        add_residual(a, PKR, RES, 8, TMP)
        last = a.lab('L_folast'); dn = a.lab('L_fodn')
        a(f's_cmp_lg_u32 s{sLv}, 0\ns_cbranch_scc1 {last}\ns_add_u32 s{sA}, s{sB}, {L.LSTRIDE + L.X0 + 16*L.XSEG*r}')
        for G in range(2): a(f'buffer_store_dwordx4 {R(PKR+4*G,4)}, v{vL16}, {WS}, s{sA} offen offset:{1024*G} sc1')
        row_stats(a, PKR, 8, TMP)
        a(f's_add_u32 s{sA}, s{sC}, {L.LSTRIDE + L.X0 + 16*L.XSEG*r + 36864}\nbuffer_store_dword v{TMP}, v{vSt}, {WS}, s{sA} offen sc1\ns_branch {dn}')
        a(f'{last}:\ns_add_u32 s{sA}, s{sOut}, {16*36864*r}')
        for G in range(2): a(f'buffer_store_dwordx4 {R(PKR+4*G,4)}, v{vOut}, s[{sY}:{sY+3}], s{sA} offen offset:{32*G}')
        a(f'{dn}:')
        vm.q += ['o', 'o']
        prof(a, 7)
    sig(3)
    a('s_waitcnt vmcnt(0)\ns_barrier')

def pre_phase(a):
    stat_addr(a, vSt, TMP)
    a(f"""
    v_and_b32 v{TMP}, 31, v{vLane}
    v_lshrrev_b32 v{TMP+1}, 5, v{vLane}
    v_mul_u32_u24 v{vOut}, 1152, v{TMP}
    v_lshl_add_u32 v{vOut}, v{TMP+1}, 4, v{vOut}
    s_lshr_b32 s{sTmp}, s{sW}, 1
    s_lshl_b32 s{sTmp}, s{sTmp}, 5
    s_add_u32 s{sS}, s{sId}, s{sTmp}
    s_and_b32 s{sTmp}, s{sW}, 1
    s_mul_i32 s{sTile}, s{sTmp}, 9
    s_mul_i32 s{sA}, s{sS}, 36864
    s_lshl_b32 s{sTmp}, s{sTile}, 6
    s_add_u32 s{sA}, s{sA}, s{sTmp}
    s_mul_i32 s{sB}, s{sS}, {L.XSEG}
    s_add_u32 s{sB}, s{sB}, {L.X0}
    s_lshl_b32 s{sTmp}, s{sTile}, 8
    s_add_u32 s{sC}, s{sB}, s{sTmp}
    s_add_u32 s{sC}, s{sC}, 36864
    s_lshl_b32 s{sTmp}, s{sTile}, 11
    s_add_u32 s{sB}, s{sB}, s{sTmp}
    """)
    D = 48
    for i in range(18): a(f'buffer_load_dwordx4 {R(D+4*i,4)}, v{vOut}, s[{sX}:{sX+3}], s{sA} offen offset:{32*i}')
    a('s_waitcnt vmcnt(0)')
    for tl in range(9):
        for G in range(2): a(f'buffer_store_dwordx4 {R(D+8*tl+4*G,4)}, v{vL16}, {WS}, s{sB} offen offset:{1024*G} sc1')
        row_stats(a, D + 8 * tl, 8, 12 + 2 * tl)
        a(f'buffer_store_dword v{12+2*tl}, v{vSt}, {WS}, s{sC} offen offset:{256*tl} sc1\ns_add_u32 s{sB}, s{sB}, 2048')
    a(f"""
    s_waitcnt vmcnt(0)
    s_barrier
    s_lshl_b32 s{sA}, s{sS}, 5
    s_add_u32 s{sA}, s{sA}, {L.F_X}
    s_cmp_eq_u32 s{sTile}, 0
    s_cselect_b32 s{sA}, s{sA}, {OOB}
    v_mov_b32 v{vF}, 1
    v_lshlrev_b32 v{vFa}, 2, v{vLane}
    s_mov_b64 exec, 31
    buffer_store_dword v{vF}, v{vFa}, {WS}, s{sA} offen sc1
    s_mov_b64 exec, -1
    """)

NPOIS = 56
def poison_phase(a):
    lp = a.lab('L_poi')
    load_ptr_srd(a, sT, 88, 256)
    a(f"""
    v_mov_b64 v[4:5], -1
    v_mov_b64 v[6:7], -1
    s_lshl_b32 s{sA}, s{sTile}, 2
    s_add_u32 s{sA}, s{sA}, s{sW}
    s_lshl_b32 s{sA}, s{sA}, 12
    s_add_u32 s{sA}, s{sA}, {L.KM}
    {lp}:
    """)
    for i in range(4): a(f'buffer_store_dwordx4 v[4:7], v{vL16}, {WS}, s{sA} offen offset:{1024*i} sc1')
    a(f"""
    s_add_u32 s{sA}, s{sA}, {NPOIS*4*4096}
    s_cmp_lt_u32 s{sA}, {L.KM + 2048*4096}
    s_cbranch_scc1 {lp}
    s_waitcnt vmcnt(0)
    s_barrier
    v_mov_b32 v4, 1
    s_cmp_eq_u32 s{sW}, 0
    s_cselect_b32 s{sA}, 0, {OOB}
    s_mov_b64 exec, 1
    buffer_atomic_add v4, v{vL16}, s[{sT}:{sT+3}], s{sA} offen offset:{L.D_POI}
    s_mov_b64 exec, -1
    """)

def att_phase(a, ex):
    vKa = 4; vVa = 5; m0 = 6; m1 = 7; vWr = 202
    MK = 8; KMr = 120; VMr = 152; Sx = 160; Sm = 176; Px = 192; Pm = 200; PO = 204
    Qr = 256; Kr = 288; Vr = 320
    O = [24, 40, 56, 72]; PKo = 88; LDm = 24
    a(f"""
    v_lshlrev_b32 v{vFa}, 2, v{vLane}
    s_lshl_b32 s{sTmp}, s{sW}, 12
    v_add_u32 v{vWr}, s{sTmp}, v{vL16}
    v_lshrrev_b32 v{m0}, 5, v{vLane}
    v_and_b32 v{m1}, 7, v{vLane}
    v_lshlrev_b32 v{m1}, 4, v{m1}
    v_lshl_add_u32 v{vKa}, v{m0}, 7, v{m1}
    v_add_u32 v{vKa}, s{sTmp}, v{vKa}
    v_and_b32 v{m1}, 1, v{vLane}
    v_lshl_add_u32 v{m1}, v{m1}, 1, v{m0}
    v_lshlrev_b32 v{m1}, 4, v{m1}
    v_bfe_u32 v{vVa}, v{vLane}, 1, 4
    v_add_lshl_u32 v{vVa}, v{vVa}, v{m1}, 3
    v_add_u32 v{vVa}, s{sTmp}, v{vVa}
    v_and_b32 v{m1}, 31, v{vLane}
    v_lshlrev_b32 v{m0}, 2, v{m0}
    v_sub_u32 v{m1}, v{m1}, v{m0}
    v_mov_b32 v{m0}, 0xff800000
    v_mov_b64 {R(PO,2)}, -1
    v_mov_b64 {R(PO+2,2)}, -1
    """)
    for r in range(16):
        a(f'v_cmp_le_i32 vcc, {8*(r>>2) + (r&3)}, v{m1}\nv_cndmask_b32 v{MK+r}, v{m0}, 0, vcc')
    a(f"""
    s_mov_b32 s{sS}, s{sPar}
    s_lshl_b32 s{sPoll}, s{sId}, 7
    s_add_u32 s{sPoll}, s{sPoll}, {L.F_HEAD}
    s_lshl_b32 s{sSig}, s{sPar}, 5
    s_add_u32 s{sSig}, s{sSig}, s{sId}
    s_lshl_b32 s{sSig}, s{sSig}, 2
    s_add_u32 s{sSig}, s{sSig}, {L.F_ATT}
    s_mov_b32 s{sC}, {fbits(SCALE_LOG2E)}
    s_mov_b32 s{sKnown}, 0
    s_mov_b32 s{sSigPrev}, {OOB}
    s_mov_b32 s{sFv}, 0
    """)
    load_ptr_srd(a, sT, 88, 256)
    pw = a.lab('L_pw')
    a(f'{pw}:\nbuffer_load_dword v{vF}, v{vFa}, s[{sT}:{sT+3}], 0 offen offset:{L.D_POI} sc1\ns_sleep 8')
    budget(a, ex)
    a(f's_waitcnt vmcnt(0)\nv_readfirstlane_b32 s{sTmp}, v{vF}\ns_cmp_lt_u32 s{sTmp}, {NPOIS}\ns_cbranch_scc1 {pw}')
    loop = a.lab('L_att')
    a(f'{loop}:\ns_add_u32 s{sNeed}, s{sS}, s{sLv}\ns_add_u32 s{sNeed}, s{sNeed}, 1')
    prof(a, 0)
    hv = a.lab('L_ahv')
    a(f's_cmp_le_u32 s{sNeed}, s{sKnown}\ns_cbranch_scc1 {hv}\ns_waitcnt vmcnt(0)')
    signal(a, sSigPrev, sFv)
    poll(a, ex, 0xfff, vFa, sPoll, sNeed)
    a(f's_mov_b32 s{sSigPrev}, {OOB}\ns_mov_b64 exec, 0xfff')
    for d in (2, 4, 8, 16, 32):
        a(f's_add_u32 s{sTmp}, s{sNeed}, {d}\nv_cmp_gt_u32 vcc, s{sTmp}, v{vF}\ns_cmp_eq_u64 vcc, 0\ns_cselect_b32 s{sKnown}, s{sTmp}, s{sKnown}')
    a(f's_add_u32 s{sTmp}, s{sLv}, 64\nv_cmp_gt_u32 vcc, s{sTmp}, v{vF}\ns_cmp_eq_u64 vcc, 0\ns_cselect_b32 s{sKnown}, s{sTmp}, s{sKnown}\ns_mov_b64 exec, -1\n{hv}:')
    prof(a, 1)
    a(f"""
    s_lshl_b32 s{sTmp}, s{sS}, 5
    s_add_u32 s{sTmp}, s{sTmp}, s{sId}
    s_lshl_b32 s{sA}, s{sTmp}, 13
    s_add_u32 s{sA}, s{sA}, s{sLay}
    s_lshl_b32 s{sB}, s{sTmp}, 12
    s_add_u32 s{sB}, s{sB}, s{sLay}
    s_add_u32 s{sB}, s{sB}, {L.KM}
    """)
    for base, reg in ((L.QX, Qr), (L.KX, Kr), (L.VX, Vr)):
        for hf in range(2):
            a(f's_add_u32 s{sTmp}, s{sA}, {base + 4096*hf}')
            for i in range(4): a(f'buffer_load_dwordx4 {R(reg+16*hf+4*i,4)}, v{vL16}, {WS}, s{sTmp} offen offset:{1024*i} sc1')
        if reg == Qr:
            a('s_waitcnt vmcnt(8)'); signal(a, sSigPrev, sFv)
    a('s_waitcnt vmcnt(8)')
    npz = a.lab('L_npz')
    a(f's_cmp_lg_u32 s{sLv}, 0\ns_cbranch_scc1 {npz}\ns_add_u32 s{sD}, s{sB}, {L.LSTRIDE}')
    for i in range(4): a(f'buffer_store_dwordx4 {R(PO,4)}, v{vL16}, {WS}, s{sD} offen offset:{1024*i} sc1')
    a(f'{npz}:')
    for f in range(8): a(f'{M32} {R(Sx,16)}, {R(Kr+4*f,4)}, {R(Qr+4*f,4)}, {R(MK,16) if f == 0 else R(Sx,16)}')
    a(f'v_max3_f32 v{m0}, v{Sx}, v{Sx+1}, v{Sx+2}')
    for r in range(3, 15, 2): a(f'v_max3_f32 v{m0}, v{m0}, v{Sx+r}, v{Sx+r+1}')
    a(f'v_max_f32 v{m0}, v{m0}, v{Sx+15}')
    prof(a, 2)
    lp = a.lab('L_km'); dn = a.lab('L_kmd')
    a(f'{lp}:')
    for i in range(4): a(f'buffer_load_dwordx4 {R(LDm+4*i,4)}, v{vL16}, {WS}, s{sB} offen offset:{1024*i} sc1')
    budget(a, ex)
    a(f's_waitcnt vmcnt(0)\nv_max3_u32 v{m1}, v{LDm}, v{LDm+1}, v{LDm+2}')
    for i in range(3, 15, 2): a(f'v_max3_u32 v{m1}, v{m1}, v{LDm+i}, v{LDm+i+1}')
    a(f'v_max_u32 v{m1}, v{m1}, v{LDm+15}\nv_cmp_eq_u32 vcc, -1, v{m1}\ns_cbranch_vccz {dn}\ns_sleep 3\ns_branch {lp}\n{dn}:')
    prof(a, 3)
    for i in range(4): a(f'ds_write_b128 v{vWr}, {R(LDm+4*i,4)} offset:{1024*i}')
    for f in range(8): a(f'ds_read_b128 {R(KMr+4*f,4)}, v{vKa} offset:{256*f}')
    for f in range(8):
        a(f's_waitcnt lgkmcnt({7 - f + min(f, 4)})\n{M32} {R(Sm,16)}, {R(KMr+4*f,4)}, {R(Qr+4*f,4)}, {"0" if f == 0 else R(Sm,16)}')
        if f < 4: a(f'ds_read_b64 {R(VMr+2*f,2)}, v{vVa} offset:{2048 + 512*f}')
    prof(a, 4)
    for i in range(4): a(f'v_mul_f32 v{Sm+i}, s{sC}, v{Sm+i}')
    a(f"""
    v_max3_f32 v{m0}, v{m0}, v{Sm}, v{Sm+1}
    v_max3_f32 v{m0}, v{m0}, v{Sm+2}, v{Sm+3}
    v_mov_b32 v{m1}, v{m0}
    v_permlane32_swap_b32 v{m0}, v{m1}
    v_max_f32 v{m0}, v{m0}, v{m1}
    """)
    for r in range(20): a(f'v_sub_f32 v{Sx+r}, v{Sx+r}, v{m0}')
    for r in range(20): a(f'v_exp_f32 v{Sx+r}, v{Sx+r}')
    a(f'v_add_f32 v{m0}, v{Sx}, v{Sx+1}\nv_add_f32 v{m1}, v{Sx+2}, v{Sx+3}')
    for r in range(4, 20, 2): a(f'v_add_f32 v{m0}, v{m0}, v{Sx+r}\nv_add_f32 v{m1}, v{m1}, v{Sx+r+1}')
    a(f"""
    v_add_f32 v{m0}, v{m0}, v{m1}
    v_mov_b32 v{m1}, v{m0}
    v_permlane32_swap_b32 v{m0}, v{m1}
    v_add_f32 v{m0}, v{m0}, v{m1}
    v_rcp_f32 v{m0}, v{m0}
    """)
    for r in range(20): a(f'v_mul_f32 v{Sx+r}, v{m0}, v{Sx+r}')
    for r in range(0, 20, 2): a(f'v_cvt_pk_bf16_f32 v{Px+r//2}, v{Sx+r}, v{Sx+r+1}')
    a(f's_waitcnt lgkmcnt(0)\ns_add_u32 s{sA}, s{sA}, {L.OA}\ns_add_u32 s{sD}, s{sA}, 4096')
    def out(e):
        for G in range(2):
            for r in range(8*G, 8*G + 8, 2): a(f'v_cvt_pk_bf16_f32 v{PKo+8*e+r//2}, v{O[e]+r}, v{O[e]+r+1}')
            a(f'buffer_store_dwordx4 {R(PKo+8*e+4*G,4)}, v{vL16}, {WS}, s{sA if e < 2 else sD} offen offset:{2048*(e&1) + 1024*G} sc1')
    m8 = lambda e: a(f'v_mfma_f32_32x32x8_bf16 {R(O[e],16)}, {R(VMr+2*e,2)}, {R(Pm,2)}, 0')
    m8(0); m8(1)
    for e in range(4):
        for G in range(2): a(f'{M32} {R(O[e],16)}, {R(Vr+8*e+4*G,4)}, {R(Px+4*G,4)}, {R(O[e],16)}')
        if e + 2 < 4: m8(e + 2)
        if e >= 1: out(e - 1)
    out(3)
    prof(a, 5)
    a(f's_mov_b32 s{sFv}, s{sNeed}\ns_mov_b32 s{sSigPrev}, s{sSig}\ns_add_u32 s{sS}, s{sS}, 2\ns_cmp_lt_u32 s{sS}, 64\ns_cbranch_scc1 {loop}\ns_waitcnt vmcnt(0)')
    signal(a, sSig, sFv)
    a('s_waitcnt vmcnt(0)\ns_barrier')

def wo_reg(f, ct):
    i = ct * 32 + f
    return 256 + 4 * i if i < 64 else 128 + 4 * (i - 64)

def wo_load_weights(a):
    t = 4
    a(f"""
    v_lshrrev_b32 v{t}, 1, v{vLane}
    v_mul_u32_u24 v{t}, 1152, v{t}
    v_and_b32 v{t+1}, 1, v{vLane}
    v_lshl_add_u32 v{t}, v{t+1}, 4, v{t}
    v_lshrrev_b32 v{t+2}, 5, v{vLane}
    v_bfe_u32 v{t+3}, v{vLane}, 4, 1
    v_lshl_add_u32 v{t+2}, v{t+2}, 2, v{t+3}
    v_bfe_u32 v{t+3}, v{vLane}, 2, 2
    v_lshl_add_u32 v{t+2}, v{t+2}, 2, v{t+3}
    v_and_b32 v{t+3}, 3, v{vLane}
    v_lshlrev_b32 v{t+3}, 3, v{t+3}
    v_lshl_add_u32 v{t+2}, v{t+2}, 5, v{t+3}
    s_lshl_b32 s{sB}, s{sW}, 15
    v_add_u32 v{t+2}, s{sB}, v{t+2}
    """)
    for ct in range(3):
        lp = a.lab('L_wol')
        a(f"""
        s_mul_i32 s{sA}, s{sW}, {1024*1152}
        s_mul_i32 s{sC}, s{sId}, 96
        s_add_u32 s{sA}, s{sA}, s{sC}
        s_add_u32 s{sA}, s{sA}, {32*ct}
        s_mov_b32 s{sM0}, s{sB}
        s_mov_b32 s{sC}, 32
        {lp}:
        s_mov_b32 m0, s{sM0}
        s_add_u32 s{sM0}, s{sM0}, 1024
        buffer_load_dwordx4 v{t}, s[{sT}:{sT+3}], s{sA} offen lds
        s_add_u32 s{sA}, s{sA}, {32*1152}
        s_sub_u32 s{sC}, s{sC}, 1
        s_cmp_lg_u32 s{sC}, 0
        s_cbranch_scc1 {lp}
        s_waitcnt vmcnt(0)
        """)
        for f in range(32):
            for hf in range(2): a(f'ds_read_b64_tr_b16 {R(wo_reg(f,ct)+2*hf,2)}, v{t+2} offset:{f*1024 + 256*hf}')
            if f % 4 == 3: a('s_waitcnt lgkmcnt(0)')
    a('s_barrier')

WO_NB = 14
def wo_phase(a, ex):
    ACC = 4; LB = [16 + 4 * i for i in range(WO_NB)]; RES = 116; vOa = 120; vXa = 121; vSt_ = 122; vWr = 124; vRd = 125
    NB = len(LB)
    a(f"""
    v_lshlrev_b32 v{vFa}, 2, v{vLane}
    v_and_b32 v{vSt_}, 15, v{vLane}
    v_lshrrev_b32 v{vWr}, 4, v{vLane}
    v_lshrrev_b32 v{vRd}, 5, v{vLane}
    s_lshl_b32 s{sTmp}, s{sTeam}, 4
    v_add_lshl_u32 v{vXa}, v{vSt_}, s{sTmp}, 4
    v_lshl_add_u32 v{vOa}, v{vWr}, 9, v{vXa}
    v_lshl_add_u32 v{vXa}, v{vRd}, 9, v{vXa}
    v_lshlrev_b32 v{vSt_}, 2, v{vSt_}
    v_lshl_add_u32 v{vSt_}, v{vRd}, 6, v{vSt_}
    s_mul_i32 s{sTmp}, s{sW}, 3072
    v_add_u32 v{vWr}, s{sTmp}, v{vL16}
    s_lshl_b32 s{sTmp}, s{sW}, 10
    v_add_u32 v{vRd}, s{sTmp}, v{vL16}
    s_mul_i32 s{sTmp}, s{sId}, 3
    s_add_u32 s{sTmp}, s{sTmp}, s{sW}
    s_lshl_b32 s{sOut}, s{sTmp}, 10
    s_add_u32 s{sOut}, s{sOut}, s{sLay}
    s_lshl_b32 s{sC}, s{sTmp}, 8
    s_lshl_b32 s{sTmp}, s{sTeam}, 7
    s_add_u32 s{sC}, s{sC}, s{sTmp}
    s_add_u32 s{sC}, s{sC}, s{sLay}
    s_add_u32 s{sC}, s{sC}, {L.X1 + 36864}
    s_cmp_eq_u32 s{sW}, 3
    s_cselect_b32 s{sOut}, {OOB}, s{sOut}
    s_cselect_b32 s{sC}, {OOB}, s{sC}
    s_mov_b32 s{sS}, s{sPar}
    s_lshl_b32 s{sPoll}, s{sPar}, 7
    s_add_u32 s{sPoll}, s{sPoll}, {L.F_ATT}
    s_mul_i32 s{sSig}, s{sTeam}, 12
    s_add_u32 s{sSig}, s{sSig}, s{sId}
    s_lshl_b32 s{sTmp}, s{sPar}, 5
    s_add_u32 s{sSig}, s{sSig}, s{sTmp}
    s_lshl_b32 s{sSig}, s{sSig}, 2
    s_add_u32 s{sSig}, s{sSig}, {L.F_WO}
    s_cmp_eq_u32 s{sW}, 0
    s_cselect_b32 s{sSig}, s{sSig}, {OOB}
    s_mov_b32 s{sE}, 0xffff
    s_mov_b32 s{sE+1}, 0xffff
    """)
    loop = a.lab('L_wo')
    a(f"""
    {loop}:
    s_add_u32 s{sNeed}, s{sS}, s{sLv}
    s_add_u32 s{sNeed}, s{sNeed}, 1
    s_lshl_b32 s{sA}, s{sS}, 18
    s_lshl_b32 s{sTmp}, s{sW}, 16
    s_add_u32 s{sA}, s{sA}, s{sTmp}
    s_add_u32 s{sA}, s{sA}, s{sLay}
    s_add_u32 s{sA}, s{sA}, {L.OA}
    s_mul_i32 s{sD}, s{sS}, {L.XSEG}
    s_add_u32 s{sB}, s{sD}, s{sC}
    s_add_u32 s{sD}, s{sD}, s{sOut}
    s_add_u32 s{sSrc}, s{sD}, {L.X0}
    s_add_u32 s{sD}, s{sD}, {L.X1}
    """)
    prof(a, 0)
    one_wave(a, lambda: poll(a, ex, 0xffffffff, vFa, sPoll, sNeed, sleep=1))
    prof(a, 1)
    vm = Q(a, 'vmcnt', 63)
    def ld(f):
        vm.issue(f, f'buffer_load_dwordx4 {R(LB[f%NB],4)}, v{vOa}, {WS}, s{sA} offen offset:{2048*(f&1)} sc1')
        if f & 1: a(f's_add_u32 s{sA}, s{sA}, 4096')
    for f in range(NB): ld(f)
    for f in range(32):
        vm.wait(f)
        if f == 0: prof(a, 2)
        for ct in range(3):
            a(f'v_mfma_f32_16x16x32_bf16 {R(ACC+4*ct,4)}, {R(wo_reg(f,ct),4)}, {R(LB[f%NB],4)}, {"0" if f == 0 else R(ACC+4*ct,4)}')
        if f + NB < 32: ld(f + NB)
        if f + NB == 32: vm.issue('r', f'buffer_load_dwordx4 {R(RES,4)}, v{vXa}, {WS}, s{sSrc} offen sc1')
    prof(a, 3)
    for ct in range(3): a(f'ds_write_b128 v{vWr}, {R(ACC+4*ct,4)} offset:{1024*ct}')
    a('s_waitcnt lgkmcnt(0)\ns_barrier')
    for ww in range(4): a(f'ds_read_b128 {R(16+4*ww,4)}, v{vRd} offset:{3072*ww}')
    a('s_waitcnt vmcnt(0) lgkmcnt(0)')
    for i in range(4): a(f'v_add_f32 v{16+i}, v{16+i}, v{20+i}\nv_add_f32 v{24+i}, v{24+i}, v{28+i}')
    for i in range(4): a(f'v_add_f32 v{16+i}, v{16+i}, v{24+i}')
    a('v_cvt_pk_bf16_f32 v32, v16, v17\nv_cvt_pk_bf16_f32 v33, v18, v19\nv_permlane16_swap_b32 v32, v34\nv_permlane16_swap_b32 v33, v35')
    add_residual(a, 32, RES, 4, 36)
    a(f's_mov_b64 exec, s[{sE}:{sE+1}]\nbuffer_store_dwordx4 {R(32,4)}, v{vXa}, {WS}, s{sD} offen sc1\ns_mov_b64 exec, -1')
    row_stats(a, 32, 4, 36)
    a(f's_mov_b64 exec, s[{sE}:{sE+1}]\nbuffer_store_dword v36, v{vSt_}, {WS}, s{sB} offen sc1\ns_mov_b64 exec, -1')
    prof(a, 4)
    a('s_waitcnt vmcnt(0)\ns_barrier')
    prof(a, 5)
    signal(a, sSig, sNeed)
    a(f's_add_u32 s{sS}, s{sS}, 2\ns_cmp_lt_u32 s{sS}, 64\ns_cbranch_scc1 {loop}\ns_waitcnt vmcnt(0)\ns_barrier')

def ba_phase(a, ex):
    O = [12 + 16 * u for u in range(4)]; Qs = [76 + 8 * u for u in range(4)]
    S = [108, 124]; P = 140; OC = 148; QC = 164; ST = [172, 186]; CI = 200; T = 216
    vH = 4; vK0 = 5; vK1 = 6; vV0 = 7; vWr = 8; vRd = 9; vSg = 10
    K1 = lambda b: ST[b]; K0 = lambda b: ST[b] + 2; V = lambda b, G: ST[b] + 6 + 4 * G
    KV = f's[{sX}:{sX+3}]'
    a(f"""
    v_lshlrev_b32 v{vFa}, 2, v{vLane}
    v_mov_b32 v{T}, {OOB}
    v_cmp_gt_u32 vcc, 32, v{vLane}
    v_cndmask_b32 v{vH}, v{T}, v{vFa}, vcc
    s_mul_i32 s{sTmp}, s{sW}, 3072
    v_add_u32 v{vWr}, s{sTmp}, v{vL16}
    v_mov_b32 v{vRd}, v{vL16}
    v_lshlrev_b32 v{vSg}, 11, v{vLane}
    s_lshr_b32 s{sPoll}, s{sJ}, 2
    s_lshl_b32 s{sPoll}, s{sPoll}, 7
    s_add_u32 s{sPoll}, s{sPoll}, {L.F_BQ}
    s_mul_i32 s{sTmp}, s{sJ}, {64*L.KVT}
    s_add_u32 s{sTmp}, s{sTmp}, s{sLay}
    """)
    ws_srd(a, sX, sTmp, L.KVB, 0)
    a(f"""
    s_mul_i32 s{sSrc}, s{sJ}, {64*1152}
    s_add_u32 s{sSrc}, s{sSrc}, s{sLay}
    s_add_u32 s{sSrc}, s{sSrc}, {L.QB}
    s_lshl_b32 s{sTmp}, s{sW}, 2
    s_add_u32 s{sTmp}, s{sTmp}, s{sI}
    s_lshl_b32 s{sSig}, s{sTmp}, 5
    s_add_u32 s{sSig}, s{sSig}, s{sJ}
    s_lshl_b32 s{sSig}, s{sSig}, 2
    s_add_u32 s{sSig}, s{sSig}, {L.F_OB}
    s_mul_i32 s{sOut}, s{sTmp}, 36864
    s_add_u32 s{sOut}, s{sOut}, s{sLay}
    s_add_u32 s{sOut}, s{sOut}, {L.OB}
    s_lshl_b32 s{sTmp}, s{sJ}, 7
    s_add_u32 s{sB}, s{sOut}, s{sTmp}
    s_add_u32 s{sB}, s{sB}, 32768
    s_lshl_b32 s{sTmp}, s{sJ}, 10
    s_add_u32 s{sOut}, s{sOut}, s{sTmp}
    s_mov_b32 s{sKd}, 0
    s_mov_b32 s{sKnown}, 0
    s_mov_b32 s{sAct}, 0
    s_mov_b32 s{sS}, s{sI}
    s_mov_b32 s{sDel}, 12288
    """)
    for r in [q + i for q in Qs + [QC] for i in (5, 6, 7)] + [ST[0] + 1, ST[1] + 1] + list(range(CI, CI + 16)): a(f'v_mov_b32 v{r}, 0')
    def set_stride(n):
        a(f's_mov_b32 s{sMul}, {n*L.KVT}\nv_add_u32 v{vK0}, {2*n*L.KVT}, v{vL16}\nv_add_u32 v{vK1}, {2*n*L.KVT}, v{vH}\nv_add_u32 v{vV0}, {n*L.KVT}, v{vL16}')
    set_stride(4)
    def ldk(b, so, k0=vL16, k1=vH): return f'buffer_load_dwordx4 {R(K0(b),4)}, v{k0}, {KV}, s{so} offen sc1\nbuffer_load_dword v{K1(b)}, v{k1}, {KV}, s{so} offen offset:3072 sc1'
    def ldv(b, G, so, va=vL16): return f'buffer_load_dwordx4 {R(V(b,G),4)}, v{va}, {KV}, s{so} offen offset:{1024*(G+1)} sc1'
    def qk0(sb, b, q, c='0'): return f'{M32} {R(S[sb],16)}, {R(K0(b),4)}, {R(q,4)}, {c}'
    def qk1(sb, b, q): return f'{M32} {R(S[sb],16)}, {R(K1(b),4)}, {R(q+4,4)}, {R(S[sb],16)}'
    def pv(o, b, G): return f'{M32} {R(o,16)}, {R(V(b,G),4)}, {R(P+4*G,4)}, {R(o,16)}'
    def body(sb, ms):
        s_ = S[sb]
        for g in range(4):
            if ms[g]: a(ms[g])
            for i in range(4): a(f'v_exp_f32 v{s_+4*g+i}, v{s_+4*g+i}')
            a(f'v_cvt_pk_bf16_f32 v{P+2*g}, v{s_+4*g}, v{s_+4*g+1}\nv_cvt_pk_bf16_f32 v{P+2*g+1}, v{s_+4*g+2}, v{s_+4*g+3}')
    def sweep():
        lp = a.lab('L_sw')
        a(ldk(0, sA)); a(ldv(0, 0, sA)); a(ldv(0, 1, sA))
        a(f's_add_u32 s{sA}, s{sA}, s{sMul}')
        a(ldk(1, sA)); a(ldv(1, 0, sA))
        for i in range(0, 16, 2): a(f'v_mov_b64 {R(OC+i,2)}, 0')
        for i in range(0, 4, 2): a(f'v_mov_b64 {R(P+4+i,2)}, 0\nv_mov_b64 {R(V(1,1)+i,2)}, 0')
        a(f's_add_u32 s{sTmp}, s{sA}, s{sMul}\ns_waitcnt vmcnt(5)')
        a(qk0(0, 0, QC, R(CI, 16))); a(qk1(0, 0, QC))
        a(ldk(0, sTmp))
        a(f's_waitcnt vmcnt(2)\n{lp}:')
        for b in range(2):
            body(b, [qk0(1-b, 1-b, QC, R(CI, 16)), qk1(1-b, 1-b, QC) + '\n' + ldk(1-b, sA, vK0, vK1),
                     pv(OC, 1-b, 1) + '\n' + ldv(1-b, 1, sA), pv(OC, b, 0) + '\n' + ldv(b, 0, sA, vV0)])
            a(f's_add_u32 s{sA}, s{sA}, s{sMul}\ns_waitcnt vmcnt(4)')
        a(f's_sub_u32 s{sN}, s{sN}, 1\ns_cmp_lg_u32 s{sN}, 0\ns_cbranch_scc1 {lp}')
        a(pv(OC, 1, 1))
    def finalize(u):
        fb = a.lab('L_fb'); ok = a.lab('L_fok')
        lo, hi = fbits(2.0 ** -60), fbits(2.0 ** 60)
        o = O[u]
        def getl(): a(f'v_mov_b32 v{T}, v{o+10}\nv_mov_b32 v{T+1}, v{o+10}\nv_permlane32_swap_b32 v{T}, v{T+1}')
        getl()
        a(f'v_subrev_u32 v{T+1}, {hex(lo)}, v{T}\nv_cmp_lt_u32 vcc, {hex(hi - lo)}, v{T+1}\ns_cbranch_vccnz {fb}\n{ok}:\nv_rcp_f32 v{T}, v{T}')
        for r in range(10): a(f'v_mul_f32 v{o+r}, v{T}, v{o+r}')
        for r in range(0, 10, 2): a(f'v_cvt_pk_bf16_f32 v{o+r//2}, v{o+r}, v{o+r+1}')
        a(f"""
        s_add_u32 s{sTmp}, s{sOut}, {16*36864*u}
        s_add_u32 s{sTmp+1}, s{sB}, {16*36864*u}
        buffer_store_dwordx4 {R(o,4)}, v{vL16}, {WS}, s{sTmp} offen sc1
        buffer_store_dword v{o+4}, v{vH}, {WS}, s{sTmp+1} offen sc1
        """)
        def cold():
            ret = a.lab('L_fbr')
            a(f'{fb}:')
            for i in range(0, 6, 2): a(f'v_mov_b64 {R(QC+i,2)}, {R(Qs[u]+i,2)}')
            a(f's_mov_b32 s{sFlag}, {len(rets)}\ns_branch {redo}\n{ret}:')
            for i in range(0, 12, 2): a(f'v_mov_b64 {R(o+i,2)}, {R(OC+i,2)}')
            getl(); a(f's_branch {ok}')
            rets.append(ret)
        colds.append(cold)
    colds = []; rets = []; redo = a.lab('L_redo')
    def publish(mask):
        a(f's_waitcnt vmcnt(0)\nv_mov_b32 v{vF}, s{sL1}\ns_mov_b64 exec, {mask}\nbuffer_store_dword v{vF}, v{vSg}, {WS}, s{sSig} offen sc1\ns_mov_b64 exec, -1')
        if DEBUG: logtime(a, sSig, sL1, vF, vL16, 2048 * (3 if mask == 8 else 0))
    level = a.lab('L_lev'); nokeys = a.lab('L_nokeys'); nocatch = a.lab('L_nocatch'); end = a.lab('L_baend')
    a(f"""
    {level}:
    s_add_u32 s{sLev}, s{sS}, 1
    s_cmp_eq_u32 s{sS}, 62
    s_cselect_b32 s{sLev}, 64, s{sLev}
    s_mov_b32 s{sTile}, s{sLev}
    s_cmp_lt_u32 s{sKd}, 63
    s_cselect_b32 s{sTmp}, 63, 64
    s_min_u32 s{sLev}, s{sLev}, s{sTmp}
    s_mul_i32 s{sX+2}, s{sLev}, {L.KVT}
    """)
    prof(a, 0)
    def w0():
        sk = a.lab('L_kn')
        a(f's_cmp_le_u32 s{sLev}, s{sKnown}\ns_cbranch_scc1 {sk}\ns_add_u32 s{sNeed}, s{sLev}, s{sLv}')
        poll(a, ex, 7, vFa, sPoll, sNeed, sleep=3)
        a(f'v_readlane_b32 s{sKnown}, v{vF}, 0\nv_readlane_b32 s{sTmp}, v{vF}, 1\ns_min_u32 s{sKnown}, s{sKnown}, s{sTmp}\nv_readlane_b32 s{sTmp}, v{vF}, 2\ns_min_u32 s{sKnown}, s{sKnown}, s{sTmp}\ns_sub_u32 s{sKnown}, s{sKnown}, s{sLv}\n{sk}:')
    one_wave(a, w0)
    prof(a, 1)
    kl = [a.lab('L_k') for _ in range(5)]
    a(f's_sub_u32 s{sN}, s{sLev}, s{sKd}\ns_mul_i32 s{sA}, s{sKd}, {L.KVT}\ns_mov_b32 s{sKd}, s{sLev}')
    a(f's_cmp_eq_u32 s{sAct}, 0\ns_cbranch_scc1 {nokeys}')
    def ldall(b): a(ldk(b, sA)); a(ldv(b, 0, sA)); a(ldv(b, 1, sA)); a(f's_add_u32 s{sA}, s{sA}, {L.KVT}')
    ldall(0)
    for n in range(1, 4): a(f's_cmp_eq_u32 s{sAct}, {n}\ns_cbranch_scc1 {kl[n]}')
    for n in (4, 3, 2, 1):
        a(f'{kl[n]}:')
        for b in range(2):
            ldall(1 - b)
            a('s_waitcnt vmcnt(6)'); a(qk0(0, b, Qs[0])); a(qk1(0, b, Qs[0])); a('s_waitcnt vmcnt(4)')
            for u in range(n):
                nx = u + 1 < n
                body(u & 1, [qk0(1-(u&1), b, Qs[u+1]) if nx else None, qk1(1-(u&1), b, Qs[u+1]) if nx else None, pv(O[u-1], b, 1) if u else None, pv(O[u], b, 0)])
            a(pv(O[n-1], b, 1))
            a(f's_sub_u32 s{sN}, s{sN}, 1\ns_cmp_eq_u32 s{sN}, 0\ns_cbranch_scc1 {nokeys}')
        a(f's_branch {kl[n]}')
    a(f'{nokeys}:')
    prof(a, 2)
    notlast = a.lab('L_nl'); three = a.lab('L_f3')
    a(f's_cmp_lg_u32 s{sLev}, 64\ns_cbranch_scc1 {notlast}')
    for u in range(3): finalize(u)
    a(f's_cmp_lg_u32 s{sAct}, 4\ns_cbranch_scc1 {three}')
    finalize(3); publish(15)
    a(f's_branch {notlast}\n{three}:'); publish(7)
    a(f'{notlast}:')
    prof(a, 3)
    a(f"""
    s_cmp_lg_u32 s{sTile}, s{sLev}
    s_cbranch_scc1 {nocatch}
    s_mul_i32 s{sTmp}, s{sS}, 1152
    s_add_u32 s{sTmp}, s{sTmp}, s{sSrc}
    s_waitcnt vmcnt(0)
    buffer_load_dwordx4 {R(QC,4)}, v{vL16}, {WS}, s{sTmp} offen sc1
    buffer_load_dword v{QC+4}, v{vH}, {WS}, s{sTmp} offen offset:1024 sc1
    s_mul_i32 s{sA}, s{sW}, {L.KVT}
    s_add_u32 s{sN}, s{sLev}, 7
    s_lshr_b32 s{sN}, s{sN}, 3
    """)
    sweep()
    prof(a, 4)
    for g in range(3): a(f'ds_write_b128 v{vWr}, {R(OC+4*g,4)} offset:{1024*g}')
    notmine = a.lab('L_nm')
    a(f"""
    s_lshr_b32 s{sTmp}, s{sS}, 2
    s_and_b32 s{sTmp}, s{sTmp}, 3
    s_add_u32 s{sS}, s{sS}, 4
    s_waitcnt vmcnt(0) lgkmcnt(0)
    s_barrier
    s_cmp_lg_u32 s{sTmp}, s{sW}
    s_cbranch_scc1 {notmine}
    """)
    RD = S[0]
    for ww in range(4):
        for g in range(3): a(f'ds_read_b128 {R(RD+12*ww+4*g,4)}, v{vRd} offset:{3072*ww + 1024*g}')
    a('s_waitcnt lgkmcnt(6)')
    for r in range(11): a(f'v_add_f32 v{RD+r}, v{RD+r}, v{RD+12+r}')
    a('s_waitcnt lgkmcnt(0)')
    for r in range(11): a(f'v_add_f32 v{RD+24+r}, v{RD+24+r}, v{RD+36+r}')
    sl = [a.lab('L_sl') for _ in range(4)]; sd = a.lab('L_sld')
    for u in range(1, 4): a(f's_cmp_eq_u32 s{sAct}, {u}\ns_cbranch_scc1 {sl[u]}')
    for u in range(4):
        a(f'{sl[u]}:')
        for r in range(11): a(f'v_add_f32 v{O[u]+r}, v{RD+r}, v{RD+24+r}')
        for i in range(0, 6, 2): a(f'v_mov_b64 {R(Qs[u]+i,2)}, {R(QC+i,2)}')
        if u < 3: a(f's_branch {sd}')
    a(f'{sd}:\ns_add_u32 s{sAct}, s{sAct}, 1\ns_cmp_lg_u32 s{sLev}, 64\ns_cbranch_scc1 {notmine}')
    finalize(3); publish(8)
    a(f'{notmine}:\nv_add_u32 v{vWr}, s{sDel}, v{vWr}\nv_add_u32 v{vRd}, s{sDel}, v{vRd}\ns_sub_u32 s{sDel}, 0, s{sDel}')
    prof(a, 5)
    a(f'{nocatch}:\ns_cmp_lt_u32 s{sKd}, 64\ns_cbranch_scc1 {level}\ns_branch {end}')
    for c in colds: c()
    mx = a.lab('L_mx')
    a(f'{redo}:\ns_waitcnt vmcnt(0)\ns_mov_b32 s{sA}, 0\nv_mov_b32 v{T}, 0xff800000\n{mx}:')
    a(ldk(0, sA)); a('s_waitcnt vmcnt(0)'); a(qk0(0, 0, QC)); a(qk1(0, 0, QC))
    for r in range(0, 16, 2): a(f'v_max3_f32 v{T}, v{T}, v{S[0]+r}, v{S[0]+r+1}')
    a(f"""
    s_add_u32 s{sA}, s{sA}, {L.KVT}
    s_cmp_lt_u32 s{sA}, {64*L.KVT}
    s_cbranch_scc1 {mx}
    v_mov_b32 v{T+1}, v{T}
    v_permlane32_swap_b32 v{T}, v{T+1}
    v_max_f32 v{T}, v{T}, v{T+1}
    s_mov_b32 s{sA}, 0
    s_mov_b32 s{sN}, 32
    """)
    for i in range(16): a(f'v_sub_f32 v{CI+i}, 0, v{T}')
    set_stride(1)
    sweep()
    a('s_waitcnt vmcnt(0)')
    set_stride(4)
    for i in range(16): a(f'v_mov_b32 v{CI+i}, 0')
    for i, r in enumerate(rets[:-1]): a(f's_cmp_eq_u32 s{sFlag}, {i}\ns_cbranch_scc1 {r}')
    a(f's_branch {rets[-1]}\n{end}:\ns_waitcnt vmcnt(0)\ns_barrier')

C_PT, C_PN, C_WO, C_AT, C_BT, C_BN, C_SP = range(7)
sCls = 66; sM = 67; sBa = 68; sFo = 69

def worker_program(a):
    ex = 'L_wexit'
    if PROF:
        for i in range(13): a(f's_mov_b32 s{79+i}, 0')
    base_regs(a)
    if DEBUG: a(f's_mov_b32 s99, {L.FLAGS + 64}'); logtime(a, 99, sRole, vF, vL16)
    lab = {c: f'L_init{c}' for c in range(7)}
    X = sTmp; r5 = sTmp + 1
    a(f"""
    s_lshr_b32 s{X}, s{sRole}, 5
    s_and_b32 s{r5}, s{sRole}, 31
    s_mov_b32 s{sPar}, 0
    s_mov_b32 s{sId}, 0
    s_mov_b32 s{sTeam}, 0
    s_mov_b32 s{sM}, 0
    s_mov_b32 s{sL1}, 1
    s_mov_b32 s{sBa}, -1
    s_mov_b32 s{sFo}, -1
    s_cmp_ge_u32 s{X}, 5
    s_cbranch_scc1 L_x567
    s_sub_u32 s{X}, s{X}, 1
    s_mul_i32 s{sTmp+2}, s{X}, 20
    s_add_u32 s{sTmp+2}, s{sTmp+2}, s{r5}
    s_cmp_lt_u32 s{r5}, 20
    s_cbranch_scc1 L_heavy
    s_sub_u32 s{sId}, s{r5}, 20
    s_and_b32 s{sTeam}, s{X}, 1
    s_lshr_b32 s{sPar}, s{X}, 1
    s_branch {lab[C_WO]}
    L_x567:
    s_lshl_b32 s{sTmp+2}, s{X}, 4
    s_add_u32 s{sTmp+2}, s{sTmp+2}, s{r5}
    s_cmp_lt_u32 s{r5}, 16
    s_cbranch_scc1 L_heavy
    s_sub_u32 s{sFo}, s{sTmp+2}, 96
    s_cmp_ge_u32 s{sFo}, 24
    s_cbranch_scc1 L_clsbq
    s_cmp_lt_u32 s{sFo}, 16
    s_cselect_b32 s{sCls}, {C_AT}, {C_SP}
    s_lshr_b32 s{sPar}, s{sFo}, 3
    s_and_b32 s{sId}, s{sFo}, 7
    s_lshl_b32 s{sId}, s{sId}, 2
    s_add_u32 s{sId}, s{sId}, s{sW}
    s_add_u32 s{sTile}, s{sFo}, 32
    s_branch L_poison
    L_heavy:
    s_mov_b32 s{sBa}, s{sTmp+2}
    s_lshr_b32 s{sId}, s{sBa}, 2
    s_and_b32 s{sM}, s{sBa}, 3
    s_add_u32 s{sTmp+2}, s{sId}, 48
    s_cmp_eq_u32 s{sM}, 0
    s_cselect_b32 s{sFo}, s{sTmp+2}, -1
    s_cmp_eq_u32 s{sM}, 3
    s_cbranch_scc1 L_cls7
    s_branch {lab[C_PT]}
    L_clsbq:
    s_sub_u32 s{r5}, s{sFo}, 24
    s_lshr_b32 s{sM}, s{r5}, 3
    s_and_b32 s{sId}, s{r5}, 7
    s_lshl_b32 s{sId}, s{sId}, 2
    s_add_u32 s{sId}, s{sId}, s{sW}
    s_cmp_ge_u32 s{r5}, 16
    s_cselect_b32 s{sCls}, {C_BN}, {C_BT}
    """)
    load_ptr_srd(a, sT, 64, 576 * 3456)
    a(f's_mul_i32 s{sA}, s{sM}, 1152\ns_mul_i32 s{sTmp}, s{sId}, 36\ns_add_u32 s{sA}, s{sA}, s{sTmp}')
    gemm_load_weights(a, False, 3456)
    a(f"""
    s_branch L_initfo
    L_cls7:
    s_mov_b32 s{sCls}, {C_SP}
    """)
    load_ptr_srd(a, sX, 0, L.XBYTES)
    pre_phase(a)
    a(f's_mov_b32 s{sTile}, s{sId}\nL_poison:')
    poison_phase(a)
    a('s_branch L_initfo')
    a(f'{lab[C_PN]}:\n{lab[C_PT]}:\ns_cmp_eq_u32 s{sM}, 2\ns_cselect_b32 s{sCls}, {C_PN}, {C_PT}')
    a(f"""
    s_load_dwordx4 s[{sTmp+2}:{sTmp+5}], s[0:1], 16
    s_load_dwordx2 s[{sTmp+6}:{sTmp+7}], s[0:1], 32
    s_waitcnt lgkmcnt(0)
    s_cmp_eq_u32 s{sM}, 0
    s_cselect_b32 s{sTmp+6}, s{sTmp+2}, s{sTmp+6}
    s_cselect_b32 s{sTmp+7}, s{sTmp+3}, s{sTmp+7}
    s_cmp_eq_u32 s{sM}, 1
    s_cselect_b32 s{sTmp+6}, s{sTmp+4}, s{sTmp+6}
    s_cselect_b32 s{sTmp+7}, s{sTmp+5}, s{sTmp+7}
    """)
    srd(a, sT, sTmp + 6, 576 * 8192)
    a(f's_lshl_b32 s{sA}, s{sId}, 8\ns_lshl_b32 s{sTmp}, s{sW}, 6\ns_add_u32 s{sA}, s{sA}, s{sTmp}')
    gemm_load_weights(a, False, 8192)
    a(f"""
    L_initfo:
    s_cmp_ge_u32 s{sFo}, 80
    s_cbranch_scc1 L_layer
    s_mul_i32 s{sTeam}, s{sFo}, 205
    s_lshr_b32 s{sTeam}, s{sTeam}, 10
    s_mul_i32 s{sTmp}, s{sTeam}, 5
    s_sub_u32 s{sTmp}, s{sFo}, s{sTmp}
    s_lshl_b32 s{sFoT}, s{sTmp}, 2
    s_add_u32 s{sFoT}, s{sFoT}, s{sW}
    """)
    load_ptr_srd(a, sT, 72, 576 * 1152)
    a(f's_lshl_b32 s{sA}, s{sFoT}, 6')
    gemm_load_weights(a, True, 1152)
    a('s_branch L_layer')
    a(f'{lab[C_WO]}:\ns_mov_b32 s{sCls}, {C_WO}')
    load_ptr_srd(a, sT, 40, 4096 * 1152)
    wo_load_weights(a)
    a('L_layer:')
    if DEBUG: a(f's_lshr_b32 s99, s{sLv}, 4\ns_add_u32 s99, s99, {L.FLAGS + 68}'); logtime(a, 99, sRole, vF, vL16)
    prof(a, 11)
    for c in range(6): a(f's_cmp_eq_u32 s{sCls}, {c}\ns_cbranch_scc1 L_run{c}')
    a('s_branch L_second')
    for c, kind in ((C_PT, 'T'), (C_PN, 'N')):
        a(f"""
        L_run{c}:
        s_add_u32 s{sSrc}, s{sLay}, {L.X0}
        s_mov_b32 s{sMul}, 262144
        s_mov_b32 s{sB}, 1024
        s_lshl_b32 s{sOut}, s{sId}, 13
        s_lshl_b32 s{sTmp}, s{sW}, 11
        s_add_u32 s{sOut}, s{sOut}, s{sTmp}
        s_add_u32 s{sOut}, s{sOut}, s{sLay}
        s_lshl_b32 s{sSig}, s{sId}, 5
        s_lshl_b32 s{sTmp}, s{sM}, 2
        s_add_u32 s{sSig}, s{sSig}, s{sTmp}
        s_add_u32 s{sSig}, s{sSig}, s{sW}
        s_lshl_b32 s{sSig}, s{sSig}, 2
        s_add_u32 s{sSig}, s{sSig}, {L.F_HEAD}
        """)
        if c == C_PT:
            a(f's_cmp_eq_u32 s{sM}, 0\ns_cselect_b32 s{sTmp}, {L.QX}, {L.KX}\ns_cselect_b32 s{sC}, 1.0, {fbits(SCALE_LOG2E)}\ns_add_u32 s{sOut}, s{sOut}, s{sTmp}')
        else: a(f's_add_u32 s{sOut}, s{sOut}, {L.VX}')
        ln_phase(a, kind, ex)
        a('s_branch L_second')
    for c, kind in ((C_BT, 'BT'), (C_BN, 'BN')):
        a(f"""
        L_run{c}:
        s_add_u32 s{sSrc}, s{sLay}, {L.X1}
        s_lshr_b32 s{sSig}, s{sId}, 2
        s_lshl_b32 s{sSig}, s{sSig}, 5
        s_add_u32 s{sSig}, s{sSig}, s{sM}
        s_lshl_b32 s{sSig}, s{sSig}, 2
        s_add_u32 s{sSig}, s{sSig}, {L.F_BQ}
        s_cmp_eq_u32 s{sW}, 0
        s_cselect_b32 s{sSig}, s{sSig}, {OOB}
        s_mov_b32 s{sMul}, {L.KVT}
        s_mov_b32 s{sB}, {1024 if c == C_BN else 3072}
        s_mov_b32 s{sTmp}, {L.KVB + (1024 if c == C_BN else 0)}
        """)
        if c == C_BT:
            a(f's_cmp_eq_u32 s{sM}, 0\ns_cselect_b32 s{sMul}, 1152, s{sMul}\ns_cselect_b32 s{sB}, 1024, s{sB}\ns_cselect_b32 s{sTmp}, {L.QB}, s{sTmp}\ns_cselect_b32 s{sC}, 1.0, {fbits(SCALE_B)}')
        a(f's_mul_i32 s{sOut}, s{sId}, s{sMul}\ns_lshl_b32 s{sOut}, s{sOut}, 6\ns_add_u32 s{sOut}, s{sOut}, s{sTmp}\ns_add_u32 s{sOut}, s{sOut}, s{sLay}')
        ln_phase(a, kind, ex)
        a('s_branch L_second')
    a(f'L_run{C_WO}:')
    wo_phase(a, ex)
    a(f's_branch L_second\nL_run{C_AT}:')
    att_phase(a, ex)
    a('L_second:')
    prof_dump(a, 0)
    a(f's_cmp_eq_u32 s{sBa}, -1\ns_cbranch_scc1 L_third\ns_lshr_b32 s{sJ}, s{sBa}, 2\ns_and_b32 s{sI}, s{sBa}, 3')
    ba_phase(a, ex)
    prof_dump(a, 1)
    a(f'L_third:\ns_cmp_ge_u32 s{sFo}, 80\ns_cbranch_scc1 L_next')
    load_ptr_srd(a, sY, 80, L.XBYTES)
    fo_phase(a, ex)
    if PROF:
        a(f's_cmp_lg_u32 s{sBa}, -1\ns_cbranch_scc1 L_next'); prof_dump(a, 1)
    a(f"""
    L_next:
    s_add_u32 s{sLv}, s{sLv}, 64
    s_add_u32 s{sL1}, s{sL1}, 1
    s_add_u32 s{sLay}, s{sLay}, {L.LSTRIDE}
    s_cmp_lt_u32 s{sLv}, 128
    s_cbranch_scc1 L_layer
    {ex}:
    s_endpgm
    """)
```

```python
import sys, re
sys.path.insert(0, 'gen')
from asmdsl import *
import layout as L, chain as C, workers as W

NAME = 'interleave_layers__memory_aug_recurrent_mem_tr__softmax_full_mha__prompt'
BUDGET = 1500000

def sum16(a, v, tmp, s):
    a(f'v_mov_b32 v{tmp}, v{v}')
    for sh in (1, 2, 4, 8): a(f'v_add_u32_dpp v{tmp}, v{tmp}, v{tmp} row_shr:{sh} row_mask:0xf bank_mask:0xf bound_ctrl:1')
    a(f'v_readlane_b32 s{s}, v{tmp}, 15')

def prologue(a, force=None):
    a(f'''
    s_cmp_ge_u32 s2, 256
    s_cbranch_scc1 L_exit0
    s_load_dwordx4 s[4:7], s[0:1], 88
    s_getreg_b32 s20, hwreg(HW_REG_XCC_ID, 0, 4)
    v_lshrrev_b32 v1, 6, v0
    v_and_b32 v2, 63, v0
    v_readfirstlane_b32 s{C.sW}, v1
    s_mov_b32 s{C.sBud}, {BUDGET}
    s_mov_b32 s{C.sLv}, 0
    s_mov_b32 s{C.sLay}, 0
    s_waitcnt lgkmcnt(0)
    ''')
    if force == 'spread': a('s_lshr_b32 s20, s2, 4\ns_and_b32 s20, s20, 15')
    C.srd(a, C.sWS, 6, L.WS_BYTES)
    C.srd(a, C.sT, 4, 256)
    C.srd(a, W.sY, 6, L.WS_BYTES)
    D = f's[{C.sT}:{C.sT+3}]'
    if W.DEBUG:
        a(f'v_mov_b32 v7, 0\ns_mov_b32 s99, {L.FLAGS + 60}')
        W.logtime(a, 99, 2, 6, 7)
    a(f'''
    s_cmp_lg_u32 s{C.sW}, 0
    s_cbranch_scc1 L_p1
    s_lshl_b32 s21, s20, 2
    v_mov_b32 v3, 1
    v_mov_b32 v6, 1
    v_mov_b32 v4, 0
    v_lshlrev_b32 v5, 2, v2
    s_lshl_b32 s22, s2, 7
    s_add_u32 s22, s22, {L.FLAGS}
    s_cmp_lg_u32 s20, 0
    s_cbranch_scc1 L_p0
    s_mov_b64 exec, 1
    buffer_atomic_add v3, v4, {D}, 0 offen offset:{L.D_RANK0} sc0
    s_mov_b32 exec_lo, -1
    buffer_store_dword v4, v5, s[{C.sWS}:{C.sWS+3}], s22 offen sc1
    s_mov_b64 exec, 1
    s_waitcnt vmcnt(1)
    ds_write_b32 v4, v3
    s_waitcnt lgkmcnt(0)
    s_barrier
    s_waitcnt vmcnt(0)
    buffer_atomic_add v6, v4, {D}, 0 offen offset:{L.D_CNT}
    s_mov_b64 exec, -1
    s_branch L_p2
    L_p0:
    s_mov_b32 exec_hi, 0
    buffer_store_dword v4, v5, s[{C.sWS}:{C.sWS+3}], s22 offen sc1
    s_mov_b64 exec, 1
    s_waitcnt vmcnt(0)
    buffer_atomic_add v3, v4, {D}, s21 offen offset:{L.D_CNT} sc0
    s_waitcnt vmcnt(0)
    ds_write_b32 v4, v3
    s_waitcnt lgkmcnt(0)
    s_mov_b64 exec, -1
    L_p1:
    s_barrier
    L_p2:
    v_mov_b32 v4, 0
    ds_read_b32 v3, v4
    s_waitcnt lgkmcnt(0)
    v_readfirstlane_b32 s{C.sH}, v3
    s_barrier
    s_cmp_lg_u32 s20, 0
    s_cbranch_scc1 L_p3
    s_cmp_lt_u32 s{C.sH}, 32
    s_cbranch_scc1 L_chain
    L_p3:
    v_lshlrev_b32 v5, 2, v2
    s_cmp_lg_u32 s{C.sW}, 0
    s_cbranch_scc1 L_p5
    L_p4:
    s_sleep 12
    buffer_load_dword v3, v5, {D}, 0 offen offset:{L.D_CNT} sc1
    s_sub_u32 s{C.sBud}, s{C.sBud}, 1
    s_cbranch_scc1 L_exit0
    s_waitcnt vmcnt(0)
    ''')
    sum16(a, 3, 6, 21)
    a(f'''
    s_cmp_lt_u32 s21, 256
    s_cbranch_scc1 L_p4
    ds_write_b32 v5, v3
    s_waitcnt lgkmcnt(0)
    L_p5:
    s_barrier
    ds_read_b32 v3, v5
    s_waitcnt lgkmcnt(0)
    s_barrier
    ''')
    for i in range(15):
        a(f'v_readlane_b32 s21, v3, {i}\ns_cmp_gt_u32 s20, {i}\ns_cselect_b32 s21, s21, 0\ns_add_u32 s{C.sH}, s{C.sH}, s21')
    C.srd(a, W.sX, 6, L.WS_BYTES)
    a(f'''
    s_cmp_lt_u32 s{C.sH}, 32
    s_cbranch_scc1 L_chain
    s_branch L_worker
    L_exit0:
    s_endpgm
    ''')

def chain_program(cfg):
    out = []
    a = Asm(); a.uid = 1000
    a('L_chain:')
    for w in range(3): a(f's_cmp_eq_u32 s{C.sW}, {w}\ns_cbranch_scc1 L_cw{w}')
    a('s_branch L_cw3')
    for lab in ('L_cw0', 'L_cw1', 'L_cw2', 'L_cw3'): a.l.append(None)
    a.l = [x for x in a.l if x]
    out.append('\n'.join(a.l) + '\n')
    macros = []
    for w in range(4):
        a = Asm(); a.uid = 2000 + 1000 * w
        ex = f'L_cx{w}'
        a(f'L_cw{w}:')
        C.emit_setup(a, cfg, w)
        if w == 2:
            a(f's_cmp_ge_u32 s{C.sH}, 8\ns_cbranch_scc1 L_cnp')
            C.emit_poison_init(a, True, w)
            a('L_cnp:')
        else: C.emit_poison_init(a, w < 2, w)
        D = f's[{C.sT}:{C.sT+3}]'
        t = C.T0
        a(f'v_mov_b32 v{t}, 1\ns_mov_b64 exec, 1\nbuffer_atomic_add v{t}, v{C.vZ}, {D}, 0 offen offset:{L.D_TEAM}\ns_mov_b64 exec, -1')
        if W.DEBUG and w == 0: a(f's_mov_b32 s99, {L.FLAGS + 64}'); W.logtime(a, 99, C.sH, t, C.vZ)
        C.emit_load_weights(a, cfg, w)
        if W.DEBUG and w == 0: a(f's_mov_b32 s99, {L.FLAGS + 68}'); W.logtime(a, 99, C.sH, t, C.vZ)
        C.srd(a, C.sT, 4, 256)
        a(f'''
        v_lshrrev_b32 v{t+1}, 2, v{C.vL16}
        L_ca{w}:
        buffer_load_dword v{t}, v{t+1}, {D}, 0 offen sc1
        s_sub_u32 s{C.sBud}, s{C.sBud}, 1
        s_cbranch_scc1 {ex}
        s_waitcnt vmcnt(0)
        v_readlane_b32 s{C.sTmp}, v{t}, {L.D_TEAM // 4}
        v_readlane_b32 s{C.sTmp+1}, v{t}, {L.D_POI // 4}
        v_readlane_b32 s{C.sFast}, v{t}, {L.D_CNT // 4}
        s_add_u32 s{C.sTmp}, s{C.sTmp}, s{C.sTmp+1}
        s_cmp_lt_u32 s{C.sTmp}, {128 + W.NPOIS}
        s_cbranch_scc1 L_ca{w}
        buffer_load_dword v{t}, v{t+1}, {D}, 0 offen sc1
        s_waitcnt vmcnt(0)
        v_readlane_b32 s{C.sFast}, v{t}, {L.D_CNT // 4}
        s_barrier
        ''')
        names = [(f'{w}', w < 2)] if w != 2 else [('2r', True), ('2n', False)]
        tail = []
        if w == 2: tail.append(f's_cmp_ge_u32 s{C.sH}, 8\ns_cbranch_scc1 L_sel2n')
        for nm, red in names:
            tail.append(f'L_sel{nm}:\ns_cmp_ge_u32 s{C.sFast}, 32\ns_cbranch_scc1 L_run{nm}f\ns_branch L_run{nm}s')
        a(f's_branch L_ct{w}\n{ex}:\ns_endpgm\nL_ct{w}:')
        out.append(a.text() + '\n'.join(tail) + '\n')
        for nm, red in names:
            b = Asm(); b.uid = 0
            b('L_run:')
            C.emit_layer(b, cfg, w, red, 'L_x', '@ST@')
            b(f'''
            s_add_u32 s{C.sLv}, s{C.sLv}, 64
            s_add_u32 s{C.sLay}, s{C.sLay}, {L.LSTRIDE}
            s_cmp_lt_u32 s{C.sLv}, 128
            s_cbranch_scc1 L_run
            L_x:
            s_endpgm
            ''')
            body = b.text()
            body = re.sub(r'\b(L_\w+)', lambda m: m.group(1) + nm + '\\id', body).replace('@ST@', '\\st')
            macros.append((nm, body))
    for nm, body in macros: out.append(f'.macro chain{nm} id, st\n{body}.endm\n')
    for nm, _ in macros: out.append(f'chain{nm} f\n')
    for nm, _ in macros: out.append(f'chain{nm} s, sc1\n')
    return ''.join(out)

def build(cfg=None, force=None, name=NAME + '_kernel'):
    cfg = cfg or C.ChainCfg(); cfg.integ = True
    W.DEBUG = cfg.log; W.PROF = getattr(cfg, 'prof', False)
    a = Asm(); prologue(a, force)
    a('L_chain:\nL_worker:')
    pro = a.text().replace('L_chain:\n', '').replace('L_worker:\n', '')
    w = Asm(); w.uid = 10000
    w('L_worker:'); W.worker_program(w)
    ref = open('cdna_kernels/' + NAME + '.s.ref').read()
    hdr = ''.join(l + '\n' for l in ref.split('\n') if l.startswith(';') and '@launch' not in l and 'Override' not in l and 'grid=ceil' not in l)
    txt = hdr + f'''; @launch grid=(256,1,1) block=(256,1,1) lds=163840
; One persistent workgroup per CU.  32 CUs run the recurrent memory chain (one head each, weights resident in
; registers and LDS); the other 224 run the projections and attentions around it, linked by progress words.
.amdgcn_target "amdgcn-amd-amdhsa--gfx950"
.text
.globl {name}
.p2align 8
.type {name},@function
{name}:
''' + pro + w.text() + chain_program(cfg) + f'''.section .rodata,"a"
.p2align 6
.amdhsa_kernel {name}
  .amdhsa_next_free_vgpr 512
  .amdhsa_next_free_sgpr 102
  .amdhsa_accum_offset 256
  .amdhsa_group_segment_fixed_size 0
  .amdhsa_kernarg_size 104
  .amdhsa_user_sgpr_count 2
  .amdhsa_user_sgpr_kernarg_segment_ptr 1
  .amdhsa_system_sgpr_workgroup_id_x 1
.end_amdhsa_kernel
'''
    txt = '\n'.join(l.strip() if not l.startswith(';') else l for l in txt.split('\n'))
    return txt

if __name__ == '__main__':
    t = build()
    p = sys.argv[1] if len(sys.argv) > 1 else 'cdna_kernels/' + NAME + '.s'
    open(p, 'w').write(t)
    print(len(t), 'bytes')
```

```python
from asmdsl import *
import layout as L
import struct
def fbits(x): return struct.unpack('<I', struct.pack('<f', x))[0]
SCALE_LOG2E = (128 ** -0.5) * 1.4426950408889634
OOB = 0x40000000

LD_MEM = 0
LD_Q   = 9216
LD_K   = LD_Q + 2048 + 32
LD_O   = LD_K + 2048
LD_PX  = LD_O + 2048 + 16
LD_PM  = LD_PX + 512
LD_Z   = LD_PM + 128
LD_ONE = LD_Z + 16
LD_SEL = LD_ONE + 16
LD_W   = 16384
NT   = [4, 4, 5, 5]
NLDS = [17, 17, 19, 19]
WBASE = [LD_W + 2048 * sum(NLDS[:w]) for w in range(4)]
def tile_of(w, slot):
    if slot == 4: return 14 + w
    return 4 * slot + w

sWS = 8
sT  = 12
sH = 16; sW = 17; sStep = 18; sBud = 19
sKX = 20; sVX = 21; sKM = 22; sVM = 23
sP = 24
sRed = 29; sPo = 30; sRing = 31; sRingPo = 32; sGat = 33
sMask = 34
sRc = 36
sPf = 37
sTmp = 38
sPar = 46
sLay = 49
sCs = 50
sSt = 52
sKMn = 64; sVMn = 65; sKX2 = 66; sUnit = 67; sKmask = 68; sHn = 44; sHv = 45; sHc = 47; sLv = 48; sFh = 70; sPfe = 71; sNd = 72; sFast = 73; sHm = 74; sKn = 76; sFc = 77; sFl = 51; sVer = 23; sH2 = 65; sLd = 76

vL16 = 0; vWl = 1; vA = 2; vIdx = 3; vQW = 4; vTR = 5; vP = 6; vPRx = 7; vPRm = 8; vTO = 9; vVp = 10
vM = 12; vKX = 13
vPW = 14; vZ = 15
vHv = vPW
vHA = vP
T0 = 16
LATE = [(4, 1), (5, 1), (6, 2), (8, 1)]
def WREG(w): return list(range(88 if w < 2 else 72, 512, 8))
GATH = [(0, 4), (4, 1), (5, 2), (7, 2)]

class ChainCfg:
    deferred = [15, 16, 17, 14, 13, 12, 11, 10, 9, 8, 7, 6]
    sh = [2, 3, 2, 2]
    nmain_lds = 12; nm5 = 0; ostart = 2
    stamps = False
    nsteps = 64
    d_redA = 0; d_red = 30; d_redC = 16
    d_comp = 24; ncomp = 16; gv = [19, 15, 8, 11]; gk = [23, 27, 31, 35]; gp = 21; kpos = [2, 2]; gkx = [1, 2, 4, 6]; d_go2 = 14; gsh = 2; d_idle = 1
    gdep = 2; ggap = 32; gdepA = 1
    hpos = 0; htry = 60; hgaps = [4, 6, 8, 10, 12, 14]; hun = 2
    vdirect = True
    lddw = 0; lddep = 8; ldbar = 1
    early = 58
    fills = [0, 0, 0, 0, 0]; nfo = 4; npw = 2
    novm = False
    gpo = 29
    hrep = 4; pfd = 1
    perm = [0, 1, 2, 3]
    pf = True
    pub = True
    noexch = False
    log = False
    integ = False
    trace = False
    fine = []
    acc = False
    stampsel = None

def main_seq(cfg):
    seq = []
    for c in range(18):
        seq += [('q', c), ('k', c)]
        if c not in cfg.deferred: seq.append(('v', c))
    return seq

def frag_plan(cfg, w):
    plan = {}; r = iter(WREG(w)); slot = 0
    seq = main_seq(cfg)
    nm = cfg.nmain_lds + (cfg.nm5 if NT[w] == 5 else 0)
    span = len(seq) - 2
    pos = sorted(set(int(round(i * span / (nm - 1))) for i in range(nm)))
    assert len(pos) == nm
    for i, key in enumerate(seq):
        if i in pos: plan[key] = ('l', slot); slot += 1
        else: plan[key] = ('r', next(r))
    for c in cfg.deferred: plan[('v', c)] = ('r', next(r))
    no = NLDS[w] - nm
    n = 4 * NT[w]
    opos = sorted(set(int(round(cfg.ostart + i * (n - 1 - cfg.ostart) / (no - 1))) for i in range(no)))
    assert len(opos) == no
    for i in range(n):
        key = ('o', i // 4, i % 4)
        if i in opos: plan[key] = ('l', slot); slot += 1
        else: plan[key] = ('r', next(r))
    assert slot == NLDS[w], slot
    return plan

def srd(a, s, lo, size):
    a(f's_mov_b32 s{s}, s{lo}\ns_and_b32 s{s+1}, s{lo+1}, 0xffff\ns_mov_b32 s{s+2}, {size}\ns_mov_b32 s{s+3}, 0x20000')

def emit_setup(a, cfg, w):
    t = T0
    a(f'''
    v_and_b32 v{t+1}, 63, v0          ; lane
    v_and_b32 v{t+2}, 15, v{t+1}      ; n
    v_lshrrev_b32 v{t+3}, 4, v{t+1}   ; g
    v_and_b32 v{t+4}, 1, v{t+3}       ; g&1
    v_lshrrev_b32 v{t+5}, 1, v{t+3}   ; g>>1
    v_lshlrev_b32 v{vL16}, 4, v{t+1}
    v_add_u32 v{vWl}, {WBASE[w]}, v{vL16}
    v_mov_b32 v{vZ}, 0
    v_and_b32 v{t+6}, 3, v{t+1}
    v_lshlrev_b32 v{t+6}, 4, v{t+6}
    v_lshl_add_u32 v{t+6}, v{t+4}, 6, v{t+6}
    v_lshl_add_u32 v{t+6}, v{t+5}, 8, v{t+6}
    v_bfe_u32 v{t+7}, v{t+1}, 2, 1
    v_lshl_add_u32 v{vA}, v{t+7}, 7, v{t+6}
    v_and_b32 v{t+6}, 8, v{t+1}
    v_cmp_eq_u32 vcc, 0, v{t+6}
    v_mov_b32 v{t+7}, 0xEEEEDDDD
    v_mov_b32 v{t+8}, 0x44448888
    v_cndmask_b32 v{vIdx}, v{t+7}, v{t+8}, vcc
    v_lshlrev_b32 v{t+6}, 4, v{t+2}
    v_lshl_add_u32 v{t+6}, v{t+4}, 3, v{t+6}
    v_lshl_add_u32 v{t+6}, v{t+5}, 2, v{t+6}
    v_mov_b32 v{t+7}, {OOB}
    v_cndmask_b32 v{vM}, v{t+7}, v{t+6}, vcc
    v_lshlrev_b32 v{t+6}, 3, v{t+5}
    v_xor_b32 v{t+6}, v{t+6}, v{t+2}
    v_lshlrev_b32 v{t+6}, 3, v{t+6}
    v_lshl_add_u32 v{t+6}, v{t+3}, 7, v{t+6}
    v_add_u32 v{vQW}, {512*w}, v{t+6}
    v_bfe_u32 v{t+6}, v{t+1}, 2, 1
    v_xor_b32 v{t+7}, v{t+6}, v{t+5}
    v_lshlrev_b32 v{t+6}, 8, v{t+6}
    v_lshl_add_u32 v{t+6}, v{t+7}, 6, v{t+6}
    v_and_b32 v{t+7}, 1, v{t+1}
    v_lshl_add_u32 v{t+6}, v{t+7}, 7, v{t+6}
    v_lshl_add_u32 v{t+6}, v{t+4}, 4, v{t+6}
    v_bfe_u32 v{t+7}, v{t+1}, 3, 1
    v_lshl_add_u32 v{vTO}, v{t+7}, 3, v{t+6}
    v_bfe_u32 v{t+7}, v{t+1}, 1, 1
    v_mul_u32_u24 v{t+7}, {LD_K - LD_Q}, v{t+7}
    v_add_u32 v{vTR}, v{vTO}, v{t+7}
    v_mul_u32_u24 v{t+6}, {L.PB_UNIT}, v{t+3}
    v_lshl_add_u32 v{vP}, v{t+2}, 3, v{t+6}
    v_lshrrev_b32 v{t+7}, 3, v{t+2}
    v_lshlrev_b32 v{t+6}, 8, v{t+7}
    v_and_b32 v{t+8}, 7, v{t+2}
    v_lshl_add_u32 v{t+6}, v{t+8}, 4, v{t+6}
    v_lshl_add_u32 v{vKX}, v{t+3}, 9, v{t+6}
    v_and_b32 v{t+8}, 7, v{t+1}
    v_lshl_add_u32 v{t+9}, v{t+3}, 3, v{t+8}
    v_lshlrev_b32 v{vPRx}, 4, v{t+9}                ; (g*8+q)*16
    v_lshl_add_u32 v{vTO}, v{t+7}, 3, v{vPRx}
    v_lshl_add_u32 v{t+9}, v{t+4}, 3, v{t+8}
    v_lshlrev_b32 v{t+9}, 3, v{t+9}                 ; ((g&1)*8+q)*8
    v_cmp_eq_u32 vcc, v{t+7}, v{t+5}
    v_mov_b32 v{t+10}, 128
    v_cndmask_b32 v{vPRm}, v{t+10}, v{t+9}, vcc
    ''')
    if w < 2: a(f'v_add_u32 v{vPW}, {LD_PX + 8*w}, v{vPRx}\ns_mov_b32 s{sMask}, 0x00ff00ff\ns_mov_b32 s{sMask+1}, 0x00ff00ff')
    elif w == 2: a(f'v_add_u32 v{vPW}, {LD_PM}, v{t+9}\ns_mov_b32 s{sMask}, 0\ns_mov_b32 s{sMask+1}, 0x00ff00ff')
    else: a(f'v_mov_b32 v{vHv}, 0')
    a(f's_mov_b32 s{sHm}, 0x00010001\ns_mov_b32 s{sHm+1}, 0x00010001')
    a(f'''
    v_mov_b64 {R(t+12,2)}, 0
    v_mov_b64 {R(t+14,2)}, 0
    ds_write_b128 v{vZ}, {R(t+12,4)} offset:{LD_Z}
    ds_write_b128 v{vZ}, {R(t+12,4)} offset:{LD_PX - 16}
    v_add_u32 v{vPRx}, 16, v{vPRx}
    v_lshlrev_b32 v{t}, 4, v{t+8}
    ds_write_b128 v{t}, {R(t+12,4)} offset:{LD_SEL}
    v_mov_b32 v{t+16}, 0x3f803f80
    v_mov_b32 v{t+17}, 0x3f803f80
    ds_write_b64 v{vZ}, {R(t+16,2)} offset:{LD_ONE}
    ds_write_b64 v{vZ}, {R(t+16,2)} offset:{LD_ONE+8}
    s_waitcnt lgkmcnt(0)
    s_barrier
    v_mul_u32_u24 v{t}, 18, v{t+8}
    ds_write_b16 v{t}, v{t+16} offset:{LD_SEL}
    s_mov_b32 s{sCs}, {fbits(SCALE_LOG2E)}
    s_lshl_b32 s{sTmp+2}, s{sH}, 7
    ''')
    for i in range(NT[w]): a(f's_add_u32 s{sP+i}, s{sTmp+2}, {L.PB + tile_of(w, i)*4*L.PB_UNIT}')
    a(f'''
    s_add_u32 s{sUnit}, s{sH}, {[0, 40, 32, 0][w]}
    s_mul_i32 s{sRed}, s{sUnit}, {L.PB_UNIT}
    s_add_u32 s{sRed}, s{sRed}, {L.PB}
    s_add_u32 s{sHn}, s{sH}, {L.HN}
    s_lshl_b32 s{sUnit}, s{sUnit}, 7
    s_mov_b32 s{sPar}, {L.PB_PAR}
    s_mov_b32 s{sRc}, 0
    s_mov_b32 s{sPo}, {OOB}
    {f's_and_b32 s{sHn}, s{sH}, {cfg.hrep-1}' if w == 1 else ''}
    {f's_mul_i32 s{sHn}, s{sHn}, {L.PB_UNIT}' if w == 1 else ''}
    {f's_add_u32 s{sHn}, s{sHn}, {L.HN}' if w == 1 else ''}
    {f's_add_u32 s{sH2}, s{sH}, {L.HN + 2048}' if w == 1 else ''}
    {f's_and_b32 s{sH2}, s{sH}, {cfg.hrep-1}' if w == 3 else ''}
    {f's_mul_i32 s{sH2}, s{sH2}, {L.PB_UNIT}' if w == 3 else ''}
    {f's_add_u32 s{sH2}, s{sH2}, {L.HN + 2048}' if w == 3 else ''}
    s_mov_b32 s{sRingPo}, {OOB}
    s_waitcnt lgkmcnt(0)
    ''')

def emit_load_weights_dw(a, cfg, w):
    plan = frag_plan(cfg, w)
    t = T0
    a(f'''
    v_bfe_u32 v{t+2}, v{vL16}, 4, 4           ; n
    v_bfe_u32 v{t+4}, v{vL16}, 8, 1           ; gB&1
    v_bfe_u32 v{t+5}, v{vL16}, 9, 1           ; gB>>1
    v_lshlrev_b32 v{t+3}, 17, v{t+4}
    v_lshl_add_u32 v{t+3}, v{t+5}, 14, v{t+3}
    v_lshl_add_u32 v{t+3}, v{t+2}, 2, v{t+3}
    s_lshl_b32 s{sTmp}, s{sH}, 8
    s_add_u32 s{sTmp}, s{sTmp}, {64*w}
    v_add_u32 v{t}, s{sTmp}, v{t+3}
    v_lshl_add_u32 v{t+4}, v{t+5}, 3, v{t+4}
    v_mul_u32_u24 v{t+4}, 1152, v{t+4}
    v_lshl_add_u32 v{t+4}, v{t+2}, 2, v{t+4}
    s_mul_i32 s{sTmp}, s{sH}, {128*1152}
    v_add_u32 v{t+1}, s{sTmp}, v{t+4}
    ''')
    stage = [t + 8 + 8 * i for i in range(6)]
    pend = []; nload = 0; si = 0
    def flush(upto):
        while pend and len(pend) > upto:
            reg, slot, last = pend.pop(0)
            a(f's_waitcnt vmcnt({min(nload - last - 1, 63)})')
            a(f'ds_write_b128 v{vWl}, {R(reg,4)} offset:{slot*2048}\nds_write_b128 v{vWl}, {R(reg+4,4)} offset:{slot*2048+1024}')
            a('s_waitcnt lgkmcnt(0)')
    def load_frag(dst, voff, offs):
        nonlocal nload, si
        kind, x = dst
        if kind == 'l':
            flush(len(stage) - 1); reg = stage[si % len(stage)]; si += 1
        else: reg = x
        cur = None
        for rho in range(8):
            o = offs[rho]
            if cur is None or not (0 <= o - cur < 4096):
                cur = o; a(f's_mov_b32 s{sTmp+3}, {o}')
            a(f'buffer_load_dword {R(reg+rho)}, v{voff}, s[{sT}:{sT+3}], s{sTmp+3} offen offset:{o-cur}')
            nload += 1
        if kind == 'l': pend.append((reg, x, nload - 1))
        a(f's_waitcnt vmcnt({cfg.lddw})')
    for m, karg in (('q', 16), ('k', 24), ('v', 32)):
        a(f's_load_dwordx2 s[{sTmp+4}:{sTmp+5}], s[0:1], {karg}\ns_waitcnt lgkmcnt(0)')
        srd(a, sT, sTmp + 4, 576 * 8192)
        for c in range(18):
            load_frag(plan[(m, c)], t, [(32*c + 4*(r & 3) + (r >> 2)) * 8192 for r in range(8)])
    a(f's_load_dwordx2 s[{sTmp+4}:{sTmp+5}], s[0:1], 40\ns_waitcnt lgkmcnt(0)')
    srd(a, sT, sTmp + 4, 4096 * 1152)
    for sl in range(NT[w]):
        for c in range(4):
            load_frag(plan[('o', sl, c)], t + 1, [(32*c + 16*(r >> 2) + 2*(r & 3)) * 1152 + 64*tile_of(w, sl) for r in range(8)])
    flush(0)
    a('s_waitcnt vmcnt(0)')

def emit_load_weights(a, cfg, w):
    if cfg.lddw: return emit_load_weights_dw(a, cfg, w)
    plan = frag_plan(cfg, w)
    t = T0
    vq, vo, rq, ro = t, t + 1, t + 2, t + 3
    a(f"""
    v_bfe_u32 v{t+4}, v{vL16}, 6, 4
    v_and_b32 v{t+5}, 48, v{vL16}
    v_lshl_add_u32 v{vq}, v{t+4}, 13, v{t+5}
    s_lshl_b32 s{sTmp}, s{sH}, 8
    s_add_u32 s{sTmp}, s{sTmp}, {64*w}
    v_add_u32 v{vq}, s{sTmp}, v{vq}
    v_mul_u32_u24 v{vo}, 1152, v{t+4}
    s_mul_i32 s{sTmp}, s{sH}, {128*1152}
    v_add3_u32 v{vo}, v{vo}, v{t+5}, s{sTmp}
    v_bfe_u32 v{t+4}, v{vL16}, 4, 4           ; n
    v_bfe_u32 v{t+5}, v{vL16}, 8, 1           ; gB&1
    v_bfe_u32 v{t+6}, v{vL16}, 9, 1           ; gB>>1
    v_lshlrev_b32 v{t+4}, 2, v{t+4}
    v_add_u32 v{t+4}, {WBASE[w]}, v{t+4}
    v_lshl_add_u32 v{rq}, v{t+5}, 10, v{t+4}
    v_lshl_add_u32 v{rq}, v{t+6}, 7, v{rq}
    v_lshl_add_u32 v{ro}, v{t+5}, 6, v{t+4}
    v_lshl_add_u32 v{ro}, v{t+6}, 9, v{ro}
    s_load_dwordx8 s[{sLd}:{sLd+7}], s[0:1], 16
    s_waitcnt lgkmcnt(0)
    """)
    for i in range(4): srd(a, sLd + 8 + 4 * i, sLd + 2 * i, 576 * 8192)
    keys = [(m, c) for m in 'qkv' for c in range(18)] + [('o', sl, c) for sl in range(NT[w]) for c in range(4)]
    ns = NLDS[w]
    regk = [k for k in keys if plan[k][0] == 'r']
    bys = {plan[k][1]: k for k in keys if plan[k][0] == 'l'}
    order = regk + [bys[(len(regk) + i) % ns] for i in range(ns)]
    def dma(i):
        k = order[i]; slot = i % ns
        for hf in range(2):
            if k[0] == 'o': off, v, sr = (32*k[2] + 16*hf) * 1152 + 64*tile_of(w, k[1]), vo, sLd + 20
            else: off, v, sr = (32*k[1] + 16*hf) * 8192, vq, sLd + 8 + 4 * 'qkv'.index(k[0])
            a(f's_mov_b32 m0, {WBASE[w] + slot*2048 + 1024*hf}\ns_mov_b32 s{sTmp}, {off}\nbuffer_load_dwordx4 v{v}, s[{sr}:{sr+3}], s{sTmp} offen lds')
    dp = min(cfg.lddep, ns)
    for i in range(dp): dma(i)
    for i, k in enumerate(order):
        slot = i % ns
        a(f's_waitcnt vmcnt({2 * (min(i + dp, len(order)) - i - 1)})')
        dst = plan[k][1] if plan[k][0] == 'r' else t + 8
        for rho in range(8):
            row = 16*(rho >> 2) + 2*(rho & 3) if k[0] == 'o' else 4*(rho & 3) + (rho >> 2)
            a(f'ds_read_b32 {R(dst+rho)}, v{ro if k[0] == "o" else rq} offset:{slot*2048 + row*64}')
        a('s_waitcnt lgkmcnt(0)')
        if plan[k][0] == 'l':
            assert plan[k][1] == slot
            a(f'ds_write_b128 v{vWl}, {R(dst,4)} offset:{slot*2048}\nds_write_b128 v{vWl}, {R(dst+4,4)} offset:{slot*2048+1024}\ns_waitcnt lgkmcnt(0)')
        if cfg.ldbar and i % cfg.ldbar == 0 and i < 40: a('s_barrier')
        if i + dp < len(order): dma(i + dp)

def emit_poison_init(a, red, w=None):
    t = T0
    WS = f's[{sWS}:{sWS+3}]'
    if w == 3:
        a(f's_mov_b64 exec, s[{sHm}:{sHm+1}]\nbuffer_store_byte v{vZ}, v{vHA}, {WS}, s{sHn} offen sc1\nbuffer_store_byte v{vZ}, v{vHA}, {WS}, s{sHn} offen offset:2048 sc1\ns_mov_b64 exec, -1\ns_waitcnt vmcnt(0)')
    if not red: return
    a(f'v_mov_b64 {R(t,2)}, -1\nv_mov_b64 {R(t+2,2)}, -1\ns_add_u32 s{sTmp}, s{sRed}, {L.PB_PAR}')
    for s in (sRed, sTmp):
        for i in range(4): a(f'buffer_store_dwordx4 {R(t,4)}, v{vL16}, {WS}, s{s} offen offset:{i*1024} sc1')
    for i in range(4):
        a(f's_add_u32 s{sTmp+1}, s{sUnit}, {L.MR + i*9216}\nbuffer_store_dword v{t}, v{vM}, {WS}, s{sTmp+1} offen sc1')
    a('s_waitcnt vmcnt(0)')

def stamp(a, cfg, i):
    if not cfg.stamps or (cfg.stampsel is not None and i not in cfg.stampsel): return
    a(f'''
    s_memtime s[{sTmp+4}:{sTmp+5}]
    s_waitcnt lgkmcnt(0)
    s_sub_u32 s{sTmp+5}, s{sTmp+4}, s{sSt}
    s_mov_b32 s{sSt}, s{sTmp+4}
    s_add_u32 s{sSt+2+i}, s{sSt+2+i}, s{sTmp+5}
    ''')

def mark(a, cfg, name):
    if name in cfg.fine:
        i = cfg.fine.index(name)
        a(f's_memtime s[{80+2*i}:{81+2*i}]')

class Q:
    def __init__(self, a, cnt, cap): self.a = a; self.q = []; self.cnt = cnt; self.cap = cap
    def issue(self, tag, text):
        for x in text.split('\n'):
            self.a(x); self.q.append(tag)
        assert len(self.q) <= self.cap, self.q
    def wait(self, *tags):
        idx = [i for i, x in enumerate(self.q) if x in tags]
        if not idx: return
        last = idx[-1]
        self.a(f's_waitcnt {self.cnt}({len(self.q)-last-1})')
        del self.q[:last + 1]
    def clear(self): self.q = []

def delay(a, n):
    while n > 0:
        k = min(n, 16); a(f's_nop {k-1}'); n -= k

def emit_layer(a, cfg, w, red, exit_label, st=''):
    plan = frag_plan(cfg, w)
    WS = f's[{sWS}:{sWS+3}]'
    t = T0
    ds = Q(a, 'lgkmcnt', 15); vm = Q(a, 'vmcnt', 63)
    accq, acck, accv = t, t + 4, t + 8
    Abuf = [t + 12 + 4 * i for i in range(3)]
    X0 = t + 24; X1 = t + 28
    Wbuf = [t + 32, t + 40]
    VXr = t + 48
    KXr = [t + 56 + 4 * i for i in range(4)]
    SM = 'v_smfmac_f32_16x16x64_bf16'
    g0, gn = GATH[w]
    GL = (Abuf + [X0])[:gn]
    cold = []
    def budget(): a(f's_sub_u32 s{sBud}, s{sBud}, 1\ns_cbranch_scc1 {exit_label}')
    def gloads():
        for i in range(gn): a(f'buffer_load_dwordx4 {R(GL[i],4)}, v{vL16}, {WS}, s{sGat} offen offset:{i*1024} sc1')
    def gwrite(i): return f'ds_write_b128 v{vL16}, {R(GL[i],4)} offset:{LD_MEM + (g0+i)*1024}'
    def kloads():
        a(f's_add_u32 s{sKX2}, s{sKX}, 4096')
        for c in range(4): a(f'buffer_load_dwordx4 {R(KXr[c],4)}, v{vKX}, {WS}, s{sKX if c < 2 else sKX2} offen offset:{2048*(c&1)} sc1')
        a(f's_add_u32 s{sKX}, s{sKX}, 262144')
    fload = f'v_lshrrev_b32 v{X1+3}, 1, v{vL16}\nbuffer_load_dwordx2 {R(vM,2)}, v{X1+3}, {WS}, s{sFh} offen offset:16 sc1'
    def level():
        a(f'v_min_u32 v{vM}, v{vM}, v{vM+1}\ns_mov_b64 exec, -1')
        for i in range(4): a(f'v_readlane_b32 s{sTmp+i}, v{vM}, {i}')
        a(f's_min_u32 s{sTmp}, s{sTmp}, s{sTmp+1}\ns_min_u32 s{sTmp+2}, s{sTmp+2}, s{sTmp+3}\ns_min_u32 s{sKn}, s{sTmp}, s{sTmp+2}')
    def avail(ahead):
        lp = a.lab('L_av'); ok = a.lab('L_avok')
        a(f's_add_u32 s{sNd}, s{sStep}, {ahead + 1}\ns_min_u32 s{sNd}, s{sNd}, 64\ns_add_u32 s{sNd}, s{sNd}, s{sLv}\ns_cmp_lt_u32 s{sKn}, s{sNd}\ns_cbranch_scc1 {lp}\n{ok}:')
        def rest():
            a(f'{lp}:\ns_mov_b64 exec, 15\n{fload}'); budget(); a('s_waitcnt vmcnt(0)'); level()
            a(f's_cmp_lt_u32 s{sKn}, s{sNd}\ns_cbranch_scc1 {lp}\ns_branch {ok}')
        cold.append(rest)
    def accumulate():
        sk_ = a.lab('L_noacc')
        a(f's_waitcnt lgkmcnt(0)\ns_sub_u32 s{sTmp+2}, s{sStep}, 9\ns_cmp_ge_u32 s{sTmp+2}, 48\ns_cbranch_scc1 {sk_}')
        for i in range(len(cfg.fine) - 1): a(f's_sub_u32 s{sTmp+2}, s{82+2*i}, s{80+2*i}\ns_add_u32 s{sSt+2+i}, s{sSt+2+i}, s{sTmp+2}')
        a(f'{sk_}:')
    a(f's_load_dwordx2 s[{sTmp+4}:{sTmp+5}], s[0:1], 8\ns_waitcnt lgkmcnt(0)')
    srd(a, sT, sTmp + 4, 9216)
    a(f"""
    v_bfe_u32 v{t}, v{vL16}, 4, 2            ; i
    v_bfe_u32 v{t+1}, v{vL16}, 7, 1          ; rh
    v_lshl_add_u32 v{t}, v{t+1}, 2, v{t}
    v_mul_u32_u24 v{t}, 1152, v{t}
    v_bfe_u32 v{t+1}, v{vL16}, 9, 1
    v_lshl_add_u32 v{t}, v{t+1}, 6, v{t}
    v_bfe_u32 v{t+1}, v{vL16}, 6, 1          ; b
    v_lshl_add_u32 v{t}, v{t+1}, 2, v{t}
    v_bfe_u32 v{t+1}, v{vL16}, 8, 1          ; par
    v_lshl_add_u32 v{t}, v{t+1}, 1, v{t}
    """)
    for i0 in range(0, gn, 2):
        for it in range(i0, min(i0 + 2, gn)):
            for j in range(8): a(f'buffer_load_ushort v{Wbuf[it&1]+j}, v{t}, s[{sT}:{sT+3}], 0 offen offset:{(g0+it)*128 + j*8}')
        a('s_waitcnt vmcnt(0)')
        for it in range(i0, min(i0 + 2, gn)):
            for j in range(4): a(f'v_lshl_or_b32 v{GL[it]+j}, v{Wbuf[it&1]+2*j+1}, 16, v{Wbuf[it&1]+2*j}')
            a(gwrite(it))
    a(f"""
    s_mov_b32 s{sStep}, 0
    s_mov_b32 s{sVer}, 1
    s_lshl_b32 s{sTmp}, s{sH}, 13
    s_add_u32 s{sTmp}, s{sTmp}, s{sLay}
    s_add_u32 s{sPf}, s{sTmp}, {L.KX + cfg.pfd*262144}
    s_add_u32 s{sKX}, s{sTmp}, {L.KX + 128*w}
    s_add_u32 s{sVX}, s{sTmp}, {L.VX + 2048*w}
    s_lshl_b32 s{sTmp+1}, s{sH}, 12
    s_add_u32 s{sTmp+1}, s{sTmp+1}, s{sLay}
    s_add_u32 s{sKMn}, s{sTmp+1}, {L.KM + 512*w - 16}
    s_mov_b32 s{sKM}, {OOB}
    s_mov_b32 s{sKmask}, 0xff00ff00
    s_mov_b32 s{sKmask+1}, 0xff00ff00
    """)
    seq = main_seq(cfg)
    ldsm = [k for k in seq if plan[k][0] == 'l']
    def wr(buf, slot, half): return f'ds_read_b128 {R(buf+4*half,4)}, v{vWl} offset:{slot*2048+1024*half}'
    def tr2(dst, base, c, vreg): return '\n'.join(f'ds_read_b64_tr_b16 {R(dst+2*hf,2)}, v{vreg} offset:{base + c*512 + 32*hf}' for hf in range(2))
    def cst(dst, off): return f'ds_read_b128 {R(dst,4)}, v{vZ} offset:{off}'
    def pre_step():
        for i in range(2):
            for hf in range(2): a(wr(Wbuf[i], plan[ldsm[i]][1], hf))
        for i in range(0, 12, 2): a(f'v_mov_b64 {R(t+i,2)}, 0')
        a(f'v_lshlrev_b32 v{X1+2}, 1, v{vL16}\nv_lshrrev_b32 v{X1+3}, 1, v{vL16}')
        if w < 2 and cfg.kpos[w] == 2: a(f's_add_u32 s{sKX2}, s{sKX}, 4096')
        if w == 3:
            a(f'v_lshlrev_b32 v{X1+1}, 2, v{vL16}')
            if not cfg.integ: a(f's_mov_b32 s{sPfe}, s{sPf}')
            else:
                a(f"""
                s_add_u32 s{sTmp+2}, s{sStep}, s{sLv}
                s_add_u32 s{sTmp+3}, s{sTmp+2}, 2
                s_cmp_ge_u32 s{sKn}, s{sTmp+3}
                s_cselect_b32 s{sPfe}, s{sPf}, {OOB}
                s_add_u32 s{sTmp+2}, s{sTmp+2}, 6
                s_add_u32 s{sTmp+3}, s{sLv}, 64
                s_min_u32 s{sTmp+2}, s{sTmp+2}, s{sTmp+3}
                s_cmp_lt_u32 s{sKn}, s{sTmp+2}
                s_cselect_b32 s{sFl}, 1, 0
                """)
            a(f's_add_u32 s{sKX2}, s{sPfe}, 4096\ns_add_u32 s{sKX}, s{sPfe}, {L.VX - L.KX}\ns_add_u32 s{sRed}, s{sPfe}, {L.VX - L.KX + 4096}\ns_add_u32 s{sPf}, s{sPf}, 262144')
    if cfg.integ:
        if w == 3:
            a(f's_lshl_b32 s{sFh}, s{sH}, 7\ns_add_u32 s{sFh}, s{sFh}, {L.F_HEAD}\ns_mov_b32 s{sKn}, 0')
            avail(0)
        a('s_barrier')
    if w < 2 and cfg.kpos[w] < 2: kloads()
    pre_step()
    loop = a.lab('L_step')
    abuf_of = {}
    def aread(c, buf):
        abuf_of[c] = buf
        ds.issue(('A', c), f'ds_read_b128 {R(buf,4)}, v{vA} offset:{LD_MEM + c*512}')
    def head(nlate=0):
        a('s_barrier')
        stamp(a, cfg, 0); mark(a, cfg, 'B1')
        aread(0, Abuf[0])
        for i in range(nlate): a(f'buffer_load_dwordx4 v{vL16}, {WS}, s{sTmp} offen offset:{i*1024} sc1 lds')
        for c in range(1, 3): aread(c, Abuf[c])
    a('s_waitcnt vmcnt(0) lgkmcnt(0)')
    if cfg.log and w == 3:
        import workers
        workers.logtime(a, sFh, sLv, vM, vZ, 52)
    head()
    a(f'{loop}:')
    F = [Wbuf[0], Wbuf[0] + 4, Wbuf[1], Wbuf[1] + 4]
    lastuse = {}
    for i, key in enumerate(seq): lastuse[key[1]] = i
    pre = {}; mem = {}; val = {}
    def put(d, g, x):
        while d is not pre and g in d and g >= 0: g += 1
        d.setdefault(g, []).append(x); return g
    def vmem(x, tag='m'):
        def f():
            for y in x.split('|'):
                if y.startswith('buffer'): vm.issue(tag, y)
                else: a(y)
        return f
    vxl = [vmem(f'buffer_load_dwordx4 {R(VXr+4*i,4)}, v{X1+2}, {WS}, s{sVX} offen offset:{16*i} sc1', 'VX') for i in range(2)]
    if w < 2 and cfg.kpos[w] == 2:
        for c in range(4): put(mem, cfg.gkx[c], vmem(f'buffer_load_dwordx4 {R(KXr[c],4)}, v{vKX}, {WS}, s{sKX if c < 2 else sKX2} offen offset:{2048*(c&1)} sc1', 'KX'))
    for i, x in enumerate(vxl): put(mem, cfg.gv[w] + i, x)
    tail_pf = []
    if w == 3:
        g = cfg.gp + 9
        if cfg.pf:
            for i in range(4):
                x = vmem(f'buffer_load_dwordx2 {R(vM,2)}, v{X1+2}, {WS}, s{[sPfe, sKX2][i >> 1]} offen offset:{2048*(i&1)} sc1')
                if cfg.gk[i] < len(seq): put(mem, cfg.gk[i], x)
                else: tail_pf.append(x)
        if cfg.integ:
            sk = a.lab('L_nofl'); nf = a.lab('L_fl')
            tail_pf.append(vmem(f's_cmp_lg_u32 s{sFl}, 0|s_cbranch_scc1 {nf}|{sk}:'))
            cold.append(lambda nf=nf, sk=sk: a(f'{nf}:\ns_mov_b64 exec, 15\n{fload}\ns_mov_b64 exec, -1\ns_branch {sk}'))
    gp = cfg.gp
    if cfg.pub:
        put(mem, gp + w, vmem(f's_mov_b64 exec, s[{sKmask}:{sKmask+1}]|buffer_store_dwordx4 {R(X0,4)}, v{vPRx}, {WS}, s{sKM} offen sc1|s_mov_b64 exec, -1'))
        put(mem, gp + 4 + w, vmem(f'buffer_store_dwordx2 {R(vVp,2)}, v{X1+3}, {WS}, s{sKM} offen offset:2064 sc1'))
    if red:
        put(val, 2, f'v_mov_b32 v{X1}, -1'); put(val, 4, f'v_lshlrev_b32 v{X1+1}, 2, v{vL16}')
        put(mem, cfg.gpo + 3 * w, vmem(f'buffer_store_dword v{X1}, v{X1+1}, {WS}, s{sPo} offen {st}'))
        put(mem, cfg.gpo + 7 + w, vmem(f'buffer_store_dword v{X1}, v{vM}, {WS}, s{sRingPo} offen {st}'))
    if cfg.novm: mem = {}
    vm.q = ['late'] + vm.q
    put(pre, lastuse[5], lambda: (mark(a, cfg, 'z0'), vm.wait('late'), mark(a, cfg, 'late'), a('s_barrier'), mark(a, cfg, 'Bz')))
    nl = len(ldsm)
    pendW = []; nextw = 2
    for f in mem.pop(-1, []): f()
    ds.wait(('A', 0)); mark(a, cfg, 'A0')
    for i, key in enumerate(seq):
        m, c = key
        B = R(plan[key][1], 8) if plan[key][0] == 'r' else R(Wbuf[ldsm.index(key) % 2], 8)
        acc = {'q': accq, 'k': acck, 'v': accv}[m]
        a(f'{SM} {R(acc,4)}, {R(abuf_of[c],4)}, {B}, v{vIdx}')
        if i + 1 < len(seq):
            assert ('W', seq[i+1]) not in [p[0] for p in pendW], (w, i)
            ds.wait(('A', seq[i+1][1]), ('W', seq[i+1]))
        for f in pre.pop(i, []): f()
        if plan[key][0] == 'l' and nextw < nl:
            for hf in range(2): pendW.append((('W', ldsm[nextw]), wr(Wbuf[nextw % 2], plan[ldsm[nextw]][1], hf)))
            nextw += 1
        if lastuse[c] == i and c + 3 < 18: aread(c + 3, abuf_of[c])
        elif pendW: ds.issue(*pendW.pop(0))
        for f in mem.pop(i, []): f()
        for x in val.pop(i, []): a(x)
        mark(a, cfg, f'm{i}')
    assert not pendW and not pre and not mem and not val, (pendW, pre, mem, val)
    mark(a, cfg, 'mainend')
    dq = list(cfg.deferred); nxt = 3
    def defer(n, valu=(), other=()):
        nonlocal nxt
        valu = list(valu); other = list(other)
        for k in range(n):
            c = dq.pop(0)
            ds.wait(('A', c))
            a(f'{SM} {R(accv,4)}, {R(abuf_of[c],4)}, {R(plan[("v",c)][1],8)}, v{vIdx}')
            if k + 1 < n: ds.wait(('A', dq[0]))
            if nxt < len(cfg.deferred): aread(cfg.deferred[nxt], abuf_of[c]); nxt += 1
            elif other: other.pop(0)()
            if valu: a(valu.pop(0))
        for x in other: x()
        for x in valu: a(x)
    sh = cfg.sh
    defer(sh[0], [f'v_cvt_pk_bf16_f32 v{accq}, v{accq}, v{accq+1}', f'v_cvt_pk_bf16_f32 v{accq+1}, v{accq+2}, v{accq+3}'])
    a(f'v_cvt_pk_bf16_f32 v{acck}, v{acck}, v{acck+1}\nv_cvt_pk_bf16_f32 v{acck+1}, v{acck+2}, v{acck+3}')
    ds.issue('wq', f'ds_write_b64 v{vQW}, {R(accq,2)} offset:{LD_Q}')
    ds.issue('wk', f'ds_write_b64 v{vQW}, {R(acck,2)} offset:{LD_K}')
    mark(a, cfg, 'wk')
    defer(sh[1])
    ds.wait('wk'); mark(a, cfg, 'preB2')
    a('s_barrier')
    stamp(a, cfg, 1); mark(a, cfg, 'B2')
    Sc, E = accq, acck
    ones = X0; O = X1
    if w < 3:
        for c in range(4): ds.issue(('F', c), tr2(F[c], LD_Q, c, vTR))
        defer(sh[2])
        vm.wait('KX'); mark(a, cfg, 'kx')
        ds.wait(('F', 0))
        for c in range(4):
            a(f'v_mfma_f32_16x16x32_bf16 {R(Sc,4)}, {R(KXr[c] if w < 2 else F[c],4)}, {R(F[c],4)}, {"0" if c == 0 else R(Sc,4)}')
            if c < 3: ds.wait(('F', c + 1))
        defer(sh[3])
        mark(a, cfg, 'sc')
        if w == 2:
            for i in range(4): a(f'v_mul_f32 v{Sc+i}, s{sCs}, v{Sc+i}')
        for i in range(4): a(f'v_exp_f32 v{E+i}, v{Sc+i}')
        a(f's_mov_b64 exec, s[{sMask}:{sMask+1}]')
        a(f'v_cvt_pk_bf16_f32 v{E}, v{E}, v{E+1}\nv_cvt_pk_bf16_f32 v{E+1}, v{E+2}, v{E+3}')
        ds.issue('wp', f'ds_write_b64 v{vPW}, {R(E,2)}')
        a('s_mov_b64 exec, -1')
        mark(a, cfg, 'wp')
    else:
        if cfg.integ: avail(1)
        for x in tail_pf: x()
        defer(sh[2] + sh[3])
        if cfg.acc == 2: accumulate()
    Obuf = Wbuf + ([KXr[0], KXr[2]] if w < 2 else [VXr])
    npre = 4 if w < 2 else 2
    ldso = [k for k in plan if k[0] == 'o' and plan[k][0] == 'l']
    opre = [lambda i=i, hf=hf: ds.issue(ldso[i], wr(Obuf[i], plan[ldso[i]][1], hf)) for i in range(npre) for hf in range(2)]
    other = [lambda: ds.issue('one', cst(ones, LD_ONE))] + opre[:cfg.npw]
    opre = opre[cfg.npw:]
    defer(len(dq), other=other)
    ds.wait('wp'); mark(a, cfg, 'preB2b')
    lab_fb = a.lab('L_fallback'); lab_back = a.lab('L_fbret'); lab_last = a.lab('L_last'); lab_cont = a.lab('L_cont')
    a('s_barrier')
    stamp(a, cfg, 2); mark(a, cfg, 'B2b')
    Px = Abuf[0]; Ls = Abuf[1]; Pm = Abuf[2]
    acc = [accv, acck, Ls, accq, accv]
    hpost = [f'v_add_u32 v{vHv}, 1, v{vHv}', f's_mov_b64 exec, s[{sHm}:{sHm+1}]', f'buffer_store_byte v{vHv}, v{vHA}, {WS}, s{sHn} offen {st}', 's_mov_b64 exec, -1']
    nvx = 0; lab_cont2 = a.lab('L_cont2')
    def pv(first):
        nonlocal opre
        M16 = 'v_mfma_f32_16x16x16_bf16'; M32_ = 'v_mfma_f32_16x16x32_bf16'
        ds.issue('pm', f'ds_read_b64 {R(Pm,2)}, v{vPRm} offset:{LD_PM}')
        ds.issue('px', f'ds_read_b128 {R(Px,4)}, v{vPRx} offset:{LD_PX - 16}')
        a(f'v_cndmask_b32 v{Pm+2}, v{vPRx}, 0, s[{sKmask}:{sKmask+1}]')
        ds.issue('pe', f'ds_read_b128 {R(acck,4)}, v{Pm+2} offset:{LD_PX - 16}')
        a(f'v_cndmask_b32 v{Pm+3}, 0, v{vPRx}, s[{sKmask}:{sKmask+1}]')
        if first:
            a(f'v_cvt_pk_bf16_f32 v{vVp}, v{accv}, v{accv+1}\nv_cvt_pk_bf16_f32 v{vVp+1}, v{accv+2}, v{accv+3}')
        ds.issue('po', f'ds_read_b128 {R(accv,4)}, v{Pm+3} offset:{LD_PX - 16}')
        if first:
            nonlocal nvx
            nvx = len(vm.q) - 1 - max([i for i, x in enumerate(vm.q) if x == 'VX'] + [-1])
            if cfg.integ: a(f's_cmp_ge_u32 s{sStep}, {cfg.early}\ns_cbranch_scc1 {lab_last}\n{lab_cont}:')
            mark(a, cfg, 'v0'); vm.wait('VX'); mark(a, cfg, 'v1')
            if cfg.integ: a(f'{lab_cont2}:')
        op = opre if first else []
        def fill(n):
            for _ in range(n):
                if op: op.pop(0)()
        ds.wait('pm'); mark(a, cfg, 'px')
        a(f'{M16} {R(Ls,4)}, {R(ones,2)}, {R(Pm,2)}, 0')
        a(f'{M16} {R(O,4)}, {R(vVp,2)}, {R(Pm,2)}, 0')
        ds.wait('px'); fill(cfg.fills[0])
        a(f'{M32_} {R(Ls,4)}, {R(ones,4)}, {R(Px,4)}, {R(Ls,4)}')
        ds.wait('pe'); fill(cfg.fills[1])
        a(f'{M32_} {R(O,4)}, {R(VXr,4)}, {R(acck,4)}, {R(O,4)}')
        ds.wait('po'); fill(cfg.fills[2])
        a(f'{M32_} {R(O,4)}, {R(VXr+4,4)}, {R(accv,4)}, {R(O,4)}')
        a(f'v_rcp_f32 v{Ls}, v{Ls}')
        for r in (acck, accv): a(f'v_mov_b64 {R(r,2)}, 0\nv_mov_b64 {R(r+2,2)}, 0')
        fill(cfg.fills[3])
        mark(a, cfg, 'rcp')
        for i in range(4): a(f'v_mul_f32 v{O+i}, v{O+i}, v{Ls}')
        a(f'v_cvt_pk_bf16_f32 v{Pm}, v{O}, v{O+1}\nv_cvt_pk_bf16_f32 v{Pm+1}, v{O+2}, v{O+3}')
        ds.issue('wo', f'ds_write_b64 v{vTO}, {R(Pm,2)} offset:{LD_O + 512*w}')
        mark(a, cfg, 'wo')
        fill(cfg.fills[4])
    pv(True)
    lo, hi = fbits(2.0 ** -60), fbits(2.0 ** 60)
    a(f'v_subrev_u32 v{Ls+1}, {hex(lo)}, v{Ls+1}\nv_cmp_lt_u32 vcc, {hex(hi - lo)}, v{Ls+1}')
    a(f'v_mov_b64 {R(Ls,2)}, 0\nv_mov_b64 {R(Ls+2,2)}, 0\ns_cbranch_vccnz {lab_fb}\n{lab_back}:')
    if cfg.hpos == -2 and w == 3 and not cfg.noexch: a('\n'.join(hpost))
    a(f'v_mov_b64 {R(accq,2)}, 0\nv_mov_b64 {R(accq+2,2)}, 0')
    ds.wait('wo'); a('s_barrier')
    stamp(a, cfg, 3); mark(a, cfg, 'B3')
    Fo = [Abuf[0], Abuf[2], X0, X1]
    def fo(c): return (('F', c), f'ds_read_b128 {R(Fo[c],4)}, v{vPRx} offset:{LD_O + 512*c - 16}')
    for c in range(cfg.nfo): ds.issue(*fo(c))
    nexto = npre; gapq = []; pendW = [fo(c) for c in range(cfg.nfo, 4)]
    ndone = 2 * npre - len(opre)
    pendW += [(ldso[i // 2], wr(Obuf[i // 2], plan[ldso[i // 2]][1], i & 1)) for i in range(ndone, 2 * npre)]
    nb = len(Obuf)
    if npre < nb:
        for hf in range(2): pendW.append((ldso[nexto], wr(Obuf[nexto % nb], plan[ldso[nexto]][1], hf)))
        nexto += 1
    def finish(sl):
        ac = acc[sl]
        return [[f'v_cvt_pk_bf16_f32 v{ac}, v{ac}, v{ac+1}'], [f'v_cvt_pk_bf16_f32 v{ac+1}, v{ac+2}, v{ac+3}'],
                [f'buffer_store_dwordx2 {R(ac,2)}, v{vP}, {WS}, s{sP+sl} offen {st}']]
    zero = {}
    if NT[w] == 5: zero[8] = [f'v_mov_b64 {R(acc[4]+2,2)}, 0']; zero[12] = [f'v_mov_b64 {R(acc[4],2)}, 0']
    oseq = [('o', sl, c) for sl in range(NT[w]) for c in range(4)]
    hint = not cfg.noexch
    hr = VXr; ha = VXr + 7
    hload = f'buffer_load_dword v{hr}, v{ha}, {WS}, s{sHn} offen sc1'
    hq = {}
    if hint and w == 3:
        if cfg.hpos >= 0: hq[cfg.hpos] = hpost[1:]; a(hpost[0])
        elif cfg.hpos == -1: a('\n'.join(hpost))
    if hint and w == 1:
        zero[0] = [f'v_bfe_u32 v{ha}, v{vL16}, 2, 5']
        a(f'v_mov_b32 v{hr}, 0x00ff00ff')
        for gp_ in cfg.hgaps: hq[gp_] = [hload]
    ds.wait(('F', 0), oseq[0]); mark(a, cfg, 'F0')
    for i, key in enumerate(oseq):
        _, sl, c = key
        B = R(Obuf[ldso.index(key) % nb], 8) if plan[key][0] == 'l' else R(plan[key][1], 8)
        a(f'{SM} {R(acc[sl],4)}, {R(Fo[c],4)}, {B}, v{vIdx}')
        if i + 1 < len(oseq):
            assert oseq[i+1] not in [p[0] for p in pendW], (w, i)
            ds.wait(('F', oseq[i+1][2]), oseq[i+1])
        if plan[key][0] == 'l' and nexto < len(ldso):
            for hf in range(2): pendW.append((ldso[nexto], wr(Obuf[nexto % nb], plan[ldso[nexto]][1], hf)))
            nexto += 1
        if pendW: ds.issue(*pendW.pop(0))
        if c == 1 and sl >= 1: gapq += finish(sl - 1)
        for x in hq.get(i, []): a(x)
        if gapq:
            for x in gapq.pop(0): a(x)
        for x in zero.get(i, []): a(x)
        mark(a, cfg, f'o{i}')
    assert not pendW and not gapq
    mark(a, cfg, 'woend')
    Sel = X0; D = X1; ck = Abuf[2]
    a(f"""
    s_add_u32 s{sStep}, s{sStep}, 1
    s_add_u32 s{sRc}, s{sRc}, 1
    s_and_b32 s{sTmp}, s{sRc}, 3
    s_mul_i32 s{sGat}, s{sTmp}, 9216
    s_add_u32 s{sGat}, s{sGat}, {L.MR}
    s_add_u32 s{sRing}, s{sGat}, s{sUnit}
    s_add_u32 s{sGat}, s{sGat}, {g0*1024}
    """)
    if red: a(f'v_and_b32 v{ck}, 127, v{vL16}')
    if hint and w == 1: a(hload)
    for g in finish(NT[w] - 1):
        for x in g: a(x)
    stamp(a, cfg, 4); mark(a, cfg, 'pst')
    def scalars():
        if red:
            a(f"""
            s_xor_b32 s{sTmp}, s{sTmp}, 2
            s_mul_i32 s{sTmp}, s{sTmp}, 9216
            s_add_u32 s{sTmp}, s{sTmp}, {L.MR}
            s_add_u32 s{sRingPo}, s{sTmp}, s{sUnit}
            s_mov_b32 s{sPo}, s{sRed}
            """)
        for i in range(NT[w]): a(f's_add_u32 s{sP+i}, s{sP+i}, s{sPar}')
        a(f"""
        s_mov_b32 s{sKM}, s{sKMn}
        s_add_u32 s{sKMn}, s{sKMn}, 131072
        """)
    def rolling(dep, nld, loads, consume, gap, between=None):
        ok = a.lab('L_ok'); nx = a.lab('L_next')
        for k in range(dep):
            loads()
            if k == 0 and between: between()
            elif k + 1 < dep: delay(a, gap)
        consume(nld * (dep - 1))
        a(f's_cbranch_vccnz {nx}\n{ok}:')
        def rest():
            a(f'{nx}:'); loads(); budget(); consume(nld * (dep - 1)); a(f's_cbranch_vccz {ok}\ns_branch {nx}')
        cold.append(rest)
    def hint_wait(load, reg, comp=0):
        go = a.lab('L_go'); hl = a.lab('L_hint')
        A_, B_ = f's[{sTmp+2}:{sTmp+3}]', f's[{sTmp+4}:{sTmp+5}]'
        a(f's_and_b32 s{sHv}, s{sRc}, 255\ns_mul_i32 s{sHv}, s{sHv}, 0x01010101\ns_mov_b32 s{sHc}, {cfg.htry}\ns_mov_b64 {B_}, -1')
        def tries(n, tgt):
            nonlocal A_, B_
            for k in range(n):
                a(load if k % cfg.hun == 0 else 's_nop 0')
                a(f'v_cmp_ne_u32 {A_}, s{sHv}, v{reg}\ns_cmp_eq_u64 {B_}, 0\ns_cbranch_scc1 {tgt}')
                A_, B_ = B_, A_
        gc = a.lab('L_goc')
        if comp: tries(cfg.ncomp, go)
        a(f'{hl}:'); tries(8, gc)
        a(f's_sub_u32 s{sHc}, s{sHc}, 1\ns_cbranch_scc0 {hl}\n{gc}:')
        delay(a, comp)
        a(f'{go}:')
    def prep():
        a(f's_sub_u32 s{sPar}, 0, s{sPar}\ns_add_u32 s{sVX}, s{sVX}, 262144')
        if w < 2 and cfg.kpos[w] == 2: a(f's_add_u32 s{sKX}, s{sKX}, 262144')
        pre_step()
        a(tr2(X0, LD_Q, w, vTR))
    if red and not cfg.noexch:
        S_ = [Wbuf[0] + 4*i for i in range(4)]
        def loads():
            for i in range(4): a(f'buffer_load_dwordx4 {R(S_[i],4)}, v{vL16}, {WS}, s{sRed} offen offset:{i*1024} sc1')
        def consume(nafter):
            for i in range(4):
                a(f's_waitcnt vmcnt({3-i+nafter})' + (' lgkmcnt(0)' if i == 0 else ''))
                mark(a, cfg, f'r{i}')
                a(f'v_mfma_f32_16x16x32_bf16 {R(D,4)}, {R(S_[i],4)}, {R(Sel,4)}, {"0" if i == 0 else R(D,4)}')
                if i == 2: a(f'v_max3_u32 v{ck}, v{S_[0]}, v{S_[1]}, v{S_[2]}')
                if i == 3: a(f'v_max_u32 v{ck}, v{ck}, v{S_[3]}')
            a(f"""
            v_cmp_eq_u32 vcc, -1, v{ck}
            v_permlane32_swap_b32 v{D}, v{D+2}
            v_permlane32_swap_b32 v{D+1}, v{D+3}
            v_add_f32 v{D}, v{D}, v{D+2}
            v_add_f32 v{D+1}, v{D+1}, v{D+3}
            v_cvt_pk_bf16_f32 v{ck}, v{D}, v{D+1}
            """)
        a(f'ds_read_b128 {R(Sel,4)}, v{ck} offset:{LD_SEL}')
        if w == 1:
            a(f'v_mov_b32 v{hr+1}, s{sRc}')
            hint_wait(hload, hr, cfg.d_comp)
            a(f's_mov_b64 exec, s[{sHm}:{sHm+1}]\ns_barrier\nbuffer_store_byte v{hr+1}, v{vHA}, {WS}, s{sH2} offen {st}\ns_mov_b64 exec, -1')
            mark(a, cfg, 'go')
            scalars()
        else:
            scalars(); a('s_barrier'); mark(a, cfg, 'go')
        delay(a, [cfg.d_redA, cfg.d_red, cfg.d_redC][w])
        mark(a, cfg, 'rstart')
        if w < 2 and cfg.kpos[w] == 0:
            ok = a.lab('L_ok'); nx = a.lab('L_next')
            loads(); kloads(); consume(4)
            a(f's_cbranch_vccnz {nx}\n{ok}:')
            def rest(ok=ok, nx=nx):
                a(f'{nx}:'); loads(); budget(); consume(0); a(f's_cbranch_vccz {ok}\ns_branch {nx}')
            cold.append(rest)
        else: rolling(1, 4, loads, consume, 0)
        a(f'buffer_store_dword v{ck}, v{vM}, {WS}, s{sRing} offen {st}')
        stamp(a, cfg, 5); mark(a, cfg, 'ring')
        if w < 2 and cfg.kpos[w] == 1: kloads()
        a(f's_add_u32 s{sRed}, s{sRed}, s{sPar}')
    else:
        if hint: a('s_barrier'); mark(a, cfg, 'go')
        if cfg.trace and w == 3:
            a(f's_memtime s[{sTmp+4}:{sTmp+5}]\ns_waitcnt lgkmcnt(0)\nv_writelane_b32 v{X1}, s{sTmp+4}, 1\ns_lshl_b32 s{sTmp+5}, s{sH}, 8\ns_lshl_b32 s{sTmp+4}, s{sStep}, 2\ns_add_u32 s{sTmp+4}, s{sTmp+4}, s{sTmp+5}\ns_add_u32 s{sTmp+4}, s{sTmp+4}, {L.STAMP+16384-4}')
            a(f's_mov_b64 exec, 2\nbuffer_store_dword v{X1}, v{vZ}, {WS}, s{sTmp+4} offen\ns_mov_b64 exec, -1')
        scalars()
        if cfg.integ and w == 3:
            sk = a.lab('L_nolv')
            a(f's_cmp_eq_u32 s{sFl}, 0\ns_cbranch_scc1 {sk}\ns_waitcnt vmcnt({NT[w] + 1})'); level(); a(f'{sk}:')
    prep()
    if cfg.acc == 1: accumulate()
    lab_join = a.lab('L_join')
    if not cfg.noexch:
        a(f's_mov_b32 s{sVer}, 0')
        if w == 3:
            a(f'v_bfe_u32 v{ha}, v{vL16}, 2, 5\nv_mov_b32 v{hr}, 0x00ff00ff\ns_mov_b32 m0, {LD_MEM}\ns_sub_u32 s{sTmp}, s{sGat}, {g0*1024}')
            if cfg.d_idle: a(f's_sleep {cfg.d_idle}')
            hint_wait(f'buffer_load_dword v{hr}, v{ha}, {WS}, s{sH2} offen sc1', hr)
            mark(a, cfg, 'go2')
            delay(a, cfg.d_go2)
            mark(a, cfg, 'gstart')
            for i in range(4): a(f'buffer_load_dwordx4 v{vL16}, {WS}, s{sTmp} offen offset:{i*1024} sc1 lds')
        l0, ln = LATE[w]
        a(f's_mov_b32 m0, {LD_MEM + 1024*l0}\ns_add_u32 s{sTmp}, s{sGat}, {(l0 - g0)*1024 & 0xffffffff}')
        a('s_waitcnt vmcnt(0) lgkmcnt(0)' if w == 3 else 's_waitcnt lgkmcnt(0)')
        mark(a, cfg, 'gok')
    else: a('s_waitcnt lgkmcnt(0)')
    ds.clear(); vm.clear()
    head(0 if cfg.noexch else LATE[w][1])
    ds.clear()
    if cfg.log and w == 3:
        import workers
        a(f's_add_u32 s99, s{sStep}, s{sLv}')
        lab_ = a.lab('L_nolog')
        a(f's_and_b32 s98, s{sStep}, 7\ns_cmp_ge_u32 s{sStep}, 60\ns_cselect_b32 s98, 0, s98\ns_cmp_le_u32 s{sStep}, 2\ns_cselect_b32 s98, 0, s98\ns_cmp_lg_u32 s98, 0\ns_cbranch_scc1 {lab_}')
        workers.logtime(a, sFh, 99, vM, vZ, 52)
        workers.logtime(a, sFh, 99, vM, vZ, 56, 's_memtime')
        a(f'{lab_}:')
    if cfg.trace and w == 3 and False:
        a(f's_memtime s[{sTmp+4}:{sTmp+5}]\ns_waitcnt lgkmcnt(0)\nv_writelane_b32 v{vM}, s{sTmp+4}, 1\ns_lshl_b32 s{sTmp+5}, s{sH}, 8\ns_lshl_b32 s{sTmp+4}, s{sStep}, 2\ns_add_u32 s{sTmp+4}, s{sTmp+4}, s{sTmp+5}\ns_add_u32 s{sTmp+4}, s{sTmp+4}, {L.STAMP+16384-4}')
        a(f's_mov_b64 exec, 2\nbuffer_store_dword v{vM}, v{vZ}, {WS}, s{sTmp+4} offen\ns_mov_b64 exec, -1')
    if cfg.integ: a(f's_sub_u32 s{sBud}, s{sBud}, 1\ns_cbranch_scc0 {loop}\ns_branch {exit_label}')
    else: a(f's_cmp_lt_u32 s{sStep}, {cfg.nsteps}\ns_cbranch_scc1 {loop}\ns_branch {lab_join}')
    for f in cold: f()
    lab_tm = a.lab('L_truemax'); lp = a.lab('L_regather')
    a(f'{lab_fb}:\ns_cmp_lg_u32 s{sVer}, 0\ns_cbranch_scc1 {lab_tm}\ns_mov_b32 s{sVer}, 1\ns_mov_b32 s{sKM}, {OOB}')
    if cfg.stamps or cfg.trace: a(f's_add_u32 s{sSt+2}, s{sSt+2}, 64')
    if cfg.acc: a(f's_add_u32 s{sSt+1}, s{sSt+1}, 1')
    if w == 3: a(f's_sub_u32 s{sPf}, s{sPf}, 262144')
    a(f's_waitcnt lgkmcnt(0)\n{lp}:'); gloads(); budget(); a('s_waitcnt vmcnt(0)')
    regs = [r + j for r in GL for j in range(4)]
    a(f'v_max_u32 v{X1}, v{regs[0]}, v{regs[1]}')
    for i in range(2, len(regs), 2): a(f'v_max3_u32 v{X1}, v{X1}, v{regs[i]}, v{regs[i+1]}')
    a(f'v_cmp_eq_u32 vcc, -1, v{X1}\ns_cbranch_vccnz {lp}')
    for i in range(gn): a(gwrite(i))
    pre_step()
    a('s_waitcnt lgkmcnt(0)'); ds.clear(); head(); ds.clear(); a(f's_branch {loop}')
    a(f'{lab_tm}:\ns_waitcnt lgkmcnt(0)\ns_barrier')
    saved = list(ds.q); ds.clear()
    m0, m1 = E, E + 1
    if w < 3:
        a(f"""
        v_max3_f32 v{m0}, v{Sc}, v{Sc+1}, v{Sc+2}
        v_max_f32 v{m0}, v{m0}, v{Sc+3}
        v_mov_b32 v{m1}, v{m0}
        s_mov_b64 exec, s[{sMask}:{sMask+1}]
        ds_write_b64 v{vPW}, {R(m0,2)}
        s_mov_b64 exec, -1
        """)
    a('s_waitcnt lgkmcnt(0)\ns_barrier')
    if w < 3:
        a(f"""
        v_subrev_u32 v{m0}, 16, v{vPRx}
        v_lshrrev_b32 v{m0}, 1, v{m0}
        v_and_b32 v{m0}, 127, v{m0}
        ds_read_b128 {R(Px,4)}, v{vPRx} offset:{LD_PX - 16}
        ds_read_b64 {R(Pm,2)}, v{m0} offset:{LD_PM}
        s_waitcnt lgkmcnt(0)
        v_max3_f32 v{m0}, v{Px}, v{Px+2}, v{Pm}
        v_mov_b32 v{m1}, v{m0}
        v_permlane32_swap_b32 v{m0}, v{m1}
        v_max_f32 v{m0}, v{m0}, v{m1}
        v_mov_b32 v{m1}, v{m0}
        v_permlane16_swap_b32 v{m0}, v{m1}
        v_max_f32 v{Px}, v{m0}, v{m1}
        """)
        for i in range(4): a(f'v_sub_f32 v{E+i}, v{Sc+i}, v{Px}')
        for i in range(4): a(f'v_exp_f32 v{E+i}, v{E+i}')
        a(f'v_cvt_pk_bf16_f32 v{E}, v{E}, v{E+1}\nv_cvt_pk_bf16_f32 v{E+1}, v{E+2}, v{E+3}')
    a('s_barrier')
    if w < 3: a(f's_mov_b64 exec, s[{sMask}:{sMask+1}]\nds_write_b64 v{vPW}, {R(E,2)}\ns_mov_b64 exec, -1')
    a(cst(ones, LD_ONE))
    a('s_waitcnt lgkmcnt(0)\ns_barrier')
    fine_save = cfg.fine; cfg.fine = []
    pv(False)
    cfg.fine = fine_save
    ds.clear()
    a(f'v_mov_b64 {R(Ls,2)}, 0\nv_mov_b64 {R(Ls+2,2)}, 0\ns_waitcnt lgkmcnt(0)\ns_branch {lab_back}')
    if cfg.integ:
        a(f"""
        {lab_last}:
        {tr2(Ls, LD_Q, w, vTR)}
        v_lshlrev_b32 v{X1}, 16, v{vVp}
        v_lshlrev_b32 v{X1+1}, 16, v{vVp+1}
        v_and_b32 v{X1+2}, 0xffff0000, v{vVp}
        v_and_b32 v{X1+3}, 0xffff0000, v{vVp+1}
        v_cmp_u_f32 vcc, v{X1}, v{X1+1}
        v_cmp_u_f32 s[{sTmp}:{sTmp+1}], v{X1+2}, v{X1+3}
        v_lshrrev_b32 v{X1+3}, 1, v{vL16}
        s_or_b64 vcc, vcc, s[{sTmp}:{sTmp+1}]
        s_cselect_b32 s{sTmp}, s{sVer}, 1
        s_cmp_eq_u32 s{sTmp}, 0
        s_waitcnt lgkmcnt(0)
        s_cbranch_scc1 {lab_cont}
        s_waitcnt vmcnt({nvx})
        buffer_store_dwordx2 {R(vVp,2)}, v{X1+3}, {WS}, s{sKMn} offen offset:2064 sc1
        s_waitcnt lgkmcnt(0)
        s_mov_b64 exec, s[{sKmask}:{sKmask+1}]
        buffer_store_dwordx4 {R(Ls,4)}, v{vPRx}, {WS}, s{sKMn} offen sc1
        s_mov_b64 exec, -1
        s_cmp_lt_u32 s{sStep}, 63
        s_cbranch_scc1 {lab_cont2}
        s_waitcnt vmcnt(0)
        s_barrier
        """)
    else:
        a(f"""
        {lab_join}:
        s_waitcnt vmcnt(0) lgkmcnt(0)
        {tr2(X0, LD_Q, w, vTR)}
        v_lshrrev_b32 v{X1+3}, 1, v{vL16}
        s_waitcnt lgkmcnt(0)
        s_mov_b64 exec, s[{sKmask}:{sKmask+1}]
        buffer_store_dwordx4 {R(X0,4)}, v{vPRx}, {WS}, s{sKM} offen sc1
        s_mov_b64 exec, -1
        buffer_store_dwordx2 {R(vVp,2)}, v{X1+3}, {WS}, s{sKM} offen offset:2064 sc1
        s_waitcnt vmcnt(0)
        s_barrier
        """)

VARIANTS = [(0, True), (1, True), (2, True), (2, False), (3, False)]

def emit_dispatch(a, labels):
    a(f'''
    s_cmp_eq_u32 s{sW}, 0
    s_cbranch_scc1 {labels[0]}
    s_cmp_eq_u32 s{sW}, 1
    s_cbranch_scc1 {labels[1]}
    s_cmp_eq_u32 s{sW}, 3
    s_cbranch_scc1 {labels[4]}
    s_cmp_lt_u32 s{sH}, 8
    s_cbranch_scc1 {labels[2]}
    s_branch {labels[3]}
    ''')
```

```python
from asmdsl import *
import layout as L
from chain import Q, srd, fbits, SCALE_LOG2E, OOB

SCALE_B = (18 ** -0.5) * 1.4426950408889634
sWS = 8; sT = 12; sRole = 16; sW = 17; sBud = 19
sLv = 48
sLay = 49
sX = 20
sY = 24
sS = 28; sNeed = 29; sKnown = 30; sOut = 31; sSig = 32; sPoll = 33; sSrc = 34; sM0 = 35; sDel = 36; sFv = 37
sTmp = 38
sId = 50; sPar = 51; sMul = 52; sStride = 53; sA = 54; sB = 55; sC = 56; sD = 57; sTeam = 58; sSigPrev = 59
sE = 60
sFlag = 62; sN = 63; sJ = 64; sI = 65
sL1 = 70
sKd = 71; sLev = 72; sAct = 73; sTile = 74; sFoT = 75
WS = f's[{sWS}:{sWS+3}]'
vL16 = 0; vLane = 1; vF = 2; vFa = 3

def base_regs(a):
    a(f'v_mbcnt_lo_u32_b32 v{vLane}, -1, 0\nv_mbcnt_hi_u32_b32 v{vLane}, -1, v{vLane}\nv_lshlrev_b32 v{vL16}, 4, v{vLane}')

def budget(a, ex): a(f's_sub_u32 s{sBud}, s{sBud}, 1\ns_cbranch_scc1 {ex}')

def poll(a, ex, mask, vaddr, soff, need, x2=False, sleep=2, vtmp=vF):
    lp = a.lab('L_poll'); dn = a.lab('L_polled')
    if isinstance(mask, int): a(f's_mov_b32 exec_lo, {hex(mask & 0xffffffff)}\ns_mov_b32 exec_hi, {hex(mask >> 32)}')
    else: a(f's_mov_b64 exec, {mask}')
    a(f'{lp}:')
    if x2:
        a(f'buffer_load_dwordx2 {R(vtmp,2)}, v{vaddr}, {WS}, s{soff} offen sc1\ns_waitcnt vmcnt(0)\nv_min_u32 v{vtmp}, v{vtmp}, v{vtmp+1}')
    else:
        a(f'buffer_load_dword v{vtmp}, v{vaddr}, {WS}, s{soff} offen sc1\ns_waitcnt vmcnt(0)')
    a(f'v_cmp_gt_u32 vcc, s{need}, v{vtmp}\ns_cbranch_vccz {dn}\ns_sleep {sleep}')
    budget(a, ex)
    a(f's_branch {lp}\n{dn}:\ns_mov_b64 exec, -1')

def signal(a, soff, sval, vtmp=vF):
    a(f'v_mov_b32 v{vtmp}, s{sval}\ns_mov_b64 exec, 1\nbuffer_store_dword v{vtmp}, v{vL16}, {WS}, s{soff} offen sc1\ns_mov_b64 exec, -1')
    if DEBUG: logtime(a, soff, sval, vtmp, vL16)

DEBUG = False
PROF = False
def prof(a, i):
    if PROF: a(f's_memtime s[94:95]\ns_waitcnt lgkmcnt(0)\ns_sub_u32 s95, s94, s79\ns_mov_b32 s79, s94\ns_add_u32 s{80+i}, s{80+i}, s95')
def prof_dump(a, slot):
    if not PROF: return
    for i in range(12): a(f'v_writelane_b32 v2, s{80+i}, {i}\ns_mov_b32 s{80+i}, 0')
    a(f'''
    s_lshl_b32 s94, s{sRole}, 2
    s_add_u32 s94, s94, s{sW}
    s_lshl_b32 s94, s94, 2
    s_lshr_b32 s95, s{sLv}, 5
    s_add_u32 s94, s94, s95
    s_add_u32 s94, s94, {slot}
    s_lshl_b32 s94, s94, 6
    s_add_u32 s94, s94, {L.STAMP + 8*1024*1024}
    v_lshlrev_b32 v3, 2, v{vLane}
    s_mov_b64 exec, 0xfff
    buffer_store_dword v2, v3, {WS}, s94 offen
    s_mov_b64 exec, -1
    s_waitcnt vmcnt(0)
    ''')
def logtime(a, soff, sval, vtmp, vzero, extra=0, clk='s_memrealtime'):
    a(f'''
    {clk} s[96:97]
    s_sub_u32 s98, s{soff}, {L.FLAGS - extra}
    s_cmp_lt_u32 s98, 16384
    s_cselect_b32 s98, s98, 16384
    s_lshl_b32 s98, s98, 6
    s_add_u32 s98, s98, s{sval}
    s_lshl_b32 s98, s98, 2
    s_add_u32 s98, s98, {L.STAMP}
    s_waitcnt lgkmcnt(0)
    v_mov_b32 v{vtmp}, s96
    s_mov_b64 exec, 1
    buffer_store_dword v{vtmp}, v{vzero}, {WS}, s98 offen
    s_mov_b64 exec, -1
    ''')

def load_ptr_srd(a, s, karg, size):
    a(f's_load_dwordx2 s[{sTmp+6}:{sTmp+7}], s[0:1], {karg}\ns_waitcnt lgkmcnt(0)')
    srd(a, s, sTmp + 6, size)

def ws_srd(a, s, off_sgpr, off_const, size):
    a(f's_add_u32 s{sTmp+6}, s{off_sgpr}, {off_const}\ns_add_u32 s{s}, s{sWS}, s{sTmp+6}\ns_addc_u32 s{s+1}, s{sWS+1}, 0\ns_mov_b32 s{s+2}, {size}\ns_mov_b32 s{s+3}, 0x20000')

WA = lambda ks: 256 + 4 * ks
WF = lambda ks: 400 + 4 * ks if ks < 28 else 224 + 4 * (ks - 28)
CS = 208
LD_PV = 0
LD_X = 1024
M32 = 'v_mfma_f32_32x32x16_bf16'

def one_wave(a, fn):
    sk = a.lab('L_ow')
    a(f's_cmp_lg_u32 s{sW}, 0\ns_cbranch_scc1 {sk}'); fn(); a(f'{sk}:\ns_barrier')

def gemm_load_weights(a, fo, rowstride):
    t = 4
    lp = a.lab('L_wl')
    a(f"""
    v_lshrrev_b32 v{t}, 2, v{vLane}
    v_mul_u32_u24 v{t}, {rowstride}, v{t}
    v_and_b32 v{t+1}, 3, v{vLane}
    v_lshl_add_u32 v{t}, v{t+1}, 4, v{t}
    s_mul_i32 s{sM0}, s{sW}, 36864
    s_mov_b32 s{sB}, s{sM0}
    s_mov_b32 s{sC}, 36
    {lp}:
    s_mov_b32 m0, s{sM0}
    s_add_u32 s{sM0}, s{sM0}, 1024
    buffer_load_dwordx4 v{t}, s[{sT}:{sT+3}], s{sA} offen lds
    s_add_u32 s{sA}, s{sA}, {16*rowstride}
    s_sub_u32 s{sC}, s{sC}, 1
    s_cmp_lg_u32 s{sC}, 0
    s_cbranch_scc1 {lp}
    v_bfe_u32 v{t+3}, v{vLane}, 4, 1
    v_lshlrev_b32 v{t+3}, 5, v{t+3}
    v_lshl_add_u32 v{t+3}, v{t+1}, 3, v{t+3}
    v_add_u32 v{t+3}, s{sB}, v{t+3}
    v_lshrrev_b32 v{t+2}, 5, v{vLane}           ; kh
    v_bfe_u32 v{t+4}, v{vLane}, 2, 2            ; r'
    v_lshl_add_u32 v{t+5}, v{t+2}, {2 if fo else 3}, v{t+4}
    v_lshl_add_u32 v{t+5}, v{t+5}, 6, v{t+3}
    """)
    if fo:
        a(f"""
        v_lshrrev_b32 v{t+6}, 1, v{t+4}
        v_lshl_add_u32 v{t+6}, v{t+2}, 2, v{t+6}
        v_mul_u32_u24 v{t+6}, 18, v{t+6}
        v_and_b32 v{t+4}, 1, v{t+4}
        v_add3_u32 v{t+6}, v{t+6}, v{t+4}, 16
        v_lshl_add_u32 v{t+6}, v{t+6}, 6, v{t+3}
        """)
    a('s_waitcnt vmcnt(0)')
    for ks in range(36):
        for hf in range(2):
            if not fo: dst, va, off = WA(ks), t + 5, (16*ks + 4*hf) * 64
            elif ks < 32: dst, va, off = WF(ks), t + 5, (18*ks + 8*hf) * 64
            else: dst, va, off = WF(ks), t + 6, 18 * (8*(ks-32) + 2*hf) * 64
            a(f'ds_read_b64_tr_b16 {R(dst+2*hf,2)}, v{va} offset:{off}')
        if ks % 4 == 3: a('s_waitcnt lgkmcnt(0)')
    a('s_barrier')

def stat_addr(a, dst, tmp):
    a(f'v_bfe_u32 v{tmp}, v{vLane}, 4, 1\nv_lshrrev_b32 v{dst}, 5, v{vLane}\nv_lshl_add_u32 v{dst}, v{tmp}, 1, v{dst}\nv_and_b32 v{tmp}, 15, v{vLane}\nv_lshlrev_b32 v{tmp}, 2, v{tmp}\nv_lshl_add_u32 v{dst}, v{dst}, 6, v{tmp}')

def add_residual(a, PK, RES, n, T):
    for i in range(n):
        a(f"""
        v_lshlrev_b32 v{T}, 16, v{RES+i}
        v_and_b32 v{T+1}, 0xffff0000, v{RES+i}
        v_lshlrev_b32 v{T+2}, 16, v{PK+i}
        v_and_b32 v{T+3}, 0xffff0000, v{PK+i}
        v_add_f32 v{T}, v{T}, v{T+2}
        v_add_f32 v{T+1}, v{T+1}, v{T+3}
        v_cvt_pk_bf16_f32 v{PK+i}, v{T}, v{T+1}
        """)

def row_stats(a, PK, n, T):
    a(f's_mov_b32 s{sTmp}, 0x3f803f80')
    for i in range(n):
        a(f'v_dot2_f32_bf16 v{T}, v{PK+i}, s{sTmp}, {"0" if i == 0 else f"v{T}"}\nv_dot2_f32_bf16 v{T+1}, v{PK+i}, v{PK+i}, {"0" if i == 0 else f"v{T+1}"}')
    a(f'v_permlane32_swap_b32 v{T}, v{T+1}\nv_add_f32 v{T}, v{T}, v{T+1}')

vR = 4; vSt = 5; vSa = 6; vPo = 7; vTl = 8; vOut = 9
FB = [12 + 4 * i for i in range(4)]
ACC = 28; TMP = 44; PKR = 84; RES = 92; SP = 100

def mfma_loop(a, kind, wreg, gap):
    ds = Q(a, 'lgkmcnt', 15)
    def rd(ks):
        if kind == 'FO' and ks >= 32:
            for hf in range(2): ds.issue(ks, f'ds_read2_b32 {R(FB[ks%4]+2*hf,2)}, v{vTl} offset0:{64*hf} offset1:{64*hf+32}')
            if ks < 35: a(f'v_add_u32 v{vTl}, 1024, v{vTl}')
        else: ds.issue(ks, f'ds_read_b128 {R(FB[ks%4],4)}, v{vR} offset:{ks*1024}')
    for ks in range(3): rd(ks)
    ds.wait(0)
    for ks in range(36):
        W_, F_ = R(wreg(ks), 4), R(FB[ks % 4], 4)
        x, y = (W_, F_) if kind in ('T', 'BT', 'FO') else (F_, W_)
        a(f'{M32} {R(ACC,16)}, {x}, {y}, {"0" if ks == 0 else R(ACC,16)}')
        if ks + 1 < 36: ds.wait(ks + 1)
        if ks + 3 < 36: rd(ks + 3)
        gap(ks, ds)

def ln_phase(a, kind, ex):
    lead = kind in ('T', 'N')
    nd = 11 if lead else 12
    npart = 18 if lead else 36
    mean, rs = TMP + 32, TMP + 33
    for i in range(4): a(f'v_mov_b32 v{FB[0]+i}, 0x3f803f80')
    for ks in range(36):
        W_, O_ = R(WA(ks), 4), R(FB[0], 4)
        x, y = (W_, O_) if kind in ('T', 'BT') else (O_, W_)
        a(f'{M32} {R(CS,16)}, {x}, {y}, {"0" if ks == 0 else R(CS,16)}')
    stat_addr(a, vSt, TMP)
    a(f"""
    v_add_u32 v{vSt}, {LD_X + 36864}, v{vSt}
    v_add_u32 v{vR}, {LD_X}, v{vL16}
    v_lshlrev_b32 v{vFa}, 2, v{vLane}
    s_lshl_b32 s{sTmp}, s{sW}, 8
    v_add_u32 v{vSa}, s{sTmp}, v{vFa}
    v_lshrrev_b32 v{TMP}, 5, v{vLane}
    v_lshl_add_u32 v{vPo}, v{TMP}, 4, s{sTmp}
    s_lshl_b32 s{sTmp}, s{sW}, 10
    v_add_u32 v{vTl}, s{sTmp}, v{vL16}
    s_add_u32 s{sM0}, s{sTmp}, {LD_X}
    s_mov_b32 s{sX+2}, {36864 + 256*npart}
    s_mov_b32 s{sX+3}, 0x20000
    s_mov_b32 s{sDel}, {4*nd*1024}
    s_mov_b32 s{sSigPrev}, {OOB}
    s_mov_b32 s{sS}, 0
    s_mov_b32 s{sKnown}, 0
    s_mov_b32 s{sFv}, 0
    """)
    order = list(range(9, nd)) + list(range(9))
    def dma(i):
        i = order[i]
        return [f's_add_u32 m0, s{sM0}, {4096*i}', f's_movk_i32 s{sA}, {4096*i}' if i < 8 else f's_mov_b32 s{sA}, {4096*i}', f'buffer_load_dwordx4 v{vTl}, s[{sX}:{sX+3}], s{sA} offen sc1 lds']
    def seg_srd(seg): a(f's_mul_i32 s{sD}, s{seg}, {L.XSEG}\ns_add_u32 s{sD}, s{sD}, s{sSrc}\ns_add_u32 s{sX}, s{sWS}, s{sD}\ns_addc_u32 s{sX+1}, s{sWS+1}, 0')
    def xpoll(seg, sleep):
        a(f's_lshl_b32 s{sPoll}, s{seg}, 5\ns_add_u32 s{sPoll}, s{sPoll}, {L.F_X}')
        poll(a, ex, 0x1f, vFa, sPoll, sL1, sleep=sleep)
    def peek_x(seg):
        a(f"""
        s_lshl_b32 s{sPoll}, s{seg}, 5
        s_add_u32 s{sPoll}, s{sPoll}, {L.F_X + 32}
        s_add_u32 s{sTmp}, s{seg}, 1
        s_cmp_lt_u32 s{sTmp}, s{sKnown}
        s_cselect_b32 s{sPoll}, {OOB}, s{sPoll}
        buffer_load_dword v{vOut}, v{vFa}, {WS}, s{sPoll} offen sc1
        """)
    loop = a.lab('L_seg')
    if lead:
        seg_srd(sS)
        one_wave(a, lambda: xpoll(sS, 1))
        for i in range(nd): a('\n'.join(dma(i)))
        peek_x(sS)
        a(f's_mov_b32 s{sE}, 0x1f1f1f1f\ns_mov_b32 s{sE+1}, 0x1f1f1f1f\ns_waitcnt vmcnt(0)\n{loop}:\ns_add_u32 s{sN}, s{sS}, 1')
        prof(a, 0)
        seg_srd(sN)
        a(f"""
        s_add_u32 s{sM0}, s{sM0}, s{sDel}
        s_waitcnt vmcnt({3+(1 if DEBUG else 0)})
        v_cmp_gt_u32 vcc, s{sL1}, v{vOut}
        s_barrier
        s_and_b64 vcc, vcc, s[{sE}:{sE+1}]
        s_ff1_i32_b64 s{sTmp}, vcc
        s_lshr_b32 s{sTmp}, s{sTmp}, 3
        s_min_u32 s{sTmp}, s{sTmp}, 8
        s_add_u32 s{sTmp}, s{sTmp}, s{sN}
        s_max_u32 s{sKnown}, s{sKnown}, s{sTmp}
        s_min_u32 s{sKnown}, s{sKnown}, 64
        s_cmp_lt_u32 s{sN}, s{sKnown}
        s_cselect_b32 s{sX+2}, s{sX+2}, 0
        """)
    else:
        have = a.lab('L_have')
        a(f'{loop}:'); prof(a, 0)
        seg_srd(sS)
        a(f's_cmp_lt_u32 s{sS}, s{sKnown}\ns_cbranch_scc1 {have}\ns_waitcnt vmcnt(0)\ns_barrier')
        signal(a, sSigPrev, sFv)
        def w0():
            a(f's_add_u32 s{sNeed}, s{sS}, s{sLv}\ns_mov_b32 s{sPoll}, {L.F_WO}')
            first = a.lab('L_f0'); go = a.lab('L_f1')
            a(f's_cmp_eq_u32 s{sS}, 0\ns_cbranch_scc1 {first}')
            poll(a, ex, 0x00ffffff00ffffff, vFa, sPoll, sNeed, sleep=1)
            a(f's_add_u32 s{sKnown}, s{sS}, 1\ns_mov_b32 exec_lo, 0xffffff\ns_mov_b32 exec_hi, 0xffffff')
            for d in (1, 2, 4, 8):
                a(f's_add_u32 s{sTmp}, s{sNeed}, {d}\nv_cmp_gt_u32 vcc, s{sTmp}, v{vF}\ns_add_u32 s{sTmp}, s{sS}, {d+1}\ns_cmp_eq_u64 vcc, 0\ns_cselect_b32 s{sKnown}, s{sTmp}, s{sKnown}')
            a(f's_mov_b64 exec, -1\ns_branch {go}\n{first}:\ns_add_u32 s{sNeed}, s{sNeed}, 1')
            poll(a, ex, 0xffffff, vFa, sPoll, sNeed, sleep=1)
            a(f's_mov_b32 s{sKnown}, 1\n{go}:\nv_mov_b32 v{vF}, s{sKnown}\nds_write_b32 v{vSa}, v{vF} offset:{LD_PV}\ns_waitcnt lgkmcnt(0)')
        one_wave(a, w0)
        a(f'ds_read_b32 v{vF}, v{vFa} offset:{LD_PV}\ns_mov_b32 s{sSigPrev}, {OOB}\ns_waitcnt lgkmcnt(0)\nv_readfirstlane_b32 s{sKnown}, v{vF}\n{have}:\ns_barrier')
        prof(a, 1)
        for i in range(nd): a('\n'.join(dma(i)))
        a('s_waitcnt vmcnt(6)\ns_barrier')
        signal(a, sSigPrev, sFv)
        a(f's_cmp_eq_u32 s{sW}, 0\ns_cselect_b32 s{sPoll}, {L.F_WO}, s{sSig}')
    prof(a, 2)
    nr = npart // 2
    fin = f"""v_add_f32 v{mean}, v{mean}, v{rs}
        v_mul_f32 v{mean}, {hex(fbits(1.0/576))}, v{mean}
        v_mov_b32 v{rs}, v{mean}
        -
        v_permlane32_swap_b32 v{mean}, v{rs}
        v_fma_f32 v{rs}, -v{mean}, v{mean}, v{rs}
        v_max_f32 v{rs}, 0, v{rs}
        v_add_f32 v{rs}, {hex(fbits(1e-5))}, v{rs}
        -
        v_rsq_f32 v{rs}, v{rs}
        -""".split('\n')
    if kind in ('T', 'BT'): fin += [f'v_mul_f32 v{rs}, s{sC}, v{rs}']
    else:
        fin += [f'v_mul_f32 v{mean}, v{mean}, v{rs}', f'v_cmp_gt_u32 vcc, 32, v{vLane}', '-', f'v_cndmask_b32 v{mean}, v{mean}, v{rs}, vcc', f'*ds_write_b32 v{vSa}, v{mean} offset:{LD_PV}']
        for g in range(8): fin += (['-'] if g % 2 == 0 else []) + [f'*ds_read_b128 {R(TMP+4*g,4)}, v{vPo} offset:{LD_PV + 32*g}']
    fin = [x.strip() for x in fin]
    def gap(ks, ds):
        if ks < nr: ds.issue(('s', ks), f'ds_read2st64_b32 {R(SP+2*(ks%4),2)}, v{vSt} offset0:{2*ks} offset1:{2*ks+1}')
        k = ks - 2
        if 0 <= k < nr:
            ds.wait(('s', k))
            if k == 0: a(f'v_mov_b64 {R(mean,2)}, {R(SP,2)}')
            else: a(f'v_add_f32 v{mean}, v{mean}, v{SP+2*(k%4)}\nv_add_f32 v{rs}, v{rs}, v{SP+2*(k%4)+1}')
        if k >= nr:
            while fin:
                x = fin.pop(0)
                if x == '-': break
                if x[0] == '*': ds.issue('pv', x[1:])
                else: a(x)
        if not lead and ks in (8, 20):
            a(f's_waitcnt vmcnt({(3 if ks == 8 else 0) + (2 if DEBUG else 1)})\ns_barrier')
        if not lead and ks == 21: a(f'buffer_load_dword v{vOut}, v{vFa}, {WS}, s{sPoll} offen sc1')
        if lead:
            if ks % 2 == 1 and ks // 2 < nd: a('\n'.join(dma(ks // 2)))
            if ks == 23: peek_x(sN)
            if ks == 28:
                prof(a, 3); a(f's_waitcnt vmcnt({nd+1})'); prof(a, 4); signal(a, sSigPrev, sFv)
    mfma_loop(a, kind, WA, gap)
    assert not fin
    prof(a, 5)
    a(f's_mul_i32 s{sD}, s{sS}, s{sMul}\ns_add_u32 s{sD}, s{sD}, s{sOut}\ns_add_u32 s{sA}, s{sD}, s{sB}')
    a(f's_add_u32 s{sFv}, s{sS}, s{sLv}\ns_add_u32 s{sFv}, s{sFv}, 1\ns_add_u32 s{sS}, s{sS}, 1')
    if lead: a(f'v_add_u32 v{vR}, s{sDel}, v{vR}\nv_add_u32 v{vSt}, s{sDel}, v{vSt}\ns_sub_u32 s{sDel}, 0, s{sDel}')
    a(f's_mov_b32 s{sSigPrev}, s{sSig}')
    a('s_waitcnt lgkmcnt(0)')
    for G in range(2):
        n = 2 if (kind == 'BT' and G == 1) else 8
        rr = range(8 * G, 8 * G + n)
        if kind in ('T', 'BT'):
            for r in rr: a(f'v_fma_f32 v{ACC+r}, -v{mean}, v{CS+r}, v{ACC+r}')
            for r in rr: a(f'v_mul_f32 v{ACC+r}, v{rs}, v{ACC+r}')
        else:
            for r in rr: a(f'v_mul_f32 v{ACC+r}, v{TMP+r}, v{ACC+r}')
            for r in rr: a(f'v_fma_f32 v{ACC+r}, -v{TMP+16+r}, v{CS}, v{ACC+r}')
        for r in rr[::2]: a(f'v_cvt_pk_bf16_f32 v{PKR+r//2}, v{ACC+r}, v{ACC+r+1}')
        if kind == 'BN':
            a(f's_mov_b32 exec_lo, {1 << 18}\ns_mov_b32 exec_hi, {1 << 18}')
            for i in range(4): a(f'v_mov_b32 v{PKR+4*G+i}, 0x3f803f80')
            a('s_mov_b64 exec, -1')
        if n == 8: a(f'buffer_store_dwordx4 {R(PKR+4*G,4)}, v{vL16}, {WS}, s{sA if G else sD} offen sc1')
        else: a(f's_mov_b32 exec_hi, 0\nbuffer_store_dword v{PKR+4}, v{vFa}, {WS}, s{sA} offen sc1\ns_mov_b64 exec, -1')
    if not lead:
        def peek():
            a(f's_waitcnt vmcnt(2)\ns_add_u32 s{sNeed}, s{sS}, s{sLv}\ns_mov_b32 exec_lo, 0xffffff\ns_mov_b32 exec_hi, 0xffffff')
            a(f'v_cmp_gt_u32 vcc, s{sNeed}, v{vOut}\ns_add_u32 s{sTmp}, s{sS}, 1\ns_cmp_eq_u64 vcc, 0\ns_cselect_b32 s{sTmp}, s{sTmp}, 0\ns_max_u32 s{sKnown}, s{sKnown}, s{sTmp}')
            a(f's_mov_b64 exec, -1\nv_mov_b32 v{vF}, s{sKnown}\nds_write_b32 v{vSa}, v{vF} offset:{LD_PV}\ns_waitcnt lgkmcnt(0)')
        one_wave(a, peek)
        a(f'ds_read_b32 v{vF}, v{vFa} offset:{LD_PV}\ns_waitcnt lgkmcnt(0)\nv_readfirstlane_b32 s{sKnown}, v{vF}')
    if lead:
        got = a.lab('L_got')
        a(f's_cmp_lg_u32 s{sX+2}, 0\ns_cbranch_scc1 {loop}\ns_cmp_ge_u32 s{sS}, 64\ns_cbranch_scc1 {got}\ns_waitcnt vmcnt(0)')
        signal(a, sSigPrev, sFv)
        xpoll(sS, 4)
        a(f's_mov_b32 s{sX+2}, {36864 + 256*npart}')
        for i in range(nd): a('\n'.join(dma(i)))
        peek_x(sS)
        a(f's_waitcnt vmcnt(0)\n{got}:')
    a(f's_cmp_lt_u32 s{sS}, 64\ns_cbranch_scc1 {loop}')
    a('s_waitcnt vmcnt(0)\ns_barrier'); signal(a, sSig, sFv)
    a('s_waitcnt vmcnt(0)\ns_barrier')

def natural_order(a, PK):
    for G in range(2):
        for i in range(2): a(f'v_permlane32_swap_b32 v{PK+4*G+i}, v{PK+4*G+2+i}')

def fo_phase(a, ex):
    stat_addr(a, vSt, TMP)
    a(f"""
    v_add_u32 v{vR}, {LD_X}, v{vL16}
    v_and_b32 v{TMP}, 31, v{vLane}
    v_lshrrev_b32 v{TMP+1}, 5, v{vLane}
    v_lshlrev_b32 v{vSa}, 2, v{TMP}
    v_lshl_add_u32 v{vSa}, v{TMP+1}, 9, v{vSa}
    v_add_u32 v{vSa}, {LD_X + 32768}, v{vSa}
    v_mul_u32_u24 v{vOut}, 1152, v{TMP}
    v_lshl_add_u32 v{vOut}, v{TMP+1}, 4, v{vOut}
    v_and_b32 v{TMP}, 15, v{vLane}
    v_lshrrev_b32 v{TMP+1}, 4, v{vLane}
    v_lshlrev_b32 v{vFa}, 3, v{TMP}
    v_lshl_add_u32 v{vFa}, v{TMP+1}, 11, v{vFa}
    s_lshl_b32 s{sPoll}, s{sTeam}, 7
    s_add_u32 s{sPoll}, s{sPoll}, {L.F_OB}
    s_lshl_b32 s{sTmp}, s{sW}, 10
    s_add_u32 s{sM0}, s{sTmp}, {LD_X}
    s_mul_i32 s{sSrc}, s{sTeam}, 36864
    s_add_u32 s{sOut}, s{sSrc}, 0
    s_add_u32 s{sSrc}, s{sSrc}, s{sTmp}
    s_add_u32 s{sSrc}, s{sSrc}, s{sLay}
    s_add_u32 s{sSrc}, s{sSrc}, {L.OB}
    s_lshl_b32 s{sTmp}, s{sFoT}, 6
    s_add_u32 s{sOut}, s{sOut}, s{sTmp}
    s_mul_i32 s{sB}, s{sTeam}, {L.XSEG}
    s_lshl_b32 s{sTmp}, s{sFoT}, 8
    s_add_u32 s{sC}, s{sB}, s{sTmp}
    s_lshl_b32 s{sTmp}, s{sFoT}, 11
    s_add_u32 s{sB}, s{sB}, s{sTmp}
    s_cmp_ge_u32 s{sFoT}, 18
    s_cselect_b32 s{sOut}, {OOB}, s{sOut}
    s_cselect_b32 s{sB}, {OOB}, s{sB}
    s_cselect_b32 s{sC}, {OOB}, s{sC}
    s_lshl_b32 s{sSig}, s{sTeam}, 3
    s_lshr_b32 s{sTmp}, s{sFoT}, 2
    s_add_u32 s{sSig}, s{sSig}, s{sTmp}
    s_lshl_b32 s{sSig}, s{sSig}, 2
    s_add_u32 s{sSig}, s{sSig}, {L.F_X}
    s_cmp_eq_u32 s{sW}, 0
    s_cselect_b32 s{sSig}, s{sSig}, {OOB}
    s_add_u32 s{sFv}, s{sL1}, 1
    """)
    vm = Q(a, 'vmcnt', 63)
    def dma(r, i):
        a(f's_add_u32 m0, s{sM0}, {36864*r + 4096*i}\ns_add_u32 s{sA}, s{sSrc}, {16*36864*r + 4096*i}')
        vm.issue(('d', r, i // 3), f'buffer_load_dwordx4 v{vL16}, {WS}, s{sA} offen sc1 lds')
    def res(r):
        a(f's_add_u32 s{sA}, s{sB}, s{sLay}\ns_add_u32 s{sA}, s{sA}, {L.X1 + 16*L.XSEG*r}')
        for G in range(2): vm.issue(('r', r), f'buffer_load_dwordx4 {R(RES+4*G,4)}, v{vL16}, {WS}, s{sA} offen offset:{1024*G} sc1')
    def sig(r):
        vm.wait('o'); a('s_barrier')
        a(f's_add_u32 s{sTmp+1}, s{sSig}, {16*32*r}'); signal(a, sTmp + 1, sFv)
        vm.q += ['s'] * (2 if DEBUG else 1)
    for r in range(4):
        prof(a, 0)
        if r in (0, 3):
            if r == 3: sig(2)
            one_wave(a, lambda: poll(a, ex, (1 << 48) - 1 if r == 0 else 0xffff << 48, vFa, sPoll, sL1, x2=True, sleep=1, vtmp=TMP))
            prof(a, 1)
            for i in range(9): dma(r, i)
            res(r)
            vm.wait(('d', r, 0))
        else:
            vm.wait(('d', r, 2)); res(r)
        a(f's_barrier\nv_mov_b32 v{vTl}, v{vSa}')
        prof(a, 2)
        def gap(ks, ds):
            if r in (0, 3) and ks in (8, 20): vm.wait(('d', r, 1 if ks == 8 else 2)); a('s_barrier')
            if r in (0, 1) and ks >= 9 and ks % 3 == 0: dma(r + 1, ks // 3 - 3)
            if ks == 26 and r in (1, 2): sig(r - 1)
        mfma_loop(a, 'FO', WF, gap)
        prof(a, 5)
        a(f'v_add_u32 v{vR}, 36864, v{vR}\nv_add_u32 v{vSa}, 36864, v{vSa}')
        for i in range(8): a(f'v_cvt_pk_bf16_f32 v{PKR+i}, v{ACC+2*i}, v{ACC+2*i+1}')
        natural_order(a, PKR)
        vm.wait(('r', r))
        add_residual(a, PKR, RES, 8, TMP)
        last = a.lab('L_folast'); dn = a.lab('L_fodn')
        a(f's_cmp_lg_u32 s{sLv}, 0\ns_cbranch_scc1 {last}\ns_add_u32 s{sA}, s{sB}, {L.LSTRIDE + L.X0 + 16*L.XSEG*r}')
        for G in range(2): a(f'buffer_store_dwordx4 {R(PKR+4*G,4)}, v{vL16}, {WS}, s{sA} offen offset:{1024*G} sc1')
        row_stats(a, PKR, 8, TMP)
        a(f's_add_u32 s{sA}, s{sC}, {L.LSTRIDE + L.X0 + 16*L.XSEG*r + 36864}\ns_branch {dn}')
        a(f'{last}:\ns_add_u32 s{sA}, s{sOut}, {16*36864*r}')
        for G in range(2): a(f'buffer_store_dwordx4 {R(PKR+4*G,4)}, v{vOut}, s[{sY}:{sY+3}], s{sA} offen offset:{32*G}')
        a(f's_mov_b32 s{sA}, {OOB}\n{dn}:\nbuffer_store_dword v{TMP}, v{vSt}, {WS}, s{sA} offen sc1')
        vm.q += ['o', 'o', 'o']
        prof(a, 7)
    sig(3)
    a('s_waitcnt vmcnt(0)\ns_barrier')

def pre_phase(a):
    stat_addr(a, vSt, TMP)
    a(f"""
    v_and_b32 v{TMP}, 31, v{vLane}
    v_lshrrev_b32 v{TMP+1}, 5, v{vLane}
    v_mul_u32_u24 v{vOut}, 1152, v{TMP}
    v_lshl_add_u32 v{vOut}, v{TMP+1}, 4, v{vOut}
    s_lshr_b32 s{sTmp}, s{sW}, 1
    s_lshl_b32 s{sTmp}, s{sTmp}, 5
    s_add_u32 s{sS}, s{sId}, s{sTmp}
    s_and_b32 s{sTmp}, s{sW}, 1
    s_mul_i32 s{sTile}, s{sTmp}, 9
    s_mul_i32 s{sA}, s{sS}, 36864
    s_lshl_b32 s{sTmp}, s{sTile}, 6
    s_add_u32 s{sA}, s{sA}, s{sTmp}
    s_mul_i32 s{sB}, s{sS}, {L.XSEG}
    s_add_u32 s{sB}, s{sB}, {L.X0}
    s_lshl_b32 s{sTmp}, s{sTile}, 8
    s_add_u32 s{sC}, s{sB}, s{sTmp}
    s_add_u32 s{sC}, s{sC}, 36864
    s_lshl_b32 s{sTmp}, s{sTile}, 11
    s_add_u32 s{sB}, s{sB}, s{sTmp}
    """)
    D = 48
    for i in range(18): a(f'buffer_load_dwordx4 {R(D+4*i,4)}, v{vOut}, s[{sX}:{sX+3}], s{sA} offen offset:{32*i}')
    a('s_waitcnt vmcnt(0)')
    for tl in range(9):
        for G in range(2): a(f'buffer_store_dwordx4 {R(D+8*tl+4*G,4)}, v{vL16}, {WS}, s{sB} offen offset:{1024*G} sc1')
        row_stats(a, D + 8 * tl, 8, 12 + 2 * tl)
        a(f'buffer_store_dword v{12+2*tl}, v{vSt}, {WS}, s{sC} offen offset:{256*tl} sc1\ns_add_u32 s{sB}, s{sB}, 2048')
    a(f"""
    s_waitcnt vmcnt(0)
    s_barrier
    s_lshl_b32 s{sA}, s{sS}, 5
    s_add_u32 s{sA}, s{sA}, {L.F_X}
    s_cmp_eq_u32 s{sTile}, 0
    s_cselect_b32 s{sA}, s{sA}, {OOB}
    v_mov_b32 v{vF}, 1
    v_lshlrev_b32 v{vFa}, 2, v{vLane}
    s_mov_b64 exec, 31
    buffer_store_dword v{vF}, v{vFa}, {WS}, s{sA} offen sc1
    s_mov_b64 exec, -1
    """)

NPOIS = 56
SENT = 4
def poison_phase(a):
    lp = a.lab('L_poi')
    load_ptr_srd(a, sT, 88, 256)
    a(f"""
    v_mov_b64 v[4:5], -1
    v_mov_b64 v[6:7], -1
    s_lshl_b32 s{sA}, s{sTile}, 2
    s_add_u32 s{sA}, s{sA}, s{sW}
    s_lshl_b32 s{sA}, s{sA}, 12
    s_add_u32 s{sA}, s{sA}, {L.KM}
    {lp}:
    """)
    for i in range(4): a(f'buffer_store_dwordx4 v[4:7], v{vL16}, {WS}, s{sA} offen offset:{1024*i} sc1')
    a(f"""
    s_add_u32 s{sA}, s{sA}, {NPOIS*4*4096}
    s_cmp_lt_u32 s{sA}, {L.KM + 2048*4096}
    s_cbranch_scc1 {lp}
    s_waitcnt vmcnt(0)
    s_barrier
    v_mov_b32 v4, 1
    s_cmp_eq_u32 s{sW}, 0
    s_cselect_b32 s{sA}, 0, {OOB}
    s_mov_b64 exec, 1
    buffer_atomic_add v4, v{vL16}, s[{sT}:{sT+3}], s{sA} offen offset:{L.D_POI}
    s_mov_b64 exec, -1
    """)

def att_phase(a, ex):
    vKa = 4; vVa = 5; m0 = 6; m1 = 7; vWr = 202
    MK = 8; KMr = 120; VMr = 152; Sx = 160; Sm = 176; Px = 192; Pm = 200; PO = 204
    Qr = 256; Kr = 288; Vr = 320
    O = [24, 40, 56, 72]; PKo = 88; LDm = 24
    a(f"""
    v_lshlrev_b32 v{vFa}, 2, v{vLane}
    s_lshl_b32 s{sTmp}, s{sW}, 12
    v_add_u32 v{vWr}, s{sTmp}, v{vL16}
    v_lshrrev_b32 v{m0}, 5, v{vLane}
    v_and_b32 v{m1}, 7, v{vLane}
    v_lshlrev_b32 v{m1}, 4, v{m1}
    v_lshl_add_u32 v{vKa}, v{m0}, 7, v{m1}
    v_add_u32 v{vKa}, s{sTmp}, v{vKa}
    v_and_b32 v{m1}, 1, v{vLane}
    v_lshl_add_u32 v{m1}, v{m1}, 1, v{m0}
    v_lshlrev_b32 v{m1}, 4, v{m1}
    v_bfe_u32 v{vVa}, v{vLane}, 1, 4
    v_add_lshl_u32 v{vVa}, v{vVa}, v{m1}, 3
    v_add_u32 v{vVa}, s{sTmp}, v{vVa}
    v_and_b32 v{m1}, 31, v{vLane}
    v_lshlrev_b32 v{m0}, 2, v{m0}
    v_sub_u32 v{m1}, v{m1}, v{m0}
    v_mov_b32 v{m0}, 0xff800000
    v_mov_b64 {R(PO,2)}, -1
    v_mov_b64 {R(PO+2,2)}, -1
    """)
    for r in range(16):
        a(f'v_cmp_le_i32 vcc, {8*(r>>2) + (r&3)}, v{m1}\nv_cndmask_b32 v{MK+r}, v{m0}, 0, vcc')
    a(f"""
    s_mov_b32 s{sS}, s{sPar}
    s_lshl_b32 s{sPoll}, s{sId}, 7
    s_add_u32 s{sPoll}, s{sPoll}, {L.F_HEAD}
    s_lshl_b32 s{sSig}, s{sPar}, 5
    s_add_u32 s{sSig}, s{sSig}, s{sId}
    s_lshl_b32 s{sSig}, s{sSig}, 2
    s_add_u32 s{sSig}, s{sSig}, {L.F_ATT}
    s_mov_b32 s{sC}, {fbits(SCALE_LOG2E)}
    s_mov_b32 s{sKnown}, 0
    s_mov_b32 s{sSigPrev}, {OOB}
    s_mov_b32 s{sFv}, 0
    """)
    load_ptr_srd(a, sT, 88, 256)
    pw = a.lab('L_pw')
    a(f'{pw}:\nbuffer_load_dword v{vF}, v{vFa}, s[{sT}:{sT+3}], 0 offen offset:{L.D_POI} sc1\ns_sleep 8')
    budget(a, ex)
    a(f's_waitcnt vmcnt(0)\nv_readfirstlane_b32 s{sTmp}, v{vF}\ns_cmp_lt_u32 s{sTmp}, {NPOIS}\ns_cbranch_scc1 {pw}')
    loop = a.lab('L_att')
    a(f'{loop}:\ns_add_u32 s{sNeed}, s{sS}, s{sLv}\ns_add_u32 s{sNeed}, s{sNeed}, 1')
    prof(a, 0)
    hv = a.lab('L_ahv')
    a(f's_cmp_le_u32 s{sNeed}, s{sKnown}\ns_cbranch_scc1 {hv}\ns_waitcnt vmcnt(0)')
    signal(a, sSigPrev, sFv)
    poll(a, ex, 0xfff, vFa, sPoll, sNeed)
    a(f's_mov_b32 s{sSigPrev}, {OOB}\ns_mov_b64 exec, 0xfff')
    for d in (2, 4, 8, 16, 32):
        a(f's_add_u32 s{sTmp}, s{sNeed}, {d}\nv_cmp_gt_u32 vcc, s{sTmp}, v{vF}\ns_cmp_eq_u64 vcc, 0\ns_cselect_b32 s{sKnown}, s{sTmp}, s{sKnown}')
    a(f's_add_u32 s{sTmp}, s{sLv}, 64\nv_cmp_gt_u32 vcc, s{sTmp}, v{vF}\ns_cmp_eq_u64 vcc, 0\ns_cselect_b32 s{sKnown}, s{sTmp}, s{sKnown}\ns_mov_b64 exec, -1\n{hv}:')
    prof(a, 1)
    a(f"""
    s_lshl_b32 s{sTmp}, s{sS}, 5
    s_add_u32 s{sTmp}, s{sTmp}, s{sId}
    s_lshl_b32 s{sA}, s{sTmp}, 13
    s_add_u32 s{sA}, s{sA}, s{sLay}
    s_lshl_b32 s{sB}, s{sTmp}, 12
    s_add_u32 s{sB}, s{sB}, s{sLay}
    s_add_u32 s{sB}, s{sB}, {L.KM}
    """)
    for base, reg in ((L.QX, Qr), (L.KX, Kr), (L.VX, Vr)):
        for hf in range(2):
            a(f's_add_u32 s{sTmp}, s{sA}, {base + 4096*hf}')
            for i in range(4): a(f'buffer_load_dwordx4 {R(reg+16*hf+4*i,4)}, v{vL16}, {WS}, s{sTmp} offen offset:{1024*i} sc1')
        if reg == Qr:
            a('s_waitcnt vmcnt(8)'); signal(a, sSigPrev, sFv)
    a('s_waitcnt vmcnt(8)')
    npz = a.lab('L_npz')
    a(f's_cmp_lg_u32 s{sLv}, 0\ns_cbranch_scc1 {npz}\ns_add_u32 s{sD}, s{sB}, {L.LSTRIDE}')
    for i in range(4): a(f'buffer_store_dwordx4 {R(PO,4)}, v{vL16}, {WS}, s{sD} offen offset:{1024*i} sc1')
    a(f'{npz}:')
    for f in range(8): a(f'{M32} {R(Sx,16)}, {R(Kr+4*f,4)}, {R(Qr+4*f,4)}, {R(MK,16) if f == 0 else R(Sx,16)}')
    a(f'v_max3_f32 v{m0}, v{Sx}, v{Sx+1}, v{Sx+2}')
    for r in range(3, 15, 2): a(f'v_max3_f32 v{m0}, v{m0}, v{Sx+r}, v{Sx+r+1}')
    a(f'v_max_f32 v{m0}, v{m0}, v{Sx+15}')
    prof(a, 2)
    lp = a.lab('L_km'); dn = a.lab('L_kmd'); sp = a.lab('L_kms')
    if SENT:
        a(f's_cmp_ge_u32 s{sS}, 63\ns_cbranch_scc1 {lp}\ns_mov_b64 exec, 1\n{sp}:\ns_sleep {SENT}\nbuffer_load_dword v{m1}, v{vL16}, {WS}, s{sB} offen offset:4092 sc1')
        budget(a, ex)
        a(f's_waitcnt vmcnt(0)\nv_cmp_eq_u32 vcc, -1, v{m1}\ns_cbranch_vccnz {sp}\ns_mov_b64 exec, -1')
    a(f'{lp}:')
    for i in range(4): a(f'buffer_load_dwordx4 {R(LDm+4*i,4)}, v{vL16}, {WS}, s{sB} offen offset:{1024*i} sc1')
    budget(a, ex)
    a(f's_waitcnt vmcnt(0)\nv_max3_u32 v{m1}, v{LDm}, v{LDm+1}, v{LDm+2}')
    for i in range(3, 15, 2): a(f'v_max3_u32 v{m1}, v{m1}, v{LDm+i}, v{LDm+i+1}')
    a(f'v_max_u32 v{m1}, v{m1}, v{LDm+15}\nv_cmp_eq_u32 vcc, -1, v{m1}\ns_cbranch_vccz {dn}\ns_sleep 2\ns_branch {lp}\n{dn}:')
    prof(a, 3)
    for i in range(4): a(f'ds_write_b128 v{vWr}, {R(LDm+4*i,4)} offset:{1024*i}')
    for f in range(8): a(f'ds_read_b128 {R(KMr+4*f,4)}, v{vKa} offset:{256*f}')
    for f in range(8):
        a(f's_waitcnt lgkmcnt({7 - f + min(f, 4)})\n{M32} {R(Sm,16)}, {R(KMr+4*f,4)}, {R(Qr+4*f,4)}, {"0" if f == 0 else R(Sm,16)}')
        if f < 4: a(f'ds_read_b64 {R(VMr+2*f,2)}, v{vVa} offset:{2048 + 512*f}')
    prof(a, 4)
    for i in range(4): a(f'v_mul_f32 v{Sm+i}, s{sC}, v{Sm+i}')
    a(f"""
    v_max3_f32 v{m0}, v{m0}, v{Sm}, v{Sm+1}
    v_max3_f32 v{m0}, v{m0}, v{Sm+2}, v{Sm+3}
    v_mov_b32 v{m1}, v{m0}
    v_permlane32_swap_b32 v{m0}, v{m1}
    v_max_f32 v{m0}, v{m0}, v{m1}
    """)
    for r in range(20): a(f'v_sub_f32 v{Sx+r}, v{Sx+r}, v{m0}')
    for r in range(20): a(f'v_exp_f32 v{Sx+r}, v{Sx+r}')
    a(f'v_add_f32 v{m0}, v{Sx}, v{Sx+1}\nv_add_f32 v{m1}, v{Sx+2}, v{Sx+3}')
    for r in range(4, 20, 2): a(f'v_add_f32 v{m0}, v{m0}, v{Sx+r}\nv_add_f32 v{m1}, v{m1}, v{Sx+r+1}')
    a(f"""
    v_add_f32 v{m0}, v{m0}, v{m1}
    v_mov_b32 v{m1}, v{m0}
    v_permlane32_swap_b32 v{m0}, v{m1}
    v_add_f32 v{m0}, v{m0}, v{m1}
    v_rcp_f32 v{m0}, v{m0}
    """)
    for r in range(20): a(f'v_mul_f32 v{Sx+r}, v{m0}, v{Sx+r}')
    for r in range(0, 20, 2): a(f'v_cvt_pk_bf16_f32 v{Px+r//2}, v{Sx+r}, v{Sx+r+1}')
    a(f's_waitcnt lgkmcnt(0)\ns_add_u32 s{sA}, s{sA}, {L.OA}\ns_add_u32 s{sD}, s{sA}, 4096')
    def out(e):
        for G in range(2):
            for r in range(8*G, 8*G + 8, 2): a(f'v_cvt_pk_bf16_f32 v{PKo+8*e+r//2}, v{O[e]+r}, v{O[e]+r+1}')
            a(f'buffer_store_dwordx4 {R(PKo+8*e+4*G,4)}, v{vL16}, {WS}, s{sA if e < 2 else sD} offen offset:{2048*(e&1) + 1024*G} sc1')
    m8 = lambda e: a(f'v_mfma_f32_32x32x8_bf16 {R(O[e],16)}, {R(VMr+2*e,2)}, {R(Pm,2)}, 0')
    m8(0); m8(1)
    for e in range(4):
        for G in range(2): a(f'{M32} {R(O[e],16)}, {R(Vr+8*e+4*G,4)}, {R(Px+4*G,4)}, {R(O[e],16)}')
        if e + 2 < 4: m8(e + 2)
        if e >= 1: out(e - 1)
    out(3)
    prof(a, 5)
    a(f's_mov_b32 s{sFv}, s{sNeed}\ns_mov_b32 s{sSigPrev}, s{sSig}\ns_add_u32 s{sS}, s{sS}, 2\ns_cmp_lt_u32 s{sS}, 64\ns_cbranch_scc1 {loop}\ns_waitcnt vmcnt(0)')
    signal(a, sSig, sFv)
    a('s_waitcnt vmcnt(0)\ns_barrier')

def wo_reg(f, ct):
    i = ct * 32 + f
    return 256 + 4 * i if i < 64 else 128 + 4 * (i - 64)

def wo_load_weights(a):
    t = 4
    a(f"""
    v_lshrrev_b32 v{t}, 3, v{vLane}
    v_mul_u32_u24 v{t}, 1152, v{t}
    v_and_b32 v{t+1}, 7, v{vLane}
    v_min_u32 v{t+1}, 5, v{t+1}
    v_lshl_add_u32 v{t}, v{t+1}, 4, v{t}
    v_lshrrev_b32 v{t+2}, 5, v{vLane}
    v_bfe_u32 v{t+3}, v{vLane}, 4, 1
    v_lshl_add_u32 v{t+2}, v{t+2}, 2, v{t+3}
    v_bfe_u32 v{t+3}, v{vLane}, 2, 2
    v_lshl_add_u32 v{t+2}, v{t+2}, 2, v{t+3}
    v_and_b32 v{t+3}, 3, v{vLane}
    v_lshlrev_b32 v{t+3}, 3, v{t+3}
    v_lshl_add_u32 v{t+2}, v{t+2}, 7, v{t+3}
    s_lshl_b32 s{sB}, s{sW}, 15
    v_add_u32 v{t+2}, s{sB}, v{t+2}
    s_mul_i32 s{sA}, s{sW}, {1024*1152}
    s_mul_i32 s{sC}, s{sId}, 96
    s_add_u32 s{sA}, s{sA}, s{sC}
    """)
    for ps in range(4):
        lp = a.lab('L_wol')
        a(f"""
        s_mov_b32 s{sM0}, s{sB}
        s_mov_b32 s{sC}, 32
        {lp}:
        s_mov_b32 m0, s{sM0}
        s_add_u32 s{sM0}, s{sM0}, 1024
        buffer_load_dwordx4 v{t}, s[{sT}:{sT+3}], s{sA} offen lds
        s_add_u32 s{sA}, s{sA}, {8*1152}
        s_sub_u32 s{sC}, s{sC}, 1
        s_cmp_lg_u32 s{sC}, 0
        s_cbranch_scc1 {lp}
        s_waitcnt vmcnt(0)
        """)
        for f in range(8):
            for ct in range(3):
                for hf in range(2): a(f'ds_read_b64_tr_b16 {R(wo_reg(8*ps+f,ct)+2*hf,2)}, v{t+2} offset:{f*4096 + 1024*hf + 32*ct}')
            if f % 2 == 1: a('s_waitcnt lgkmcnt(0)')
    a('s_barrier')

WO_NB = 14
def wo_phase(a, ex):
    ACC = 4; LB = [16 + 4 * i for i in range(WO_NB)]; RES = 116; vOa = 120; vXa = 121; vSt_ = 122; vWr = 124; vRd = 125
    NB = len(LB)
    a(f"""
    v_lshlrev_b32 v{vFa}, 2, v{vLane}
    v_and_b32 v{vSt_}, 15, v{vLane}
    v_lshrrev_b32 v{vWr}, 4, v{vLane}
    v_lshrrev_b32 v{vRd}, 5, v{vLane}
    s_lshl_b32 s{sTmp}, s{sTeam}, 4
    v_add_lshl_u32 v{vXa}, v{vSt_}, s{sTmp}, 4
    v_lshl_add_u32 v{vOa}, v{vWr}, 9, v{vXa}
    v_lshl_add_u32 v{vXa}, v{vRd}, 9, v{vXa}
    v_lshlrev_b32 v{vSt_}, 2, v{vSt_}
    v_lshl_add_u32 v{vSt_}, v{vRd}, 6, v{vSt_}
    s_mul_i32 s{sTmp}, s{sW}, 3072
    v_add_u32 v{vWr}, s{sTmp}, v{vL16}
    s_lshl_b32 s{sTmp}, s{sW}, 10
    v_add_u32 v{vRd}, s{sTmp}, v{vL16}
    s_mul_i32 s{sTmp}, s{sId}, 3
    s_add_u32 s{sTmp}, s{sTmp}, s{sW}
    s_lshl_b32 s{sOut}, s{sTmp}, 10
    s_add_u32 s{sOut}, s{sOut}, s{sLay}
    s_lshl_b32 s{sC}, s{sTmp}, 8
    s_lshl_b32 s{sTmp}, s{sTeam}, 7
    s_add_u32 s{sC}, s{sC}, s{sTmp}
    s_add_u32 s{sC}, s{sC}, s{sLay}
    s_add_u32 s{sC}, s{sC}, {L.X1 + 36864}
    s_cmp_eq_u32 s{sW}, 3
    s_cselect_b32 s{sOut}, {OOB}, s{sOut}
    s_cselect_b32 s{sC}, {OOB}, s{sC}
    s_mov_b32 s{sS}, s{sPar}
    s_lshl_b32 s{sPoll}, s{sPar}, 7
    s_add_u32 s{sPoll}, s{sPoll}, {L.F_ATT}
    s_mul_i32 s{sSig}, s{sTeam}, 12
    s_add_u32 s{sSig}, s{sSig}, s{sId}
    s_lshl_b32 s{sTmp}, s{sPar}, 5
    s_add_u32 s{sSig}, s{sSig}, s{sTmp}
    s_lshl_b32 s{sSig}, s{sSig}, 2
    s_add_u32 s{sSig}, s{sSig}, {L.F_WO}
    s_cmp_eq_u32 s{sW}, 0
    s_cselect_b32 s{sSig}, s{sSig}, {OOB}
    s_mov_b32 s{sE}, 0xffff
    s_mov_b32 s{sE+1}, 0xffff
    """)
    loop = a.lab('L_wo')
    a(f"""
    {loop}:
    s_add_u32 s{sNeed}, s{sS}, s{sLv}
    s_add_u32 s{sNeed}, s{sNeed}, 1
    s_lshl_b32 s{sA}, s{sS}, 18
    s_lshl_b32 s{sTmp}, s{sW}, 16
    s_add_u32 s{sA}, s{sA}, s{sTmp}
    s_add_u32 s{sA}, s{sA}, s{sLay}
    s_add_u32 s{sA}, s{sA}, {L.OA}
    s_mul_i32 s{sD}, s{sS}, {L.XSEG}
    s_add_u32 s{sB}, s{sD}, s{sC}
    s_add_u32 s{sD}, s{sD}, s{sOut}
    s_add_u32 s{sSrc}, s{sD}, {L.X0}
    s_add_u32 s{sD}, s{sD}, {L.X1}
    """)
    prof(a, 0)
    one_wave(a, lambda: poll(a, ex, 0xffffffff, vFa, sPoll, sNeed, sleep=1))
    prof(a, 1)
    vm = Q(a, 'vmcnt', 63)
    def ld(f):
        vm.issue(f, f'buffer_load_dwordx4 {R(LB[f%NB],4)}, v{vOa}, {WS}, s{sA} offen offset:{2048*(f&1)} sc1')
        if f & 1: a(f's_add_u32 s{sA}, s{sA}, 4096')
    for f in range(NB): ld(f)
    for f in range(32):
        vm.wait(f)
        if f == 0: prof(a, 2)
        for ct in range(3):
            a(f'v_mfma_f32_16x16x32_bf16 {R(ACC+4*ct,4)}, {R(wo_reg(f,ct),4)}, {R(LB[f%NB],4)}, {"0" if f == 0 else R(ACC+4*ct,4)}')
        if f + NB < 32: ld(f + NB)
        if f + NB == 32: vm.issue('r', f'buffer_load_dwordx4 {R(RES,4)}, v{vXa}, {WS}, s{sSrc} offen sc1')
    prof(a, 3)
    for ct in range(3): a(f'ds_write_b128 v{vWr}, {R(ACC+4*ct,4)} offset:{1024*ct}')
    a('s_waitcnt lgkmcnt(0)\ns_barrier')
    for ww in range(4): a(f'ds_read_b128 {R(16+4*ww,4)}, v{vRd} offset:{3072*ww}')
    a('s_waitcnt vmcnt(0) lgkmcnt(0)')
    for i in range(4): a(f'v_add_f32 v{16+i}, v{16+i}, v{20+i}\nv_add_f32 v{24+i}, v{24+i}, v{28+i}')
    for i in range(4): a(f'v_add_f32 v{16+i}, v{16+i}, v{24+i}')
    a('v_cvt_pk_bf16_f32 v32, v16, v17\nv_cvt_pk_bf16_f32 v33, v18, v19\nv_permlane16_swap_b32 v32, v34\nv_permlane16_swap_b32 v33, v35')
    add_residual(a, 32, RES, 4, 36)
    a(f's_mov_b64 exec, s[{sE}:{sE+1}]\nbuffer_store_dwordx4 {R(32,4)}, v{vXa}, {WS}, s{sD} offen sc1\ns_mov_b64 exec, -1')
    row_stats(a, 32, 4, 36)
    a(f's_mov_b64 exec, s[{sE}:{sE+1}]\nbuffer_store_dword v36, v{vSt_}, {WS}, s{sB} offen sc1\ns_mov_b64 exec, -1')
    prof(a, 4)
    a('s_waitcnt vmcnt(0)\ns_barrier')
    prof(a, 5)
    signal(a, sSig, sNeed)
    a(f's_add_u32 s{sS}, s{sS}, 2\ns_cmp_lt_u32 s{sS}, 64\ns_cbranch_scc1 {loop}\ns_waitcnt vmcnt(0)\ns_barrier')

def ba_phase(a, ex):
    O = [12 + 16 * u for u in range(4)]; Qs = [76 + 8 * u for u in range(4)]
    S = [108, 124]; P = 140; OC = 148; QC = 164; ST = [172, 186]; CI = 200; T = 216
    vH = 4; vK0 = 5; vK1 = 6; vV0 = 7; vWr = 8; vRd = 9; vSg = 10
    K1 = lambda b: ST[b]; K0 = lambda b: ST[b] + 2; V = lambda b, G: ST[b] + 6 + 4 * G
    KV = f's[{sX}:{sX+3}]'
    a(f"""
    v_lshlrev_b32 v{vFa}, 2, v{vLane}
    v_mov_b32 v{T}, {OOB}
    v_cmp_gt_u32 vcc, 32, v{vLane}
    v_cndmask_b32 v{vH}, v{T}, v{vFa}, vcc
    s_mul_i32 s{sTmp}, s{sW}, 3072
    v_add_u32 v{vWr}, s{sTmp}, v{vL16}
    v_mov_b32 v{vRd}, v{vL16}
    v_lshlrev_b32 v{vSg}, 11, v{vLane}
    s_lshr_b32 s{sPoll}, s{sJ}, 2
    s_lshl_b32 s{sPoll}, s{sPoll}, 7
    s_add_u32 s{sPoll}, s{sPoll}, {L.F_BQ}
    s_mul_i32 s{sTmp}, s{sJ}, {64*L.KVT}
    s_add_u32 s{sTmp}, s{sTmp}, s{sLay}
    """)
    ws_srd(a, sX, sTmp, L.KVB, 0)
    a(f"""
    s_mul_i32 s{sSrc}, s{sJ}, {64*1152}
    s_add_u32 s{sSrc}, s{sSrc}, s{sLay}
    s_add_u32 s{sSrc}, s{sSrc}, {L.QB}
    s_lshl_b32 s{sTmp}, s{sW}, 2
    s_add_u32 s{sTmp}, s{sTmp}, s{sI}
    s_lshl_b32 s{sSig}, s{sTmp}, 5
    s_add_u32 s{sSig}, s{sSig}, s{sJ}
    s_lshl_b32 s{sSig}, s{sSig}, 2
    s_add_u32 s{sSig}, s{sSig}, {L.F_OB}
    s_mul_i32 s{sOut}, s{sTmp}, 36864
    s_add_u32 s{sOut}, s{sOut}, s{sLay}
    s_add_u32 s{sOut}, s{sOut}, {L.OB}
    s_lshl_b32 s{sTmp}, s{sJ}, 7
    s_add_u32 s{sB}, s{sOut}, s{sTmp}
    s_add_u32 s{sB}, s{sB}, 32768
    s_lshl_b32 s{sTmp}, s{sJ}, 10
    s_add_u32 s{sOut}, s{sOut}, s{sTmp}
    s_mov_b32 s{sKd}, 0
    s_mov_b32 s{sKnown}, 0
    s_mov_b32 s{sAct}, 0
    s_mov_b32 s{sS}, s{sI}
    s_mov_b32 s{sDel}, 12288
    """)
    for r in [q + i for q in Qs + [QC] for i in (5, 6, 7)] + [ST[0] + 1, ST[1] + 1] + list(range(CI, CI + 16)): a(f'v_mov_b32 v{r}, 0')
    def set_stride(n):
        a(f's_mov_b32 s{sMul}, {n*L.KVT}\nv_add_u32 v{vK0}, {2*n*L.KVT}, v{vL16}\nv_add_u32 v{vK1}, {2*n*L.KVT}, v{vH}\nv_add_u32 v{vV0}, {n*L.KVT}, v{vL16}')
    set_stride(4)
    def ldk(b, so, k0=vL16, k1=vH): return f'buffer_load_dwordx4 {R(K0(b),4)}, v{k0}, {KV}, s{so} offen sc1\nbuffer_load_dword v{K1(b)}, v{k1}, {KV}, s{so} offen offset:3072 sc1'
    def ldv(b, G, so, va=vL16): return f'buffer_load_dwordx4 {R(V(b,G),4)}, v{va}, {KV}, s{so} offen offset:{1024*(G+1)} sc1'
    def qk0(sb, b, q, c='0'): return f'{M32} {R(S[sb],16)}, {R(K0(b),4)}, {R(q,4)}, {c}'
    def qk1(sb, b, q): return f'{M32} {R(S[sb],16)}, {R(K1(b),4)}, {R(q+4,4)}, {R(S[sb],16)}'
    def pv(o, b, G): return f'{M32} {R(o,16)}, {R(V(b,G),4)}, {R(P+4*G,4)}, {R(o,16)}'
    def body(sb, ms):
        s_ = S[sb]
        for g in range(4):
            if ms[g]: a(ms[g])
            for i in range(4): a(f'v_exp_f32 v{s_+4*g+i}, v{s_+4*g+i}')
            a(f'v_cvt_pk_bf16_f32 v{P+2*g}, v{s_+4*g}, v{s_+4*g+1}\nv_cvt_pk_bf16_f32 v{P+2*g+1}, v{s_+4*g+2}, v{s_+4*g+3}')
    def sweep():
        lp = a.lab('L_sw')
        a(ldk(0, sA)); a(ldv(0, 0, sA)); a(ldv(0, 1, sA))
        a(f's_add_u32 s{sA}, s{sA}, s{sMul}')
        a(ldk(1, sA)); a(ldv(1, 0, sA))
        for i in range(0, 16, 2): a(f'v_mov_b64 {R(OC+i,2)}, 0')
        a(f's_add_u32 s{sTmp}, s{sA}, s{sMul}\ns_waitcnt vmcnt(5)')
        for i in range(0, 4, 2): a(f'v_mov_b64 {R(P+4+i,2)}, 0\nv_mov_b64 {R(V(1,1)+i,2)}, 0')
        a(qk0(0, 0, QC, R(CI, 16))); a(qk1(0, 0, QC))
        a(ldk(0, sTmp))
        a(f's_waitcnt vmcnt(2)\n{lp}:')
        for b in range(2):
            body(b, [qk0(1-b, 1-b, QC, R(CI, 16)), qk1(1-b, 1-b, QC) + '\n' + ldk(1-b, sA, vK0, vK1),
                     pv(OC, 1-b, 1) + '\n' + ldv(1-b, 1, sA), pv(OC, b, 0) + '\n' + ldv(b, 0, sA, vV0)])
            a(f's_add_u32 s{sA}, s{sA}, s{sMul}\ns_waitcnt vmcnt(4)')
        a(f's_sub_u32 s{sN}, s{sN}, 1\ns_cmp_lg_u32 s{sN}, 0\ns_cbranch_scc1 {lp}')
        a(pv(OC, 1, 1))
    def finalize(u):
        fb = a.lab('L_fb'); ok = a.lab('L_fok')
        lo, hi = fbits(2.0 ** -60), fbits(2.0 ** 60)
        o = O[u]
        def getl(): a(f'v_mov_b32 v{T}, v{o+10}\nv_mov_b32 v{T+1}, v{o+10}\nv_permlane32_swap_b32 v{T}, v{T+1}')
        getl()
        a(f'v_subrev_u32 v{T+1}, {hex(lo)}, v{T}\nv_cmp_lt_u32 vcc, {hex(hi - lo)}, v{T+1}\ns_cbranch_vccnz {fb}\n{ok}:\nv_rcp_f32 v{T}, v{T}')
        for r in range(10): a(f'v_mul_f32 v{o+r}, v{T}, v{o+r}')
        for r in range(0, 10, 2): a(f'v_cvt_pk_bf16_f32 v{o+r//2}, v{o+r}, v{o+r+1}')
        a(f"""
        s_add_u32 s{sTmp}, s{sOut}, {16*36864*u}
        s_add_u32 s{sTmp+1}, s{sB}, {16*36864*u}
        buffer_store_dwordx4 {R(o,4)}, v{vL16}, {WS}, s{sTmp} offen sc1
        buffer_store_dword v{o+4}, v{vH}, {WS}, s{sTmp+1} offen sc1
        """)
        def cold():
            ret = a.lab('L_fbr')
            a(f'{fb}:')
            for i in range(0, 6, 2): a(f'v_mov_b64 {R(QC+i,2)}, {R(Qs[u]+i,2)}')
            a(f's_mov_b32 s{sFlag}, {len(rets)}\ns_branch {redo}\n{ret}:')
            for i in range(0, 12, 2): a(f'v_mov_b64 {R(o+i,2)}, {R(OC+i,2)}')
            getl(); a(f's_branch {ok}')
            rets.append(ret)
        colds.append(cold)
    colds = []; rets = []; redo = a.lab('L_redo')
    def publish(mask):
        a(f's_waitcnt vmcnt(0)\nv_mov_b32 v{vF}, s{sL1}\ns_mov_b64 exec, {mask}\nbuffer_store_dword v{vF}, v{vSg}, {WS}, s{sSig} offen sc1\ns_mov_b64 exec, -1')
        if DEBUG: logtime(a, sSig, sL1, vF, vL16, 2048 * (3 if mask == 8 else 0))
    level = a.lab('L_lev'); nokeys = a.lab('L_nokeys'); nocatch = a.lab('L_nocatch'); end = a.lab('L_baend')
    LD_KN = 24576
    def progress(need):
        def w0():
            sk = a.lab('L_kn')
            if need:
                a(f's_add_u32 s{sNeed}, s{need}, s{sLv}')
                poll(a, ex, 7, vFa, sPoll, sNeed, sleep=2)
            else: a(f'buffer_load_dword v{vF}, v{vFa}, {WS}, s{sPoll} offen sc1\ns_waitcnt vmcnt(0)')
            a(f'ds_write_b32 v{vFa}, v{vF} offset:{LD_KN}\ns_waitcnt lgkmcnt(0)')
        one_wave(a, w0)
        a(f'ds_read_b32 v{vF}, v{vFa} offset:{LD_KN}\ns_waitcnt lgkmcnt(0)')
        a(f'v_readlane_b32 s{sKnown}, v{vF}, 0\nv_readlane_b32 s{sTmp}, v{vF}, 1\ns_min_u32 s{sKnown}, s{sKnown}, s{sTmp}\nv_readlane_b32 s{sTmp}, v{vF}, 2\ns_min_u32 s{sKnown}, s{sKnown}, s{sTmp}\ns_sub_u32 s{sKnown}, s{sKnown}, s{sLv}\ns_barrier')
    progress(None)
    a(f's_min_u32 s{sLev}, s{sKnown}, 60\ns_lshl_b32 s{sTile}, s{sW}, 2\ns_add_u32 s{sTile}, s{sTile}, s{sI}')
    jd = a.lab('L_jd')
    for u in range(4):
        a(f"""
        s_cmp_ge_u32 s{sTile}, s{sLev}
        s_cbranch_scc1 {jd}
        s_mul_i32 s{sTmp}, s{sTile}, 1152
        s_add_u32 s{sTmp}, s{sTmp}, s{sSrc}
        buffer_load_dwordx4 {R(Qs[u],4)}, v{vL16}, {WS}, s{sTmp} offen sc1
        buffer_load_dword v{Qs[u]+4}, v{vH}, {WS}, s{sTmp} offen offset:1024 sc1
        s_add_u32 s{sAct}, s{sAct}, 1
        s_add_u32 s{sTile}, s{sTile}, 16
        """)
        for i in range(0, 12, 2): a(f'v_mov_b64 {R(O[u]+i,2)}, 0')
    a(f"""
    {jd}:
    s_add_u32 s{sTmp}, s{sLev}, 3
    s_sub_u32 s{sTmp}, s{sTmp}, s{sI}
    s_and_b32 s{sTmp}, s{sTmp}, -4
    s_add_u32 s{sS}, s{sI}, s{sTmp}
    {level}:
    s_add_u32 s{sTile}, s{sS}, 1
    s_cmp_eq_u32 s{sS}, 62
    s_cselect_b32 s{sTile}, 64, s{sTile}
    s_add_u32 s{sLev}, s{sKd}, 1
    s_max_u32 s{sLev}, s{sLev}, 57
    s_min_u32 s{sLev}, s{sLev}, s{sTile}
    s_cmp_lt_u32 s{sKd}, s{sKnown}
    """)
    prof(a, 0)
    hv = a.lab('L_lhv')
    a(f's_cmp_lt_u32 s{sKd}, s{sKnown}\ns_cbranch_scc1 {hv}')
    progress(sLev)
    a(f'{hv}:\ns_min_u32 s{sLev}, s{sKnown}, s{sTile}\ns_mul_i32 s{sX+2}, s{sLev}, {L.KVT}')
    prof(a, 1)
    kl = [a.lab('L_k') for _ in range(5)]
    a(f's_sub_u32 s{sN}, s{sLev}, s{sKd}\ns_mul_i32 s{sA}, s{sKd}, {L.KVT}\ns_mov_b32 s{sKd}, s{sLev}')
    a(f's_cmp_eq_u32 s{sAct}, 0\ns_cbranch_scc1 {nokeys}')
    def ldall(b): a(ldk(b, sA)); a(ldv(b, 0, sA)); a(ldv(b, 1, sA)); a(f's_add_u32 s{sA}, s{sA}, {L.KVT}')
    ldall(0)
    for n in range(1, 4): a(f's_cmp_eq_u32 s{sAct}, {n}\ns_cbranch_scc1 {kl[n]}')
    for n in (4, 3, 2, 1):
        a(f'{kl[n]}:')
        for b in range(2):
            ldall(1 - b)
            a('s_waitcnt vmcnt(6)'); a(qk0(0, b, Qs[0])); a(qk1(0, b, Qs[0])); a('s_waitcnt vmcnt(4)')
            for u in range(n):
                nx = u + 1 < n
                body(u & 1, [qk0(1-(u&1), b, Qs[u+1]) if nx else None, qk1(1-(u&1), b, Qs[u+1]) if nx else None, pv(O[u-1], b, 1) if u else None, pv(O[u], b, 0)])
            a(pv(O[n-1], b, 1))
            a(f's_sub_u32 s{sN}, s{sN}, 1\ns_cmp_eq_u32 s{sN}, 0\ns_cbranch_scc1 {nokeys}')
        a(f's_branch {kl[n]}')
    a(f'{nokeys}:')
    prof(a, 2)
    notlast = a.lab('L_nl'); three = a.lab('L_f3')
    a(f's_cmp_lg_u32 s{sLev}, 64\ns_cbranch_scc1 {notlast}')
    for u in range(3): finalize(u)
    a(f's_cmp_lg_u32 s{sAct}, 4\ns_cbranch_scc1 {three}')
    finalize(3); publish(15)
    a(f's_branch {notlast}\n{three}:'); publish(7)
    a(f'{notlast}:')
    prof(a, 3)
    a(f"""
    s_cmp_lg_u32 s{sTile}, s{sLev}
    s_cbranch_scc1 {nocatch}
    s_mul_i32 s{sTmp}, s{sS}, 1152
    s_add_u32 s{sTmp}, s{sTmp}, s{sSrc}
    buffer_load_dwordx4 {R(QC,4)}, v{vL16}, {WS}, s{sTmp} offen sc1
    buffer_load_dword v{QC+4}, v{vH}, {WS}, s{sTmp} offen offset:1024 sc1
    s_mul_i32 s{sA}, s{sW}, {L.KVT}
    s_add_u32 s{sN}, s{sLev}, 7
    s_lshr_b32 s{sN}, s{sN}, 3
    """)
    sweep()
    prof(a, 4)
    for g in range(3): a(f'ds_write_b128 v{vWr}, {R(OC+4*g,4)} offset:{1024*g}')
    notmine = a.lab('L_nm')
    a(f"""
    s_lshr_b32 s{sTmp}, s{sS}, 2
    s_and_b32 s{sTmp}, s{sTmp}, 3
    s_add_u32 s{sS}, s{sS}, 4
    s_waitcnt vmcnt(0) lgkmcnt(0)
    s_barrier
    s_cmp_lg_u32 s{sTmp}, s{sW}
    s_cbranch_scc1 {notmine}
    """)
    RD = S[0]
    for ww in range(4):
        for g in range(3): a(f'ds_read_b128 {R(RD+12*ww+4*g,4)}, v{vRd} offset:{3072*ww + 1024*g}')
    a('s_waitcnt lgkmcnt(6)')
    for r in range(11): a(f'v_add_f32 v{RD+r}, v{RD+r}, v{RD+12+r}')
    a('s_waitcnt lgkmcnt(0)')
    for r in range(11): a(f'v_add_f32 v{RD+24+r}, v{RD+24+r}, v{RD+36+r}')
    sl = [a.lab('L_sl') for _ in range(4)]; sd = a.lab('L_sld')
    for u in range(1, 4): a(f's_cmp_eq_u32 s{sAct}, {u}\ns_cbranch_scc1 {sl[u]}')
    for u in range(4):
        a(f'{sl[u]}:')
        for r in range(11): a(f'v_add_f32 v{O[u]+r}, v{RD+r}, v{RD+24+r}')
        for i in range(0, 6, 2): a(f'v_mov_b64 {R(Qs[u]+i,2)}, {R(QC+i,2)}')
        if u < 3: a(f's_branch {sd}')
    a(f'{sd}:\ns_add_u32 s{sAct}, s{sAct}, 1\ns_cmp_lg_u32 s{sLev}, 64\ns_cbranch_scc1 {notmine}')
    finalize(3); publish(8)
    a(f'{notmine}:\nv_add_u32 v{vWr}, s{sDel}, v{vWr}\nv_add_u32 v{vRd}, s{sDel}, v{vRd}\ns_sub_u32 s{sDel}, 0, s{sDel}')
    prof(a, 5)
    a(f'{nocatch}:\ns_cmp_lt_u32 s{sKd}, 64\ns_cbranch_scc1 {level}\ns_branch {end}')
    for c in colds: c()
    mx = a.lab('L_mx')
    a(f'{redo}:\ns_waitcnt vmcnt(0)\ns_mov_b32 s{sA}, 0\nv_mov_b32 v{T}, 0xff800000\n{mx}:')
    a(ldk(0, sA)); a('s_waitcnt vmcnt(0)'); a(qk0(0, 0, QC)); a(qk1(0, 0, QC))
    for r in range(0, 16, 2): a(f'v_max3_f32 v{T}, v{T}, v{S[0]+r}, v{S[0]+r+1}')
    a(f"""
    s_add_u32 s{sA}, s{sA}, {L.KVT}
    s_cmp_lt_u32 s{sA}, {64*L.KVT}
    s_cbranch_scc1 {mx}
    v_mov_b32 v{T+1}, v{T}
    v_permlane32_swap_b32 v{T}, v{T+1}
    v_max_f32 v{T}, v{T}, v{T+1}
    s_mov_b32 s{sA}, 0
    s_mov_b32 s{sN}, 32
    """)
    for i in range(16): a(f'v_sub_f32 v{CI+i}, 0, v{T}')
    set_stride(1)
    sweep()
    a('s_waitcnt vmcnt(0)')
    set_stride(4)
    for i in range(16): a(f'v_mov_b32 v{CI+i}, 0')
    for i, r in enumerate(rets[:-1]): a(f's_cmp_eq_u32 s{sFlag}, {i}\ns_cbranch_scc1 {r}')
    a(f's_branch {rets[-1]}\n{end}:\ns_waitcnt vmcnt(0)\ns_barrier')

C_PT, C_PN, C_WO, C_AT, C_BT, C_BN, C_SP = range(7)
sCls = 66; sM = 67; sBa = 68; sFo = 69; sFoSkip = 76

def worker_program(a):
    ex = 'L_wexit'
    if PROF:
        for i in range(13): a(f's_mov_b32 s{79+i}, 0')
    base_regs(a)
    if DEBUG: a(f's_mov_b32 s99, {L.FLAGS + 64}'); logtime(a, 99, sRole, vF, vL16)
    lab = {c: f'L_init{c}' for c in range(7)}
    X = sTmp; r5 = sTmp + 1
    a(f"""
    s_lshr_b32 s{X}, s{sRole}, 5
    s_and_b32 s{r5}, s{sRole}, 31
    s_mov_b32 s{sPar}, 0
    s_mov_b32 s{sId}, 0
    s_mov_b32 s{sTeam}, 0
    s_mov_b32 s{sM}, 0
    s_mov_b32 s{sL1}, 1
    s_mov_b32 s{sBa}, -1
    s_mov_b32 s{sFo}, -1
    s_mov_b32 s{sFoSkip}, 0
    s_cmp_ge_u32 s{X}, 5
    s_cbranch_scc1 L_x567
    s_sub_u32 s{X}, s{X}, 1
    s_mul_i32 s{sTmp+2}, s{X}, 20
    s_add_u32 s{sTmp+2}, s{sTmp+2}, s{r5}
    s_cmp_lt_u32 s{r5}, 20
    s_cbranch_scc1 L_heavy
    s_sub_u32 s{sId}, s{r5}, 20
    s_and_b32 s{sTeam}, s{X}, 1
    s_lshr_b32 s{sPar}, s{X}, 1
    s_branch {lab[C_WO]}
    L_x567:
    s_lshl_b32 s{sTmp+2}, s{X}, 4
    s_add_u32 s{sTmp+2}, s{sTmp+2}, s{r5}
    s_cmp_lt_u32 s{r5}, 16
    s_cbranch_scc1 L_heavy
    s_sub_u32 s{sFo}, s{sTmp+2}, 96
    s_cmp_ge_u32 s{sFo}, 24
    s_cbranch_scc1 L_clsbq
    s_cmp_lt_u32 s{sFo}, 16
    s_cselect_b32 s{sCls}, {C_AT}, {C_SP}
    s_lshr_b32 s{sPar}, s{sFo}, 3
    s_and_b32 s{sId}, s{sFo}, 7
    s_lshl_b32 s{sId}, s{sId}, 2
    s_add_u32 s{sId}, s{sId}, s{sW}
    s_add_u32 s{sTile}, s{sFo}, 32
    s_branch L_poison
    L_heavy:
    s_mov_b32 s{sBa}, s{sTmp+2}
    s_lshr_b32 s{sId}, s{sBa}, 2
    s_and_b32 s{sM}, s{sBa}, 3
    s_cmp_eq_u32 s{sM}, 3
    s_cbranch_scc1 L_cls7
    s_add_u32 s{sM}, s{sM}, 1
    s_cmp_eq_u32 s{sM}, 3
    s_cselect_b32 s{sM}, 0, s{sM}
    s_add_u32 s{sTmp+2}, s{sId}, 48
    s_cmp_eq_u32 s{sM}, 2
    s_cselect_b32 s{sFo}, -1, s{sTmp+2}
    s_sub_u32 s{sFoSkip}, 2, s{sM}
    s_branch {lab[C_PT]}
    L_clsbq:
    s_sub_u32 s{r5}, s{sFo}, 24
    s_lshr_b32 s{sM}, s{r5}, 3
    s_and_b32 s{sId}, s{r5}, 7
    s_lshl_b32 s{sId}, s{sId}, 2
    s_add_u32 s{sId}, s{sId}, s{sW}
    s_cmp_ge_u32 s{r5}, 16
    s_cselect_b32 s{sCls}, {C_BN}, {C_BT}
    """)
    load_ptr_srd(a, sT, 64, 576 * 3456)
    a(f's_mul_i32 s{sA}, s{sM}, 1152\ns_mul_i32 s{sTmp}, s{sId}, 36\ns_add_u32 s{sA}, s{sA}, s{sTmp}')
    gemm_load_weights(a, False, 3456)
    a(f"""
    s_branch L_initfo
    L_cls7:
    s_mov_b32 s{sCls}, {C_SP}
    """)
    load_ptr_srd(a, sX, 0, L.XBYTES)
    pre_phase(a)
    a(f's_mov_b32 s{sTile}, s{sId}\nL_poison:')
    poison_phase(a)
    a('s_branch L_initfo')
    a(f'{lab[C_PN]}:\n{lab[C_PT]}:\ns_cmp_eq_u32 s{sM}, 2\ns_cselect_b32 s{sCls}, {C_PN}, {C_PT}')
    a(f"""
    s_load_dwordx4 s[{sTmp+2}:{sTmp+5}], s[0:1], 16
    s_load_dwordx2 s[{sTmp+6}:{sTmp+7}], s[0:1], 32
    s_waitcnt lgkmcnt(0)
    s_cmp_eq_u32 s{sM}, 0
    s_cselect_b32 s{sTmp+6}, s{sTmp+2}, s{sTmp+6}
    s_cselect_b32 s{sTmp+7}, s{sTmp+3}, s{sTmp+7}
    s_cmp_eq_u32 s{sM}, 1
    s_cselect_b32 s{sTmp+6}, s{sTmp+4}, s{sTmp+6}
    s_cselect_b32 s{sTmp+7}, s{sTmp+5}, s{sTmp+7}
    """)
    srd(a, sT, sTmp + 6, 576 * 8192)
    a(f's_lshl_b32 s{sA}, s{sId}, 8\ns_lshl_b32 s{sTmp}, s{sW}, 6\ns_add_u32 s{sA}, s{sA}, s{sTmp}')
    gemm_load_weights(a, False, 8192)
    a(f"""
    L_initfo:
    s_cmp_ge_u32 s{sFo}, 80
    s_cbranch_scc1 L_layer
    s_mul_i32 s{sTeam}, s{sFo}, 205
    s_lshr_b32 s{sTeam}, s{sTeam}, 10
    s_mul_i32 s{sTmp}, s{sTeam}, 5
    s_sub_u32 s{sTmp}, s{sFo}, s{sTmp}
    s_lshl_b32 s{sFoT}, s{sTmp}, 2
    s_add_u32 s{sFoT}, s{sFoT}, s{sW}
    """)
    load_ptr_srd(a, sT, 72, 576 * 1152)
    a(f's_lshl_b32 s{sA}, s{sFoT}, 6')
    gemm_load_weights(a, True, 1152)
    a('s_branch L_layer')
    a(f'{lab[C_WO]}:\ns_mov_b32 s{sCls}, {C_WO}')
    load_ptr_srd(a, sT, 40, 4096 * 1152)
    wo_load_weights(a)
    a('L_layer:')
    if DEBUG: a(f's_lshr_b32 s99, s{sLv}, 4\ns_add_u32 s99, s99, {L.FLAGS + 68}'); logtime(a, 99, sRole, vF, vL16)
    prof(a, 11)
    for c in range(6): a(f's_cmp_eq_u32 s{sCls}, {c}\ns_cbranch_scc1 L_run{c}')
    a('s_branch L_second')
    for c, kind in ((C_PT, 'T'), (C_PN, 'N')):
        a(f"""
        L_run{c}:
        s_add_u32 s{sSrc}, s{sLay}, {L.X0}
        s_mov_b32 s{sMul}, 262144
        s_mov_b32 s{sB}, 1024
        s_lshl_b32 s{sOut}, s{sId}, 13
        s_lshl_b32 s{sTmp}, s{sW}, 11
        s_add_u32 s{sOut}, s{sOut}, s{sTmp}
        s_add_u32 s{sOut}, s{sOut}, s{sLay}
        s_lshl_b32 s{sSig}, s{sId}, 5
        s_lshl_b32 s{sTmp}, s{sM}, 2
        s_add_u32 s{sSig}, s{sSig}, s{sTmp}
        s_add_u32 s{sSig}, s{sSig}, s{sW}
        s_lshl_b32 s{sSig}, s{sSig}, 2
        s_add_u32 s{sSig}, s{sSig}, {L.F_HEAD}
        """)
        if c == C_PT:
            a(f's_cmp_eq_u32 s{sM}, 0\ns_cselect_b32 s{sTmp}, {L.QX}, {L.KX}\ns_cselect_b32 s{sC}, 1.0, {fbits(SCALE_LOG2E)}\ns_add_u32 s{sOut}, s{sOut}, s{sTmp}')
        else: a(f's_add_u32 s{sOut}, s{sOut}, {L.VX}')
        ln_phase(a, kind, ex)
        a('s_branch L_second')
    for c, kind in ((C_BT, 'BT'), (C_BN, 'BN')):
        a(f"""
        L_run{c}:
        s_add_u32 s{sSrc}, s{sLay}, {L.X1}
        s_lshr_b32 s{sSig}, s{sId}, 2
        s_lshl_b32 s{sSig}, s{sSig}, 5
        s_add_u32 s{sSig}, s{sSig}, s{sM}
        s_lshl_b32 s{sSig}, s{sSig}, 2
        s_add_u32 s{sSig}, s{sSig}, {L.F_BQ}
        s_cmp_eq_u32 s{sW}, 0
        s_cselect_b32 s{sSig}, s{sSig}, {OOB}
        s_mov_b32 s{sMul}, {L.KVT}
        s_mov_b32 s{sB}, {1024 if c == C_BN else 3072}
        s_mov_b32 s{sTmp}, {L.KVB + (1024 if c == C_BN else 0)}
        """)
        if c == C_BT:
            a(f's_cmp_eq_u32 s{sM}, 0\ns_cselect_b32 s{sMul}, 1152, s{sMul}\ns_cselect_b32 s{sB}, 1024, s{sB}\ns_cselect_b32 s{sTmp}, {L.QB}, s{sTmp}\ns_cselect_b32 s{sC}, 1.0, {fbits(SCALE_B)}')
        a(f's_mul_i32 s{sOut}, s{sId}, s{sMul}\ns_lshl_b32 s{sOut}, s{sOut}, 6\ns_add_u32 s{sOut}, s{sOut}, s{sTmp}\ns_add_u32 s{sOut}, s{sOut}, s{sLay}')
        ln_phase(a, kind, ex)
        a('s_branch L_second')
    a(f'L_run{C_WO}:')
    wo_phase(a, ex)
    a(f's_branch L_second\nL_run{C_AT}:')
    att_phase(a, ex)
    a('L_second:')
    prof_dump(a, 0)
    a(f's_cmp_eq_u32 s{sBa}, -1\ns_cbranch_scc1 L_third\ns_lshr_b32 s{sJ}, s{sBa}, 2\ns_and_b32 s{sI}, s{sBa}, 3')
    ba_phase(a, ex)
    prof_dump(a, 1)
    a(f'L_third:\ns_cmp_ge_u32 s{sFo}, 80\ns_cbranch_scc1 L_next\ns_cmp_eq_u32 s{sFoSkip}, s{sL1}\ns_cbranch_scc1 L_next')
    load_ptr_srd(a, sY, 80, L.XBYTES)
    fo_phase(a, ex)
    if PROF:
        a(f's_cmp_lg_u32 s{sBa}, -1\ns_cbranch_scc1 L_next'); prof_dump(a, 1)
    a(f"""
    L_next:
    s_add_u32 s{sLv}, s{sLv}, 64
    s_add_u32 s{sL1}, s{sL1}, 1
    s_add_u32 s{sLay}, s{sLay}, {L.LSTRIDE}
    s_cmp_lt_u32 s{sLv}, 128
    s_cbranch_scc1 L_layer
    {ex}:
    s_endpgm
    """)
```

```python
import sys, re
sys.path.insert(0, 'gen')
from asmdsl import *
import layout as L, chain as C, workers as W

NAME = 'interleave_layers__memory_aug_recurrent_mem_tr__softmax_full_mha__prompt'
WARM = True
BUDGET = 1500000

def sum16(a, v, tmp, s):
    a(f'v_mov_b32 v{tmp}, v{v}')
    for sh in (1, 2, 4, 8): a(f'v_add_u32_dpp v{tmp}, v{tmp}, v{tmp} row_shr:{sh} row_mask:0xf bank_mask:0xf bound_ctrl:1')
    a(f'v_readlane_b32 s{s}, v{tmp}, 15')

def prologue(a, force=None):
    a(f'''
    s_cmp_ge_u32 s2, 256
    s_cbranch_scc1 L_exit0
    s_load_dwordx4 s[4:7], s[0:1], 88
    s_getreg_b32 s20, hwreg(HW_REG_XCC_ID, 0, 4)
    v_lshrrev_b32 v1, 6, v0
    v_and_b32 v2, 63, v0
    v_readfirstlane_b32 s{C.sW}, v1
    s_mov_b32 s{C.sBud}, {BUDGET}
    s_mov_b32 s{C.sLv}, 0
    s_mov_b32 s{C.sLay}, 0
    s_waitcnt lgkmcnt(0)
    ''')
    if force == 'spread': a('s_lshr_b32 s20, s2, 4\ns_and_b32 s20, s20, 15')
    C.srd(a, C.sWS, 6, L.WS_BYTES)
    C.srd(a, C.sT, 4, 256)
    C.srd(a, W.sY, 6, L.WS_BYTES)
    D = f's[{C.sT}:{C.sT+3}]'
    if W.DEBUG:
        a(f'v_mov_b32 v7, 0\ns_mov_b32 s99, {L.FLAGS + 60}')
        W.logtime(a, 99, 2, 6, 7)
    a(f'''
    s_cmp_lg_u32 s{C.sW}, 0
    s_cbranch_scc1 L_p1
    s_lshl_b32 s21, s20, 2
    v_mov_b32 v3, 1
    v_mov_b32 v6, 1
    v_mov_b32 v4, 0
    v_lshlrev_b32 v5, 2, v2
    s_lshl_b32 s22, s2, 7
    s_add_u32 s22, s22, {L.FLAGS}
    s_cmp_lg_u32 s20, 0
    s_cbranch_scc1 L_p0
    s_mov_b64 exec, 1
    buffer_atomic_add v3, v4, {D}, 0 offen offset:{L.D_RANK0} sc0
    s_mov_b32 exec_lo, -1
    buffer_store_dword v4, v5, s[{C.sWS}:{C.sWS+3}], s22 offen sc1
    s_mov_b64 exec, 1
    s_waitcnt vmcnt(1)
    ds_write_b32 v4, v3
    s_waitcnt lgkmcnt(0)
    s_barrier
    s_waitcnt vmcnt(0)
    buffer_atomic_add v6, v4, {D}, 0 offen offset:{L.D_CNT}
    s_mov_b64 exec, -1
    s_branch L_p2
    L_p0:
    s_mov_b32 exec_hi, 0
    buffer_store_dword v4, v5, s[{C.sWS}:{C.sWS+3}], s22 offen sc1
    s_mov_b64 exec, 1
    s_waitcnt vmcnt(0)
    buffer_atomic_add v3, v4, {D}, s21 offen offset:{L.D_CNT} sc0
    s_waitcnt vmcnt(0)
    ds_write_b32 v4, v3
    s_waitcnt lgkmcnt(0)
    s_mov_b64 exec, -1
    L_p1:
    s_barrier
    L_p2:
    v_mov_b32 v4, 0
    ds_read_b32 v3, v4
    s_waitcnt lgkmcnt(0)
    v_readfirstlane_b32 s{C.sH}, v3
    s_barrier
    s_cmp_lg_u32 s20, 0
    s_cbranch_scc1 L_p3
    s_cmp_lt_u32 s{C.sH}, 32
    s_cbranch_scc1 L_chain
    L_p3:
    ''')
    if WARM:
        a(f'''
        s_cmp_eq_u32 s{C.sW}, 0
        s_cbranch_scc1 L_nowarm
        s_load_dwordx8 s[40:47], s[0:1], 16
        v_lshlrev_b32 v7, 6, v2
        s_mul_i32 s21, s2, 3
        s_add_u32 s21, s21, s{C.sW}
        s_sub_u32 s21, s21, 1
        s_mul_i32 s21, s21, 6144
        s_add_u32 s22, s21, 2048
        s_waitcnt lgkmcnt(0)
        ''')
        for i in WARM:
            C.srd(a, 28, 40 + 2 * i, 576 * 8192)
            a('buffer_load_dwordx2 v[8:9], v7, s[28:31], s21 offen\nbuffer_load_dwordx2 v[8:9], v7, s[28:31], s22 offen')
        a('L_nowarm:')
    a(f'''
    v_lshlrev_b32 v5, 2, v2
    s_cmp_lg_u32 s{C.sW}, 0
    s_cbranch_scc1 L_p5
    L_p4:
    s_sleep 12
    buffer_load_dword v3, v5, {D}, 0 offen offset:{L.D_CNT} sc1
    s_sub_u32 s{C.sBud}, s{C.sBud}, 1
    s_cbranch_scc1 L_exit0
    s_waitcnt vmcnt(0)
    ''')
    sum16(a, 3, 6, 21)
    a(f'''
    s_cmp_lt_u32 s21, 256
    s_cbranch_scc1 L_p4
    ds_write_b32 v5, v3
    s_waitcnt lgkmcnt(0)
    L_p5:
    s_barrier
    ds_read_b32 v3, v5
    s_waitcnt vmcnt(0) lgkmcnt(0)
    s_barrier
    ''')
    for i in range(15):
        a(f'v_readlane_b32 s21, v3, {i}\ns_cmp_gt_u32 s20, {i}\ns_cselect_b32 s21, s21, 0\ns_add_u32 s{C.sH}, s{C.sH}, s21')
    C.srd(a, W.sX, 6, L.WS_BYTES)
    a(f'''
    s_cmp_lt_u32 s{C.sH}, 32
    s_cbranch_scc1 L_chain
    s_branch L_worker
    L_exit0:
    s_endpgm
    ''')

def chain_program(cfg):
    out = []
    a = Asm(); a.uid = 1000
    a('L_chain:')
    for w in range(3): a(f's_cmp_eq_u32 s{C.sW}, {w}\ns_cbranch_scc1 L_cw{w}')
    a('s_branch L_cw3')
    for lab in ('L_cw0', 'L_cw1', 'L_cw2', 'L_cw3'): a.l.append(None)
    a.l = [x for x in a.l if x]
    out.append('\n'.join(a.l) + '\n')
    macros = []
    for w in range(4):
        a = Asm(); a.uid = 2000 + 1000 * w
        ex = f'L_cx{w}'
        a(f'L_cw{w}:')
        C.emit_setup(a, cfg, w)
        if w == 2:
            a(f's_cmp_ge_u32 s{C.sH}, 8\ns_cbranch_scc1 L_cnp')
            C.emit_poison_init(a, True, w)
            a('L_cnp:')
        else: C.emit_poison_init(a, w < 2, w)
        D = f's[{C.sT}:{C.sT+3}]'
        t = C.T0
        a(f'v_mov_b32 v{t}, 1\ns_mov_b64 exec, 1\nbuffer_atomic_add v{t}, v{C.vZ}, {D}, 0 offen offset:{L.D_TEAM}\ns_mov_b64 exec, -1')
        if W.DEBUG and w == 0: a(f's_mov_b32 s99, {L.FLAGS + 64}'); W.logtime(a, 99, C.sH, t, C.vZ)
        C.emit_load_weights(a, cfg, w)
        if W.DEBUG and w == 0: a(f's_mov_b32 s99, {L.FLAGS + 68}'); W.logtime(a, 99, C.sH, t, C.vZ)
        if cfg.acc:
            for i in list(range(52, 64)) + list(range(80, 102)): a(f's_mov_b32 s{i}, 0')
        C.srd(a, C.sT, 4, 256)
        a(f'''
        v_lshrrev_b32 v{t+1}, 2, v{C.vL16}
        L_ca{w}:
        buffer_load_dword v{t}, v{t+1}, {D}, 0 offen sc1
        s_sub_u32 s{C.sBud}, s{C.sBud}, 1
        s_cbranch_scc1 {ex}
        s_waitcnt vmcnt(0)
        v_readlane_b32 s{C.sTmp}, v{t}, {L.D_TEAM // 4}
        v_readlane_b32 s{C.sTmp+1}, v{t}, {L.D_POI // 4}
        v_readlane_b32 s{C.sFast}, v{t}, {L.D_CNT // 4}
        s_add_u32 s{C.sTmp}, s{C.sTmp}, s{C.sTmp+1}
        s_cmp_lt_u32 s{C.sTmp}, {128 + W.NPOIS}
        s_cbranch_scc1 L_ca{w}
        buffer_load_dword v{t}, v{t+1}, {D}, 0 offen sc1
        s_waitcnt vmcnt(0)
        v_readlane_b32 s{C.sFast}, v{t}, {L.D_CNT // 4}
        s_barrier
        ''')
        names = [(f'{w}', w < 2)] if w != 2 else [('2r', True), ('2n', False)]
        tail = []
        if w == 2: tail.append(f's_cmp_ge_u32 s{C.sH}, 8\ns_cbranch_scc1 L_sel2n')
        for nm, red in names:
            tail.append(f'L_sel{nm}:\ns_cmp_ge_u32 s{C.sFast}, 32\ns_cbranch_scc1 L_run{nm}f\ns_branch L_run{nm}s')
        a(f's_branch L_ct{w}\n{ex}:\ns_endpgm\nL_ct{w}:')
        out.append(a.text() + '\n'.join(tail) + '\n')
        for nm, red in names:
            b = Asm(); b.uid = 0
            b('L_run:')
            C.emit_layer(b, cfg, w, red, 'L_x', '@ST@')
            b(f'''
            s_add_u32 s{C.sLv}, s{C.sLv}, 64
            s_add_u32 s{C.sLay}, s{C.sLay}, {L.LSTRIDE}
            s_cmp_lt_u32 s{C.sLv}, 128
            s_cbranch_scc1 L_run
            ''')
            if cfg.acc:
                for i in range(11): b(f'v_writelane_b32 v20, s{C.sSt+1+i}, {i}')
                b(f's_lshl_b32 s40, s{C.sH}, 8\ns_add_u32 s40, s40, {L.STAMP + 12*1024*1024 + 64*w}\nv_lshrrev_b32 v21, 2, v{C.vL16}\ns_mov_b64 exec, 0x7ff\nbuffer_store_dword v20, v21, s[8:11], s40 offen\ns_waitcnt vmcnt(0)')
            b(f'''
            L_x:
            s_endpgm
            ''')
            body = b.text()
            body = re.sub(r'\b(L_\w+)', lambda m: m.group(1) + nm + '\\id', body).replace('@ST@', '\\st')
            macros.append((nm, body))
    for nm, body in macros: out.append(f'.macro chain{nm} id, st\n{body}.endm\n')
    for nm, _ in macros: out.append(f'chain{nm} f\n')
    for nm, _ in macros: out.append(f'chain{nm} s, sc1\n')
    return ''.join(out)

def build(cfg=None, force=None, name=NAME + '_kernel'):
    cfg = cfg or C.ChainCfg(); cfg.integ = True
    global WARM; WARM = getattr(cfg, 'warm', [])
    W.SENT = getattr(cfg, 'sent', 4)
    W.DEBUG = cfg.log; W.PROF = getattr(cfg, 'prof', False)
    a = Asm(); prologue(a, force)
    a('L_chain:\nL_worker:')
    pro = a.text().replace('L_chain:\n', '').replace('L_worker:\n', '')
    w = Asm(); w.uid = 10000
    w('L_worker:'); W.worker_program(w)
    ref = open('cdna_kernels/' + NAME + '.s.ref').read()
    hdr = ''.join(l + '\n' for l in ref.split('\n') if l.startswith(';') and '@launch' not in l and 'Override' not in l and 'grid=ceil' not in l)
    txt = hdr + f'''; @launch grid=(256,1,1) block=(256,1,1) lds=163840
; One persistent workgroup per CU.  32 CUs run the recurrent memory chain (one head each, weights resident in
; registers and LDS); the other 224 run the projections and attentions around it, linked by progress words.
.amdgcn_target "amdgcn-amd-amdhsa--gfx950"
.text
.globl {name}
.p2align 8
.type {name},@function
{name}:
''' + pro + w.text() + chain_program(cfg) + f'''.section .rodata,"a"
.p2align 6
.amdhsa_kernel {name}
  .amdhsa_next_free_vgpr 512
  .amdhsa_next_free_sgpr 102
  .amdhsa_accum_offset 256
  .amdhsa_group_segment_fixed_size 0
  .amdhsa_kernarg_size 104
  .amdhsa_user_sgpr_count 2
  .amdhsa_user_sgpr_kernarg_segment_ptr 1
  .amdhsa_system_sgpr_workgroup_id_x 1
.end_amdhsa_kernel
'''
    txt = '\n'.join(l.strip() if not l.startswith(';') else l for l in txt.split('\n'))
    return txt

if __name__ == '__main__':
    t = build()
    p = sys.argv[1] if len(sys.argv) > 1 else 'cdna_kernels/' + NAME + '.s'
    open(p, 'w').write(t)
    print(len(t), 'bytes')
```

```python
from asmdsl import *
import layout as L
import struct
def fbits(x): return struct.unpack('<I', struct.pack('<f', x))[0]
SCALE_LOG2E = (128 ** -0.5) * 1.4426950408889634
OOB = 0x40000000

LD_MEM = 0
LD_Q   = 9216
LD_K   = LD_Q + 2048 + 32
LD_O   = LD_K + 2048
LD_PX  = LD_O + 2048 + 16
LD_PM  = LD_PX + 512
LD_Z   = LD_PM + 128
LD_ONE = LD_Z + 16
LD_SEL = LD_ONE + 16
LD_W   = 16384
NT   = [4, 4, 5, 5]
NLDS = [17, 17, 19, 19]
WBASE = [LD_W + 2048 * sum(NLDS[:w]) for w in range(4)]
def tile_of(w, slot):
    if slot == 4: return 14 + w
    return 4 * slot + w

sWS = 8
sT  = 12
sH = 16; sW = 17; sStep = 18; sBud = 19
sKX = 20; sVX = 21; sKM = 22; sVM = 23
sP = 24
sRed = 29; sPo = 30; sRing = 31; sRingPo = 32; sGat = 33
sMask = 34
sRc = 36
sPf = 37
sTmp = 38
sPar = 46
sLay = 49
sCs = 50
sSt = 52
sKMn = 64; sVMn = 65; sKX2 = 66; sUnit = 67; sKmask = 68; sHn = 44; sHv = 45; sHc = 47; sLv = 48; sFh = 70; sPfe = 71; sNd = 72; sFast = 73; sHm = 74; sKn = 76; sFc = 77; sFl = 51; sVer = 23; sH2 = 65; sLd = 76

vL16 = 0; vWl = 1; vA = 2; vIdx = 3; vQW = 4; vTR = 5; vP = 6; vPRx = 7; vPRm = 8; vTO = 9; vVp = 10
vM = 12; vKX = 13
vPW = 14; vZ = 15
vHv = vPW
vHA = vP
T0 = 16
LATE = [(4, 1), (5, 1), (6, 2), (8, 1)]
def WREG(w): return list(range(88 if w < 2 else 72, 512, 8))
GATH = [(0, 4), (4, 1), (5, 2), (7, 2)]

class ChainCfg:
    deferred = [15, 16, 17, 14, 13, 12, 11, 10, 9, 8, 7, 6]
    sh = [2, 3, 2, 2]
    nm = [12, 12, 12, 12]; smart = True; wlat = 5; mlate = 1; ostart = 4
    stamps = False
    nsteps = 64
    d_redA = 0; d_red = 38; d_redC = 16
    poller = 0; h2first = False; d_comp = 24; ncomp = 16; gv = [16, 13, 10, 19]; gk = [23, 27, 31, 35]; gp = 21; kpos = [2, 2]; gkx = [0, 1, 3, 4]; d_go2 = 14; gsh = 2; d_idle = 0
    gdep = 2; ggap = 32; gdepA = 1
    hpos = 1; htry = 60; hgaps = [4, 6, 8, 10, 12, 14]; hun = 2
    vdirect = True
    lddw = 0; lddep = 8; ldbar = 1
    early = 59
    fills = [0, 0, 0, 0, 0]; nfo = 4; npw = 2
    novm = False
    gpo = 35
    hrep = 4; pfd = 1
    perm = [0, 1, 2, 3]
    pf = True
    pub = True
    noexch = False
    log = False
    integ = False
    trace = False
    fine = []
    acc = False
    stampsel = None

def main_seq(cfg):
    seq = []
    for c in range(18):
        seq += [('q', c), ('k', c)]
        if c not in cfg.deferred: seq.append(('v', c))
    return seq

def frag_plan(cfg, w):
    plan = {}; r = iter(WREG(w)); slot = 0
    seq = main_seq(cfg)
    nm = cfg.nm[w]
    span = len(seq) - 2
    pos = sorted(set(int(round(i * span / (nm - 1))) for i in range(nm)))
    assert len(pos) == nm
    for i, key in enumerate(seq):
        if i in pos: plan[key] = ('l', slot); slot += 1
        else: plan[key] = ('r', next(r))
    for c in cfg.deferred: plan[('v', c)] = ('r', next(r))
    no = NLDS[w] - nm
    n = 4 * NT[w]
    opos = sorted(set(int(round(cfg.ostart + i * (n - 1 - cfg.ostart) / (no - 1))) for i in range(no)))
    assert len(opos) == no
    for i in range(n):
        key = ('o', i // 4, i % 4)
        if i in opos: plan[key] = ('l', slot); slot += 1
        else: plan[key] = ('r', next(r))
    assert slot == NLDS[w], slot
    return plan

def srd(a, s, lo, size):
    a(f's_mov_b32 s{s}, s{lo}\ns_and_b32 s{s+1}, s{lo+1}, 0xffff\ns_mov_b32 s{s+2}, {size}\ns_mov_b32 s{s+3}, 0x20000')

def emit_setup(a, cfg, w):
    t = T0
    a(f'''
    v_and_b32 v{t+1}, 63, v0          ; lane
    v_and_b32 v{t+2}, 15, v{t+1}      ; n
    v_lshrrev_b32 v{t+3}, 4, v{t+1}   ; g
    v_and_b32 v{t+4}, 1, v{t+3}       ; g&1
    v_lshrrev_b32 v{t+5}, 1, v{t+3}   ; g>>1
    v_lshlrev_b32 v{vL16}, 4, v{t+1}
    v_add_u32 v{vWl}, {WBASE[w]}, v{vL16}
    v_mov_b32 v{vZ}, 0
    v_and_b32 v{t+6}, 3, v{t+1}
    v_lshlrev_b32 v{t+6}, 4, v{t+6}
    v_lshl_add_u32 v{t+6}, v{t+4}, 6, v{t+6}
    v_lshl_add_u32 v{t+6}, v{t+5}, 8, v{t+6}
    v_bfe_u32 v{t+7}, v{t+1}, 2, 1
    v_lshl_add_u32 v{vA}, v{t+7}, 7, v{t+6}
    v_and_b32 v{t+6}, 8, v{t+1}
    v_cmp_eq_u32 vcc, 0, v{t+6}
    v_mov_b32 v{t+7}, 0xEEEEDDDD
    v_mov_b32 v{t+8}, 0x44448888
    v_cndmask_b32 v{vIdx}, v{t+7}, v{t+8}, vcc
    v_lshlrev_b32 v{t+6}, 4, v{t+2}
    v_lshl_add_u32 v{t+6}, v{t+4}, 3, v{t+6}
    v_lshl_add_u32 v{t+6}, v{t+5}, 2, v{t+6}
    v_mov_b32 v{t+7}, {OOB}
    v_cndmask_b32 v{vM}, v{t+7}, v{t+6}, vcc
    v_lshlrev_b32 v{t+6}, 3, v{t+5}
    v_xor_b32 v{t+6}, v{t+6}, v{t+2}
    v_lshlrev_b32 v{t+6}, 3, v{t+6}
    v_lshl_add_u32 v{t+6}, v{t+3}, 7, v{t+6}
    v_add_u32 v{vQW}, {512*w}, v{t+6}
    v_bfe_u32 v{t+6}, v{t+1}, 2, 1
    v_xor_b32 v{t+7}, v{t+6}, v{t+5}
    v_lshlrev_b32 v{t+6}, 8, v{t+6}
    v_lshl_add_u32 v{t+6}, v{t+7}, 6, v{t+6}
    v_and_b32 v{t+7}, 1, v{t+1}
    v_lshl_add_u32 v{t+6}, v{t+7}, 7, v{t+6}
    v_lshl_add_u32 v{t+6}, v{t+4}, 4, v{t+6}
    v_bfe_u32 v{t+7}, v{t+1}, 3, 1
    v_lshl_add_u32 v{vTO}, v{t+7}, 3, v{t+6}
    v_bfe_u32 v{t+7}, v{t+1}, 1, 1
    v_mul_u32_u24 v{t+7}, {LD_K - LD_Q}, v{t+7}
    v_add_u32 v{vTR}, v{vTO}, v{t+7}
    v_mul_u32_u24 v{t+6}, {L.PB_UNIT}, v{t+3}
    v_lshl_add_u32 v{vP}, v{t+2}, 3, v{t+6}
    v_lshrrev_b32 v{t+7}, 3, v{t+2}
    v_lshlrev_b32 v{t+6}, 8, v{t+7}
    v_and_b32 v{t+8}, 7, v{t+2}
    v_lshl_add_u32 v{t+6}, v{t+8}, 4, v{t+6}
    v_lshl_add_u32 v{vKX}, v{t+3}, 9, v{t+6}
    v_and_b32 v{t+8}, 7, v{t+1}
    v_lshl_add_u32 v{t+9}, v{t+3}, 3, v{t+8}
    v_lshlrev_b32 v{vPRx}, 4, v{t+9}                ; (g*8+q)*16
    v_lshl_add_u32 v{vTO}, v{t+7}, 3, v{vPRx}
    v_lshl_add_u32 v{t+9}, v{t+4}, 3, v{t+8}
    v_lshlrev_b32 v{t+9}, 3, v{t+9}                 ; ((g&1)*8+q)*8
    v_cmp_eq_u32 vcc, v{t+7}, v{t+5}
    v_mov_b32 v{t+10}, 128
    v_cndmask_b32 v{vPRm}, v{t+10}, v{t+9}, vcc
    ''')
    if w < 2: a(f'v_add_u32 v{vPW}, {LD_PX + 8*w}, v{vPRx}\ns_mov_b32 s{sMask}, 0x00ff00ff\ns_mov_b32 s{sMask+1}, 0x00ff00ff')
    elif w == 2: a(f'v_add_u32 v{vPW}, {LD_PM}, v{t+9}\ns_mov_b32 s{sMask}, 0\ns_mov_b32 s{sMask+1}, 0x00ff00ff')
    else: a(f'v_mov_b32 v{vHv}, 0')
    a(f's_mov_b32 s{sHm}, 0x00010001\ns_mov_b32 s{sHm+1}, 0x00010001')
    a(f'''
    v_mov_b64 {R(t+12,2)}, 0
    v_mov_b64 {R(t+14,2)}, 0
    ds_write_b128 v{vZ}, {R(t+12,4)} offset:{LD_Z}
    ds_write_b128 v{vZ}, {R(t+12,4)} offset:{LD_PX - 16}
    v_add_u32 v{vPRx}, 16, v{vPRx}
    v_lshlrev_b32 v{t}, 4, v{t+8}
    ds_write_b128 v{t}, {R(t+12,4)} offset:{LD_SEL}
    v_mov_b32 v{t+16}, 0x3f803f80
    v_mov_b32 v{t+17}, 0x3f803f80
    ds_write_b64 v{vZ}, {R(t+16,2)} offset:{LD_ONE}
    ds_write_b64 v{vZ}, {R(t+16,2)} offset:{LD_ONE+8}
    s_waitcnt lgkmcnt(0)
    s_barrier
    v_mul_u32_u24 v{t}, 18, v{t+8}
    ds_write_b16 v{t}, v{t+16} offset:{LD_SEL}
    s_mov_b32 s{sCs}, {fbits(SCALE_LOG2E)}
    s_lshl_b32 s{sTmp+2}, s{sH}, 7
    ''')
    for i in range(NT[w]): a(f's_add_u32 s{sP+i}, s{sTmp+2}, {L.PB + tile_of(w, i)*4*L.PB_UNIT}')
    a(f'''
    s_add_u32 s{sUnit}, s{sH}, {[0, 40, 32, 0][w]}
    s_mul_i32 s{sRed}, s{sUnit}, {L.PB_UNIT}
    s_add_u32 s{sRed}, s{sRed}, {L.PB}
    s_add_u32 s{sHn}, s{sH}, {L.HN}
    s_lshl_b32 s{sUnit}, s{sUnit}, 7
    s_mov_b32 s{sPar}, {L.PB_PAR}
    s_mov_b32 s{sRc}, 0
    s_mov_b32 s{sPo}, {OOB}
    {f's_and_b32 s{sHn}, s{sH}, {cfg.hrep-1}' if w == cfg.poller else ''}
    {f's_mul_i32 s{sHn}, s{sHn}, {L.PB_UNIT}' if w == cfg.poller else ''}
    {f's_add_u32 s{sHn}, s{sHn}, {L.HN}' if w == cfg.poller else ''}
    {f's_add_u32 s{sH2}, s{sH}, {L.HN + 2048}' if w == cfg.poller else ''}
    {f's_and_b32 s{sH2}, s{sH}, {cfg.hrep-1}' if w == 3 else ''}
    {f's_mul_i32 s{sH2}, s{sH2}, {L.PB_UNIT}' if w == 3 else ''}
    {f's_add_u32 s{sH2}, s{sH2}, {L.HN + 2048}' if w == 3 else ''}
    s_mov_b32 s{sRingPo}, {OOB}
    s_waitcnt lgkmcnt(0)
    ''')

def emit_load_weights_dw(a, cfg, w):
    plan = frag_plan(cfg, w)
    t = T0
    a(f'''
    v_bfe_u32 v{t+2}, v{vL16}, 4, 4           ; n
    v_bfe_u32 v{t+4}, v{vL16}, 8, 1           ; gB&1
    v_bfe_u32 v{t+5}, v{vL16}, 9, 1           ; gB>>1
    v_lshlrev_b32 v{t+3}, 17, v{t+4}
    v_lshl_add_u32 v{t+3}, v{t+5}, 14, v{t+3}
    v_lshl_add_u32 v{t+3}, v{t+2}, 2, v{t+3}
    s_lshl_b32 s{sTmp}, s{sH}, 8
    s_add_u32 s{sTmp}, s{sTmp}, {64*w}
    v_add_u32 v{t}, s{sTmp}, v{t+3}
    v_lshl_add_u32 v{t+4}, v{t+5}, 3, v{t+4}
    v_mul_u32_u24 v{t+4}, 1152, v{t+4}
    v_lshl_add_u32 v{t+4}, v{t+2}, 2, v{t+4}
    s_mul_i32 s{sTmp}, s{sH}, {128*1152}
    v_add_u32 v{t+1}, s{sTmp}, v{t+4}
    ''')
    stage = [t + 8 + 8 * i for i in range(6)]
    pend = []; nload = 0; si = 0
    def flush(upto):
        while pend and len(pend) > upto:
            reg, slot, last = pend.pop(0)
            a(f's_waitcnt vmcnt({min(nload - last - 1, 63)})')
            a(f'ds_write_b128 v{vWl}, {R(reg,4)} offset:{slot*2048}\nds_write_b128 v{vWl}, {R(reg+4,4)} offset:{slot*2048+1024}')
            a('s_waitcnt lgkmcnt(0)')
    def load_frag(dst, voff, offs):
        nonlocal nload, si
        kind, x = dst
        if kind == 'l':
            flush(len(stage) - 1); reg = stage[si % len(stage)]; si += 1
        else: reg = x
        cur = None
        for rho in range(8):
            o = offs[rho]
            if cur is None or not (0 <= o - cur < 4096):
                cur = o; a(f's_mov_b32 s{sTmp+3}, {o}')
            a(f'buffer_load_dword {R(reg+rho)}, v{voff}, s[{sT}:{sT+3}], s{sTmp+3} offen offset:{o-cur}')
            nload += 1
        if kind == 'l': pend.append((reg, x, nload - 1))
        a(f's_waitcnt vmcnt({cfg.lddw})')
    for m, karg in (('q', 16), ('k', 24), ('v', 32)):
        a(f's_load_dwordx2 s[{sTmp+4}:{sTmp+5}], s[0:1], {karg}\ns_waitcnt lgkmcnt(0)')
        srd(a, sT, sTmp + 4, 576 * 8192)
        for c in range(18):
            load_frag(plan[(m, c)], t, [(32*c + 4*(r & 3) + (r >> 2)) * 8192 for r in range(8)])
    a(f's_load_dwordx2 s[{sTmp+4}:{sTmp+5}], s[0:1], 40\ns_waitcnt lgkmcnt(0)')
    srd(a, sT, sTmp + 4, 4096 * 1152)
    for sl in range(NT[w]):
        for c in range(4):
            load_frag(plan[('o', sl, c)], t + 1, [(32*c + 16*(r >> 2) + 2*(r & 3)) * 1152 + 64*tile_of(w, sl) for r in range(8)])
    flush(0)
    a('s_waitcnt vmcnt(0)')

def emit_load_weights(a, cfg, w, hooks={}):
    if cfg.lddw: return emit_load_weights_dw(a, cfg, w)
    plan = frag_plan(cfg, w)
    t = T0
    vq, vo, rq, ro = t, t + 1, t + 2, t + 3
    a(f"""
    v_bfe_u32 v{t+4}, v{vL16}, 6, 4
    v_and_b32 v{t+5}, 48, v{vL16}
    v_lshl_add_u32 v{vq}, v{t+4}, 13, v{t+5}
    s_lshl_b32 s{sTmp}, s{sH}, 8
    s_add_u32 s{sTmp}, s{sTmp}, {64*w}
    v_add_u32 v{vq}, s{sTmp}, v{vq}
    v_mul_u32_u24 v{vo}, 1152, v{t+4}
    s_mul_i32 s{sTmp}, s{sH}, {128*1152}
    v_add3_u32 v{vo}, v{vo}, v{t+5}, s{sTmp}
    v_bfe_u32 v{t+4}, v{vL16}, 4, 4           ; n
    v_bfe_u32 v{t+5}, v{vL16}, 8, 1           ; gB&1
    v_bfe_u32 v{t+6}, v{vL16}, 9, 1           ; gB>>1
    v_lshlrev_b32 v{t+4}, 2, v{t+4}
    v_add_u32 v{t+4}, {WBASE[w]}, v{t+4}
    v_lshl_add_u32 v{rq}, v{t+5}, 10, v{t+4}
    v_lshl_add_u32 v{rq}, v{t+6}, 7, v{rq}
    v_lshl_add_u32 v{ro}, v{t+5}, 6, v{t+4}
    v_lshl_add_u32 v{ro}, v{t+6}, 9, v{ro}
    s_load_dwordx8 s[{sLd}:{sLd+7}], s[0:1], 16
    s_waitcnt lgkmcnt(0)
    """)
    for i in range(4): srd(a, sLd + 8 + 4 * i, sLd + 2 * i, 576 * 8192)
    keys = [(m, c) for m in 'qkv' for c in range(18)] + [('o', sl, c) for sl in range(NT[w]) for c in range(4)]
    ns = NLDS[w]
    regk = [k for k in keys if plan[k][0] == 'r']
    bys = {plan[k][1]: k for k in keys if plan[k][0] == 'l'}
    order = regk + [bys[(len(regk) + i) % ns] for i in range(ns)]
    def dma(i):
        k = order[i]; slot = i % ns
        for hf in range(2):
            if k[0] == 'o': off, v, sr = (32*k[2] + 16*hf) * 1152 + 64*tile_of(w, k[1]), vo, sLd + 20
            else: off, v, sr = (32*k[1] + 16*hf) * 8192, vq, sLd + 8 + 4 * 'qkv'.index(k[0])
            a(f's_mov_b32 m0, {WBASE[w] + slot*2048 + 1024*hf}\ns_mov_b32 s{sTmp}, {off}\nbuffer_load_dwordx4 v{v}, s[{sr}:{sr+3}], s{sTmp} offen lds')
    dp = min(cfg.lddep, ns)
    for i in range(dp): dma(i)
    if 'start' in hooks: hooks['start']()
    for i, k in enumerate(order):
        slot = i % ns
        a(f's_waitcnt vmcnt({2 * (min(i + dp, len(order)) - i - 1)})')
        dst = plan[k][1] if plan[k][0] == 'r' else t + 8
        for rho in range(8):
            row = 16*(rho >> 2) + 2*(rho & 3) if k[0] == 'o' else 4*(rho & 3) + (rho >> 2)
            a(f'ds_read_b32 {R(dst+rho)}, v{ro if k[0] == "o" else rq} offset:{slot*2048 + row*64}')
        a('s_waitcnt lgkmcnt(0)')
        if plan[k][0] == 'l':
            assert plan[k][1] == slot
            a(f'ds_write_b128 v{vWl}, {R(dst,4)} offset:{slot*2048}\nds_write_b128 v{vWl}, {R(dst+4,4)} offset:{slot*2048+1024}\ns_waitcnt lgkmcnt(0)')
        if cfg.ldbar and i % cfg.ldbar == 0 and i < 40: a('s_barrier')
        if i + dp < len(order): dma(i + dp)
        if len(order) - i in hooks: hooks[len(order) - i]()

def emit_poison_init(a, red, w=None, t=T0, wait=True):
    WS = f's[{sWS}:{sWS+3}]'
    if w == 3:
        a(f's_mov_b64 exec, s[{sHm}:{sHm+1}]\nbuffer_store_byte v{vZ}, v{vHA}, {WS}, s{sHn} offen sc1\nbuffer_store_byte v{vZ}, v{vHA}, {WS}, s{sHn} offen offset:2048 sc1\ns_mov_b64 exec, -1')
        if wait: a('s_waitcnt vmcnt(0)')
    if not red: return
    a(f'v_mov_b64 {R(t,2)}, -1\nv_mov_b64 {R(t+2,2)}, -1\ns_add_u32 s{sTmp}, s{sRed}, {L.PB_PAR}')
    for s in (sRed, sTmp):
        for i in range(4): a(f'buffer_store_dwordx4 {R(t,4)}, v{vL16}, {WS}, s{s} offen offset:{i*1024} sc1')
    for i in range(4):
        a(f's_add_u32 s{sTmp+1}, s{sUnit}, {L.MR + i*9216}\nbuffer_store_dword v{t}, v{vM}, {WS}, s{sTmp+1} offen sc1')
    if wait: a('s_waitcnt vmcnt(0)')

def stamp(a, cfg, i):
    if not cfg.stamps or (cfg.stampsel is not None and i not in cfg.stampsel): return
    a(f'''
    s_memtime s[{sTmp+4}:{sTmp+5}]
    s_waitcnt lgkmcnt(0)
    s_sub_u32 s{sTmp+5}, s{sTmp+4}, s{sSt}
    s_mov_b32 s{sSt}, s{sTmp+4}
    s_add_u32 s{sSt+2+i}, s{sSt+2+i}, s{sTmp+5}
    ''')

def mark(a, cfg, name):
    if name in cfg.fine:
        i = cfg.fine.index(name)
        a(f's_memtime s[{80+2*i}:{81+2*i}]')

class Q:
    def __init__(self, a, cnt, cap): self.a = a; self.q = []; self.cnt = cnt; self.cap = cap
    def issue(self, tag, text):
        for x in text.split('\n'):
            self.a(x); self.q.append(tag)
        assert len(self.q) <= self.cap, self.q
    def wait(self, *tags):
        idx = [i for i, x in enumerate(self.q) if x in tags]
        if not idx: return
        last = idx[-1]
        self.a(f's_waitcnt {self.cnt}({len(self.q)-last-1})')
        del self.q[:last + 1]
    def clear(self): self.q = []

def delay(a, n):
    while n > 0:
        k = min(n, 16); a(f's_nop {k-1}'); n -= k

def emit_mem0(a, w, t=T0):
    g0, gn = GATH[w]
    Wbuf = [t + 20, t + 28]; GL = [t + 4, t + 8, t + 12, t + 16]
    def gwrite(i): return f'ds_write_b128 v{vL16}, {R(GL[i],4)} offset:{LD_MEM + (g0+i)*1024}'
    a(f's_load_dwordx2 s[{sTmp+4}:{sTmp+5}], s[0:1], 8\ns_waitcnt lgkmcnt(0)')
    srd(a, sT, sTmp + 4, 9216)
    a(f"""
    v_bfe_u32 v{t}, v{vL16}, 4, 2            ; i
    v_bfe_u32 v{t+1}, v{vL16}, 7, 1          ; rh
    v_lshl_add_u32 v{t}, v{t+1}, 2, v{t}
    v_mul_u32_u24 v{t}, 1152, v{t}
    v_bfe_u32 v{t+1}, v{vL16}, 9, 1
    v_lshl_add_u32 v{t}, v{t+1}, 6, v{t}
    v_bfe_u32 v{t+1}, v{vL16}, 6, 1          ; b
    v_lshl_add_u32 v{t}, v{t+1}, 2, v{t}
    v_bfe_u32 v{t+1}, v{vL16}, 8, 1          ; par
    v_lshl_add_u32 v{t}, v{t+1}, 1, v{t}
    """)
    for it in range(gn):
        for j in range(8): a(f'buffer_load_ushort v{t+4+8*it+j}, v{t}, s[{sT}:{sT+3}], 0 offen offset:{(g0+it)*128 + j*8}')
    a('s_waitcnt vmcnt(0)')
    for it in range(gn):
        for j in range(4): a(f'v_lshl_or_b32 v{GL[it]+j}, v{t+4+8*it+2*j+1}, 16, v{t+4+8*it+2*j}')
    for it in range(gn): a(gwrite(it))
    a('s_waitcnt lgkmcnt(0)')

def flag_load(tmp): return f'v_lshrrev_b32 v{tmp}, 1, v{vL16}\nbuffer_load_dwordx2 {R(vM,2)}, v{tmp}, s[{sWS}:{sWS+3}], s{sFh} offen offset:16 sc1'
def flag_level(a):
    a(f'v_min_u32 v{vM}, v{vM}, v{vM+1}\ns_mov_b64 exec, -1')
    for i in range(4): a(f'v_readlane_b32 s{sTmp+i}, v{vM}, {i}')
    a(f's_min_u32 s{sTmp}, s{sTmp}, s{sTmp+1}\ns_min_u32 s{sTmp+2}, s{sTmp+2}, s{sTmp+3}\ns_min_u32 s{sKn}, s{sTmp}, s{sTmp+2}')

def emit_layer(a, cfg, w, red, exit_label, st=''):
    plan = frag_plan(cfg, w)
    WS = f's[{sWS}:{sWS+3}]'
    t = T0
    ds = Q(a, 'lgkmcnt', 15); vm = Q(a, 'vmcnt', 63)
    accq, acck, accv = t, t + 4, t + 8
    Abuf = [t + 12 + 4 * i for i in range(3)]
    X0 = t + 24; X1 = t + 28
    Wbuf = [t + 32, t + 40]
    VXr = t + 48
    KXr = [t + 56 + 4 * i for i in range(4)]
    SM = 'v_smfmac_f32_16x16x64_bf16'
    g0, gn = GATH[w]
    GL = (Abuf + [X0])[:gn]
    cold = []
    def budget(): a(f's_sub_u32 s{sBud}, s{sBud}, 1\ns_cbranch_scc1 {exit_label}')
    def gloads():
        for i in range(gn): a(f'buffer_load_dwordx4 {R(GL[i],4)}, v{vL16}, {WS}, s{sGat} offen offset:{i*1024} sc1')
    def gwrite(i): return f'ds_write_b128 v{vL16}, {R(GL[i],4)} offset:{LD_MEM + (g0+i)*1024}'
    def kloads():
        a(f's_add_u32 s{sKX2}, s{sKX}, 4096')
        for c in range(4): a(f'buffer_load_dwordx4 {R(KXr[c],4)}, v{vKX}, {WS}, s{sKX if c < 2 else sKX2} offen offset:{2048*(c&1)} sc1')
        a(f's_add_u32 s{sKX}, s{sKX}, 262144')
    fload = f'v_lshrrev_b32 v{X1+3}, 1, v{vL16}\nbuffer_load_dwordx2 {R(vM,2)}, v{X1+3}, {WS}, s{sFh} offen offset:16 sc1'
    def level():
        a(f'v_min_u32 v{vM}, v{vM}, v{vM+1}\ns_mov_b64 exec, -1')
        for i in range(4): a(f'v_readlane_b32 s{sTmp+i}, v{vM}, {i}')
        a(f's_min_u32 s{sTmp}, s{sTmp}, s{sTmp+1}\ns_min_u32 s{sTmp+2}, s{sTmp+2}, s{sTmp+3}\ns_min_u32 s{sKn}, s{sTmp}, s{sTmp+2}')
    def avail(ahead):
        lp = a.lab('L_av'); ok = a.lab('L_avok')
        a(f's_add_u32 s{sNd}, s{sStep}, {ahead + 1}\ns_min_u32 s{sNd}, s{sNd}, 64\ns_add_u32 s{sNd}, s{sNd}, s{sLv}\ns_cmp_lt_u32 s{sKn}, s{sNd}\ns_cbranch_scc1 {lp}\n{ok}:')
        def rest():
            a(f'{lp}:\ns_mov_b64 exec, 15\n{fload}'); budget(); a('s_waitcnt vmcnt(0)'); level()
            a(f's_cmp_lt_u32 s{sKn}, s{sNd}\ns_cbranch_scc1 {lp}\ns_branch {ok}')
        cold.append(rest)
    def accumulate():
        sk_ = a.lab('L_noacc')
        a(f's_waitcnt lgkmcnt(0)\ns_sub_u32 s{sTmp+2}, s{sStep}, 9\ns_cmp_ge_u32 s{sTmp+2}, 48\ns_cbranch_scc1 {sk_}')
        for i in range(len(cfg.fine) - 1): a(f's_sub_u32 s{sTmp+2}, s{82+2*i}, s{80+2*i}\ns_add_u32 s{sSt+2+i}, s{sSt+2+i}, s{sTmp+2}')
        a(f'{sk_}:')
    a(f"""
    s_mov_b32 s{sStep}, 0
    s_mov_b32 s{sVer}, 1
    s_lshl_b32 s{sTmp}, s{sH}, 13
    s_add_u32 s{sTmp}, s{sTmp}, s{sLay}
    s_add_u32 s{sPf}, s{sTmp}, {L.KX + cfg.pfd*262144}
    s_add_u32 s{sKX}, s{sTmp}, {L.KX + 128*w}
    s_add_u32 s{sVX}, s{sTmp}, {L.VX + 2048*w}
    s_lshl_b32 s{sTmp+1}, s{sH}, 12
    s_add_u32 s{sTmp+1}, s{sTmp+1}, s{sLay}
    s_add_u32 s{sKMn}, s{sTmp+1}, {L.KM + 512*w - 16}
    s_mov_b32 s{sKM}, {OOB}
    s_mov_b32 s{sKmask}, 0xff00ff00
    s_mov_b32 s{sKmask+1}, 0xff00ff00
    """)
    seq = main_seq(cfg)
    ldsm = [k for k in seq if plan[k][0] == 'l']
    def wr(buf, slot, half): return f'ds_read_b128 {R(buf+4*half,4)}, v{vWl} offset:{slot*2048+1024*half}'
    def tr2(dst, base, c, vreg): return '\n'.join(f'ds_read_b64_tr_b16 {R(dst+2*hf,2)}, v{vreg} offset:{base + c*512 + 32*hf}' for hf in range(2))
    def cst(dst, off): return f'ds_read_b128 {R(dst,4)}, v{vZ} offset:{off}'
    def pre_step():
        for i in range(2):
            for hf in range(2): a(wr(Wbuf[i], plan[ldsm[i]][1], hf))
        for i in range(0, 12, 2): a(f'v_mov_b64 {R(t+i,2)}, 0')
        a(f'v_lshlrev_b32 v{X1+2}, 1, v{vL16}\nv_lshrrev_b32 v{X1+3}, 1, v{vL16}')
        if w < 2 and cfg.kpos[w] == 2: a(f's_add_u32 s{sKX2}, s{sKX}, 4096')
        if w == 3:
            a(f'v_lshlrev_b32 v{X1+1}, 2, v{vL16}')
            if not cfg.integ: a(f's_mov_b32 s{sPfe}, s{sPf}')
            else:
                a(f"""
                s_add_u32 s{sTmp+2}, s{sStep}, s{sLv}
                s_add_u32 s{sTmp+3}, s{sTmp+2}, 2
                s_cmp_ge_u32 s{sKn}, s{sTmp+3}
                s_cselect_b32 s{sPfe}, s{sPf}, {OOB}
                s_add_u32 s{sTmp+2}, s{sTmp+2}, 6
                s_add_u32 s{sTmp+3}, s{sLv}, 64
                s_min_u32 s{sTmp+2}, s{sTmp+2}, s{sTmp+3}
                s_cmp_lt_u32 s{sKn}, s{sTmp+2}
                s_cselect_b32 s{sFl}, 1, 0
                """)
            a(f's_add_u32 s{sKX2}, s{sPfe}, 4096\ns_add_u32 s{sKX}, s{sPfe}, {L.VX - L.KX}\ns_add_u32 s{sRed}, s{sPfe}, {L.VX - L.KX + 4096}\ns_add_u32 s{sPf}, s{sPf}, 262144')
    if cfg.integ:
        if w == 3:
            a(f's_lshl_b32 s{sFh}, s{sH}, 7\ns_add_u32 s{sFh}, s{sFh}, {L.F_HEAD}')
            avail(0)
        if min(cfg.kpos) < 2: a('s_barrier')
    if w < 2 and cfg.kpos[w] < 2: kloads()
    pre_step()
    loop = a.lab('L_step')
    abuf_of = {}
    def aread(c, buf):
        abuf_of[c] = buf
        ds.issue(('A', c), f'ds_read_b128 {R(buf,4)}, v{vA} offset:{LD_MEM + c*512}')
    def head(nlate=0):
        a('s_barrier')
        stamp(a, cfg, 0); mark(a, cfg, 'B1')
        aread(0, Abuf[0])
        for i in range(nlate): a(f'buffer_load_dwordx4 v{vL16}, {WS}, s{sTmp} offen offset:{i*1024} sc1 lds')
        for c in range(1, 3): aread(c, Abuf[c])
    a('s_waitcnt vmcnt(0) lgkmcnt(0)')
    if cfg.log and w == 3:
        import workers
        workers.logtime(a, sFh, sLv, vM, vZ, 52)
    head()
    a(f'{loop}:')
    F = [Wbuf[0], Wbuf[0] + 4, Wbuf[1], Wbuf[1] + 4]
    lastuse = {}
    for i, key in enumerate(seq): lastuse[key[1]] = i
    pre = {}; mem = {}; val = {}
    def put(d, g, x):
        while d is not pre and g in d and g >= 0: g += 1
        d.setdefault(g, []).append(x); return g
    def vmem(x, tag='m'):
        def f():
            for y in x.split('|'):
                if y.startswith('buffer'): vm.issue(tag, y)
                else: a(y)
        return f
    vxl = [vmem(f'buffer_load_dwordx4 {R(VXr+4*i,4)}, v{X1+2}, {WS}, s{sVX} offen offset:{16*i} sc1', 'VX') for i in range(2)]
    if w < 2 and cfg.kpos[w] == 2:
        for c in range(4): put(mem, cfg.gkx[c], vmem(f'buffer_load_dwordx4 {R(KXr[c],4)}, v{vKX}, {WS}, s{sKX if c < 2 else sKX2} offen offset:{2048*(c&1)} sc1', 'KX'))
    for i, x in enumerate(vxl): put(mem, cfg.gv[w] + i, x)
    tail_pf = []
    if w == 3:
        g = cfg.gp + 9
        if cfg.pf:
            for i in range(4):
                x = vmem(f'buffer_load_dwordx2 {R(vM,2)}, v{X1+2}, {WS}, s{[sPfe, sKX2][i >> 1]} offen offset:{2048*(i&1)} sc1')
                if cfg.gk[i] < len(seq): put(mem, cfg.gk[i], x)
                else: tail_pf.append(x)
        if cfg.integ:
            sk = a.lab('L_nofl'); nf = a.lab('L_fl')
            tail_pf.append(vmem(f's_cmp_lg_u32 s{sFl}, 0|s_cbranch_scc1 {nf}|{sk}:'))
            cold.append(lambda nf=nf, sk=sk: a(f'{nf}:\ns_mov_b64 exec, 15\n{fload}\ns_mov_b64 exec, -1\ns_branch {sk}'))
    gp = cfg.gp
    if cfg.pub:
        put(val, 2, f'v_cndmask_b32 v{X1}, 2.0, v{vPRx}, s[{sKmask}:{sKmask+1}]')
        put(mem, gp + w, vmem(f'buffer_store_dwordx4 {R(X0,4)}, v{X1}, {WS}, s{sKM} offen sc1'))
        put(mem, gp + 4 + w, vmem(f'buffer_store_dwordx2 {R(vVp,2)}, v{X1+3}, {WS}, s{sKM} offen offset:2064 sc1'))
    if red:
        put(val, cfg.gpo - 2, f'v_mov_b32 v{X1+2}, -1'); put(val, 4, f'v_lshlrev_b32 v{X1+1}, 2, v{vL16}')
        put(mem, cfg.gpo + 2 * w, vmem(f'buffer_store_dword v{X1+2}, v{X1+1}, {WS}, s{sPo} offen {st}'))
        put(mem, cfg.gpo + 5, vmem(f'buffer_store_dword v{X1+2}, v{vM}, {WS}, s{sRingPo} offen {st}'))
    if cfg.novm: mem = {}
    vm.q = ['late'] + vm.q
    put(pre, lastuse[5], lambda: (mark(a, cfg, 'z0'), vm.wait('late'), mark(a, cfg, 'late'), a('s_barrier'), mark(a, cfg, 'Bz')))
    nl = len(ldsm)
    pendW = []; nextw = 2; mq = []
    for f in mem.pop(-1, []): f()
    ds.wait(('A', 0)); mark(a, cfg, 'A0')
    for i, key in enumerate(seq):
        m, c = key
        B = R(plan[key][1], 8) if plan[key][0] == 'r' else R(Wbuf[ldsm.index(key) % 2], 8)
        acc = {'q': accq, 'k': acck, 'v': accv}[m]
        a(f'{SM} {R(acc,4)}, {R(abuf_of[c],4)}, {B}, v{vIdx}')
        if i + 1 < len(seq):
            assert ('W', seq[i+1]) not in [p[0] for p in pendW], (w, i)
            ds.wait(('A', seq[i+1][1]), ('W', seq[i+1]))
        for f in pre.pop(i, []): f()
        if plan[key][0] == 'l' and nextw < nl:
            for hf in range(2): pendW.append((('W', ldsm[nextw]), wr(Wbuf[nextw % 2], plan[ldsm[nextw]][1], hf)))
            nextw += 1
        for f in mem.pop(i, []): mq.append((i, f))
        isA = lambda j: j < len(seq) and lastuse[seq[j][1]] == j and seq[j][1] + 3 < 18
        if isA(i): aread(c + 3, abuf_of[c]); used = True
        else: used = False
        def w_can_wait():
            j = i
            for tag, _ in pendW:
                j += 1
                while isA(j): j += 1
                if j > seq.index(tag[1]) - cfg.wlat: return False
            return True
        if not cfg.smart:
            if not used and pendW: ds.issue(*pendW.pop(0))
            while mq: mq.pop(0)[1]()
        else:
            if not used and mq and w_can_wait(): mq.pop(0)[1]()
            else:
                if not used and pendW: ds.issue(*pendW.pop(0))
                if mq and (i - mq[0][0] >= cfg.mlate or len(seq) - 1 - i < len(mq)): mq.pop(0)[1]()
        for x in val.pop(i, []): a(x)
        mark(a, cfg, f'm{i}')
    assert not pendW and not pre and not mem and not val and not mq, (pendW, pre, mem, val, mq)
    mark(a, cfg, 'mainend')
    dq = list(cfg.deferred); nxt = 3
    def defer(n, valu=(), other=()):
        nonlocal nxt
        valu = list(valu); other = list(other)
        for k in range(n):
            c = dq.pop(0)
            ds.wait(('A', c))
            a(f'{SM} {R(accv,4)}, {R(abuf_of[c],4)}, {R(plan[("v",c)][1],8)}, v{vIdx}')
            if k + 1 < n: ds.wait(('A', dq[0]))
            if nxt < len(cfg.deferred): aread(cfg.deferred[nxt], abuf_of[c]); nxt += 1
            elif other: other.pop(0)()
            if valu: a(valu.pop(0))
        for x in other: x()
        for x in valu: a(x)
    sh = cfg.sh
    defer(sh[0], [f'v_cvt_pk_bf16_f32 v{accq}, v{accq}, v{accq+1}', f'v_cvt_pk_bf16_f32 v{accq+1}, v{accq+2}, v{accq+3}'])
    a(f'v_cvt_pk_bf16_f32 v{acck}, v{acck}, v{acck+1}\nv_cvt_pk_bf16_f32 v{acck+1}, v{acck+2}, v{acck+3}')
    ds.issue('wq', f'ds_write_b64 v{vQW}, {R(accq,2)} offset:{LD_Q}')
    ds.issue('wk', f'ds_write_b64 v{vQW}, {R(acck,2)} offset:{LD_K}')
    mark(a, cfg, 'wk')
    defer(sh[1])
    ds.wait('wk'); mark(a, cfg, 'preB2')
    a('s_barrier')
    stamp(a, cfg, 1); mark(a, cfg, 'B2')
    Sc, E = accq, acck
    ones = X0; O = X1
    if w < 3:
        for c in range(4): ds.issue(('F', c), tr2(F[c], LD_Q, c, vTR))
        defer(sh[2])
        vm.wait('KX'); mark(a, cfg, 'kx')
        ds.wait(('F', 0))
        for c in range(4):
            a(f'v_mfma_f32_16x16x32_bf16 {R(Sc,4)}, {R(KXr[c] if w < 2 else F[c],4)}, {R(F[c],4)}, {"0" if c == 0 else R(Sc,4)}')
            if c < 3: ds.wait(('F', c + 1))
        defer(sh[3])
        mark(a, cfg, 'sc')
        if w == 2:
            for i in range(4): a(f'v_mul_f32 v{Sc+i}, s{sCs}, v{Sc+i}')
        for i in range(4): a(f'v_exp_f32 v{E+i}, v{Sc+i}')
        a(f's_mov_b64 exec, s[{sMask}:{sMask+1}]')
        a(f'v_cvt_pk_bf16_f32 v{E}, v{E}, v{E+1}\nv_cvt_pk_bf16_f32 v{E+1}, v{E+2}, v{E+3}')
        ds.issue('wp', f'ds_write_b64 v{vPW}, {R(E,2)}')
        a('s_mov_b64 exec, -1')
        mark(a, cfg, 'wp')
    else:
        if cfg.integ: avail(1)
        for x in tail_pf: x()
        defer(sh[2] + sh[3])
        if cfg.acc == 2: accumulate()
    Obuf = Wbuf + ([KXr[0], KXr[2]] if w < 2 else [VXr])
    npre = 4 if w < 2 else 2
    ldso = [k for k in plan if k[0] == 'o' and plan[k][0] == 'l']
    opre = [lambda i=i, hf=hf: ds.issue(ldso[i], wr(Obuf[i], plan[ldso[i]][1], hf)) for i in range(npre) for hf in range(2)]
    other = [lambda: ds.issue('one', cst(ones, LD_ONE))] + opre[:cfg.npw]
    opre = opre[cfg.npw:]
    defer(len(dq), other=other)
    ds.wait('wp'); mark(a, cfg, 'preB2b')
    lab_fb = a.lab('L_fallback'); lab_back = a.lab('L_fbret'); lab_last = a.lab('L_last'); lab_cont = a.lab('L_cont')
    a('s_barrier')
    stamp(a, cfg, 2); mark(a, cfg, 'B2b')
    Px = Abuf[0]; Ls = Abuf[1]; Pm = Abuf[2]
    acc = [accv, acck, Ls, accq, accv]
    hpost = [f's_add_u32 s{sHv}, s{sRc}, 1\nv_mov_b32 v{VXr+1}, s{sHv}', f's_mov_b64 exec, s[{sHm}:{sHm+1}]', f'buffer_store_byte v{VXr+1}, v{vHA}, {WS}, s{sHn} offen {st}', 's_mov_b64 exec, -1']
    nvx = 0; lab_cont2 = a.lab('L_cont2')
    def pv(first):
        nonlocal opre
        M16 = 'v_mfma_f32_16x16x16_bf16'; M32_ = 'v_mfma_f32_16x16x32_bf16'
        ds.issue('pm', f'ds_read_b64 {R(Pm,2)}, v{vPRm} offset:{LD_PM}')
        ds.issue('px', f'ds_read_b128 {R(Px,4)}, v{vPRx} offset:{LD_PX - 16}')
        a(f'v_cndmask_b32 v{Pm+2}, v{vPRx}, 0, s[{sKmask}:{sKmask+1}]')
        ds.issue('pe', f'ds_read_b128 {R(acck,4)}, v{Pm+2} offset:{LD_PX - 16}')
        a(f'v_cndmask_b32 v{Pm+3}, 0, v{vPRx}, s[{sKmask}:{sKmask+1}]')
        if first:
            a(f'v_cvt_pk_bf16_f32 v{vVp}, v{accv}, v{accv+1}\nv_cvt_pk_bf16_f32 v{vVp+1}, v{accv+2}, v{accv+3}')
        ds.issue('po', f'ds_read_b128 {R(accv,4)}, v{Pm+3} offset:{LD_PX - 16}')
        if first:
            nonlocal nvx
            nvx = len(vm.q) - 1 - max([i for i, x in enumerate(vm.q) if x == 'VX'] + [-1])
            if cfg.integ: a(f's_cmp_ge_u32 s{sStep}, {cfg.early}\ns_cbranch_scc1 {lab_last}\n{lab_cont}:')
            mark(a, cfg, 'v0'); vm.wait('VX'); mark(a, cfg, 'v1')
            if cfg.integ: a(f'{lab_cont2}:')
        op = opre if first else []
        def fill(n):
            for _ in range(n):
                if op: op.pop(0)()
        ds.wait('pm'); mark(a, cfg, 'px')
        a(f'{M16} {R(Ls,4)}, {R(ones,2)}, {R(Pm,2)}, 0')
        a(f'{M16} {R(O,4)}, {R(vVp,2)}, {R(Pm,2)}, 0')
        ds.wait('px'); fill(cfg.fills[0])
        a(f'{M32_} {R(Ls,4)}, {R(ones,4)}, {R(Px,4)}, {R(Ls,4)}')
        ds.wait('pe'); fill(cfg.fills[1])
        a(f'{M32_} {R(O,4)}, {R(VXr,4)}, {R(acck,4)}, {R(O,4)}')
        ds.wait('po'); fill(cfg.fills[2])
        a(f'{M32_} {R(O,4)}, {R(VXr+4,4)}, {R(accv,4)}, {R(O,4)}')
        a(f'v_rcp_f32 v{Ls}, v{Ls}')
        for r in (acck, accv): a(f'v_mov_b64 {R(r,2)}, 0\nv_mov_b64 {R(r+2,2)}, 0')
        fill(cfg.fills[3])
        mark(a, cfg, 'rcp')
        for i in range(4): a(f'v_mul_f32 v{O+i}, v{O+i}, v{Ls}')
        a(f'v_cvt_pk_bf16_f32 v{Pm}, v{O}, v{O+1}\nv_cvt_pk_bf16_f32 v{Pm+1}, v{O+2}, v{O+3}')
        ds.issue('wo', f'ds_write_b64 v{vTO}, {R(Pm,2)} offset:{LD_O + 512*w}')
        mark(a, cfg, 'wo')
        fill(cfg.fills[4])
    pv(True)
    lo, hi = fbits(2.0 ** -60), fbits(2.0 ** 60)
    a(f'v_subrev_u32 v{Ls+1}, {hex(lo)}, v{Ls+1}\nv_cmp_lt_u32 vcc, {hex(hi - lo)}, v{Ls+1}')
    a(f'v_mov_b64 {R(Ls,2)}, 0\nv_mov_b64 {R(Ls+2,2)}, 0\ns_cbranch_vccnz {lab_fb}\n{lab_back}:')
    if cfg.hpos == -2 and w == 1 - cfg.poller and not cfg.noexch: a('\n'.join(hpost))
    a(f'v_mov_b64 {R(accq,2)}, 0\nv_mov_b64 {R(accq+2,2)}, 0')
    ds.wait('wo'); a('s_barrier')
    stamp(a, cfg, 3); mark(a, cfg, 'B3')
    Fo = [Abuf[0], Abuf[2], X0, X1]
    def fo(c): return (('F', c), f'ds_read_b128 {R(Fo[c],4)}, v{vPRx} offset:{LD_O + 512*c - 16}')
    for c in range(cfg.nfo): ds.issue(*fo(c))
    nexto = npre; gapq = []; pendW = [fo(c) for c in range(cfg.nfo, 4)]
    ndone = 2 * npre - len(opre)
    pendW += [(ldso[i // 2], wr(Obuf[i // 2], plan[ldso[i // 2]][1], i & 1)) for i in range(ndone, 2 * npre)]
    nb = len(Obuf)
    if npre < nb:
        for hf in range(2): pendW.append((ldso[nexto], wr(Obuf[nexto % nb], plan[ldso[nexto]][1], hf)))
        nexto += 1
    def finish(sl):
        ac = acc[sl]
        return [[f'v_cvt_pk_bf16_f32 v{ac}, v{ac}, v{ac+1}'], [f'v_cvt_pk_bf16_f32 v{ac+1}, v{ac+2}, v{ac+3}'],
                [f'buffer_store_dwordx2 {R(ac,2)}, v{vP}, {WS}, s{sP+sl} offen {st}']]
    zero = {}
    if NT[w] == 5: zero[8] = [f'v_mov_b64 {R(acc[4]+2,2)}, 0']; zero[12] = [f'v_mov_b64 {R(acc[4],2)}, 0']
    oseq = [('o', sl, c) for sl in range(NT[w]) for c in range(4)]
    hint = not cfg.noexch
    hr = VXr; ha = VXr + 7
    hload = f'buffer_load_dword v{hr}, v{ha}, {WS}, s{sHn} offen sc1'
    hq = {}
    if hint and w == 1 - cfg.poller:
        if cfg.hpos >= 0: hq[cfg.hpos] = hpost[1:]; a(hpost[0])
        elif cfg.hpos == -1: a('\n'.join(hpost))
    if hint and w == cfg.poller:
        zero[0] = [f'v_bfe_u32 v{ha}, v{vL16}, 2, 5']
        a(f'v_mov_b32 v{hr}, 0x00ff00ff')
        for gp_ in cfg.hgaps: hq[gp_] = [hload]
    ds.wait(('F', 0), oseq[0]); mark(a, cfg, 'F0')
    for i, key in enumerate(oseq):
        _, sl, c = key
        B = R(Obuf[ldso.index(key) % nb], 8) if plan[key][0] == 'l' else R(plan[key][1], 8)
        a(f'{SM} {R(acc[sl],4)}, {R(Fo[c],4)}, {B}, v{vIdx}')
        if i + 1 < len(oseq):
            assert oseq[i+1] not in [p[0] for p in pendW], (w, i)
            ds.wait(('F', oseq[i+1][2]), oseq[i+1])
        if plan[key][0] == 'l' and nexto < len(ldso):
            for hf in range(2): pendW.append((ldso[nexto], wr(Obuf[nexto % nb], plan[ldso[nexto]][1], hf)))
            nexto += 1
        busy = cfg.smart and (i in hq or (c == 3 and sl >= 1))
        if pendW and (not busy or pendW[0][0][0] == 'F' or oseq.index(pendW[0][0]) - i <= cfg.wlat): ds.issue(*pendW.pop(0))
        if c == 1 and sl >= 1: gapq += finish(sl - 1)
        for x in hq.get(i, []): a(x)
        if gapq:
            for x in gapq.pop(0): a(x)
        for x in zero.get(i, []): a(x)
        mark(a, cfg, f'o{i}')
    assert not pendW and not gapq
    mark(a, cfg, 'woend')
    Sel = X0; D = X1; ck = Abuf[2]
    a(f"""
    s_add_u32 s{sStep}, s{sStep}, 1
    s_add_u32 s{sRc}, s{sRc}, 1
    s_and_b32 s{sTmp}, s{sRc}, 3
    s_mul_i32 s{sGat}, s{sTmp}, 9216
    s_add_u32 s{sGat}, s{sGat}, {L.MR}
    s_add_u32 s{sRing}, s{sGat}, s{sUnit}
    s_add_u32 s{sGat}, s{sGat}, {g0*1024}
    """)
    if red: a(f'v_and_b32 v{ck}, 127, v{vL16}')
    if hint and w == cfg.poller: a(hload)
    for g in finish(NT[w] - 1):
        for x in g: a(x)
    stamp(a, cfg, 4); mark(a, cfg, 'pst')
    def scalars():
        if red:
            a(f"""
            s_xor_b32 s{sTmp}, s{sTmp}, 2
            s_mul_i32 s{sTmp}, s{sTmp}, 9216
            s_add_u32 s{sTmp}, s{sTmp}, {L.MR}
            s_add_u32 s{sRingPo}, s{sTmp}, s{sUnit}
            s_mov_b32 s{sPo}, s{sRed}
            """)
        for i in range(NT[w]): a(f's_add_u32 s{sP+i}, s{sP+i}, s{sPar}')
        a(f"""
        s_mov_b32 s{sKM}, s{sKMn}
        s_add_u32 s{sKMn}, s{sKMn}, 131072
        """)
    def rolling(dep, nld, loads, consume, gap, between=None):
        ok = a.lab('L_ok'); nx = a.lab('L_next')
        for k in range(dep):
            loads()
            if k == 0 and between: between()
            elif k + 1 < dep: delay(a, gap)
        consume(nld * (dep - 1))
        a(f's_cbranch_vccnz {nx}\n{ok}:')
        def rest():
            a(f'{nx}:'); loads(); budget(); consume(nld * (dep - 1)); a(f's_cbranch_vccz {ok}\ns_branch {nx}')
        cold.append(rest)
    def hint_wait(load, reg, comp=0):
        go = a.lab('L_go'); hl = a.lab('L_hint')
        A_, B_ = f's[{sTmp+2}:{sTmp+3}]', f's[{sTmp+4}:{sTmp+5}]'
        a(f's_and_b32 s{sHv}, s{sRc}, 255\ns_mul_i32 s{sHv}, s{sHv}, 0x01010101\ns_mov_b32 s{sHc}, {cfg.htry}\ns_mov_b64 {B_}, -1')
        def tries(n, tgt):
            nonlocal A_, B_
            for k in range(n):
                a(load if k % cfg.hun == 0 else 's_nop 0')
                a(f'v_cmp_ne_u32 {A_}, s{sHv}, v{reg}\ns_cmp_eq_u64 {B_}, 0\ns_cbranch_scc1 {tgt}')
                A_, B_ = B_, A_
        gc = a.lab('L_goc')
        if comp: tries(cfg.ncomp, go)
        a(f'{hl}:'); tries(8, gc)
        a(f's_sub_u32 s{sHc}, s{sHc}, 1\ns_cbranch_scc0 {hl}\n{gc}:')
        delay(a, comp)
        a(f'{go}:')
    def prep():
        a(f's_sub_u32 s{sPar}, 0, s{sPar}\ns_add_u32 s{sVX}, s{sVX}, 262144')
        if w < 2 and cfg.kpos[w] == 2: a(f's_add_u32 s{sKX}, s{sKX}, 262144')
        pre_step()
        a(tr2(X0, LD_Q, w, vTR))
    if red and not cfg.noexch:
        S_ = [Wbuf[0] + 4*i for i in range(4)]
        def loads():
            for i in range(4): a(f'buffer_load_dwordx4 {R(S_[i],4)}, v{vL16}, {WS}, s{sRed} offen offset:{i*1024} sc1')
        def consume(nafter):
            for i in range(4):
                a(f's_waitcnt vmcnt({3-i+nafter})' + (' lgkmcnt(0)' if i == 0 else ''))
                mark(a, cfg, f'r{i}')
                a(f'v_mfma_f32_16x16x32_bf16 {R(D,4)}, {R(S_[i],4)}, {R(Sel,4)}, {"0" if i == 0 else R(D,4)}')
                if i == 2: a(f'v_max3_u32 v{ck}, v{S_[0]}, v{S_[1]}, v{S_[2]}')
                if i == 3: a(f'v_max_u32 v{ck}, v{ck}, v{S_[3]}')
            a(f"""
            v_cmp_eq_u32 vcc, -1, v{ck}
            v_permlane32_swap_b32 v{D}, v{D+2}
            v_permlane32_swap_b32 v{D+1}, v{D+3}
            v_add_f32 v{D}, v{D}, v{D+2}
            v_add_f32 v{D+1}, v{D+1}, v{D+3}
            v_cvt_pk_bf16_f32 v{ck}, v{D}, v{D+1}
            """)
        a(f'ds_read_b128 {R(Sel,4)}, v{ck} offset:{LD_SEL}')
        post2 = f's_mov_b64 exec, s[{sHm}:{sHm+1}]\nbuffer_store_byte v{hr+1}, v{vHA}, {WS}, s{sH2} offen {st}\ns_mov_b64 exec, -1'
        if w == cfg.poller:
            a(f'v_mov_b32 v{hr+1}, s{sRc}')
            hint_wait(hload, hr, cfg.d_comp)
        if w == 0 and cfg.poller == 0:
            mark(a, cfg, 'go')
            if cfg.h2first: a(post2)
            loads()
            if not cfg.h2first: a(post2)
            a('s_barrier')
            scalars()
            ok = a.lab('L_ok'); nx = a.lab('L_next')
            consume(0 if cfg.h2first else 1)
            a(f's_cbranch_vccnz {nx}\n{ok}:')
            def rest(ok=ok, nx=nx):
                a(f'{nx}:'); loads(); budget(); consume(0); a(f's_cbranch_vccz {ok}\ns_branch {nx}')
            cold.append(rest)
        else:
            if w == cfg.poller:
                a('s_barrier'); a(post2); mark(a, cfg, 'go'); scalars()
            else:
                scalars(); a('s_barrier'); mark(a, cfg, 'go')
            delay(a, [cfg.d_redA, cfg.d_red, cfg.d_redC][w])
            mark(a, cfg, 'rstart')
            rolling(1, 4, loads, consume, 0)
        a(f'buffer_store_dword v{ck}, v{vM}, {WS}, s{sRing} offen {st}')
        stamp(a, cfg, 5); mark(a, cfg, 'ring')
        if w < 2 and cfg.kpos[w] == 1: kloads()
        a(f's_add_u32 s{sRed}, s{sRed}, s{sPar}')
    else:
        if hint: a('s_barrier'); mark(a, cfg, 'go')
        if cfg.trace and w == 3:
            a(f's_memtime s[{sTmp+4}:{sTmp+5}]\ns_waitcnt lgkmcnt(0)\nv_writelane_b32 v{X1}, s{sTmp+4}, 1\ns_lshl_b32 s{sTmp+5}, s{sH}, 8\ns_lshl_b32 s{sTmp+4}, s{sStep}, 2\ns_add_u32 s{sTmp+4}, s{sTmp+4}, s{sTmp+5}\ns_add_u32 s{sTmp+4}, s{sTmp+4}, {L.STAMP+16384-4}')
            a(f's_mov_b64 exec, 2\nbuffer_store_dword v{X1}, v{vZ}, {WS}, s{sTmp+4} offen\ns_mov_b64 exec, -1')
        scalars()
        if cfg.integ and w == 3:
            sk = a.lab('L_nolv')
            a(f's_cmp_eq_u32 s{sFl}, 0\ns_cbranch_scc1 {sk}\ns_waitcnt vmcnt({NT[w] + 1})'); level(); a(f'{sk}:')
    prep()
    if cfg.acc == 1: accumulate()
    if cfg.log and w == 2:
        import workers
        a(f's_add_u32 s99, s{sStep}, s{sLv}\ns_lshl_b32 s{sFh}, s{sH}, 7\ns_add_u32 s{sFh}, s{sFh}, {L.F_HEAD}')
        workers.logtime(a, sFh, 99, vKX, vZ, 52)
        workers.logtime(a, sFh, 99, vKX, vZ, 56, 's_memtime')
    lab_join = a.lab('L_join')
    if not cfg.noexch:
        a(f's_mov_b32 s{sVer}, 0')
        if w == 3:
            a(f'v_bfe_u32 v{ha}, v{vL16}, 2, 5\nv_mov_b32 v{hr}, 0x00ff00ff\ns_mov_b32 m0, {LD_MEM}\ns_sub_u32 s{sTmp}, s{sGat}, {g0*1024}')
            if cfg.d_idle: a(f's_sleep {cfg.d_idle}')
            hint_wait(f'buffer_load_dword v{hr}, v{ha}, {WS}, s{sH2} offen sc1', hr)
            mark(a, cfg, 'go2')
            delay(a, cfg.d_go2)
            mark(a, cfg, 'gstart')
            for i in range(4): a(f'buffer_load_dwordx4 v{vL16}, {WS}, s{sTmp} offen offset:{i*1024} sc1 lds')
        l0, ln = LATE[w]
        a(f's_mov_b32 m0, {LD_MEM + 1024*l0}\ns_add_u32 s{sTmp}, s{sGat}, {(l0 - g0)*1024 & 0xffffffff}')
        a('s_waitcnt vmcnt(0) lgkmcnt(0)' if w == 3 else 's_waitcnt lgkmcnt(0)')
        mark(a, cfg, 'gok')
    else: a('s_waitcnt lgkmcnt(0)')
    ds.clear(); vm.clear()
    head(0 if cfg.noexch else LATE[w][1])
    ds.clear()
    if cfg.trace and w == 3 and False:
        a(f's_memtime s[{sTmp+4}:{sTmp+5}]\ns_waitcnt lgkmcnt(0)\nv_writelane_b32 v{vM}, s{sTmp+4}, 1\ns_lshl_b32 s{sTmp+5}, s{sH}, 8\ns_lshl_b32 s{sTmp+4}, s{sStep}, 2\ns_add_u32 s{sTmp+4}, s{sTmp+4}, s{sTmp+5}\ns_add_u32 s{sTmp+4}, s{sTmp+4}, {L.STAMP+16384-4}')
        a(f's_mov_b64 exec, 2\nbuffer_store_dword v{vM}, v{vZ}, {WS}, s{sTmp+4} offen\ns_mov_b64 exec, -1')
    if cfg.integ: a(f's_sub_u32 s{sBud}, s{sBud}, 1\ns_cbranch_scc0 {loop}\ns_branch {exit_label}')
    else: a(f's_cmp_lt_u32 s{sStep}, {cfg.nsteps}\ns_cbranch_scc1 {loop}\ns_branch {lab_join}')
    for f in cold: f()
    lab_tm = a.lab('L_truemax'); lp = a.lab('L_regather')
    a(f'{lab_fb}:\ns_cmp_lg_u32 s{sVer}, 0\ns_cbranch_scc1 {lab_tm}\ns_mov_b32 s{sVer}, 1\ns_mov_b32 s{sKM}, {OOB}')
    if cfg.stamps or cfg.trace: a(f's_add_u32 s{sSt+2}, s{sSt+2}, 64')
    if cfg.acc: a(f's_add_u32 s{sSt+1}, s{sSt+1}, 1')
    if w == 3: a(f's_sub_u32 s{sPf}, s{sPf}, 262144')
    a(f's_waitcnt lgkmcnt(0)\n{lp}:'); gloads(); budget(); a('s_waitcnt vmcnt(0)')
    regs = [r + j for r in GL for j in range(4)]
    a(f'v_max_u32 v{X1}, v{regs[0]}, v{regs[1]}')
    for i in range(2, len(regs), 2): a(f'v_max3_u32 v{X1}, v{X1}, v{regs[i]}, v{regs[i+1]}')
    a(f'v_cmp_eq_u32 vcc, -1, v{X1}\ns_cbranch_vccnz {lp}')
    for i in range(gn): a(gwrite(i))
    pre_step()
    a('s_waitcnt lgkmcnt(0)'); ds.clear(); head(); ds.clear(); a(f's_branch {loop}')
    a(f'{lab_tm}:\ns_waitcnt lgkmcnt(0)\ns_barrier')
    saved = list(ds.q); ds.clear()
    m0, m1 = E, E + 1
    if w < 3:
        a(f"""
        v_max3_f32 v{m0}, v{Sc}, v{Sc+1}, v{Sc+2}
        v_max_f32 v{m0}, v{m0}, v{Sc+3}
        v_mov_b32 v{m1}, v{m0}
        s_mov_b64 exec, s[{sMask}:{sMask+1}]
        ds_write_b64 v{vPW}, {R(m0,2)}
        s_mov_b64 exec, -1
        """)
    a('s_waitcnt lgkmcnt(0)\ns_barrier')
    if w < 3:
        a(f"""
        v_subrev_u32 v{m0}, 16, v{vPRx}
        v_lshrrev_b32 v{m0}, 1, v{m0}
        v_and_b32 v{m0}, 127, v{m0}
        ds_read_b128 {R(Px,4)}, v{vPRx} offset:{LD_PX - 16}
        ds_read_b64 {R(Pm,2)}, v{m0} offset:{LD_PM}
        s_waitcnt lgkmcnt(0)
        v_max3_f32 v{m0}, v{Px}, v{Px+2}, v{Pm}
        v_mov_b32 v{m1}, v{m0}
        v_permlane32_swap_b32 v{m0}, v{m1}
        v_max_f32 v{m0}, v{m0}, v{m1}
        v_mov_b32 v{m1}, v{m0}
        v_permlane16_swap_b32 v{m0}, v{m1}
        v_max_f32 v{Px}, v{m0}, v{m1}
        """)
        for i in range(4): a(f'v_sub_f32 v{E+i}, v{Sc+i}, v{Px}')
        for i in range(4): a(f'v_exp_f32 v{E+i}, v{E+i}')
        a(f'v_cvt_pk_bf16_f32 v{E}, v{E}, v{E+1}\nv_cvt_pk_bf16_f32 v{E+1}, v{E+2}, v{E+3}')
    a('s_barrier')
    if w < 3: a(f's_mov_b64 exec, s[{sMask}:{sMask+1}]\nds_write_b64 v{vPW}, {R(E,2)}\ns_mov_b64 exec, -1')
    a(cst(ones, LD_ONE))
    a('s_waitcnt lgkmcnt(0)\ns_barrier')
    fine_save = cfg.fine; cfg.fine = []
    pv(False)
    cfg.fine = fine_save
    ds.clear()
    a(f'v_mov_b64 {R(Ls,2)}, 0\nv_mov_b64 {R(Ls+2,2)}, 0\ns_waitcnt lgkmcnt(0)\ns_branch {lab_back}')
    if cfg.integ:
        a(f"""
        {lab_last}:
        {tr2(Ls, LD_Q, w, vTR)}
        v_lshlrev_b32 v{X1}, 16, v{vVp}
        v_lshlrev_b32 v{X1+1}, 16, v{vVp+1}
        v_and_b32 v{X1+2}, 0xffff0000, v{vVp}
        v_and_b32 v{X1+3}, 0xffff0000, v{vVp+1}
        v_cmp_u_f32 vcc, v{X1}, v{X1+1}
        v_cmp_u_f32 s[{sTmp}:{sTmp+1}], v{X1+2}, v{X1+3}
        v_lshrrev_b32 v{X1+3}, 1, v{vL16}
        s_or_b64 vcc, vcc, s[{sTmp}:{sTmp+1}]
        s_cselect_b32 s{sTmp}, s{sVer}, 1
        s_cmp_eq_u32 s{sTmp}, 0
        s_waitcnt lgkmcnt(0)
        s_cbranch_scc1 {lab_cont}
        s_waitcnt vmcnt({nvx})
        buffer_store_dwordx2 {R(vVp,2)}, v{X1+3}, {WS}, s{sKMn} offen offset:2064 sc1
        s_waitcnt lgkmcnt(0)
        s_mov_b64 exec, s[{sKmask}:{sKmask+1}]
        buffer_store_dwordx4 {R(Ls,4)}, v{vPRx}, {WS}, s{sKMn} offen sc1
        s_mov_b64 exec, -1
        s_cmp_lt_u32 s{sStep}, 63
        s_cbranch_scc1 {lab_cont2}
        s_waitcnt vmcnt(0)
        s_barrier
        """)
    else:
        a(f"""
        {lab_join}:
        s_waitcnt vmcnt(0) lgkmcnt(0)
        {tr2(X0, LD_Q, w, vTR)}
        v_lshrrev_b32 v{X1+3}, 1, v{vL16}
        s_waitcnt lgkmcnt(0)
        s_mov_b64 exec, s[{sKmask}:{sKmask+1}]
        buffer_store_dwordx4 {R(X0,4)}, v{vPRx}, {WS}, s{sKM} offen sc1
        s_mov_b64 exec, -1
        buffer_store_dwordx2 {R(vVp,2)}, v{X1+3}, {WS}, s{sKM} offen offset:2064 sc1
        s_waitcnt vmcnt(0)
        s_barrier
        """)

VARIANTS = [(0, True), (1, True), (2, True), (2, False), (3, False)]

def emit_dispatch(a, labels):
    a(f'''
    s_cmp_eq_u32 s{sW}, 0
    s_cbranch_scc1 {labels[0]}
    s_cmp_eq_u32 s{sW}, 1
    s_cbranch_scc1 {labels[1]}
    s_cmp_eq_u32 s{sW}, 3
    s_cbranch_scc1 {labels[4]}
    s_cmp_lt_u32 s{sH}, 8
    s_cbranch_scc1 {labels[2]}
    s_branch {labels[3]}
    ''')
```

```python
from asmdsl import *
import layout as L
from chain import Q, srd, fbits, SCALE_LOG2E, OOB

SCALE_B = (18 ** -0.5) * 1.4426950408889634
sWS = 8; sT = 12; sRole = 16; sW = 17; sBud = 19
sLv = 48
sLay = 49
sX = 20
sY = 24
sS = 28; sNeed = 29; sKnown = 30; sOut = 31; sSig = 32; sPoll = 33; sSrc = 34; sM0 = 35; sDel = 36; sFv = 37
sTmp = 38
sId = 50; sPar = 51; sMul = 52; sStride = 53; sA = 54; sB = 55; sC = 56; sD = 57; sTeam = 58; sSigPrev = 59
sE = 60
sFlag = 62; sN = 63; sJ = 64; sI = 65
sL1 = 70
sKd = 71; sLev = 72; sAct = 73; sTile = 74; sFoT = 75
WS = f's[{sWS}:{sWS+3}]'
vL16 = 0; vLane = 1; vF = 2; vFa = 3

def base_regs(a):
    a(f'v_mbcnt_lo_u32_b32 v{vLane}, -1, 0\nv_mbcnt_hi_u32_b32 v{vLane}, -1, v{vLane}\nv_lshlrev_b32 v{vL16}, 4, v{vLane}')

def budget(a, ex): a(f's_sub_u32 s{sBud}, s{sBud}, 1\ns_cbranch_scc1 {ex}')

def poll(a, ex, mask, vaddr, soff, need, x2=False, sleep=2, vtmp=vF, allload=False):
    lp = a.lab('L_poll'); dn = a.lab('L_polled')
    if isinstance(mask, int): a(f's_mov_b32 exec_lo, {hex(mask & 0xffffffff)}\ns_mov_b32 exec_hi, {hex(mask >> 32)}')
    else: a(f's_mov_b64 exec, {mask}')
    a(f'{lp}:')
    if x2:
        if allload: a('s_mov_b32 exec_hi, -1')
        a(f'buffer_load_dwordx2 {R(vtmp,2)}, v{vaddr}, {WS}, s{soff} offen sc1\ns_waitcnt vmcnt(0)\nv_min_u32 v{vtmp}, v{vtmp}, v{vtmp+1}')
        if allload: a(f's_mov_b32 exec_hi, {hex(mask >> 32)}')
    else:
        a(f'buffer_load_dword v{vtmp}, v{vaddr}, {WS}, s{soff} offen sc1\ns_waitcnt vmcnt(0)')
    a(f'v_cmp_gt_u32 vcc, s{need}, v{vtmp}\ns_cbranch_vccz {dn}\ns_sleep {sleep}')
    budget(a, ex)
    a(f's_branch {lp}\n{dn}:\ns_mov_b64 exec, -1')

def signal(a, soff, sval, vtmp=vF, mask=1, vaddr=vL16):
    a(f'v_mov_b32 v{vtmp}, s{sval}\ns_mov_b64 exec, {mask}\nbuffer_store_dword v{vtmp}, v{vaddr}, {WS}, s{soff} offen sc1\ns_mov_b64 exec, -1')
    if DEBUG: logtime(a, soff, sval, vtmp, vL16)

DEBUG = False
PROF = False
def prof(a, i):
    if PROF: a(f's_memtime s[94:95]\ns_waitcnt lgkmcnt(0)\ns_sub_u32 s95, s94, s79\ns_mov_b32 s79, s94\ns_add_u32 s{80+i}, s{80+i}, s95')
def prof_dump(a, slot):
    if not PROF: return
    for i in range(12): a(f'v_writelane_b32 v2, s{80+i}, {i}\ns_mov_b32 s{80+i}, 0')
    a(f'''
    s_lshl_b32 s94, s{sRole}, 2
    s_add_u32 s94, s94, s{sW}
    s_lshl_b32 s94, s94, 2
    s_lshr_b32 s95, s{sLv}, 5
    s_add_u32 s94, s94, s95
    s_add_u32 s94, s94, {slot}
    s_lshl_b32 s94, s94, 6
    s_add_u32 s94, s94, {L.STAMP + 8*1024*1024}
    v_lshlrev_b32 v3, 2, v{vLane}
    s_mov_b64 exec, 0xfff
    buffer_store_dword v2, v3, {WS}, s94 offen
    s_mov_b64 exec, -1
    s_waitcnt vmcnt(0)
    ''')
def logtime(a, soff, sval, vtmp, vzero, extra=0, clk='s_memrealtime'):
    a(f'''
    {clk} s[96:97]
    s_sub_u32 s98, s{soff}, {L.FLAGS - extra}
    s_cmp_lt_u32 s98, 16384
    s_cselect_b32 s98, s98, 16384
    s_lshl_b32 s98, s98, 6
    s_add_u32 s98, s98, s{sval}
    s_lshl_b32 s98, s98, 2
    s_add_u32 s98, s98, {L.STAMP}
    s_waitcnt lgkmcnt(0)
    v_mov_b32 v{vtmp}, s96
    s_mov_b64 exec, 1
    buffer_store_dword v{vtmp}, v{vzero}, {WS}, s98 offen
    s_mov_b64 exec, -1
    ''')

def load_ptr_srd(a, s, karg, size):
    a(f's_load_dwordx2 s[{sTmp+6}:{sTmp+7}], s[0:1], {karg}\ns_waitcnt lgkmcnt(0)')
    srd(a, s, sTmp + 6, size)

def ws_srd(a, s, off_sgpr, off_const, size):
    a(f's_add_u32 s{sTmp+6}, s{off_sgpr}, {off_const}\ns_add_u32 s{s}, s{sWS}, s{sTmp+6}\ns_addc_u32 s{s+1}, s{sWS+1}, 0\ns_mov_b32 s{s+2}, {size}\ns_mov_b32 s{s+3}, 0x20000')

WA = lambda ks: 256 + 4 * ks
WF = lambda ks: 400 + 4 * ks if ks < 28 else 224 + 4 * (ks - 28)
CS = 208
LD_PV = 0
LD_X = 1024
M32 = 'v_mfma_f32_32x32x16_bf16'

def one_wave(a, fn):
    sk = a.lab('L_ow')
    a(f's_cmp_lg_u32 s{sW}, 0\ns_cbranch_scc1 {sk}'); fn(); a(f'{sk}:\ns_barrier')

def gemm_load_weights(a, fo, rowstride, pair=False):
    t = 4
    lp = a.lab('L_wl')
    a(f"""
    v_lshrrev_b32 v{t}, 2, v{vLane}
    v_mul_u32_u24 v{t}, {rowstride}, v{t}
    v_and_b32 v{t+1}, 3, v{vLane}
    v_lshl_add_u32 v{t}, v{t+1}, 4, v{t}
    {f'v_lshrrev_b32 v{t+2}, 1, v{t+1}' if pair else ''}
    {f'v_lshl_add_u32 v{t}, v{t+2}, 2, v{t}' if pair else ''}
    s_mul_i32 s{sM0}, s{sW}, 36864
    s_mov_b32 s{sB}, s{sM0}
    s_mov_b32 s{sC}, 36
    {lp}:
    s_mov_b32 m0, s{sM0}
    s_add_u32 s{sM0}, s{sM0}, 1024
    buffer_load_dwordx4 v{t}, s[{sT}:{sT+3}], s{sA} offen lds
    s_add_u32 s{sA}, s{sA}, {16*rowstride}
    s_sub_u32 s{sC}, s{sC}, 1
    s_cmp_lg_u32 s{sC}, 0
    s_cbranch_scc1 {lp}
    v_bfe_u32 v{t+3}, v{vLane}, 4, 1
    v_lshlrev_b32 v{t+3}, 5, v{t+3}
    v_lshl_add_u32 v{t+3}, v{t+1}, 3, v{t+3}
    v_add_u32 v{t+3}, s{sB}, v{t+3}
    v_lshrrev_b32 v{t+2}, 5, v{vLane}           ; kh
    v_bfe_u32 v{t+4}, v{vLane}, 2, 2            ; r'
    v_lshl_add_u32 v{t+5}, v{t+2}, {2 if fo else 3}, v{t+4}
    v_lshl_add_u32 v{t+5}, v{t+5}, 6, v{t+3}
    """)
    if fo:
        a(f"""
        v_lshrrev_b32 v{t+6}, 1, v{t+4}
        v_lshl_add_u32 v{t+6}, v{t+2}, 2, v{t+6}
        v_mul_u32_u24 v{t+6}, 18, v{t+6}
        v_and_b32 v{t+4}, 1, v{t+4}
        v_add3_u32 v{t+6}, v{t+6}, v{t+4}, 16
        v_lshl_add_u32 v{t+6}, v{t+6}, 6, v{t+3}
        """)
    a('s_waitcnt vmcnt(0)')
    for ks in range(36):
        for hf in range(2):
            if not fo: dst, va, off = WA(ks), t + 5, (16*ks + 4*hf) * 64
            elif ks < 32: dst, va, off = WF(ks), t + 5, (18*ks + 8*hf) * 64
            else: dst, va, off = WF(ks), t + 6, 18 * (8*(ks-32) + 2*hf) * 64
            a(f'ds_read_b64_tr_b16 {R(dst+2*hf,2)}, v{va} offset:{off}')
        if ks % 4 == 3: a('s_waitcnt lgkmcnt(0)')
    a('s_barrier')

def bv_load_weights(a):
    t = 4
    a(f"""
    v_lshrrev_b32 v{t}, 3, v{vLane}
    v_mul_u32_u24 v{t}, 3456, v{t}
    v_and_b32 v{t+1}, 7, v{vLane}
    v_lshlrev_b32 v{t+2}, 4, v{t+1}
    v_add_u32 v{t+2}, 2304, v{t+2}
    v_mov_b32 v{t+3}, {1152 + 32}
    v_cmp_eq_u32 vcc, 3, v{t+1}
    v_cndmask_b32 v{t+2}, v{t+2}, 32, vcc
    v_cmp_lt_u32 vcc, 3, v{t+1}
    v_cndmask_b32 v{t+2}, v{t+2}, v{t+3}, vcc
    v_add_u32 v{t}, v{t}, v{t+2}
    v_bfe_u32 v{t+2}, v{vLane}, 4, 1
    v_and_b32 v{t+3}, 3, v{vLane}
    v_lshl_add_u32 v{t+2}, v{t+2}, 2, v{t+3}
    v_cmp_eq_u32 vcc, 7, v{t+2}
    v_cndmask_b32 v{t+2}, v{t+2}, 8, vcc
    v_lshrrev_b32 v{t+3}, 5, v{vLane}
    v_bfe_u32 v{t+4}, v{vLane}, 2, 2
    v_lshl_add_u32 v{t+3}, v{t+3}, 3, v{t+4}
    v_lshlrev_b32 v{t+3}, 7, v{t+3}
    v_lshl_add_u32 v{t+2}, v{t+2}, 3, v{t+3}
    s_mul_i32 s{sB}, s{sW}, 36864
    v_add_u32 v{t+2}, s{sB}, v{t+2}
    s_mul_i32 s{sA}, s{sId}, 36
    """)
    for ps in range(2):
        lp = a.lab('L_bvl')
        a(f"""
        s_mov_b32 s{sM0}, s{sB}
        s_mov_b32 s{sC}, 36
        {lp}:
        s_mov_b32 m0, s{sM0}
        s_add_u32 s{sM0}, s{sM0}, 1024
        buffer_load_dwordx4 v{t}, s[{sT}:{sT+3}], s{sA} offen lds
        s_add_u32 s{sA}, s{sA}, {8*3456}
        s_sub_u32 s{sC}, s{sC}, 1
        s_cmp_lg_u32 s{sC}, 0
        s_cbranch_scc1 {lp}
        s_waitcnt vmcnt(0)
        """)
        for ks in range(18):
            for hf in range(2): a(f'ds_read_b64_tr_b16 {R(WA(18*ps+ks)+2*hf,2)}, v{t+2} offset:{(16*ks + 4*hf) * 128}')
            if ks % 3 == 2: a('s_waitcnt lgkmcnt(0)')
    a('s_barrier')

def stat_addr(a, dst, tmp):
    a(f'v_bfe_u32 v{tmp}, v{vLane}, 4, 1\nv_lshrrev_b32 v{dst}, 5, v{vLane}\nv_lshl_add_u32 v{dst}, v{tmp}, 1, v{dst}\nv_and_b32 v{tmp}, 15, v{vLane}\nv_lshlrev_b32 v{tmp}, 2, v{tmp}\nv_lshl_add_u32 v{dst}, v{dst}, 6, v{tmp}')

def add_residual(a, PK, RES, n, T):
    for i in range(n):
        a(f"""
        v_lshlrev_b32 v{T}, 16, v{RES+i}
        v_and_b32 v{T+1}, 0xffff0000, v{RES+i}
        v_lshlrev_b32 v{T+2}, 16, v{PK+i}
        v_and_b32 v{T+3}, 0xffff0000, v{PK+i}
        v_add_f32 v{T}, v{T}, v{T+2}
        v_add_f32 v{T+1}, v{T+1}, v{T+3}
        v_cvt_pk_bf16_f32 v{PK+i}, v{T}, v{T+1}
        """)

def row_stats(a, PK, n, T):
    a(f's_mov_b32 s{sTmp}, 0x3f803f80')
    for i in range(n):
        a(f'v_dot2_f32_bf16 v{T}, v{PK+i}, s{sTmp}, {"0" if i == 0 else f"v{T}"}\nv_dot2_f32_bf16 v{T+1}, v{PK+i}, v{PK+i}, {"0" if i == 0 else f"v{T+1}"}')
    a(f'v_permlane32_swap_b32 v{T}, v{T+1}\nv_add_f32 v{T}, v{T}, v{T+1}')

vR = 4; vSt = 5; vSa = 6; vPo = 7; vTl = 8; vOut = 9; vGo = 10
FB = [12 + 4 * i for i in range(4)]
ACC = 28; TMP = 44; PKR = 84; RES = 92; SP = 100

def mfma_loop(a, kind, wreg, gap, c0='0'):
    ds = Q(a, 'lgkmcnt', 15)
    def rd(ks):
        if kind == 'FO' and ks >= 32:
            for hf in range(2): ds.issue(ks, f'ds_read2_b32 {R(FB[ks%4]+2*hf,2)}, v{vTl} offset0:{64*hf} offset1:{64*hf+32}')
            if ks < 35: a(f'v_add_u32 v{vTl}, 1024, v{vTl}')
        else: ds.issue(ks, f'ds_read_b128 {R(FB[ks%4],4)}, v{vR} offset:{ks*1024}')
    for ks in range(3): rd(ks)
    ds.wait(0)
    for ks in range(36):
        W_, F_ = R(wreg(ks), 4), R(FB[ks % 4], 4)
        x, y = (W_, F_) if kind in ('T', 'BT', 'FO') else (F_, W_)
        a(f'{M32} {R(ACC,16)}, {x}, {y}, {c0 if ks == 0 else R(ACC,16)}')
        if ks + 1 < 36: ds.wait(ks + 1)
        if ks + 3 < 36: rd(ks + 3)
        gap(ks, ds)

def ln_phase(a, kind, ex):
    lead = kind in ('T', 'N')
    nd = 11 if lead else 12
    npart = 18 if lead else 36
    mean, rs = TMP + 32, TMP + 33
    for i in range(4): a(f'v_mov_b32 v{FB[0]+i}, 0x3f803f80')
    for ks in range(36):
        W_, O_ = R(WA(ks), 4), R(FB[0], 4)
        x, y = (W_, O_) if kind in ('T', 'BT') else (O_, W_)
        a(f'{M32} {R(CS,16)}, {x}, {y}, {"0" if ks == 0 else R(CS,16)}')
    stat_addr(a, vSt, TMP)
    a(f"""
    v_add_u32 v{vSt}, {LD_X + 36864}, v{vSt}
    v_add_u32 v{vR}, {LD_X}, v{vL16}
    v_lshlrev_b32 v{vFa}, 2, v{vLane}
    s_lshl_b32 s{sTmp}, s{sW}, 8
    v_add_u32 v{vSa}, s{sTmp}, v{vFa}
    v_lshrrev_b32 v{TMP}, 5, v{vLane}
    v_lshl_add_u32 v{vPo}, v{TMP}, 4, s{sTmp}
    s_mul_i32 s{sTmp}, s{sW}, 3072
    v_add_u32 v{vTl}, s{sTmp}, v{vL16}
    s_add_u32 s{sM0}, s{sTmp}, {LD_X}
    s_mov_b32 s{sX+2}, {36864 + 256*npart}
    s_mov_b32 s{sX+3}, 0x20000
    s_mov_b32 s{sDel}, 49152
    s_mov_b32 s{sSigPrev}, {OOB}
    s_mov_b32 s{sS}, {0 if lead else f's{sPar}'}
    s_mov_b32 s{sKnown}, 0
    s_mov_b32 s{sFv}, 0
    s_mul_i32 s{sTile}, s{sW}, {(nd - 12) * 1024 & 0xffffffff}
    s_add_u32 s{sTile}, s{sTile}, 36864
    """)
    nst = nd - 9
    def dma(i):
        st_, j = (3, i) if i < nst else divmod(i - nst, 3)
        o = []
        if j == 0:
            if st_ == 3: o = [f's_add_u32 m0, s{sM0}, s{sTile}']
            else: o = [f's_add_u32 m0, s{sM0}, {12288*st_}'] + ([f's_movk_i32 s{sA}, {12288*st_}'] if st_ else [])
        so = f's{sTile}' if st_ == 3 else (f's{sA}' if st_ else '0')
        return o + [f'buffer_load_dwordx4 v{vTl}, s[{sX}:{sX+3}], {so} offen offset:{1024*j} sc1 lds']
    def seg_srd(seg): a(f's_mul_i32 s{sD}, s{seg}, {L.XSEG}\ns_add_u32 s{sD}, s{sD}, s{sSrc}\ns_add_u32 s{sX}, s{sWS}, s{sD}\ns_addc_u32 s{sX+1}, s{sWS+1}, 0')
    LD_GO = LD_X + 2 * 49152
    nsig = 2 if DEBUG else 1
    def sig():
        signal(a, sSigPrev, sFv, mask=15 if lead else 0x101 if kind == 'BT' else 1, vaddr=vFa if lead else vL16)
        a(f's_mov_b32 s{sSigPrev}, {OOB}')
    def look(seg):
        if lead: a(f's_lshl_b32 s{sPoll}, s{seg}, 5\ns_add_u32 s{sPoll}, s{sPoll}, s{sFlag}\nbuffer_load_dword v{vOut}, v{vFa}, {WS}, s{sPoll} offen sc1')
        else: a(f'buffer_load_dword v{vOut}, v{vFa}, {WS}, s{sFlag} offen sc1')
    def judge(seg):
        if lead:
            a(f"""
            v_cmp_gt_u32 vcc, s{sL1}, v{vOut}
            s_and_b64 vcc, vcc, s[{sE}:{sE+1}]
            s_ff1_i32_b64 s{sTmp}, vcc
            s_lshr_b32 s{sTmp}, s{sTmp}, 3
            s_min_u32 s{sTmp}, s{sTmp}, 8
            s_add_u32 s{sTmp}, s{sTmp}, s{seg}
            s_max_u32 s{sKnown}, s{sKnown}, s{sTmp}
            s_min_u32 s{sKnown}, s{sKnown}, 64
            """)
        else:
            a(f's_add_u32 s{sTmp}, s{seg}, s{sLv}\nv_cmp_ge_u32 vcc, s{sTmp}, v{vOut}\ns_add_u32 s{sTmp}, s{seg}, 1\ns_and_b64 vcc, vcc, s[{sE}:{sE+1}]\ns_cselect_b32 s{sKnown}, 0, s{sTmp}')
    def share(): a(f'v_mov_b32 v{vF}, s{sKnown}\nds_write_b32 v{vGo}, v{vF}\ns_waitcnt lgkmcnt(0)')
    loop = a.lab('L_seg'); slow = a.lab('L_slow'); fetch = a.lab('L_fetch'); plain = a.lab('L_plain'); epi = a.lab('L_epi')
    a(f"""
    v_mov_b32 v{vGo}, {LD_GO}
    s_mov_b32 s{sE}, {0x1f1f1f1f if lead else 0xffffff}
    s_mov_b32 s{sE+1}, {0x1f1f1f1f if lead else 0}
    s_lshl_b32 s{sFlag}, s{sPar}, 7
    s_add_u32 s{sFlag}, s{sFlag}, {L.F_X if lead else L.F_WO}
    s_cmp_eq_u32 s{sW}, 0
    s_cselect_b32 s{sFlag}, s{sFlag}, {OOB}
    s_cselect_b32 s{sSig}, s{sSig}, {OOB}
    """)
    vXw, vXr = 108, 109; PO = 112
    one_wave(a, lambda: wait_marks(a, ex, None if lead else 1))
    if kind == 'BN':
        a(f"""
        s_lshl_b32 s{sTmp}, s{sW}, 9
        s_add_u32 s{sTmp}, s{sTmp}, {LD_GO + 64}
        v_bfe_u32 v{TMP}, v{vLane}, 2, 1
        v_and_b32 v{TMP+1}, 1, v{vLane}
        v_lshl_add_u32 v{TMP}, v{TMP}, 1, v{TMP+1}
        v_lshrrev_b32 v{TMP+1}, 5, v{vLane}
        v_lshl_add_u32 v{vXw}, v{TMP+1}, 4, s{sTmp}
        v_lshl_add_u32 v{vXw}, v{TMP}, 7, v{vXw}
        v_lshl_add_u32 v{vXr}, v{TMP+1}, 7, v{vFa}
        v_add_u32 v{vXr}, s{sTmp}, v{vXr}
        """)
    seg_srd(sS)
    a(f'{slow}:'); prof(a, 0)
    look(sS)
    a('s_waitcnt vmcnt(0)\ns_barrier'); sig()
    def block():
        lp = a.lab('L_bl'); dn = a.lab('L_bld')
        a(f'{lp}:'); judge(sS)
        a(f's_cmp_lt_u32 s{sS}, s{sKnown}\ns_cbranch_scc1 {dn}\ns_sleep 1'); look(sS); budget(a, ex)
        a(f's_waitcnt vmcnt(0)\ns_branch {lp}\n{dn}:'); share()
    one_wave(a, block)
    a(f'ds_read_b32 v{vF}, v{vGo}\ns_mov_b32 s{sAct}, 2')
    prof(a, 1)
    a(f'{fetch}:')
    for i in range(nd): a('\n'.join(dma(i)))
    a(f's_waitcnt vmcnt(6) lgkmcnt(0)\nv_readfirstlane_b32 s{sKnown}, v{vF}\ns_cmp_eq_u32 s{sAct}, 2\ns_cbranch_scc1 {loop}\ns_barrier'); sig()
    a(f'{loop}:\ns_barrier\ns_add_u32 s{sN}, s{sS}, {1 if lead else 2}')
    prof(a, 2)
    nr = npart // 2
    nout = 16
    def body(pre):
        fin = f"""v_add_f32 v{mean}, v{mean}, v{rs}
            v_mul_f32 v{mean}, {hex(fbits(1.0/576))}, v{mean}
            v_mov_b32 v{rs}, v{mean}
            -
            v_permlane32_swap_b32 v{mean}, v{rs}
            v_fma_f32 v{rs}, -v{mean}, v{mean}, v{rs}
            v_max_f32 v{rs}, 0, v{rs}
            -
            v_add_f32 v{rs}, {hex(fbits(1e-5))}, v{rs}
            v_rsq_f32 v{rs}, v{rs}
            -""".split('\n')
        per = 3 if lead else 2 if kind == 'BT' else 4
        if kind in ('T', 'BT'):
            fin += [f'v_mul_f32 v{rs}, s{sC}, v{rs}', f'v_mul_f32 v{mean}, v{mean}, v{rs}']
            for r in range(nout): fin += (['-'] if r % per == 0 else []) + [f'v_mul_f32 v{TMP+16+r}, v{mean}, v{CS+r}']
        else:
            fin += [f'v_mul_f32 v{mean}, v{mean}, v{rs}', f'v_cmp_gt_u32 vcc, 32, v{vLane}', '-', f'v_cndmask_b32 v{mean}, v{mean}, v{rs}, vcc', f'*ds_write_b32 v{vSa}, v{mean} offset:{LD_PV}']
            for g in (4, 5, 6, 7, 0, 1, 2, 3): fin += (['-'] if g % 2 == 0 or lead else []) + [f'*ds_read_b128 {R(TMP+4*g,4)}, v{vPo} offset:{LD_PV + 32*g}']
            for r in range(16): fin += (['-', '!'] if r == 0 else ['-'] if r % per == 0 else []) + [f'v_mul_f32 v{TMP+16+r}, v{CS}, v{TMP+16+r}']
        fin = [x.strip() for x in fin]
        nv = 0
        def gap(ks, ds):
            nonlocal nv
            if ks < nr: ds.issue(('s', ks), f'ds_read2st64_b32 {R(SP+2*(ks%4),2)}, v{vSt} offset0:{2*ks} offset1:{2*ks+1}')
            if ks == 0: seg_srd(sN)
            if ks == 1: a(f's_add_u32 s{sM0}, s{sM0}, s{sDel}')
            if pre and ks >= 9 and ks % 2 == 1 and (ks - 9) // 2 < nd: a('\n'.join(dma((ks - 9) // 2))); nv += 1
            k = ks - 3
            if 0 <= k < nr:
                ds.wait(('s', k))
                if k == 0: a(f'v_mov_b64 {R(mean,2)}, {R(SP,2)}')
                else: a(f'v_add_f32 v{mean}, v{mean}, v{SP+2*(k%4)}\nv_add_f32 v{rs}, v{rs}, v{SP+2*(k%4)+1}')
            if k >= nr:
                while fin:
                    x = fin.pop(0)
                    if x == '-': break
                    if x == '!': ds.wait('pv')
                    elif x[0] == '*': ds.issue('pv', x[1:])
                    else: a(x)
            if ks in (8, 20): a(f's_waitcnt vmcnt({(3 if ks == 8 else 0) + nv})\ns_barrier')
            if lead and ks == 22: look(sN); nv = 0
            if lead and ks == 24: sig(); nv += nsig
        mfma_loop(a, kind, WA, gap)
        assert not fin, fin
        return nv
    if lead:
        a(f's_cmp_lt_u32 s{sN}, s{sKnown}\ns_cselect_b32 s{sAct}, 1, 0\ns_cbranch_scc0 {plain}')
        nvp = body(True)
        a(f's_branch {epi}\n{plain}:')
    body(False)
    a(f'{epi}:')
    prof(a, 5)
    a(f's_mul_i32 s{sD}, s{sS}, s{sMul}\ns_add_u32 s{sD}, s{sD}, s{sOut}\ns_add_u32 s{sA}, s{sD}, s{sB}')
    a(f's_add_u32 s{sFv}, s{sS}, s{sLv}\ns_add_u32 s{sFv}, s{sFv}, 1')
    if kind == 'BN': a(f's_mul_i32 s{sTmp+1}, s{sS}, 1152\ns_add_u32 s{sTmp+1}, s{sTmp+1}, s{sStride}')
    a(f's_mov_b32 s{sS}, s{sN}')
    a(f'v_add_u32 v{vR}, s{sDel}, v{vR}\nv_add_u32 v{vSt}, s{sDel}, v{vSt}\ns_sub_u32 s{sDel}, 0, s{sDel}\ns_mov_b32 s{sSigPrev}, s{sSig}')
    for G in range(2):
        rr = range(8 * G, 8 * G + 8)
        for r in rr: a(f'v_fma_f32 v{ACC+r}, v{ACC+r}, v{rs if kind in ("T", "BT") else TMP+r}, -v{TMP+16+r}')
        if kind == 'BN':
            a('s_mov_b32 exec_lo, 0x33000000\ns_mov_b32 exec_hi, 0x33000000')
            for g in (2 * G, 2 * G + 1): a(f'ds_write_b128 v{vXw}, {R(ACC+4*g,4)} offset:{32*g}')
            a('s_mov_b64 exec, -1')
            if G: a(f'ds_read2_b32 {R(TMP,2)}, v{vXr} offset0:0 offset1:32')
        for r in rr[::2]: a(f'v_cvt_pk_bf16_f32 v{PKR+r//2}, v{ACC+r}, v{ACC+r+1}')
        if kind == 'BN':
            a(f's_mov_b32 exec_lo, {1 << 18}\ns_mov_b32 exec_hi, {1 << 18}')
            for i in range(4): a(f'v_mov_b32 v{PKR+4*G+i}, 0x3f803f80')
            a('s_mov_b64 exec, -1')
        a(f'buffer_store_dwordx4 {R(PKR+4*G,4)}, v{vL16}, {WS}, s{sA if G else sD} offen sc1')
    if kind == 'BN':
        a(f"""
        s_mov_b32 exec_lo, 0
        s_waitcnt lgkmcnt(0)
        v_mul_f32 v{TMP}, s{sC}, v{TMP}
        v_mul_f32 v{TMP+1}, s{sC}, v{TMP+1}
        v_cvt_pk_bf16_f32 v{TMP+2}, v{TMP}, v{TMP+1}
        buffer_store_dword v{TMP+2}, v{vFa}, {WS}, s{sD} offen offset:{2048 - 128} sc1
        s_not_b64 exec, exec
        v_cvt_pk_bf16_f32 v{TMP+3}, v{TMP}, v{TMP+1}
        buffer_store_dword v{TMP+3}, v{vFa}, {WS}, s{sTmp+1} offen offset:1024 sc1
        s_mov_b64 exec, -1
        """)
    prof(a, 6)
    if lead:
        np_ = a.lab('L_np'); jd = a.lab('L_jd')
        a(f's_cmp_eq_u32 s{sAct}, 0\ns_cbranch_scc1 {np_}\ns_add_u32 s{sTmp}, s{sS}, 1\ns_cmp_lt_u32 s{sTmp}, s{sKnown}\ns_waitcnt vmcnt({nvp + 2})\ns_cbranch_scc1 {loop}\ns_branch {jd}')
        a(f'{np_}:\ns_waitcnt vmcnt({nsig + 2})\n{jd}:')
        one_wave(a, lambda: (judge(sS), share()))
        a(f'ds_read_b32 v{vF}, v{vGo}\ns_waitcnt lgkmcnt(0)\nv_readfirstlane_b32 s{sKnown}, v{vF}')
        a(f's_cmp_lg_u32 s{sAct}, 0\ns_cbranch_scc1 {loop}\ns_cmp_lt_u32 s{sS}, s{sKnown}\ns_cbranch_scc1 {fetch}')
    a(f's_cmp_lt_u32 s{sS}, 64\ns_cbranch_scc1 {slow}')
    a('s_waitcnt vmcnt(0)\ns_barrier'); sig()
    a('s_waitcnt vmcnt(0)\ns_barrier')

def natural_order(a, PK):
    for G in range(2):
        for i in range(2): a(f'v_permlane32_swap_b32 v{PK+4*G+i}, v{PK+4*G+2+i}')

def fo_phase(a, ex):
    stat_addr(a, vSt, TMP)
    a(f"""
    v_add_u32 v{vR}, {LD_X}, v{vL16}
    v_and_b32 v{TMP}, 31, v{vLane}
    v_lshrrev_b32 v{TMP+1}, 5, v{vLane}
    v_lshlrev_b32 v{vSa}, 2, v{TMP}
    v_lshl_add_u32 v{vSa}, v{TMP+1}, 9, v{vSa}
    v_add_u32 v{vSa}, {LD_X + 32768}, v{vSa}
    v_mul_u32_u24 v{vOut}, 1152, v{TMP}
    v_lshl_add_u32 v{vOut}, v{TMP+1}, 4, v{vOut}
    v_and_b32 v{TMP}, 15, v{vLane}
    v_lshrrev_b32 v{TMP+1}, 4, v{vLane}
    v_lshlrev_b32 v{vFa}, 3, v{TMP}
    v_lshl_add_u32 v{vFa}, v{TMP+1}, 11, v{vFa}
    s_lshl_b32 s{sPoll}, s{sTeam}, 7
    s_add_u32 s{sPoll}, s{sPoll}, {L.F_OB}
    s_lshl_b32 s{sTmp}, s{sW}, 10
    s_add_u32 s{sM0}, s{sTmp}, {LD_X}
    s_mul_i32 s{sSrc}, s{sTeam}, 36864
    s_add_u32 s{sOut}, s{sSrc}, 0
    s_add_u32 s{sSrc}, s{sSrc}, s{sTmp}
    s_add_u32 s{sSrc}, s{sSrc}, s{sLay}
    s_add_u32 s{sSrc}, s{sSrc}, {L.OB}
    s_lshl_b32 s{sTmp}, s{sFoT}, 6
    s_add_u32 s{sOut}, s{sOut}, s{sTmp}
    s_mul_i32 s{sB}, s{sTeam}, {L.XSEG}
    s_lshl_b32 s{sTmp}, s{sFoT}, 8
    s_add_u32 s{sC}, s{sB}, s{sTmp}
    s_lshl_b32 s{sTmp}, s{sFoT}, 11
    s_add_u32 s{sB}, s{sB}, s{sTmp}
    s_cmp_ge_u32 s{sFoT}, 18
    s_cselect_b32 s{sOut}, {OOB}, s{sOut}
    s_cselect_b32 s{sB}, {OOB}, s{sB}
    s_cselect_b32 s{sC}, {OOB}, s{sC}
    s_lshl_b32 s{sSig}, s{sTeam}, 3
    s_lshr_b32 s{sTmp}, s{sFoT}, 2
    s_add_u32 s{sSig}, s{sSig}, s{sTmp}
    s_lshl_b32 s{sSig}, s{sSig}, 2
    s_add_u32 s{sSig}, s{sSig}, {L.F_X}
    s_add_u32 s{sTmp}, s{sW}, {0 if DEBUG else f's{sLv}'}
    s_cmp_eq_u32 s{sTmp}, 0
    s_cselect_b32 s{sSig}, s{sSig}, {OOB}
    s_add_u32 s{sFv}, s{sL1}, 1
    """)
    vm = Q(a, 'vmcnt', 63)
    def dma(r, i):
        a(f's_add_u32 m0, s{sM0}, {36864*r + 4096*i}\ns_add_u32 s{sA}, s{sSrc}, {16*36864*r + 4096*i}')
        vm.issue(('d', r, i // 3), f'buffer_load_dwordx4 v{vL16}, {WS}, s{sA} offen sc1 lds')
    def res(r):
        a(f's_add_u32 s{sA}, s{sB}, s{sLay}\ns_add_u32 s{sA}, s{sA}, {L.X1 + 16*L.XSEG*r}')
        for G in range(2): vm.issue(('r', r), f'buffer_load_dwordx4 {R(RES+4*G,4)}, v{vL16}, {WS}, s{sA} offen offset:{1024*G} sc1')
    def sig(r):
        vm.wait('o'); a('s_barrier')
        a(f's_add_u32 s{sTmp+1}, s{sSig}, {16*32*r}'); signal(a, sTmp + 1, sFv)
        vm.q += ['s'] * (2 if DEBUG else 1)
    LD_GO = LD_X + 4 * 36864
    a(f'v_mov_b32 v{vGo}, {LD_GO}')
    def first():
        poll(a, ex, (1 << 48) - 1, vFa, sPoll, sL1, x2=True, sleep=1, vtmp=TMP, allload=True)
        a(f'v_cmp_gt_u32 vcc, s{sL1}, v{TMP}\nv_mov_b32 v{vF}, vcc_hi\nds_write_b32 v{vGo}, v{vF}\ns_waitcnt lgkmcnt(0)')
    CI = 108
    def unpack():
        o = [f'v_permlane32_swap_b32 v{RES+4*G+i}, v{RES+4*G+2+i}' for G in range(2) for i in range(2)]
        for i in range(8): o += [f'v_lshlrev_b32 v{CI+2*i}, 16, v{RES+i}', f'v_and_b32 v{CI+2*i+1}, 0xffff0000, v{RES+i}']
        return o
    def rnd(r, pre):
        prof(a, 0)
        fresh = r == 0 or (r == 3 and not pre)
        if fresh:
            if r == 3: sig(2)
            one_wave(a, first if r == 0 else lambda: poll(a, ex, 0xffff << 48, vFa, sPoll, sL1, x2=True, sleep=1, vtmp=TMP))
            prof(a, 1)
            if r == 0: res(0)
            for i in range(9): dma(r, i)
            if r == 0:
                a(f'ds_read_b32 v{vF}, v{vGo}\ns_waitcnt lgkmcnt(0)\nv_readfirstlane_b32 s{sAct}, v{vF}')
                vm.wait(('r', 0)); a('\n'.join(unpack()))
            vm.wait(('d', r, 0))
        else:
            vm.wait(('d', r, 2))
        a(f's_barrier\nv_mov_b32 v{vTl}, v{vSa}')
        prof(a, 2)
        up = unpack() if r < 3 else []
        def gap(ks, ds):
            if ks == 1 and r < 3: res(r + 1)
            if fresh and ks in (8, 20): vm.wait(('d', r, 1 if ks == 8 else 2)); a('s_barrier')
            if (r in (0, 1) or (r == 2 and pre)) and ks >= 6 and ks % 3 == 0 and ks < 33: dma(r + 1, ks // 3 - 2)
            if ks == 22 and not fresh: sig(r - 1)
            if ks >= 25:
                vm.wait(('r', r + 1))
                for _ in range(2):
                    if up: a(up.pop(0))
        mfma_loop(a, 'FO', WF, gap, R(CI, 16))
        assert not up
        prof(a, 5)
        a(f'v_add_u32 v{vR}, 36864, v{vR}\nv_add_u32 v{vSa}, 36864, v{vSa}')
        a(f's_add_u32 s{sA}, s{sB}, {L.LSTRIDE + L.X0 + 16*L.XSEG*r}\ns_add_u32 s{sD}, s{sOut}, {16*36864*r}')
        for i in range(8): a(f'v_cvt_pk_bf16_f32 v{PKR+i}, v{ACC+2*i}, v{ACC+2*i+1}')
        natural_order(a, PKR)
        last = a.lab('L_folast'); dn = a.lab('L_fodn')
        a(f's_cmp_lg_u32 s{sLv}, 0\ns_cbranch_scc1 {last}')
        for G in range(2): a(f'buffer_store_dwordx4 {R(PKR+4*G,4)}, v{vL16}, {WS}, s{sA} offen offset:{1024*G} sc1')
        row_stats(a, PKR, 8, TMP)
        a(f's_add_u32 s{sA}, s{sC}, {L.LSTRIDE + L.X0 + 16*L.XSEG*r + 36864}\ns_branch {dn}')
        a(f'{last}:')
        for G in range(2): a(f'buffer_store_dwordx4 {R(PKR+4*G,4)}, v{vOut}, s[{sY}:{sY+3}], s{sD} offen offset:{32*G}')
        a(f's_mov_b32 s{sA}, {OOB}\n{dn}:\nbuffer_store_dword v{TMP}, v{vSt}, {WS}, s{sA} offen sc1')
        vm.q += ['o', 'o', 'o']
        prof(a, 7)
    rnd(0, False); rnd(1, False)
    late = a.lab('L_folate'); fin = a.lab('L_fofin')
    a(f's_cmp_lg_u32 s{sAct}, 0\ns_cbranch_scc1 {late}')
    q0 = list(vm.q)
    rnd(2, True); rnd(3, True)
    a(f's_branch {fin}\n{late}:')
    vm.q = q0
    rnd(2, False); rnd(3, False)
    a(f'{fin}:')
    sig(3)
    a('s_waitcnt vmcnt(0)\ns_barrier')

def pre_phase(a):
    stat_addr(a, vSt, TMP)
    a(f"""
    v_and_b32 v{TMP}, 31, v{vLane}
    v_lshrrev_b32 v{TMP+1}, 5, v{vLane}
    v_mul_u32_u24 v{vOut}, 1152, v{TMP}
    v_lshl_add_u32 v{vOut}, v{TMP+1}, 4, v{vOut}
    s_lshr_b32 s{sTmp}, s{sW}, 1
    s_lshl_b32 s{sTmp}, s{sTmp}, 5
    s_add_u32 s{sS}, s{sId}, s{sTmp}
    s_and_b32 s{sTmp}, s{sW}, 1
    s_mul_i32 s{sTile}, s{sTmp}, 9
    s_mul_i32 s{sA}, s{sS}, 36864
    s_lshl_b32 s{sTmp}, s{sTile}, 6
    s_add_u32 s{sA}, s{sA}, s{sTmp}
    s_mul_i32 s{sB}, s{sS}, {L.XSEG}
    s_add_u32 s{sB}, s{sB}, {L.X0}
    s_lshl_b32 s{sTmp}, s{sTile}, 8
    s_add_u32 s{sC}, s{sB}, s{sTmp}
    s_add_u32 s{sC}, s{sC}, 36864
    s_lshl_b32 s{sTmp}, s{sTile}, 11
    s_add_u32 s{sB}, s{sB}, s{sTmp}
    """)
    D = 48
    for i in range(18): a(f'buffer_load_dwordx4 {R(D+4*i,4)}, v{vOut}, s[{sX}:{sX+3}], s{sA} offen offset:{32*i}')
    a('s_waitcnt vmcnt(0)')
    for tl in range(9):
        for G in range(2): a(f'buffer_store_dwordx4 {R(D+8*tl+4*G,4)}, v{vL16}, {WS}, s{sB} offen offset:{1024*G} sc1')
        row_stats(a, D + 8 * tl, 8, 12 + 2 * tl)
        a(f'buffer_store_dword v{12+2*tl}, v{vSt}, {WS}, s{sC} offen offset:{256*tl} sc1\ns_add_u32 s{sB}, s{sB}, 2048')
    a(f"""
    s_waitcnt vmcnt(0)
    s_barrier
    s_lshl_b32 s{sA}, s{sS}, 5
    s_add_u32 s{sA}, s{sA}, {L.F_X}
    s_cmp_eq_u32 s{sTile}, 0
    s_cselect_b32 s{sA}, s{sA}, {OOB}
    v_mov_b32 v{vF}, 1
    v_lshlrev_b32 v{vFa}, 2, v{vLane}
    s_mov_b64 exec, 31
    buffer_store_dword v{vF}, v{vFa}, {WS}, s{sA} offen sc1
    s_mov_b64 exec, -1
    """)

NPOIS = 48; NPOIS2 = 32; POI_WAIT = True
SENT = 4
def poison_phase(a, part):
    load_ptr_srd(a, sT, 88, 256)
    a(f"""
    v_mov_b64 v[4:5], -1
    v_mov_b64 v[6:7], -1
    s_lshl_b32 s{sA}, s{sTile}, 2
    s_add_u32 s{sA}, s{sA}, s{sW}
    s_lshl_b32 s{sA}, s{sA}, 12
    """)
    def region(base, n):
        lp = a.lab('L_poi')
        a(f's_add_u32 s{sB}, s{sA}, {base}\n{lp}:')
        for i in range(4): a(f'buffer_store_dwordx4 v[4:7], v{vL16}, {WS}, s{sB} offen offset:{1024*i} sc1')
        a(f's_add_u32 s{sB}, s{sB}, {(NPOIS, NPOIS2, NPOIS2)[part]*4*4096}\ns_cmp_lt_u32 s{sB}, {base + n}\ns_cbranch_scc1 {lp}')
    if part == 0: region(L.KM, 2048 * 4096)
    elif part == 1: region(L.QB, 2048 * 1152); region(L.KVB, 2048 * L.KVT)
    else:
        for base, n in ((L.KM, 2048 * 4096), (L.QB, 2048 * 1152), (L.KVB, 2048 * L.KVT)): region(L.LSTRIDE + base, n)
    a(f"""
    s_waitcnt vmcnt(0)
    s_barrier
    v_mov_b32 v8, 1
    s_cmp_eq_u32 s{sW}, 0
    s_cselect_b32 s{sB}, 0, {OOB}
    s_add_u32 s{sC}, s{sB}, {L.F_POI + 128 * part}
    s_mov_b64 exec, 1
    {f'buffer_atomic_add v8, v{vL16}, s[{sT}:{sT+3}], s{sB} offen offset:{L.D_POI}' if part == 0 else ''}
    buffer_atomic_add v8, v{vL16}, {WS}, s{sC} offen
    s_mov_b64 exec, -1
    """)

def wait_marks(a, ex, part):
    a(f's_mov_b32 s{sTmp}, {L.F_POI + 128 * (part or 0)}\ns_cmp_eq_u32 s{sLv}, 0\ns_cselect_b32 s{sTmp}, s{sTmp}, {L.F_POI + 256}\ns_cselect_b32 s{sNeed}, {0 if part is None else (NPOIS, NPOIS2)[part]}, {NPOIS2}')
    poll(a, ex, 1, vL16, sTmp, sNeed, sleep=32)

def att_phase(a, ex):
    vKa = 4; vVa = 5; m0 = 6; m1 = 7; vWr = 202
    MK = 8; KMr = 120; VMr = 152; Sx = 160; Sm = 176; Px = 192; Pm = 200; PO = 204
    Qr = 256; Kr = 288; Vr = 320
    O = [24, 40, 56, 72]; PKo = 88; LDm = 24
    a(f"""
    v_lshlrev_b32 v{vFa}, 2, v{vLane}
    s_lshl_b32 s{sTmp}, s{sW}, 12
    v_add_u32 v{vWr}, s{sTmp}, v{vL16}
    v_lshrrev_b32 v{m0}, 5, v{vLane}
    v_and_b32 v{m1}, 7, v{vLane}
    v_lshlrev_b32 v{m1}, 4, v{m1}
    v_lshl_add_u32 v{vKa}, v{m0}, 7, v{m1}
    v_add_u32 v{vKa}, s{sTmp}, v{vKa}
    v_and_b32 v{m1}, 1, v{vLane}
    v_lshl_add_u32 v{m1}, v{m1}, 1, v{m0}
    v_lshlrev_b32 v{m1}, 4, v{m1}
    v_bfe_u32 v{vVa}, v{vLane}, 1, 4
    v_add_lshl_u32 v{vVa}, v{vVa}, v{m1}, 3
    v_add_u32 v{vVa}, s{sTmp}, v{vVa}
    v_and_b32 v{m1}, 31, v{vLane}
    v_lshlrev_b32 v{m0}, 2, v{m0}
    v_sub_u32 v{m1}, v{m1}, v{m0}
    v_mov_b32 v{m0}, 0xff800000
    v_mov_b64 {R(PO,2)}, -1
    v_mov_b64 {R(PO+2,2)}, -1
    """)
    for r in range(16):
        a(f'v_cmp_le_i32 vcc, {8*(r>>2) + (r&3)}, v{m1}\nv_cndmask_b32 v{MK+r}, v{m0}, 0, vcc')
    a(f"""
    s_mov_b32 s{sS}, s{sPar}
    s_lshl_b32 s{sPoll}, s{sId}, 7
    s_add_u32 s{sPoll}, s{sPoll}, {L.F_HEAD}
    s_lshl_b32 s{sSig}, s{sPar}, 5
    s_add_u32 s{sSig}, s{sSig}, s{sId}
    s_lshl_b32 s{sSig}, s{sSig}, 2
    s_add_u32 s{sSig}, s{sSig}, {L.F_ATT}
    s_mov_b32 s{sC}, {fbits(SCALE_LOG2E)}
    s_mov_b32 s{sKnown}, 0
    s_mov_b32 s{sSigPrev}, {OOB}
    s_mov_b32 s{sFv}, 0
    """)
    one_wave(a, lambda: wait_marks(a, ex, 0))
    loop = a.lab('L_att')
    a(f'{loop}:\ns_add_u32 s{sNeed}, s{sS}, s{sLv}\ns_add_u32 s{sNeed}, s{sNeed}, 1')
    prof(a, 0)
    hv = a.lab('L_ahv')
    a(f's_cmp_le_u32 s{sNeed}, s{sKnown}\ns_cbranch_scc1 {hv}\ns_waitcnt vmcnt(0)')
    signal(a, sSigPrev, sFv)
    poll(a, ex, 0xfff, vFa, sPoll, sNeed)
    a(f's_mov_b32 s{sSigPrev}, {OOB}\ns_mov_b64 exec, 0xfff')
    for d in (2, 4, 8, 16, 32):
        a(f's_add_u32 s{sTmp}, s{sNeed}, {d}\nv_cmp_gt_u32 vcc, s{sTmp}, v{vF}\ns_cmp_eq_u64 vcc, 0\ns_cselect_b32 s{sKnown}, s{sTmp}, s{sKnown}')
    a(f's_add_u32 s{sTmp}, s{sLv}, 64\nv_cmp_gt_u32 vcc, s{sTmp}, v{vF}\ns_cmp_eq_u64 vcc, 0\ns_cselect_b32 s{sKnown}, s{sTmp}, s{sKnown}\ns_mov_b64 exec, -1\n{hv}:')
    prof(a, 1)
    a(f"""
    s_lshl_b32 s{sTmp}, s{sS}, 5
    s_add_u32 s{sTmp}, s{sTmp}, s{sId}
    s_lshl_b32 s{sA}, s{sTmp}, 13
    s_add_u32 s{sA}, s{sA}, s{sLay}
    s_lshl_b32 s{sB}, s{sTmp}, 12
    s_add_u32 s{sB}, s{sB}, s{sLay}
    s_add_u32 s{sB}, s{sB}, {L.KM}
    """)
    for base, reg in ((L.QX, Qr), (L.KX, Kr), (L.VX, Vr)):
        for hf in range(2):
            a(f's_add_u32 s{sTmp}, s{sA}, {base + 4096*hf}')
            for i in range(4): a(f'buffer_load_dwordx4 {R(reg+16*hf+4*i,4)}, v{vL16}, {WS}, s{sTmp} offen offset:{1024*i} sc1')
        if reg == Qr:
            a('s_waitcnt vmcnt(8)'); signal(a, sSigPrev, sFv)
    a('s_waitcnt vmcnt(8)')
    for f in range(8): a(f'{M32} {R(Sx,16)}, {R(Kr+4*f,4)}, {R(Qr+4*f,4)}, {R(MK,16) if f == 0 else R(Sx,16)}')
    a(f'v_max3_f32 v{m0}, v{Sx}, v{Sx+1}, v{Sx+2}')
    for r in range(3, 15, 2): a(f'v_max3_f32 v{m0}, v{m0}, v{Sx+r}, v{Sx+r+1}')
    a(f'v_max_f32 v{m0}, v{m0}, v{Sx+15}')
    prof(a, 2)
    lp = a.lab('L_km'); dn = a.lab('L_kmd'); sp = a.lab('L_kms')
    if SENT:
        a(f's_cmp_ge_u32 s{sS}, 63\ns_cbranch_scc1 {lp}\ns_mov_b64 exec, 1\n{sp}:\ns_sleep {SENT}\nbuffer_load_dword v{m1}, v{vL16}, {WS}, s{sB} offen offset:4092 sc1')
        budget(a, ex)
        a(f's_waitcnt vmcnt(0)\nv_cmp_eq_u32 vcc, -1, v{m1}\ns_cbranch_vccnz {sp}\ns_mov_b64 exec, -1')
    a(f'{lp}:')
    for i in range(4): a(f'buffer_load_dwordx4 {R(LDm+4*i,4)}, v{vL16}, {WS}, s{sB} offen offset:{1024*i} sc1')
    budget(a, ex)
    a(f's_waitcnt vmcnt(0)\nv_max3_u32 v{m1}, v{LDm}, v{LDm+1}, v{LDm+2}')
    for i in range(3, 15, 2): a(f'v_max3_u32 v{m1}, v{m1}, v{LDm+i}, v{LDm+i+1}')
    a(f'v_max_u32 v{m1}, v{m1}, v{LDm+15}\nv_cmp_eq_u32 vcc, -1, v{m1}\ns_cbranch_vccz {dn}\ns_sleep 2\ns_branch {lp}\n{dn}:')
    prof(a, 3)
    for i in range(4): a(f'ds_write_b128 v{vWr}, {R(LDm+4*i,4)} offset:{1024*i}')
    for f in range(8): a(f'ds_read_b128 {R(KMr+4*f,4)}, v{vKa} offset:{256*f}')
    for f in range(8):
        a(f's_waitcnt lgkmcnt({7 - f + min(f, 4)})\n{M32} {R(Sm,16)}, {R(KMr+4*f,4)}, {R(Qr+4*f,4)}, {"0" if f == 0 else R(Sm,16)}')
        if f < 4: a(f'ds_read_b64 {R(VMr+2*f,2)}, v{vVa} offset:{2048 + 512*f}')
    prof(a, 4)
    for i in range(4): a(f'v_mul_f32 v{Sm+i}, s{sC}, v{Sm+i}')
    a(f"""
    v_max3_f32 v{m0}, v{m0}, v{Sm}, v{Sm+1}
    v_max3_f32 v{m0}, v{m0}, v{Sm+2}, v{Sm+3}
    v_mov_b32 v{m1}, v{m0}
    v_permlane32_swap_b32 v{m0}, v{m1}
    v_max_f32 v{m0}, v{m0}, v{m1}
    """)
    for r in range(20): a(f'v_sub_f32 v{Sx+r}, v{Sx+r}, v{m0}')
    for r in range(20): a(f'v_exp_f32 v{Sx+r}, v{Sx+r}')
    a(f'v_add_f32 v{m0}, v{Sx}, v{Sx+1}\nv_add_f32 v{m1}, v{Sx+2}, v{Sx+3}')
    for r in range(4, 20, 2): a(f'v_add_f32 v{m0}, v{m0}, v{Sx+r}\nv_add_f32 v{m1}, v{m1}, v{Sx+r+1}')
    a(f"""
    v_add_f32 v{m0}, v{m0}, v{m1}
    v_mov_b32 v{m1}, v{m0}
    v_permlane32_swap_b32 v{m0}, v{m1}
    v_add_f32 v{m0}, v{m0}, v{m1}
    v_rcp_f32 v{m0}, v{m0}
    """)
    for r in range(20): a(f'v_mul_f32 v{Sx+r}, v{m0}, v{Sx+r}')
    for r in range(0, 20, 2): a(f'v_cvt_pk_bf16_f32 v{Px+r//2}, v{Sx+r}, v{Sx+r+1}')
    a(f's_waitcnt lgkmcnt(0)\ns_add_u32 s{sA}, s{sA}, {L.OA}\ns_add_u32 s{sD}, s{sA}, 4096')
    def out(e):
        for G in range(2):
            for r in range(8*G, 8*G + 8, 2): a(f'v_cvt_pk_bf16_f32 v{PKo+8*e+r//2}, v{O[e]+r}, v{O[e]+r+1}')
            a(f'buffer_store_dwordx4 {R(PKo+8*e+4*G,4)}, v{vL16}, {WS}, s{sA if e < 2 else sD} offen offset:{2048*(e&1) + 1024*G} sc1')
    m8 = lambda e: a(f'v_mfma_f32_32x32x8_bf16 {R(O[e],16)}, {R(VMr+2*e,2)}, {R(Pm,2)}, 0')
    m8(0); m8(1)
    for e in range(4):
        for G in range(2): a(f'{M32} {R(O[e],16)}, {R(Vr+8*e+4*G,4)}, {R(Px+4*G,4)}, {R(O[e],16)}')
        if e + 2 < 4: m8(e + 2)
        if e >= 1: out(e - 1)
    out(3)
    prof(a, 5)
    a(f's_mov_b32 s{sFv}, s{sNeed}\ns_mov_b32 s{sSigPrev}, s{sSig}\ns_add_u32 s{sS}, s{sS}, 2\ns_cmp_lt_u32 s{sS}, 64\ns_cbranch_scc1 {loop}\ns_waitcnt vmcnt(0)')
    signal(a, sSig, sFv)
    a('s_waitcnt vmcnt(0)\ns_barrier')

def wo_reg(f, ct):
    i = ct * 32 + f
    return 256 + 4 * i if i < 64 else 128 + 4 * (i - 64)

def wo_load_weights(a):
    t = 4
    a(f"""
    v_lshrrev_b32 v{t}, 3, v{vLane}
    v_mul_u32_u24 v{t}, 1152, v{t}
    v_and_b32 v{t+1}, 7, v{vLane}
    v_min_u32 v{t+1}, 5, v{t+1}
    v_lshl_add_u32 v{t}, v{t+1}, 4, v{t}
    v_lshrrev_b32 v{t+2}, 5, v{vLane}
    v_bfe_u32 v{t+3}, v{vLane}, 4, 1
    v_lshl_add_u32 v{t+2}, v{t+2}, 2, v{t+3}
    v_bfe_u32 v{t+3}, v{vLane}, 2, 2
    v_lshl_add_u32 v{t+2}, v{t+2}, 2, v{t+3}
    v_and_b32 v{t+3}, 3, v{vLane}
    v_lshlrev_b32 v{t+3}, 3, v{t+3}
    v_lshl_add_u32 v{t+2}, v{t+2}, 7, v{t+3}
    s_lshl_b32 s{sB}, s{sW}, 15
    v_add_u32 v{t+2}, s{sB}, v{t+2}
    s_mul_i32 s{sA}, s{sW}, {1024*1152}
    s_mul_i32 s{sC}, s{sId}, 96
    s_add_u32 s{sA}, s{sA}, s{sC}
    """)
    for ps in range(4):
        lp = a.lab('L_wol')
        a(f"""
        s_mov_b32 s{sM0}, s{sB}
        s_mov_b32 s{sC}, 32
        {lp}:
        s_mov_b32 m0, s{sM0}
        s_add_u32 s{sM0}, s{sM0}, 1024
        buffer_load_dwordx4 v{t}, s[{sT}:{sT+3}], s{sA} offen lds
        s_add_u32 s{sA}, s{sA}, {8*1152}
        s_sub_u32 s{sC}, s{sC}, 1
        s_cmp_lg_u32 s{sC}, 0
        s_cbranch_scc1 {lp}
        s_waitcnt vmcnt(0)
        """)
        for f in range(8):
            for ct in range(3):
                for hf in range(2): a(f'ds_read_b64_tr_b16 {R(wo_reg(8*ps+f,ct)+2*hf,2)}, v{t+2} offset:{f*4096 + 1024*hf + 32*ct}')
            if f % 2 == 1: a('s_waitcnt lgkmcnt(0)')
    a('s_barrier')

WO_NB = 14
def wo_phase(a, ex):
    ACC = 4; LB = [16 + 4 * i for i in range(WO_NB)]; RES = 116; vOa = 120; vXa = 121; vSt_ = 122; vRa = 123; vWr = 124; vRd = 125
    NB = len(LB)
    a(f"""
    v_lshlrev_b32 v{vFa}, 2, v{vLane}
    v_and_b32 v{vSt_}, 15, v{vLane}
    v_lshrrev_b32 v{vWr}, 4, v{vLane}
    v_lshrrev_b32 v{vRd}, 5, v{vLane}
    s_lshl_b32 s{sTmp}, s{sTeam}, 4
    v_add_lshl_u32 v{vXa}, v{vSt_}, s{sTmp}, 4
    v_lshl_add_u32 v{vOa}, v{vWr}, 9, v{vXa}
    v_lshl_add_u32 v{vXa}, v{vRd}, 9, v{vXa}
    v_and_b32 v{vRa}, 1, v{vWr}
    v_lshl_add_u32 v{vRa}, v{vRa}, 3, v{vXa}
    v_lshlrev_b32 v{vSt_}, 2, v{vSt_}
    v_lshl_add_u32 v{vSt_}, v{vRd}, 6, v{vSt_}
    s_mul_i32 s{sTmp}, s{sW}, 3072
    v_add_u32 v{vWr}, s{sTmp}, v{vL16}
    s_lshl_b32 s{sTmp}, s{sW}, 10
    v_add_u32 v{vRd}, s{sTmp}, v{vL16}
    s_mul_i32 s{sTmp}, s{sId}, 3
    s_add_u32 s{sTmp}, s{sTmp}, s{sW}
    s_lshl_b32 s{sOut}, s{sTmp}, 10
    s_add_u32 s{sOut}, s{sOut}, s{sLay}
    s_lshl_b32 s{sC}, s{sTmp}, 8
    s_lshl_b32 s{sTmp}, s{sTeam}, 7
    s_add_u32 s{sC}, s{sC}, s{sTmp}
    s_add_u32 s{sC}, s{sC}, s{sLay}
    s_add_u32 s{sC}, s{sC}, {L.X1 + 36864}
    s_cmp_eq_u32 s{sW}, 3
    s_cselect_b32 s{sOut}, {OOB}, s{sOut}
    s_cselect_b32 s{sC}, {OOB}, s{sC}
    s_mov_b32 s{sS}, s{sPar}
    s_lshl_b32 s{sPoll}, s{sPar}, 7
    s_add_u32 s{sPoll}, s{sPoll}, {L.F_ATT}
    s_mul_i32 s{sSig}, s{sTeam}, 12
    s_add_u32 s{sSig}, s{sSig}, s{sId}
    s_lshl_b32 s{sTmp}, s{sPar}, 5
    s_add_u32 s{sSig}, s{sSig}, s{sTmp}
    s_lshl_b32 s{sSig}, s{sSig}, 2
    s_add_u32 s{sSig}, s{sSig}, {L.F_WO}
    s_cmp_eq_u32 s{sW}, 0
    s_cselect_b32 s{sSig}, s{sSig}, {OOB}
    s_mov_b32 s{sE}, 0xffff
    s_mov_b32 s{sE+1}, 0xffff
    """)
    loop = a.lab('L_wo')
    a(f"""
    {loop}:
    s_add_u32 s{sNeed}, s{sS}, s{sLv}
    s_add_u32 s{sNeed}, s{sNeed}, 1
    s_lshl_b32 s{sA}, s{sS}, 18
    s_lshl_b32 s{sTmp}, s{sW}, 16
    s_add_u32 s{sA}, s{sA}, s{sTmp}
    s_add_u32 s{sA}, s{sA}, s{sLay}
    s_add_u32 s{sA}, s{sA}, {L.OA}
    s_mul_i32 s{sD}, s{sS}, {L.XSEG}
    s_add_u32 s{sB}, s{sD}, s{sC}
    s_add_u32 s{sD}, s{sD}, s{sOut}
    s_add_u32 s{sSrc}, s{sD}, {L.X0}
    s_add_u32 s{sD}, s{sD}, {L.X1}
    """)
    prof(a, 0)
    one_wave(a, lambda: poll(a, ex, 0xffffffff, vFa, sPoll, sNeed, sleep=1))
    prof(a, 1)
    vm = Q(a, 'vmcnt', 63)
    def ld(f):
        vm.issue(f, f'buffer_load_dwordx4 {R(LB[f%NB],4)}, v{vOa}, {WS}, s{sA} offen offset:{2048*(f&1)} sc1')
        if f & 1: a(f's_add_u32 s{sA}, s{sA}, 4096')
    for f in range(NB): ld(f)
    for f in range(32):
        vm.wait(f)
        if f == 0: prof(a, 2)
        for ct in range(3):
            a(f'v_mfma_f32_16x16x32_bf16 {R(ACC+4*ct,4)}, {R(wo_reg(f,ct),4)}, {R(LB[f%NB],4)}, {"0" if f == 0 else R(ACC+4*ct,4)}')
        if f + NB < 32: ld(f + NB)
        if f == 4: vm.issue('r', f'buffer_load_dwordx2 {R(RES,2)}, v{vRa}, {WS}, s{sSrc} offen sc1')
        if f == 24:
            vm.wait('r')
            a(f'v_and_b32 v{RES+3}, 0xffff0000, v{RES+1}\nv_lshlrev_b32 v{RES+2}, 16, v{RES+1}\nv_and_b32 v{RES+1}, 0xffff0000, v{RES}\nv_lshlrev_b32 v{RES}, 16, v{RES}')
    prof(a, 3)
    for ct in range(3): a(f'ds_write_b128 v{vWr}, {R(ACC+4*ct,4)} offset:{1024*ct}')
    a('s_waitcnt lgkmcnt(0)\ns_barrier')
    for ww in range(4): a(f'ds_read_b128 {R(16+4*ww,4)}, v{vRd} offset:{3072*ww}')
    for ww in range(4):
        a(f's_waitcnt lgkmcnt({3-ww})')
        for i in range(4): a(f'v_add_f32 v{RES+i}, v{RES+i}, v{16+4*ww+i}')
    a(f'v_cvt_pk_bf16_f32 v32, v{RES}, v{RES+1}\nv_cvt_pk_bf16_f32 v33, v{RES+2}, v{RES+3}\nv_permlane16_swap_b32 v32, v34\nv_permlane16_swap_b32 v33, v35')
    a(f's_mov_b64 exec, s[{sE}:{sE+1}]\nbuffer_store_dwordx4 {R(32,4)}, v{vXa}, {WS}, s{sD} offen sc1\ns_mov_b64 exec, -1')
    row_stats(a, 32, 4, 36)
    a(f's_mov_b64 exec, s[{sE}:{sE+1}]\nbuffer_store_dword v36, v{vSt_}, {WS}, s{sB} offen sc1\ns_mov_b64 exec, -1')
    prof(a, 4)
    a('s_waitcnt vmcnt(0)\ns_barrier')
    prof(a, 5)
    signal(a, sSig, sNeed)
    a(f's_add_u32 s{sS}, s{sS}, 2\ns_cmp_lt_u32 s{sS}, 64\ns_cbranch_scc1 {loop}\ns_waitcnt vmcnt(0)\ns_barrier')

BA_SLEEP = 3; BA_FINE = 57; BA_DEFER = 62
def ba_phase(a, ex):
    O = [12 + 16 * u for u in range(4)]; Qs = [76 + 8 * u for u in range(4)]
    S = [108, 124]; P = 140; OC = 148; QC = 164; ST = [172, 186]; CI = 200; T = 216
    vH = 4; vK0 = 5; vK1 = 6; vV0 = 7; vWr = 8; vRd = 9; vSg = 10
    K1 = lambda b: ST[b]; K0 = lambda b: ST[b] + 2; V = lambda b, G: ST[b] + 6 + 4 * G
    KV = f's[{sX}:{sX+3}]'
    a(f"""
    v_lshlrev_b32 v{vFa}, 2, v{vLane}
    v_mov_b32 v{T}, {OOB}
    v_cmp_gt_u32 vcc, 32, v{vLane}
    v_cndmask_b32 v{vH}, v{T}, v{vFa}, vcc
    s_mul_i32 s{sTmp}, s{sW}, 3072
    v_add_u32 v{vWr}, s{sTmp}, v{vL16}
    v_mov_b32 v{vRd}, v{vL16}
    v_lshlrev_b32 v{vSg}, 11, v{vLane}
    s_lshr_b32 s{sPoll}, s{sJ}, 2
    s_lshl_b32 s{sPoll}, s{sPoll}, 7
    s_add_u32 s{sPoll}, s{sPoll}, {L.F_BQ}
    s_mul_i32 s{sTmp}, s{sJ}, {64*L.KVT}
    s_add_u32 s{sTmp}, s{sTmp}, s{sLay}
    """)
    ws_srd(a, sX, sTmp, L.KVB, 0)
    a(f"""
    s_mul_i32 s{sSrc}, s{sJ}, {64*1152}
    s_add_u32 s{sSrc}, s{sSrc}, s{sLay}
    s_add_u32 s{sSrc}, s{sSrc}, {L.QB}
    s_sub_u32 s{sStride}, 3, s{sI}
    s_lshl_b32 s{sTmp}, s{sW}, 2
    s_add_u32 s{sTmp}, s{sTmp}, s{sI}
    s_cmp_eq_u32 s{sW}, 0
    s_cselect_b32 s{sTmp}, s{sStride}, s{sTmp}
    s_mov_b32 s{sC}, s{sTmp}
    s_lshl_b32 s{sSig}, s{sTmp}, 5
    s_add_u32 s{sSig}, s{sSig}, s{sJ}
    s_lshl_b32 s{sSig}, s{sSig}, 2
    s_add_u32 s{sSig}, s{sSig}, {L.F_OB}
    s_mul_i32 s{sOut}, s{sTmp}, 36864
    s_add_u32 s{sOut}, s{sOut}, s{sLay}
    s_add_u32 s{sOut}, s{sOut}, {L.OB}
    s_lshl_b32 s{sTmp}, s{sJ}, 7
    s_add_u32 s{sB}, s{sOut}, s{sTmp}
    s_add_u32 s{sB}, s{sB}, 32768
    s_lshl_b32 s{sTmp}, s{sJ}, 10
    s_add_u32 s{sOut}, s{sOut}, s{sTmp}
    s_mov_b32 s{sKd}, 0
    s_mov_b32 s{sKnown}, 0
    s_mov_b32 s{sAct}, 0
    s_mov_b32 s{sS}, s{sI}
    s_mov_b32 s{sDel}, 12288
    """)
    for r in [q + i for q in Qs + [QC] for i in (5, 6, 7)] + [ST[0] + 1, ST[1] + 1] + list(range(CI, CI + 16)): a(f'v_mov_b32 v{r}, 0')
    def set_stride(n):
        a(f's_mov_b32 s{sMul}, {n*L.KVT}\nv_add_u32 v{vK0}, {2*n*L.KVT}, v{vL16}\nv_add_u32 v{vK1}, {2*n*L.KVT}, v{vH}\nv_add_u32 v{vV0}, {n*L.KVT}, v{vL16}')
    set_stride(4)
    def ldk(b, so, k0=vL16, k1=vH): return f'buffer_load_dwordx4 {R(K0(b),4)}, v{k0}, {KV}, s{so} offen sc1\nbuffer_load_dword v{K1(b)}, v{k1}, {KV}, s{so} offen offset:3072 sc1'
    def ldv(b, G, so, va=vL16): return f'buffer_load_dwordx4 {R(V(b,G),4)}, v{va}, {KV}, s{so} offen offset:{1024*(G+1)} sc1'
    def qk0(sb, b, q, c='0'): return f'{M32} {R(S[sb],16)}, {R(K0(b),4)}, {R(q,4)}, {c}'
    def qk1(sb, b, q): return f'{M32} {R(S[sb],16)}, {R(K1(b),4)}, {R(q+4,4)}, {R(S[sb],16)}'
    def pv(o, b, G): return f'{M32} {R(o,16)}, {R(V(b,G),4)}, {R(P+4*G,4)}, {R(o,16)}'
    def body(sb, ms):
        s_ = S[sb]
        for g in range(4):
            if ms[g]: a(ms[g])
            for i in range(4): a(f'v_exp_f32 v{s_+4*g+i}, v{s_+4*g+i}')
            a(f'v_cvt_pk_bf16_f32 v{P+2*g}, v{s_+4*g}, v{s_+4*g+1}\nv_cvt_pk_bf16_f32 v{P+2*g+1}, v{s_+4*g+2}, v{s_+4*g+3}')
    def sweep(hook=None, check=None):
        lp = a.lab('L_sw')
        a(ldk(0, sA)); a(ldv(0, 0, sA)); a(ldv(0, 1, sA))
        a(f's_add_u32 s{sA}, s{sA}, s{sMul}')
        a(ldk(1, sA)); a(ldv(1, 0, sA))
        for i in range(0, 16, 2): a(f'v_mov_b64 {R(OC+i,2)}, 0')
        a(f's_add_u32 s{sTmp}, s{sA}, s{sMul}\ns_waitcnt vmcnt(5)')
        if hook: hook()
        if check: check()
        for i in range(0, 4, 2): a(f'v_mov_b64 {R(P+4+i,2)}, 0\nv_mov_b64 {R(V(1,1)+i,2)}, 0')
        a(qk0(0, 0, QC, R(CI, 16))); a(qk1(0, 0, QC))
        a(ldk(0, sTmp))
        a('s_waitcnt vmcnt(2)')
        a(f'{lp}:')
        for b in range(2):
            body(b, [qk0(1-b, 1-b, QC, R(CI, 16)), qk1(1-b, 1-b, QC) + '\n' + ldk(1-b, sA, vK0, vK1),
                     pv(OC, 1-b, 1) + '\n' + ldv(1-b, 1, sA), pv(OC, b, 0) + '\n' + ldv(b, 0, sA, vV0)])
            a(f's_add_u32 s{sA}, s{sA}, s{sMul}\ns_waitcnt vmcnt(4)')
        a(f's_sub_u32 s{sN}, s{sN}, 1\ns_cmp_lg_u32 s{sN}, 0\ns_cbranch_scc1 {lp}')
        a(pv(OC, 1, 1))
    def finalize(u):
        fb = a.lab('L_fb'); ok = a.lab('L_fok')
        lo, hi = fbits(2.0 ** -60), fbits(2.0 ** 60)
        o = O[u]
        def getl(): a(f'v_mov_b32 v{T}, v{o+10}\nv_mov_b32 v{T+1}, v{o+10}\nv_permlane32_swap_b32 v{T}, v{T+1}')
        getl()
        a(f'v_subrev_u32 v{T+1}, {hex(lo)}, v{T}\nv_cmp_lt_u32 vcc, {hex(hi - lo)}, v{T+1}\ns_cbranch_vccnz {fb}\n{ok}:\nv_rcp_f32 v{T}, v{T}')
        for r in range(10): a(f'v_mul_f32 v{o+r}, v{T}, v{o+r}')
        for r in range(0, 10, 2): a(f'v_cvt_pk_bf16_f32 v{o+r//2}, v{o+r}, v{o+r+1}')
        a(f"""
        s_add_u32 s{sTmp}, s{sOut}, {16*36864*u}
        s_add_u32 s{sTmp+1}, s{sB}, {16*36864*u}
        buffer_store_dwordx4 {R(o,4)}, v{vL16}, {WS}, s{sTmp} offen sc1
        buffer_store_dword v{o+4}, v{vH}, {WS}, s{sTmp+1} offen sc1
        """)
        def cold():
            ret = a.lab('L_fbr')
            a(f'{fb}:')
            for i in range(0, 6, 2): a(f'v_mov_b64 {R(QC+i,2)}, {R(Qs[u]+i,2)}')
            a(f's_mov_b32 s{sFlag}, {len(rets)}\ns_branch {redo}\n{ret}:')
            for i in range(0, 12, 2): a(f'v_mov_b64 {R(o+i,2)}, {R(OC+i,2)}')
            getl(); a(f's_branch {ok}')
            rets.append(ret)
        colds.append(cold)
    colds = []; rets = []; redo = a.lab('L_redo')
    def publish(mask, wait=True):
        if wait: a('s_waitcnt vmcnt(0)')
        a(f'v_mov_b32 v{vF}, s{sL1}\ns_mov_b64 exec, {mask}\nbuffer_store_dword v{vF}, v{vSg}, {WS}, s{sSig} offen sc1\ns_mov_b64 exec, -1')
        if DEBUG: logtime(a, sSig, sL1, vF, vL16, 2048 * (3 if mask == 8 else 0))
    level = a.lab('L_lev'); nokeys = a.lab('L_nokeys'); nocatch = a.lab('L_nocatch'); end = a.lab('L_baend')
    LD_KN = 24576
    def w0():
        wait_marks(a, ex, 1)
        a(f'buffer_load_dword v{vF}, v{vFa}, {WS}, s{sPoll} offen sc1\ns_waitcnt vmcnt(0)')
        a(f'ds_write_b32 v{vFa}, v{vF} offset:{LD_KN}\ns_waitcnt lgkmcnt(0)')
    one_wave(a, w0)
    a(f'ds_read_b32 v{vF}, v{vFa} offset:{LD_KN}\ns_waitcnt lgkmcnt(0)\nv_readlane_b32 s{sKnown}, v{vF}, 0')
    for i in (1, 2, 4, 5, 6): a(f'v_readlane_b32 s{sTmp}, v{vF}, {i}\ns_min_u32 s{sKnown}, s{sKnown}, s{sTmp}')
    a(f's_cmp_gt_u32 s{sKnown}, s{sLv}\ns_cselect_b32 s{sKnown}, s{sKnown}, s{sLv}\ns_addc_u32 s{sKnown}, s{sKnown}, 0\ns_sub_u32 s{sKnown}, s{sKnown}, s{sLv}')
    a(f's_min_u32 s{sLev}, s{sKnown}, 60\ns_and_b32 s{sLev}, s{sLev}, -4\ns_mov_b32 s{sTile}, s{sC}')
    jd = a.lab('L_jd')
    for u in range(4):
        a(f"""
        s_cmp_ge_u32 s{sTile}, s{sLev}
        s_cbranch_scc1 {jd}
        s_mul_i32 s{sTmp}, s{sTile}, 1152
        s_add_u32 s{sTmp}, s{sTmp}, s{sSrc}
        buffer_load_dwordx4 {R(Qs[u],4)}, v{vL16}, {WS}, s{sTmp} offen sc1
        buffer_load_dword v{Qs[u]+4}, v{vH}, {WS}, s{sTmp} offen offset:1024 sc1
        s_add_u32 s{sAct}, s{sAct}, 1
        s_add_u32 s{sTile}, s{sTile}, 16
        """)
        for i in range(0, 12, 2): a(f'v_mov_b64 {R(O[u]+i,2)}, 0')
    a(f"""
    {jd}:
    s_mov_b32 s{sS}, s{sLev}
    {level}:
    s_and_b32 s{sS}, s{sS}, -4
    s_and_b32 s{sTmp}, s{sS}, 12
    s_cselect_b32 s{sTmp}, s{sI}, s{sStride}
    s_add_u32 s{sS}, s{sS}, s{sTmp}
    s_add_u32 s{sTile}, s{sS}, 1
    s_max_u32 s{sTmp}, s{sTile}, 64
    s_cmp_ge_u32 s{sS}, {BA_DEFER}
    s_cselect_b32 s{sTile}, s{sTmp}, s{sTile}
    s_min_u32 s{sLev}, s{sTile}, 64
    s_mul_i32 s{sX+2}, s{sLev}, {L.KVT}
    s_min_u32 s{sD}, s{sS}, 63
    s_mul_i32 s{sD}, s{sD}, 1152
    s_add_u32 s{sD}, s{sD}, s{sSrc}
    """)
    prof(a, 0)
    kl = [a.lab('L_k') for _ in range(5)]
    a(f's_sub_u32 s{sN}, s{sLev}, s{sKd}\ns_mul_i32 s{sA}, s{sKd}, {L.KVT}\ns_mov_b32 s{sKd}, s{sLev}')
    def ldall(b): a(ldk(b, sA)); a(ldv(b, 0, sA)); a(ldv(b, 1, sA))
    def ldq(): a(f'buffer_load_dwordx4 {R(QC,4)}, v{vL16}, {WS}, s{sD} offen sc1\nbuffer_load_dword v{QC+4}, v{vH}, {WS}, s{sD} offen offset:1024 sc1')
    def arrived(b):
        ok = a.lab('L_arr'); re = a.lab('L_rea')
        test = f's_waitcnt vmcnt(0)\nv_max3_u32 v{T}, v{K1(b)}, v{K0(b)}, v{V(b,0)}\nv_max_u32 v{T}, v{T}, v{V(b,1)}\nv_cmp_eq_u32 vcc, -1, v{T}'
        a(f'{test}\ns_cbranch_vccnz {re}\n{ok}:')
        def cold():
            sh = a.lab('L_sh')
            a(f'{re}:\ns_cmp_ge_u32 s{sA}, {BA_FINE * L.KVT}\ns_cbranch_scc1 {sh}\ns_sleep 12\n{sh}:\ns_sleep {BA_SLEEP}'); ldall(b); budget(a, ex); a(f'{test}\ns_cbranch_vccnz {re}\ns_branch {ok}')
        colds.append(cold)
    ldall(0)
    for n in range(4): a(f's_cmp_eq_u32 s{sAct}, {n}\ns_cbranch_scc1 {kl[n]}')
    for n in (4, 3, 2, 1, 0):
        a(f'{kl[n]}:')
        for b in range(2):
            arrived(b)
            if n: a(qk0(0, b, Qs[0])); a(qk1(0, b, Qs[0]))
            a(f's_add_u32 s{sA}, s{sA}, {L.KVT}'); ldall(1 - b)
            for u in range(n):
                nx = u + 1 < n
                body(u & 1, [qk0(1-(u&1), b, Qs[u+1]) if nx else None, qk1(1-(u&1), b, Qs[u+1]) if nx else None, pv(O[u-1], b, 1) if u else None, pv(O[u], b, 0)])
            if n: a(pv(O[n-1], b, 1))
            a(f's_sub_u32 s{sN}, s{sN}, 1\ns_cmp_eq_u32 s{sN}, 0\ns_cbranch_scc1 {nokeys}')
        a(f's_branch {kl[n]}')
    a(f'{nokeys}:')
    prof(a, 2)
    notlast = a.lab('L_nl'); three = a.lab('L_f3')
    a(f's_cmp_lg_u32 s{sLev}, 64\ns_cbranch_scc1 {notlast}')
    for u in range(3): finalize(u)
    a(f's_cmp_lg_u32 s{sAct}, 4\ns_cbranch_scc1 {three}')
    finalize(3)
    a(f'{three}:\ns_cmp_eq_u32 s{sTile}, 64\ns_cbranch_scc1 {notlast}'); publish(15)
    a(f'{notlast}:')
    prof(a, 3)
    a(f"""
    s_cmp_lg_u32 s{sTile}, s{sLev}
    s_cbranch_scc1 {nocatch}
    s_mul_i32 s{sA}, s{sW}, {L.KVT}
    s_add_u32 s{sN}, s{sLev}, 7
    s_lshr_b32 s{sN}, s{sN}, 3
    """)
    ldq()
    def qcheck():
        ok = a.lab('L_qok'); re = a.lab('L_qre')
        test = f'v_max_u32 v{T}, v{QC}, v{QC+4}\nv_cmp_eq_u32 vcc, -1, v{T}'
        a(f'{test}\ns_cbranch_vccnz {re}\n{ok}:')
        def cold():
            a(f'{re}:\ns_sleep 1'); ldq(); budget(a, ex); a(f's_waitcnt vmcnt(0)\n{test}\ns_cbranch_vccnz {re}\ns_branch {ok}')
        colds.append(cold)
    def hook():
        sk = a.lab('L_hk')
        a(f's_cmp_lg_u32 s{sLev}, 64\ns_cbranch_scc1 {sk}\ns_lshl_b32 s{sE}, 1, s{sAct}\ns_sub_u32 s{sE}, s{sE}, 1\ns_mov_b32 s{sE+1}, 0')
        publish(f's[{sE}:{sE+1}]', wait=False)
        a(f'{sk}:')
    sweep(hook, qcheck)
    prof(a, 4)
    for g in range(3): a(f'ds_write_b128 v{vWr}, {R(OC+4*g,4)} offset:{1024*g}')
    notmine = a.lab('L_nm')
    a(f"""
    s_lshr_b32 s{sTmp}, s{sS}, 2
    s_and_b32 s{sTmp}, s{sTmp}, 3
    s_add_u32 s{sS}, s{sS}, 4
    s_waitcnt vmcnt(0) lgkmcnt(0)
    s_barrier
    s_cmp_lg_u32 s{sTmp}, s{sW}
    s_cbranch_scc1 {notmine}
    """)
    RD = S[0]
    for ww in range(4):
        for g in range(3): a(f'ds_read_b128 {R(RD+12*ww+4*g,4)}, v{vRd} offset:{3072*ww + 1024*g}')
    a('s_waitcnt lgkmcnt(6)')
    for r in range(11): a(f'v_add_f32 v{RD+r}, v{RD+r}, v{RD+12+r}')
    a('s_waitcnt lgkmcnt(0)')
    for r in range(11): a(f'v_add_f32 v{RD+24+r}, v{RD+24+r}, v{RD+36+r}')
    sl = [a.lab('L_sl') for _ in range(4)]; sd = a.lab('L_sld')
    for u in range(1, 4): a(f's_cmp_eq_u32 s{sAct}, {u}\ns_cbranch_scc1 {sl[u]}')
    for u in range(4):
        a(f'{sl[u]}:')
        for r in range(11): a(f'v_add_f32 v{O[u]+r}, v{RD+r}, v{RD+24+r}')
        for i in range(0, 6, 2): a(f'v_mov_b64 {R(Qs[u]+i,2)}, {R(QC+i,2)}')
        if u < 3: a(f's_branch {sd}')
    a(f'{sd}:\ns_add_u32 s{sAct}, s{sAct}, 1\ns_cmp_lg_u32 s{sLev}, 64\ns_cbranch_scc1 {notmine}')
    finalize(3); publish(8)
    a(f'{notmine}:\nv_add_u32 v{vWr}, s{sDel}, v{vWr}\nv_add_u32 v{vRd}, s{sDel}, v{vRd}\ns_sub_u32 s{sDel}, 0, s{sDel}')
    prof(a, 5)
    a(f'{nocatch}:\ns_cmp_lt_u32 s{sKd}, 64\ns_cbranch_scc1 {level}\ns_branch {end}')
    for c in colds: c()
    mx = a.lab('L_mx')
    a(f'{redo}:\ns_waitcnt vmcnt(0)\ns_mov_b32 s{sA}, 0\nv_mov_b32 v{T}, 0xff800000\n{mx}:')
    a(ldk(0, sA)); a('s_waitcnt vmcnt(0)'); a(qk0(0, 0, QC)); a(qk1(0, 0, QC))
    for r in range(0, 16, 2): a(f'v_max3_f32 v{T}, v{T}, v{S[0]+r}, v{S[0]+r+1}')
    a(f"""
    s_add_u32 s{sA}, s{sA}, {L.KVT}
    s_cmp_lt_u32 s{sA}, {64*L.KVT}
    s_cbranch_scc1 {mx}
    v_mov_b32 v{T+1}, v{T}
    v_permlane32_swap_b32 v{T}, v{T+1}
    v_max_f32 v{T}, v{T}, v{T+1}
    s_mov_b32 s{sA}, 0
    s_mov_b32 s{sN}, 32
    """)
    for i in range(16): a(f'v_sub_f32 v{CI+i}, 0, v{T}')
    set_stride(1)
    sweep()
    a('s_waitcnt vmcnt(0)')
    set_stride(4)
    for i in range(16): a(f'v_mov_b32 v{CI+i}, 0')
    for i, r in enumerate(rets[:-1]): a(f's_cmp_eq_u32 s{sFlag}, {i}\ns_cbranch_scc1 {r}')
    a(f's_branch {rets[-1]}\n{end}:\ns_waitcnt vmcnt(0)\ns_barrier')

C_PT, C_PN, C_WO, C_AT, C_BT, C_BN, C_SP = range(7)
sCls = 66; sM = 67; sBa = 68; sFo = 69; sFoSkip = 76

def worker_program(a):
    ex = 'L_wexit'
    if PROF:
        for i in range(13): a(f's_mov_b32 s{79+i}, 0')
    base_regs(a)
    if DEBUG: a(f's_mov_b32 s99, {L.FLAGS + 64}'); logtime(a, 99, sRole, vF, vL16)
    lab = {c: f'L_init{c}' for c in range(7)}
    X = sTmp; r5 = sTmp + 1
    a(f"""
    s_lshr_b32 s{X}, s{sRole}, 5
    s_and_b32 s{r5}, s{sRole}, 31
    s_mov_b32 s{sPar}, 0
    s_mov_b32 s{sId}, 0
    s_mov_b32 s{sTeam}, 0
    s_mov_b32 s{sM}, 0
    s_mov_b32 s{sL1}, 1
    s_mov_b32 s{sBa}, -1
    s_mov_b32 s{sFo}, -1
    s_mov_b32 s{sFoSkip}, 0
    s_mov_b32 s{sKd}, 0
    s_cmp_ge_u32 s{X}, 5
    s_cbranch_scc1 L_x567
    s_sub_u32 s{X}, s{X}, 1
    s_mul_i32 s{sTmp+2}, s{X}, 20
    s_add_u32 s{sTmp+2}, s{sTmp+2}, s{r5}
    s_cmp_lt_u32 s{r5}, 20
    s_cbranch_scc1 L_heavy
    s_sub_u32 s{sId}, s{r5}, 20
    s_and_b32 s{sTeam}, s{X}, 1
    s_lshr_b32 s{sPar}, s{X}, 1
    s_branch {lab[C_WO]}
    L_x567:
    s_lshl_b32 s{sTmp+2}, s{X}, 4
    s_add_u32 s{sTmp+2}, s{sTmp+2}, s{r5}
    s_cmp_lt_u32 s{r5}, 16
    s_cbranch_scc1 L_heavy
    s_sub_u32 s{sFo}, s{sTmp+2}, 96
    s_cmp_ge_u32 s{sFo}, 16
    s_cbranch_scc1 L_clsbq
    s_mov_b32 s{sCls}, {C_AT}
    s_lshr_b32 s{sPar}, s{sFo}, 3
    s_and_b32 s{sId}, s{sFo}, 7
    s_lshl_b32 s{sId}, s{sId}, 2
    s_add_u32 s{sId}, s{sId}, s{sW}
    s_add_u32 s{sTile}, s{sFo}, 32
    s_branch L_poison
    L_heavy:
    s_mov_b32 s{sBa}, s{sTmp+2}
    s_lshr_b32 s{sId}, s{sBa}, 2
    s_and_b32 s{sM}, s{sBa}, 3
    s_cmp_eq_u32 s{sM}, 3
    s_cbranch_scc1 L_cls7
    s_add_u32 s{sM}, s{sM}, 1
    s_cmp_eq_u32 s{sM}, 3
    s_cselect_b32 s{sM}, 0, s{sM}
    s_add_u32 s{sTmp+2}, s{sId}, 48
    s_cmp_eq_u32 s{sM}, 2
    s_cselect_b32 s{sFo}, -1, s{sTmp+2}
    s_sub_u32 s{sFoSkip}, 2, s{sM}
    s_branch {lab[C_PT]}
    L_clsbq:
    s_lshr_b32 s{sPar}, s{sFo}, 5
    s_and_b32 s{r5}, s{sFo}, 15
    s_lshl_b32 s{sId}, s{r5}, 2
    s_add_u32 s{sId}, s{sId}, s{sW}
    """)
    load_ptr_srd(a, sT, 64, 576 * 3456)
    a(f"""
    s_cmp_ge_u32 s{sId}, 32
    s_cbranch_scc1 L_clsbv
    s_mov_b32 s{sCls}, {C_BT}
    s_lshr_b32 s{sM}, s{sId}, 4
    s_and_b32 s{sId}, s{sId}, 15
    s_lshl_b32 s{sId}, s{sId}, 1
    s_mul_i32 s{sA}, s{sM}, 1152
    s_mul_i32 s{sTmp}, s{sId}, 36
    s_add_u32 s{sA}, s{sA}, s{sTmp}
    """)
    gemm_load_weights(a, False, 3456, pair=True)
    a(f's_branch L_initfo\nL_clsbv:\ns_mov_b32 s{sCls}, {C_BN}\ns_mov_b32 s{sM}, 2\ns_sub_u32 s{sId}, s{sId}, 32')
    bv_load_weights(a)
    a(f"""
    s_branch L_initfo
    L_cls7:
    s_mov_b32 s{sCls}, {C_SP}
    """)
    load_ptr_srd(a, sX, 0, L.XBYTES)
    pre_phase(a)
    a(f's_mov_b32 s{sTile}, s{sId}\nL_poison:')
    poison_phase(a, 0)
    a(f's_cmp_lt_u32 s{sTile}, {NPOIS2}\ns_cselect_b32 s{sKd}, 1, 0\ns_branch L_initfo')
    a(f'{lab[C_PN]}:\n{lab[C_PT]}:\ns_cmp_eq_u32 s{sM}, 2\ns_cselect_b32 s{sCls}, {C_PN}, {C_PT}')
    a(f"""
    s_load_dwordx4 s[{sTmp+2}:{sTmp+5}], s[0:1], 16
    s_load_dwordx2 s[{sTmp+6}:{sTmp+7}], s[0:1], 32
    s_waitcnt lgkmcnt(0)
    s_cmp_eq_u32 s{sM}, 0
    s_cselect_b32 s{sTmp+6}, s{sTmp+2}, s{sTmp+6}
    s_cselect_b32 s{sTmp+7}, s{sTmp+3}, s{sTmp+7}
    s_cmp_eq_u32 s{sM}, 1
    s_cselect_b32 s{sTmp+6}, s{sTmp+4}, s{sTmp+6}
    s_cselect_b32 s{sTmp+7}, s{sTmp+5}, s{sTmp+7}
    """)
    srd(a, sT, sTmp + 6, 576 * 8192)
    a(f's_lshl_b32 s{sA}, s{sId}, 8\ns_lshl_b32 s{sTmp}, s{sW}, 6\ns_add_u32 s{sA}, s{sA}, s{sTmp}')
    gemm_load_weights(a, False, 8192)
    a(f"""
    s_cmp_eq_u32 s{sFoSkip}, 1
    s_cbranch_scc1 L_layer
    L_initfo:
    s_cmp_ge_u32 s{sFo}, 80
    s_cbranch_scc1 L_initp
    s_mul_i32 s{sTeam}, s{sFo}, 205
    s_lshr_b32 s{sTeam}, s{sTeam}, 10
    s_mul_i32 s{sTmp}, s{sTeam}, 5
    s_sub_u32 s{sTmp}, s{sFo}, s{sTmp}
    s_lshl_b32 s{sFoT}, s{sTmp}, 2
    s_add_u32 s{sFoT}, s{sFoT}, s{sW}
    """)
    load_ptr_srd(a, sT, 72, 576 * 1152)
    a(f's_lshl_b32 s{sA}, s{sFoT}, 6')
    gemm_load_weights(a, True, 1152)
    a(f's_cmp_eq_u32 s{sFoSkip}, 1\ns_cbranch_scc1 L_second2\nL_initp:\ns_cmp_eq_u32 s{sKd}, 0\ns_cbranch_scc1 L_layer')
    def started():
        lp = a.lab('L_st')
        wait_marks(a, ex, 0)
        a(f's_lshl_b32 s{sA}, s{sTile}, 12\ns_add_u32 s{sA}, s{sA}, {L.KM}\ns_mov_b64 exec, 1\n{lp}:\ns_sleep 16\nbuffer_load_dword v{vF}, v{vL16}, {WS}, s{sA} offen sc1')
        budget(a, ex)
        a(f's_waitcnt vmcnt(0)\nv_cmp_eq_u32 vcc, -1, v{vF}\ns_cbranch_vccnz {lp}\ns_mov_b64 exec, -1')
    if POI_WAIT: one_wave(a, started)
    poison_phase(a, 1)
    poison_phase(a, 2)
    a('s_branch L_layer')
    a(f'{lab[C_WO]}:\ns_mov_b32 s{sCls}, {C_WO}')
    load_ptr_srd(a, sT, 40, 4096 * 1152)
    wo_load_weights(a)
    a('L_layer:')
    if DEBUG: a(f's_lshr_b32 s99, s{sLv}, 4\ns_add_u32 s99, s99, {L.FLAGS + 68}'); logtime(a, 99, sRole, vF, vL16)
    prof(a, 11)
    for c in range(6): a(f's_cmp_eq_u32 s{sCls}, {c}\ns_cbranch_scc1 L_run{c}')
    a('s_branch L_second')
    for c, kind in ((C_PT, 'T'), (C_PN, 'N')):
        a(f"""
        L_run{c}:
        s_add_u32 s{sSrc}, s{sLay}, {L.X0}
        s_mov_b32 s{sMul}, 262144
        s_mov_b32 s{sB}, 1024
        s_lshl_b32 s{sOut}, s{sId}, 13
        s_lshl_b32 s{sTmp}, s{sW}, 11
        s_add_u32 s{sOut}, s{sOut}, s{sTmp}
        s_add_u32 s{sOut}, s{sOut}, s{sLay}
        s_lshl_b32 s{sSig}, s{sId}, 5
        s_lshl_b32 s{sTmp}, s{sM}, 2
        s_add_u32 s{sSig}, s{sSig}, s{sTmp}
        s_add_u32 s{sSig}, s{sSig}, s{sW}
        s_lshl_b32 s{sSig}, s{sSig}, 2
        s_add_u32 s{sSig}, s{sSig}, {L.F_HEAD}
        """)
        if c == C_PT:
            a(f's_cmp_eq_u32 s{sM}, 0\ns_cselect_b32 s{sTmp}, {L.QX}, {L.KX}\ns_cselect_b32 s{sC}, 1.0, {fbits(SCALE_LOG2E)}\ns_add_u32 s{sOut}, s{sOut}, s{sTmp}')
        else: a(f's_add_u32 s{sOut}, s{sOut}, {L.VX}')
        ln_phase(a, kind, ex)
        a('s_branch L_second')
    for c, kind in ((C_BT, 'BT'), (C_BN, 'BN')):
        a(f"""
        L_run{c}:
        s_add_u32 s{sSrc}, s{sLay}, {L.X1}
        s_lshr_b32 s{sSig}, s{sId}, 2
        s_lshl_b32 s{sSig}, s{sSig}, 3
        s_add_u32 s{sSig}, s{sSig}, s{sPar}
        s_lshl_b32 s{sSig}, s{sSig}, 2
        s_add_u32 s{sSig}, s{sSig}, s{sM}
        s_lshl_b32 s{sSig}, s{sSig}, 2
        s_add_u32 s{sSig}, s{sSig}, {L.F_BQ}
        s_mov_b32 s{sMul}, {L.KVT}
        s_mov_b32 s{sTmp}, {L.KVB + (1024 if c == C_BN else 0)}
        s_mov_b32 s{sC}, {fbits(SCALE_B)}
        """)
        if c == C_BT:
            a(f's_cmp_eq_u32 s{sM}, 0\ns_cselect_b32 s{sMul}, 1152, s{sMul}\ns_cselect_b32 s{sTmp}, {L.QB}, s{sTmp}\ns_cselect_b32 s{sC}, 1.0, s{sC}\ns_lshl_b32 s{sB}, s{sMul}, 6')
        else:
            a(f's_mov_b32 s{sB}, 1024\ns_mul_i32 s{sStride}, s{sId}, {64*1152}\ns_add_u32 s{sStride}, s{sStride}, s{sLay}\ns_add_u32 s{sStride}, s{sStride}, {L.QB}')
        a(f's_mul_i32 s{sOut}, s{sId}, s{sMul}\ns_lshl_b32 s{sOut}, s{sOut}, 6\ns_add_u32 s{sOut}, s{sOut}, s{sTmp}\ns_add_u32 s{sOut}, s{sOut}, s{sLay}')
        ln_phase(a, kind, ex)
        a('s_branch L_second')
    a(f'L_run{C_WO}:')
    wo_phase(a, ex)
    a(f's_branch L_second\nL_run{C_AT}:')
    att_phase(a, ex)
    a(f'L_second:\ns_add_u32 s{sTmp}, s{sFoSkip}, s{sLv}\ns_cmp_eq_u32 s{sTmp}, 1\ns_cbranch_scc1 L_initfo\nL_second2:')
    prof_dump(a, 0)
    a(f's_cmp_eq_u32 s{sBa}, -1\ns_cbranch_scc1 L_third\ns_lshr_b32 s{sJ}, s{sBa}, 2\ns_and_b32 s{sI}, s{sBa}, 3')
    ba_phase(a, ex)
    prof_dump(a, 1)
    a(f'L_third:\ns_cmp_ge_u32 s{sFo}, 80\ns_cbranch_scc1 L_next\ns_cmp_eq_u32 s{sFoSkip}, s{sL1}\ns_cbranch_scc1 L_next')
    load_ptr_srd(a, sY, 80, L.XBYTES)
    fo_phase(a, ex)
    if PROF:
        a(f's_cmp_lg_u32 s{sBa}, -1\ns_cbranch_scc1 L_next'); prof_dump(a, 1)
    a(f"""
    L_next:
    s_add_u32 s{sLv}, s{sLv}, 64
    s_add_u32 s{sL1}, s{sL1}, 1
    s_add_u32 s{sLay}, s{sLay}, {L.LSTRIDE}
    s_cmp_lt_u32 s{sLv}, 128
    s_cbranch_scc1 L_layer
    {ex}:
    s_endpgm
    """)
```

```python
import sys, re
sys.path.insert(0, 'gen')
from asmdsl import *
import layout as L, chain as C, workers as W

NAME = 'interleave_layers__memory_aug_recurrent_mem_tr__softmax_full_mha__prompt'
WARM = True
BUDGET = 200000

def sum16(a, v, tmp, s):
    a(f'v_mov_b32 v{tmp}, v{v}')
    for sh in (1, 2, 4, 8): a(f'v_add_u32_dpp v{tmp}, v{tmp}, v{tmp} row_shr:{sh} row_mask:0xf bank_mask:0xf bound_ctrl:1')
    a(f'v_readlane_b32 s{s}, v{tmp}, 15')

def prologue(a, force=None):
    a(f'''
    s_cmp_ge_u32 s2, 256
    s_cbranch_scc1 L_exit0
    s_load_dwordx4 s[4:7], s[0:1], 88
    s_getreg_b32 s20, hwreg(HW_REG_XCC_ID, 0, 4)
    v_lshrrev_b32 v1, 6, v0
    v_and_b32 v2, 63, v0
    v_readfirstlane_b32 s{C.sW}, v1
    s_mov_b32 s{C.sBud}, {BUDGET}
    s_mov_b32 s{C.sLv}, 0
    s_mov_b32 s{C.sLay}, 0
    s_waitcnt lgkmcnt(0)
    ''')
    if force == 'spread': a('s_lshr_b32 s20, s2, 4\ns_and_b32 s20, s20, 15')
    C.srd(a, C.sWS, 6, L.WS_BYTES)
    C.srd(a, C.sT, 4, 256)
    C.srd(a, W.sY, 6, L.WS_BYTES)
    D = f's[{C.sT}:{C.sT+3}]'
    if W.DEBUG:
        a(f'v_mov_b32 v7, 0\ns_mov_b32 s99, {L.FLAGS + 60}')
        W.logtime(a, 99, 2, 6, 7)
    a(f'''
    s_cmp_lg_u32 s{C.sW}, 0
    s_cbranch_scc1 L_p1
    s_lshl_b32 s21, s20, 2
    v_mov_b32 v3, 1
    v_mov_b32 v6, 1
    v_mov_b32 v4, 0
    v_lshlrev_b32 v5, 2, v2
    s_lshl_b32 s22, s2, 7
    s_add_u32 s22, s22, {L.FLAGS}
    s_cmp_lg_u32 s20, 0
    s_cbranch_scc1 L_p0
    s_mov_b64 exec, 1
    buffer_atomic_add v3, v4, {D}, 0 offen offset:{L.D_RANK0} sc0
    s_mov_b32 exec_lo, -1
    buffer_store_dword v4, v5, s[{C.sWS}:{C.sWS+3}], s22 offen sc1
    s_mov_b64 exec, 1
    s_waitcnt vmcnt(1)
    ds_write_b32 v4, v3
    s_waitcnt lgkmcnt(0)
    s_barrier
    s_waitcnt vmcnt(0)
    buffer_atomic_add v6, v4, {D}, 0 offen offset:{L.D_CNT}
    s_mov_b64 exec, -1
    s_branch L_p2
    L_p0:
    s_mov_b32 exec_hi, 0
    buffer_store_dword v4, v5, s[{C.sWS}:{C.sWS+3}], s22 offen sc1
    s_mov_b64 exec, 1
    s_waitcnt vmcnt(0)
    buffer_atomic_add v3, v4, {D}, s21 offen offset:{L.D_CNT} sc0
    s_waitcnt vmcnt(0)
    ds_write_b32 v4, v3
    s_waitcnt lgkmcnt(0)
    s_mov_b64 exec, -1
    L_p1:
    s_barrier
    L_p2:
    v_mov_b32 v4, 0
    ds_read_b32 v3, v4
    s_waitcnt lgkmcnt(0)
    v_readfirstlane_b32 s{C.sH}, v3
    s_barrier
    s_cmp_lg_u32 s20, 0
    s_cbranch_scc1 L_p3
    s_cmp_lt_u32 s{C.sH}, 32
    s_cbranch_scc1 L_chain
    L_p3:
    ''')
    if WARM:
        a(f'''
        s_cmp_eq_u32 s{C.sW}, 0
        s_cbranch_scc1 L_nowarm
        s_load_dwordx8 s[40:47], s[0:1], 16
        v_lshlrev_b32 v7, 6, v2
        s_mul_i32 s21, s2, 3
        s_add_u32 s21, s21, s{C.sW}
        s_sub_u32 s21, s21, 1
        s_mul_i32 s21, s21, 6144
        s_add_u32 s22, s21, 2048
        s_waitcnt lgkmcnt(0)
        ''')
        for i in WARM:
            C.srd(a, 28, 40 + 2 * i, 576 * 8192)
            a('buffer_load_dwordx2 v[8:9], v7, s[28:31], s21 offen\nbuffer_load_dwordx2 v[8:9], v7, s[28:31], s22 offen')
        a('L_nowarm:')
    a(f'''
    v_lshlrev_b32 v5, 2, v2
    s_cmp_lg_u32 s{C.sW}, 0
    s_cbranch_scc1 L_p5
    L_p4:
    s_sleep 12
    buffer_load_dword v3, v5, {D}, 0 offen offset:{L.D_CNT} sc1
    s_sub_u32 s{C.sBud}, s{C.sBud}, 1
    s_cbranch_scc1 L_exit0
    s_waitcnt vmcnt(0)
    ''')
    sum16(a, 3, 6, 21)
    a(f'''
    s_cmp_lt_u32 s21, 256
    s_cbranch_scc1 L_p4
    ds_write_b32 v5, v3
    s_waitcnt lgkmcnt(0)
    L_p5:
    s_barrier
    ds_read_b32 v3, v5
    s_waitcnt vmcnt(0) lgkmcnt(0)
    s_barrier
    ''')
    for i in range(15):
        a(f'v_readlane_b32 s21, v3, {i}\ns_cmp_gt_u32 s20, {i}\ns_cselect_b32 s21, s21, 0\ns_add_u32 s{C.sH}, s{C.sH}, s21')
    C.srd(a, W.sX, 6, L.WS_BYTES)
    a(f'''
    s_cmp_lt_u32 s{C.sH}, 32
    s_cbranch_scc1 L_chain
    s_branch L_worker
    L_exit0:
    s_endpgm
    ''')

def chain_program(cfg):
    out = []
    a = Asm(); a.uid = 1000
    a('L_chain:')
    for w in range(3): a(f's_cmp_eq_u32 s{C.sW}, {w}\ns_cbranch_scc1 L_cw{w}')
    a('s_branch L_cw3')
    for lab in ('L_cw0', 'L_cw1', 'L_cw2', 'L_cw3'): a.l.append(None)
    a.l = [x for x in a.l if x]
    out.append('\n'.join(a.l) + '\n')
    macros = []
    for w in range(4):
        a = Asm(); a.uid = 2000 + 1000 * w
        ex = f'L_cx{w}'
        a(f'L_cw{w}:')
        C.emit_setup(a, cfg, w)
        D = f's[{C.sT}:{C.sT+3}]'
        t = C.T0
        if W.DEBUG and w == 0: a(f's_mov_b32 s99, {L.FLAGS + 64}'); W.logtime(a, 99, C.sH, t, C.vZ)
        dl = f'v_lshrrev_b32 v{t+21}, 2, v{C.vL16}\nbuffer_load_dword v{t+20}, v{t+21}, {D}, 0 offen sc1'
        def start():
            if w == 2:
                a(f's_cmp_ge_u32 s{C.sH}, 8\ns_cbranch_scc1 L_cnp')
                C.emit_poison_init(a, True, w, t + 48, False)
                a('L_cnp:')
            else: C.emit_poison_init(a, w < 2, w, t + 48, False)
            C.emit_mem0(a, w, t + 8); C.srd(a, C.sT, 4, 256)
            a('s_barrier')
            if w == 1: a(f'v_mov_b32 v{t+8}, 1\ns_mov_b64 exec, 1\nbuffer_atomic_add v{t+8}, v{C.vZ}, {D}, 0 offen offset:{L.D_TEAM}\ns_mov_b64 exec, -1')
        hooks = {13: lambda: a(dl)}
        if getattr(cfg, 'inload', True): hooks['start'] = start
        else: start()
        if w == 3: hooks[3] = lambda: a(f's_lshl_b32 s{C.sFh}, s{C.sH}, 7\ns_add_u32 s{C.sFh}, s{C.sFh}, {L.F_HEAD}\ns_mov_b64 exec, 15\n' + C.flag_load(t + 22) + '\ns_mov_b64 exec, -1')
        C.emit_load_weights(a, cfg, w, hooks)
        if W.DEBUG and w == 0: a(f's_mov_b32 s99, {L.FLAGS + 68}'); W.logtime(a, 99, C.sH, t, C.vZ)
        if cfg.acc:
            for i in list(range(52, 64)) + list(range(80, 102)): a(f's_mov_b32 s{i}, 0')
        a('s_waitcnt vmcnt(0)')
        if w == 3: C.flag_level(a)
        a(f'''
        s_branch L_cb{w}
        L_ca{w}:
        s_mov_b32 s{C.sKn}, 0
        {dl}
        s_sub_u32 s{C.sBud}, s{C.sBud}, 1
        s_cbranch_scc1 {ex}
        s_waitcnt vmcnt(0)
        L_cb{w}:
        v_readlane_b32 s{C.sTmp}, v{t+20}, {L.D_TEAM // 4}
        v_readlane_b32 s{C.sTmp+1}, v{t+20}, {L.D_POI // 4}
        v_readlane_b32 s{C.sFast}, v{t+20}, {L.D_CNT // 4}
        s_add_u32 s{C.sTmp}, s{C.sTmp}, s{C.sTmp+1}
        s_cmp_lt_u32 s{C.sTmp}, {32 + W.NPOIS}
        s_cbranch_scc1 L_ca{w}
        ''')
        names = [(f'{w}', w < 2)] if w != 2 else [('2r', True), ('2n', False)]
        tail = []
        if w == 2: tail.append(f's_cmp_ge_u32 s{C.sH}, 8\ns_cbranch_scc1 L_sel2n')
        for nm, red in names:
            tail.append(f'L_sel{nm}:\ns_cmp_ge_u32 s{C.sFast}, 32\ns_cbranch_scc1 L_run{nm}f\ns_branch L_run{nm}s')
        a(f's_branch L_ct{w}\n{ex}:\ns_endpgm\nL_ct{w}:')
        out.append(a.text() + '\n'.join(tail) + '\n')
        for nm, red in names:
            b = Asm(); b.uid = 0
            b('L_run:')
            C.emit_layer(b, cfg, w, red, 'L_x', '@ST@')
            b(f'''
            s_add_u32 s{C.sLv}, s{C.sLv}, 64
            s_add_u32 s{C.sLay}, s{C.sLay}, {L.LSTRIDE}
            s_cmp_ge_u32 s{C.sLv}, 128
            s_cbranch_scc1 L_fin
            ''')
            C.emit_mem0(b, w)
            b('s_branch L_run\nL_fin:')
            if cfg.acc:
                for i in range(11): b(f'v_writelane_b32 v20, s{C.sSt+1+i}, {i}')
                b(f's_lshl_b32 s40, s{C.sH}, 8\ns_add_u32 s40, s40, {L.STAMP + 12*1024*1024 + 64*w}\nv_lshrrev_b32 v21, 2, v{C.vL16}\ns_mov_b64 exec, 0x7ff\nbuffer_store_dword v20, v21, s[8:11], s40 offen\ns_waitcnt vmcnt(0)')
            b(f'''
            L_x:
            s_endpgm
            ''')
            body = b.text()
            body = re.sub(r'\b(L_\w+)', lambda m: m.group(1) + nm + '\\id', body).replace('@ST@', '\\st')
            macros.append((nm, body))
    for nm, body in macros: out.append(f'.macro chain{nm} id, st\n{body}.endm\n')
    for nm, _ in macros: out.append(f'chain{nm} f\n')
    for nm, _ in macros: out.append(f'chain{nm} s, sc1\n')
    return ''.join(out)

def build(cfg=None, force=None, name=NAME + '_kernel'):
    cfg = cfg or C.ChainCfg(); cfg.integ = True
    global WARM; WARM = getattr(cfg, 'warm', [1, 2, 3])
    W.SENT = getattr(cfg, 'sent', 4)
    for k_, v_ in dict(POI_WAIT=True, BA_SLEEP=3, BA_FINE=63, BA_DEFER=62).items(): setattr(W, k_, getattr(cfg, k_, v_))
    W.DEBUG = cfg.log; W.PROF = getattr(cfg, 'prof', False)
    a = Asm(); prologue(a, force)
    a('L_chain:\nL_worker:')
    pro = a.text().replace('L_chain:\n', '').replace('L_worker:\n', '')
    w = Asm(); w.uid = 10000
    w('L_worker:'); W.worker_program(w)
    ref = open('cdna_kernels/' + NAME + '.s.ref').read()
    hdr = ''.join(l + '\n' for l in ref.split('\n') if l.startswith(';') and '@launch' not in l and 'Override' not in l and 'grid=ceil' not in l)
    txt = hdr + f'''; @launch grid=(256,1,1) block=(256,1,1) lds=163840
; One persistent workgroup per CU.  32 CUs run the recurrent memory chain (one head each, weights resident in
; registers and LDS); the other 224 run the projections and attentions around it, linked by progress words.
.amdgcn_target "amdgcn-amd-amdhsa--gfx950"
.text
.globl {name}
.p2align 8
.type {name},@function
{name}:
''' + pro + w.text() + chain_program(cfg) + f'''.section .rodata,"a"
.p2align 6
.amdhsa_kernel {name}
  .amdhsa_next_free_vgpr 512
  .amdhsa_next_free_sgpr 102
  .amdhsa_accum_offset 256
  .amdhsa_group_segment_fixed_size 0
  .amdhsa_kernarg_size 104
  .amdhsa_user_sgpr_count 2
  .amdhsa_user_sgpr_kernarg_segment_ptr 1
  .amdhsa_system_sgpr_workgroup_id_x 1
.end_amdhsa_kernel
'''
    txt = '\n'.join(l.strip() if not l.startswith(';') else l for l in txt.split('\n'))
    return txt

if __name__ == '__main__':
    t = build()
    p = sys.argv[1] if len(sys.argv) > 1 else 'cdna_kernels/' + NAME + '.s'
    open(p, 'w').write(t)
    print(len(t), 'bytes')
```

```python
from asmdsl import *
import layout as L
import struct
def fbits(x): return struct.unpack('<I', struct.pack('<f', x))[0]
SCALE_LOG2E = (128 ** -0.5) * 1.4426950408889634
OOB = 0x40000000

LD_MEM = 0
LD_Q   = 9216
LD_K   = LD_Q + 2048 + 32
LD_O   = LD_K + 2048
LD_PX  = LD_O + 2048 + 16
LD_PM  = LD_PX + 512
LD_Z   = LD_PM + 128
LD_ONE = LD_Z + 16
LD_SEL = LD_ONE + 16
LD_DUMP = 16240
LD_W   = 16384
NT   = [4, 4, 5, 5]
NLDS = [17, 17, 19, 19]
WBASE = [LD_W + 2048 * sum(NLDS[:w]) for w in range(4)]
def tile_of(w, slot):
    if slot == 4: return 14 + w
    return 4 * slot + w

sWS = 8
sT  = 12
sH = 16; sW = 17; sStep = 18; sBud = 19
sKX = 20; sVX = 21; sKM = 22; sVM = 23
sP = 24
sRed = 29; sPo = 30; sRing = 31; sRingPo = 32; sGat = 33
sMask = 34
sRc = 36
sPf = 37
sTmp = 38
sPar = 46
sLay = 49
sCs = 50
sSt = 52
sKMn = 64; sVMn = 65; sKX2 = 66; sUnit = 67; sKmask = 68; sHn = 44; sHv = 45; sHc = 47; sLv = 48; sFh = 70; sPfe = 71; sNd = 72; sFast = 73; sHm = 74; sKn = 76; sFc = 77; sFl = 51; sVer = 23; sH2 = 65; sLd = 76

vL16 = 0; vWl = 1; vA = 2; vIdx = 3; vQW = 4; vTR = 5; vP = 6; vPRx = 7; vPRm = 8; vTO = 9; vVp = 10
vM = 12; vKX = 13
vPW = 14; vZ = 15
vHv = vPW
vHA = vP
T0 = 16
LATE = [(4, 1), (5, 1), (6, 2), (8, 1)]
def WREG(w): return list(range(88 if w < 2 else 72, 512, 8))
GATH = [(0, 4), (4, 1), (5, 2), (7, 2)]

class ChainCfg:
    deferred = [15, 16, 17, 14, 13, 12, 11, 10, 9, 8, 7, 6]
    sh = [2, 3, 2, 2]
    nm = [12, 12, 12, 12]; smart = True; wlat = 5; mlate = 1; ostart = 4
    stamps = False
    nsteps = 64
    d_redA = 0; d_red = 24; d_redC = 16
    pos = [0, 3, 7, 10, 14, 17, 21, 25, 29, 33, 37, 41]; zoff = 0; pad = 0; sint = True; hold1 = 0; dump = True; gfl = 18; flah = 4; poller = 1; h2first = True; ncold = 2; scold = 9; d_comp = 24; ncomp = 16; gv = [10, 9, 7, 8]; gps = 1; gpd = 4; gk = [22, 28, 34, 40]; gp = 20; kpos = [2, 2]; gkx = [0, 1, 3, 4]; d_go2 = 15; gsh = 2; d_idle = 1
    gdep = 2; ggap = 32; gdepA = 1
    hpos = 1; htry = 60; hgaps = [4, 6, 8, 10, 12, 14]; hun = 2
    vdirect = True
    lddw = 0; lddep = 8; ldbar = 1
    early = 59
    fills = [0, 0, 0, 0, 0]; nfo = 4; npw = 2
    novm = False
    gpo = 35
    hrep = 4; pfd = 1
    perm = [0, 1, 2, 3]
    pf = True
    pub = True
    noexch = False
    log = False
    integ = False
    trace = False
    fine = []
    acc = False
    stampsel = None

def main_seq(cfg):
    seq = []
    for c in range(18):
        seq += [('q', c), ('k', c)]
        if c not in cfg.deferred: seq.append(('v', c))
    return seq

def frag_plan(cfg, w):
    plan = {}; r = iter(WREG(w)); slot = 0
    seq = main_seq(cfg)
    nm = cfg.nm[w]
    span = len(seq) - 2
    pos = sorted(set(int(round(i * span / (nm - 1))) for i in range(nm)))
    if cfg.pos: pos = cfg.pos[:nm]
    assert len(pos) == nm
    for i, key in enumerate(seq):
        if i in pos: plan[key] = ('l', slot); slot += 1
        else: plan[key] = ('r', next(r))
    for c in cfg.deferred: plan[('v', c)] = ('r', next(r))
    no = NLDS[w] - nm
    n = 4 * NT[w]
    opos = sorted(set(int(round(cfg.ostart + i * (n - 1 - cfg.ostart) / (no - 1))) for i in range(no)))
    assert len(opos) == no
    for i in range(n):
        key = ('o', i // 4, i % 4)
        if i in opos: plan[key] = ('l', slot); slot += 1
        else: plan[key] = ('r', next(r))
    assert slot == NLDS[w], slot
    return plan

def srd(a, s, lo, size):
    a(f's_mov_b32 s{s}, s{lo}\ns_and_b32 s{s+1}, s{lo+1}, 0xffff\ns_mov_b32 s{s+2}, {size}\ns_mov_b32 s{s+3}, 0x20000')

def emit_setup(a, cfg, w):
    t = T0
    a(f'''
    v_and_b32 v{t+1}, 63, v0          ; lane
    v_and_b32 v{t+2}, 15, v{t+1}      ; n
    v_lshrrev_b32 v{t+3}, 4, v{t+1}   ; g
    v_and_b32 v{t+4}, 1, v{t+3}       ; g&1
    v_lshrrev_b32 v{t+5}, 1, v{t+3}   ; g>>1
    v_lshlrev_b32 v{vL16}, 4, v{t+1}
    v_add_u32 v{vWl}, {WBASE[w]}, v{vL16}
    v_mov_b32 v{vZ}, 0
    v_and_b32 v{t+6}, 3, v{t+1}
    v_lshlrev_b32 v{t+6}, 4, v{t+6}
    v_lshl_add_u32 v{t+6}, v{t+4}, 6, v{t+6}
    v_lshl_add_u32 v{t+6}, v{t+5}, 8, v{t+6}
    v_bfe_u32 v{t+7}, v{t+1}, 2, 1
    v_lshl_add_u32 v{vA}, v{t+7}, 7, v{t+6}
    v_and_b32 v{t+6}, 8, v{t+1}
    v_cmp_eq_u32 vcc, 0, v{t+6}
    v_mov_b32 v{t+7}, 0xEEEEDDDD
    v_mov_b32 v{t+8}, 0x44448888
    v_cndmask_b32 v{vIdx}, v{t+7}, v{t+8}, vcc
    v_lshlrev_b32 v{t+6}, 4, v{t+2}
    v_lshl_add_u32 v{t+6}, v{t+4}, 3, v{t+6}
    v_lshl_add_u32 v{t+6}, v{t+5}, 2, v{t+6}
    v_mov_b32 v{t+7}, {OOB}
    v_cndmask_b32 v{vM}, v{t+7}, v{t+6}, vcc
    v_lshlrev_b32 v{t+6}, 3, v{t+5}
    v_xor_b32 v{t+6}, v{t+6}, v{t+2}
    v_lshlrev_b32 v{t+6}, 3, v{t+6}
    v_lshl_add_u32 v{t+6}, v{t+3}, 7, v{t+6}
    v_add_u32 v{vQW}, {512*w}, v{t+6}
    v_bfe_u32 v{t+6}, v{t+1}, 2, 1
    v_xor_b32 v{t+7}, v{t+6}, v{t+5}
    v_lshlrev_b32 v{t+6}, 8, v{t+6}
    v_lshl_add_u32 v{t+6}, v{t+7}, 6, v{t+6}
    v_and_b32 v{t+7}, 1, v{t+1}
    v_lshl_add_u32 v{t+6}, v{t+7}, 7, v{t+6}
    v_lshl_add_u32 v{t+6}, v{t+4}, 4, v{t+6}
    v_bfe_u32 v{t+7}, v{t+1}, 3, 1
    v_lshl_add_u32 v{vTO}, v{t+7}, 3, v{t+6}
    v_bfe_u32 v{t+7}, v{t+1}, 1, 1
    v_mul_u32_u24 v{t+7}, {LD_K - LD_Q}, v{t+7}
    v_add_u32 v{vTR}, v{vTO}, v{t+7}
    v_mul_u32_u24 v{t+6}, {L.PB_UNIT}, v{t+3}
    v_lshl_add_u32 v{vP}, v{t+2}, 3, v{t+6}
    v_lshrrev_b32 v{t+7}, 3, v{t+2}
    v_lshlrev_b32 v{t+6}, 8, v{t+7}
    v_and_b32 v{t+8}, 7, v{t+2}
    v_lshl_add_u32 v{t+6}, v{t+8}, 4, v{t+6}
    v_lshl_add_u32 v{vKX}, v{t+3}, 9, v{t+6}
    v_and_b32 v{t+8}, 7, v{t+1}
    v_lshl_add_u32 v{t+9}, v{t+3}, 3, v{t+8}
    v_lshlrev_b32 v{vPRx}, 4, v{t+9}                ; (g*8+q)*16
    v_lshl_add_u32 v{vTO}, v{t+7}, 3, v{vPRx}
    v_lshl_add_u32 v{t+9}, v{t+4}, 3, v{t+8}
    v_lshlrev_b32 v{t+9}, 3, v{t+9}                 ; ((g&1)*8+q)*8
    v_cmp_eq_u32 vcc, v{t+7}, v{t+5}
    v_mov_b32 v{t+10}, 128
    v_cndmask_b32 v{vPRm}, v{t+10}, v{t+9}, vcc
    ''')
    if w < 2: a(f'v_add_u32 v{vPW}, {LD_PX + 8*w}, v{vPRx}\ns_mov_b32 s{sMask}, 0x00ff00ff\ns_mov_b32 s{sMask+1}, 0x00ff00ff')
    elif w == 2: a(f'v_add_u32 v{vPW}, {LD_PM}, v{t+9}\ns_mov_b32 s{sMask}, 0\ns_mov_b32 s{sMask+1}, 0x00ff00ff')
    if w < 3:
        a(f'v_lshlrev_b32 v{t+10}, {4 if w < 2 else 3}, v{t+8}\nv_add_u32 v{t+10}, {LD_DUMP + (8 * (1 - w) if w < 2 else 64)}, v{t+10}\nv_cndmask_b32 v{vPW}, v{t+10}, v{vPW}, s[{sMask}:{sMask+1}]')
    a(f's_mov_b32 s{sHm}, 0x00010001\ns_mov_b32 s{sHm+1}, 0x00010001')
    a(f'''
    v_mov_b64 {R(t+12,2)}, 0
    v_mov_b64 {R(t+14,2)}, 0
    ds_write_b128 v{vZ}, {R(t+12,4)} offset:{LD_Z}
    ds_write_b128 v{vZ}, {R(t+12,4)} offset:{LD_PX - 16}
    v_add_u32 v{vPRx}, 16, v{vPRx}
    v_lshlrev_b32 v{t}, 4, v{t+8}
    ds_write_b128 v{t}, {R(t+12,4)} offset:{LD_SEL}
    v_mov_b32 v{t+16}, 0x3f803f80
    v_mov_b32 v{t+17}, 0x3f803f80
    ds_write_b64 v{vZ}, {R(t+16,2)} offset:{LD_ONE}
    ds_write_b64 v{vZ}, {R(t+16,2)} offset:{LD_ONE+8}
    s_waitcnt lgkmcnt(0)
    s_barrier
    v_mul_u32_u24 v{t}, 18, v{t+8}
    ds_write_b16 v{t}, v{t+16} offset:{LD_SEL}
    s_mov_b32 s{sCs}, {fbits(SCALE_LOG2E)}
    s_lshl_b32 s{sTmp+2}, s{sH}, 7
    ''')
    for i in range(NT[w]): a(f's_add_u32 s{sP+i}, s{sTmp+2}, {L.PB + tile_of(w, i)*4*L.PB_UNIT}')
    a(f'''
    s_add_u32 s{sUnit}, s{sH}, {[0, 40, 32, 0][w]}
    s_mul_i32 s{sRed}, s{sUnit}, {L.PB_UNIT}
    s_add_u32 s{sRed}, s{sRed}, {L.PB}
    s_add_u32 s{sHn}, s{sH}, {L.HN}
    s_lshl_b32 s{sUnit}, s{sUnit}, 7
    s_mov_b32 s{sPar}, {L.PB_PAR}
    s_mov_b32 s{sRc}, 0
    s_mov_b32 s{sPo}, {OOB}
    {f's_and_b32 s{sHn}, s{sH}, {cfg.hrep-1}' if w == cfg.poller else ''}
    {f's_mul_i32 s{sHn}, s{sHn}, {L.PB_UNIT}' if w == cfg.poller else ''}
    {f's_add_u32 s{sHn}, s{sHn}, {L.HN}' if w == cfg.poller else ''}
    {f's_add_u32 s{sH2}, s{sH}, {L.HN + 2048}' if w == cfg.poller else ''}
    {f's_and_b32 s{sH2}, s{sH}, {cfg.hrep-1}' if w == 3 else ''}
    {f's_mul_i32 s{sH2}, s{sH2}, {L.PB_UNIT}' if w == 3 else ''}
    {f's_add_u32 s{sH2}, s{sH2}, {L.HN + 2048}' if w == 3 else ''}
    s_mov_b32 s{sRingPo}, {OOB}
    s_waitcnt lgkmcnt(0)
    ''')

def emit_load_weights_dw(a, cfg, w):
    plan = frag_plan(cfg, w)
    t = T0
    a(f'''
    v_bfe_u32 v{t+2}, v{vL16}, 4, 4           ; n
    v_bfe_u32 v{t+4}, v{vL16}, 8, 1           ; gB&1
    v_bfe_u32 v{t+5}, v{vL16}, 9, 1           ; gB>>1
    v_lshlrev_b32 v{t+3}, 17, v{t+4}
    v_lshl_add_u32 v{t+3}, v{t+5}, 14, v{t+3}
    v_lshl_add_u32 v{t+3}, v{t+2}, 2, v{t+3}
    s_lshl_b32 s{sTmp}, s{sH}, 8
    s_add_u32 s{sTmp}, s{sTmp}, {64*w}
    v_add_u32 v{t}, s{sTmp}, v{t+3}
    v_lshl_add_u32 v{t+4}, v{t+5}, 3, v{t+4}
    v_mul_u32_u24 v{t+4}, 1152, v{t+4}
    v_lshl_add_u32 v{t+4}, v{t+2}, 2, v{t+4}
    s_mul_i32 s{sTmp}, s{sH}, {128*1152}
    v_add_u32 v{t+1}, s{sTmp}, v{t+4}
    ''')
    stage = [t + 8 + 8 * i for i in range(6)]
    pend = []; nload = 0; si = 0
    def flush(upto):
        while pend and len(pend) > upto:
            reg, slot, last = pend.pop(0)
            a(f's_waitcnt vmcnt({min(nload - last - 1, 63)})')
            a(f'ds_write_b128 v{vWl}, {R(reg,4)} offset:{slot*2048}\nds_write_b128 v{vWl}, {R(reg+4,4)} offset:{slot*2048+1024}')
            a('s_waitcnt lgkmcnt(0)')
    def load_frag(dst, voff, offs):
        nonlocal nload, si
        kind, x = dst
        if kind == 'l':
            flush(len(stage) - 1); reg = stage[si % len(stage)]; si += 1
        else: reg = x
        cur = None
        for rho in range(8):
            o = offs[rho]
            if cur is None or not (0 <= o - cur < 4096):
                cur = o; a(f's_mov_b32 s{sTmp+3}, {o}')
            a(f'buffer_load_dword {R(reg+rho)}, v{voff}, s[{sT}:{sT+3}], s{sTmp+3} offen offset:{o-cur}')
            nload += 1
        if kind == 'l': pend.append((reg, x, nload - 1))
        a(f's_waitcnt vmcnt({cfg.lddw})')
    for m, karg in (('q', 16), ('k', 24), ('v', 32)):
        a(f's_load_dwordx2 s[{sTmp+4}:{sTmp+5}], s[0:1], {karg}\ns_waitcnt lgkmcnt(0)')
        srd(a, sT, sTmp + 4, 576 * 8192)
        for c in range(18):
            load_frag(plan[(m, c)], t, [(32*c + 4*(r & 3) + (r >> 2)) * 8192 for r in range(8)])
    a(f's_load_dwordx2 s[{sTmp+4}:{sTmp+5}], s[0:1], 40\ns_waitcnt lgkmcnt(0)')
    srd(a, sT, sTmp + 4, 4096 * 1152)
    for sl in range(NT[w]):
        for c in range(4):
            load_frag(plan[('o', sl, c)], t + 1, [(32*c + 16*(r >> 2) + 2*(r & 3)) * 1152 + 64*tile_of(w, sl) for r in range(8)])
    flush(0)
    a('s_waitcnt vmcnt(0)')

def emit_load_weights(a, cfg, w, hooks={}):
    if cfg.lddw: return emit_load_weights_dw(a, cfg, w)
    plan = frag_plan(cfg, w)
    t = T0
    vq, vo, rq, ro = t, t + 1, t + 2, t + 3
    a(f"""
    v_bfe_u32 v{t+4}, v{vL16}, 6, 4
    v_and_b32 v{t+5}, 48, v{vL16}
    v_lshl_add_u32 v{vq}, v{t+4}, 13, v{t+5}
    s_lshl_b32 s{sTmp}, s{sH}, 8
    s_add_u32 s{sTmp}, s{sTmp}, {64*w}
    v_add_u32 v{vq}, s{sTmp}, v{vq}
    v_mul_u32_u24 v{vo}, 1152, v{t+4}
    s_mul_i32 s{sTmp}, s{sH}, {128*1152}
    v_add3_u32 v{vo}, v{vo}, v{t+5}, s{sTmp}
    v_bfe_u32 v{t+4}, v{vL16}, 4, 4           ; n
    v_bfe_u32 v{t+5}, v{vL16}, 8, 1           ; gB&1
    v_bfe_u32 v{t+6}, v{vL16}, 9, 1           ; gB>>1
    v_lshlrev_b32 v{t+4}, 2, v{t+4}
    v_add_u32 v{t+4}, {WBASE[w]}, v{t+4}
    v_lshl_add_u32 v{rq}, v{t+5}, 10, v{t+4}
    v_lshl_add_u32 v{rq}, v{t+6}, 7, v{rq}
    v_lshl_add_u32 v{ro}, v{t+5}, 6, v{t+4}
    v_lshl_add_u32 v{ro}, v{t+6}, 9, v{ro}
    s_load_dwordx8 s[{sLd}:{sLd+7}], s[0:1], 16
    s_waitcnt lgkmcnt(0)
    """)
    for i in range(4): srd(a, sLd + 8 + 4 * i, sLd + 2 * i, 576 * 8192)
    keys = [(m, c) for m in 'qkv' for c in range(18)] + [('o', sl, c) for sl in range(NT[w]) for c in range(4)]
    ns = NLDS[w]
    regk = [k for k in keys if plan[k][0] == 'r']
    bys = {plan[k][1]: k for k in keys if plan[k][0] == 'l'}
    order = regk + [bys[(len(regk) + i) % ns] for i in range(ns)]
    def dma(i):
        k = order[i]; slot = i % ns
        for hf in range(2):
            if k[0] == 'o': off, v, sr = (32*k[2] + 16*hf) * 1152 + 64*tile_of(w, k[1]), vo, sLd + 20
            else: off, v, sr = (32*k[1] + 16*hf) * 8192, vq, sLd + 8 + 4 * 'qkv'.index(k[0])
            a(f's_mov_b32 m0, {WBASE[w] + slot*2048 + 1024*hf}\ns_mov_b32 s{sTmp}, {off}\nbuffer_load_dwordx4 v{v}, s[{sr}:{sr+3}], s{sTmp} offen lds')
    dp = min(cfg.lddep, ns)
    for i in range(dp): dma(i)
    if 'start' in hooks: hooks['start']()
    for i, k in enumerate(order):
        slot = i % ns
        a(f's_waitcnt vmcnt({2 * (min(i + dp, len(order)) - i - 1)})')
        dst = plan[k][1] if plan[k][0] == 'r' else t + 8
        for rho in range(8):
            row = 16*(rho >> 2) + 2*(rho & 3) if k[0] == 'o' else 4*(rho & 3) + (rho >> 2)
            a(f'ds_read_b32 {R(dst+rho)}, v{ro if k[0] == "o" else rq} offset:{slot*2048 + row*64}')
        a('s_waitcnt lgkmcnt(0)')
        if plan[k][0] == 'l':
            assert plan[k][1] == slot
            a(f'ds_write_b128 v{vWl}, {R(dst,4)} offset:{slot*2048}\nds_write_b128 v{vWl}, {R(dst+4,4)} offset:{slot*2048+1024}\ns_waitcnt lgkmcnt(0)')
        if cfg.ldbar and i % cfg.ldbar == 0 and i < 40: a('s_barrier')
        if i + dp < len(order): dma(i + dp)
        if len(order) - i in hooks: hooks[len(order) - i]()

def emit_poison_init(a, red, w=None, t=T0, wait=True):
    WS = f's[{sWS}:{sWS+3}]'
    if w == 3:
        a(f's_mov_b64 exec, s[{sHm}:{sHm+1}]\nbuffer_store_byte v{vZ}, v{vHA}, {WS}, s{sHn} offen sc1\nbuffer_store_byte v{vZ}, v{vHA}, {WS}, s{sHn} offen offset:2048 sc1\ns_mov_b64 exec, -1')
        if wait: a('s_waitcnt vmcnt(0)')
    if not red: return
    a(f'v_mov_b64 {R(t,2)}, -1\nv_mov_b64 {R(t+2,2)}, -1\ns_add_u32 s{sTmp}, s{sRed}, {L.PB_PAR}')
    for s in (sRed, sTmp):
        for i in range(4): a(f'buffer_store_dwordx4 {R(t,4)}, v{vL16}, {WS}, s{s} offen offset:{i*1024} sc1')
    for i in range(4):
        a(f's_add_u32 s{sTmp+1}, s{sUnit}, {L.MR + i*9216}\nbuffer_store_dword v{t}, v{vM}, {WS}, s{sTmp+1} offen sc1')
    if wait: a('s_waitcnt vmcnt(0)')

def stamp(a, cfg, i):
    if not cfg.stamps or (cfg.stampsel is not None and i not in cfg.stampsel): return
    a(f'''
    s_memtime s[{sTmp+4}:{sTmp+5}]
    s_waitcnt lgkmcnt(0)
    s_sub_u32 s{sTmp+5}, s{sTmp+4}, s{sSt}
    s_mov_b32 s{sSt}, s{sTmp+4}
    s_add_u32 s{sSt+2+i}, s{sSt+2+i}, s{sTmp+5}
    ''')

def mark(a, cfg, name):
    if name in cfg.fine:
        i = cfg.fine.index(name)
        a(f's_memtime s[{80+2*i}:{81+2*i}]')

class Q:
    def __init__(self, a, cnt, cap): self.a = a; self.q = []; self.cnt = cnt; self.cap = cap
    def issue(self, tag, text):
        for x in text.split('\n'):
            self.a(x); self.q.append(tag)
        assert len(self.q) <= self.cap, self.q
    def wait(self, *tags):
        idx = [i for i, x in enumerate(self.q) if x in tags]
        if not idx: return
        last = idx[-1]
        self.a(f's_waitcnt {self.cnt}({len(self.q)-last-1})')
        del self.q[:last + 1]
    def clear(self): self.q = []

def delay(a, n):
    while n > 0:
        k = min(n, 16); a(f's_nop {k-1}'); n -= k

def emit_mem0(a, w, t=T0):
    g0, gn = GATH[w]
    Wbuf = [t + 20, t + 28]; GL = [t + 4, t + 8, t + 12, t + 16]
    def gwrite(i): return f'ds_write_b128 v{vL16}, {R(GL[i],4)} offset:{LD_MEM + (g0+i)*1024}'
    a(f's_load_dwordx2 s[{sTmp+4}:{sTmp+5}], s[0:1], 8\ns_waitcnt lgkmcnt(0)')
    srd(a, sT, sTmp + 4, 9216)
    a(f"""
    v_bfe_u32 v{t}, v{vL16}, 4, 2            ; i
    v_bfe_u32 v{t+1}, v{vL16}, 7, 1          ; rh
    v_lshl_add_u32 v{t}, v{t+1}, 2, v{t}
    v_mul_u32_u24 v{t}, 1152, v{t}
    v_bfe_u32 v{t+1}, v{vL16}, 9, 1
    v_lshl_add_u32 v{t}, v{t+1}, 6, v{t}
    v_bfe_u32 v{t+1}, v{vL16}, 6, 1          ; b
    v_lshl_add_u32 v{t}, v{t+1}, 2, v{t}
    v_bfe_u32 v{t+1}, v{vL16}, 8, 1          ; par
    v_lshl_add_u32 v{t}, v{t+1}, 1, v{t}
    """)
    for it in range(gn):
        for j in range(8): a(f'buffer_load_ushort v{t+4+8*it+j}, v{t}, s[{sT}:{sT+3}], 0 offen offset:{(g0+it)*128 + j*8}')
    a('s_waitcnt vmcnt(0)')
    for it in range(gn):
        for j in range(4): a(f'v_lshl_or_b32 v{GL[it]+j}, v{t+4+8*it+2*j+1}, 16, v{t+4+8*it+2*j}')
    for it in range(gn): a(gwrite(it))
    a('s_waitcnt lgkmcnt(0)')

def flag_load(): return f's_mov_b64 exec, 3\nbuffer_load_dword v{vPW}, v{vL16}, s[{sWS}:{sWS+3}], s{sFh} offen offset:16 sc1\ns_mov_b64 exec, -1'
def flag_level(a):
    a(f'v_readlane_b32 s{sTmp}, v{vPW}, 0\nv_readlane_b32 s{sKn}, v{vPW}, 1\ns_min_u32 s{sKn}, s{sKn}, s{sTmp}')

def emit_warm(a, w, red, t):
    WS = f's[{sWS}:{sWS+3}]'
    a(f'v_lshlrev_b32 v{t}, 2, v{vL16}')
    if red:
        a(f's_add_u32 s{sTmp}, s{sRed}, {L.PB_PAR}')
        for so in (sRed, sTmp): a(f'buffer_load_dwordx2 {R(t+2,2)}, v{t}, {WS}, s{so} offen sc1')
    if w == 3:
        a(f's_mul_i32 s{sTmp}, s{sH}, 1152\ns_add_u32 s{sTmp}, s{sTmp}, {L.MR}\ns_mov_b32 exec_hi, 0\nbuffer_load_dwordx2 {R(t+2,2)}, v{t}, {WS}, s{sTmp} offen sc1')
        a(f's_mov_b32 s{sTmp}, {L.HN}\ns_mov_b64 exec, s[{sHm}:{sHm+1}]\nbuffer_load_dword v{t+2}, v{vHA}, {WS}, s{sTmp} offen sc1\nbuffer_load_dword v{t+2}, v{vHA}, {WS}, s{sTmp} offen offset:2048 sc1\ns_mov_b64 exec, -1')

def emit_layer(a, cfg, w, red, exit_label, st=''):
    plan = frag_plan(cfg, w)
    WS = f's[{sWS}:{sWS+3}]'
    t = T0
    ds = Q(a, 'lgkmcnt', 15); vm = Q(a, 'vmcnt', 63)
    accq, acck, accv = t, t + 4, t + 8
    Abuf = [t + 12 + 4 * i for i in range(3)]
    X0 = t + 24; X1 = t + 28
    Wbuf = [t + 32, t + 40]
    VXr = t + 48
    KXr = [t + 56 + 4 * i for i in range(4)]
    SM = 'v_smfmac_f32_16x16x64_bf16'
    g0, gn = GATH[w]
    GL = (Abuf + [X0])[:gn]
    cold = []
    def budget(): a(f's_sub_u32 s{sBud}, s{sBud}, 1\ns_cbranch_scc1 {exit_label}')
    def gloads():
        for i in range(gn): a(f'buffer_load_dwordx4 {R(GL[i],4)}, v{vL16}, {WS}, s{sGat} offen offset:{i*1024} sc1')
    def gwrite(i): return f'ds_write_b128 v{vL16}, {R(GL[i],4)} offset:{LD_MEM + (g0+i)*1024}'
    def kloads():
        a(f's_add_u32 s{sKX2}, s{sKX}, 4096')
        for c in range(4): a(f'buffer_load_dwordx4 {R(KXr[c],4)}, v{vKX}, {WS}, s{sKX if c < 2 else sKX2} offen offset:{2048*(c&1)} sc1')
        a(f's_add_u32 s{sKX}, s{sKX}, 262144')
    fload = flag_load()
    def level(): flag_level(a)
    def avail(ahead):
        lp = a.lab('L_av'); ok = a.lab('L_avok')
        a(f's_add_u32 s{sNd}, s{sStep}, {ahead + 1}\ns_min_u32 s{sNd}, s{sNd}, 64\ns_add_u32 s{sNd}, s{sNd}, s{sLv}\ns_cmp_lt_u32 s{sKn}, s{sNd}\ns_cbranch_scc1 {lp}\n{ok}:')
        def rest():
            a(f'{lp}:\n{fload}'); budget(); a('s_waitcnt vmcnt(0)'); level()
            a(f's_cmp_lt_u32 s{sKn}, s{sNd}\ns_cbranch_scc1 {lp}\ns_branch {ok}')
        cold.append(rest)
    def accumulate():
        sk_ = a.lab('L_noacc')
        a(f's_waitcnt lgkmcnt(0)\ns_sub_u32 s{sTmp+2}, s{sStep}, 9\ns_cmp_ge_u32 s{sTmp+2}, 48\ns_cbranch_scc1 {sk_}')
        for i in range(len(cfg.fine) - 1): a(f's_sub_u32 s{sTmp+2}, s{82+2*i}, s{80+2*i}\ns_add_u32 s{sSt+2+i}, s{sSt+2+i}, s{sTmp+2}')
        a(f'{sk_}:')
    a(f"""
    s_mov_b32 s{sStep}, 0
    s_mov_b32 s{sVer}, 1
    s_lshl_b32 s{sTmp}, s{sH}, 13
    s_add_u32 s{sTmp}, s{sTmp}, s{sLay}
    s_add_u32 s{sPf}, s{sTmp}, {L.KX + cfg.pfd*262144}
    s_add_u32 s{sKX}, s{sTmp}, {L.KX + 128*w}
    s_add_u32 s{sVX}, s{sTmp}, {L.VX + 2048*w}
    s_lshl_b32 s{sTmp+1}, s{sH}, 12
    s_add_u32 s{sTmp+1}, s{sTmp+1}, s{sLay}
    s_add_u32 s{sKMn}, s{sTmp+1}, {L.KM + 512*w - 16}
    s_mov_b32 s{sKM}, {OOB}
    s_mov_b32 s{sKmask}, 0xff00ff00
    s_mov_b32 s{sKmask+1}, 0xff00ff00
    """)
    seq = main_seq(cfg)
    ldsm = [k for k in seq if plan[k][0] == 'l']
    def wr(buf, slot, half): return f'ds_read_b128 {R(buf+4*half,4)}, v{vWl} offset:{slot*2048+1024*half}'
    def tr2(dst, base, c, vreg): return '\n'.join(f'ds_read_b64_tr_b16 {R(dst+2*hf,2)}, v{vreg} offset:{base + c*512 + 32*hf}' for hf in range(2))
    def cst(dst, off): return f'ds_read_b128 {R(dst,4)}, v{vZ} offset:{off}'
    def pre_step():
        for i in range(2):
            for hf in range(2): a(wr(Wbuf[i], plan[ldsm[i]][1], hf))
        for i in range(0, 12, 2): a(f'v_mov_b64 {R(t+i,2)}, 0')
        a(f'v_lshlrev_b32 v{X1+2}, 1, v{vL16}\nv_lshrrev_b32 v{X1+3}, 1, v{vL16}')
        if w < 2 and cfg.kpos[w] == 2: a(f's_add_u32 s{sKX2}, s{sKX}, 4096')
        if w == 3:
            a(f'v_lshlrev_b32 v{X1+1}, 2, v{vL16}')
            if not cfg.integ: a(f's_mov_b32 s{sPfe}, s{sPf}')
            else:
                a(f"""
                s_add_u32 s{sTmp+2}, s{sStep}, s{sLv}
                s_add_u32 s{sTmp+3}, s{sTmp+2}, 2
                s_cmp_ge_u32 s{sKn}, s{sTmp+3}
                s_cselect_b32 s{sPfe}, s{sPf}, {OOB}
                s_add_u32 s{sTmp+2}, s{sTmp+2}, {cfg.flah}
                s_add_u32 s{sTmp+3}, s{sLv}, 64
                s_min_u32 s{sTmp+2}, s{sTmp+2}, s{sTmp+3}
                s_cmp_lt_u32 s{sKn}, s{sTmp+2}
                s_cselect_b32 s{sFl}, 1, 0
                """)
            a(f's_add_u32 s{sKX2}, s{sPfe}, 4096\ns_add_u32 s{sKX}, s{sPfe}, {L.VX - L.KX}\ns_add_u32 s{sRed}, s{sPfe}, {L.VX - L.KX + 4096}\ns_add_u32 s{sPf}, s{sPf}, 262144')
    if cfg.integ:
        if w == 3:
            a(f's_lshl_b32 s{sFh}, s{sH}, 7\ns_add_u32 s{sFh}, s{sFh}, {L.F_HEAD}')
            avail(0)
        if min(cfg.kpos) < 2: a('s_barrier')
    if w < 2 and cfg.kpos[w] < 2: kloads()
    pre_step()
    loop = a.lab('L_step')
    abuf_of = {}
    def aread(c, buf):
        abuf_of[c] = buf
        ds.issue(('A', c), f'ds_read_b128 {R(buf,4)}, v{vA} offset:{LD_MEM + c*512}')
    def head(nlate=0):
        a('s_barrier')
        stamp(a, cfg, 0); mark(a, cfg, 'B1')
        aread(0, Abuf[0])
        for i in range(nlate): a(f'buffer_load_dwordx4 v{vL16}, {WS}, s{sTmp} offen offset:{i*1024} sc1 lds')
        for c in range(1, 3): aread(c, Abuf[c])
    a('s_waitcnt vmcnt(0) lgkmcnt(0)')
    if cfg.log and w == 3:
        import workers
        workers.logtime(a, sFh, sLv, vM, vZ, 52)
    head()
    a(f'{loop}:')
    F = [Wbuf[0], Wbuf[0] + 4, Wbuf[1], Wbuf[1] + 4]
    lastuse = {}
    for i, key in enumerate(seq): lastuse[key[1]] = i
    pre = {}; mem = {}; val = {}
    def put(d, g, x):
        while d is not pre and g in d and g >= 0: g += 1
        d.setdefault(g, []).append(x); return g
    def vmem(x, tag='m'):
        def f():
            for y in x.split('|'):
                if y.startswith('buffer'): vm.issue(tag, y)
                else: a(y)
        return f
    vxl = [vmem(f'buffer_load_dwordx4 {R(VXr+4*i,4)}, v{X1+2}, {WS}, s{sVX} offen offset:{16*i} sc1', 'VX') for i in range(2)]
    if w < 2 and cfg.kpos[w] == 2:
        for c in range(4): put(mem, cfg.gkx[c], vmem(f'buffer_load_dwordx4 {R(KXr[c],4)}, v{vKX}, {WS}, s{sKX if c < 2 else sKX2} offen offset:{2048*(c&1)} sc1', 'KX'))
    for i, x in enumerate(vxl): put(mem, cfg.gv[w] + i, x)
    tail_pf = {}
    def tpf(k):
        for x in tail_pf.pop(k, []): x()
    if w == 3:
        g = cfg.gp + 9
        if cfg.pf:
            for i in range(4):
                x = vmem(f'buffer_load_dwordx2 {R(vM,2)}, v{X1+2}, {WS}, s{[sPfe, sKX2][i >> 1]} offen offset:{2048*(i&1)} sc1')
                if cfg.gk[i] < len(seq): put(mem, cfg.gk[i], x)
                else: tail_pf.setdefault(cfg.gk[i], []).append(x)
        if cfg.integ:
            sk = a.lab('L_nofl'); nf = a.lab('L_fl')
            put(pre, cfg.gfl, vmem(f's_cmp_lg_u32 s{sFl}, 0|s_cbranch_scc1 {nf}|{sk}:'))
            cold.append(lambda nf=nf, sk=sk: a(f'{nf}:\n{fload}\ns_branch {sk}'))
    gp = cfg.gp
    if cfg.pub:
        put(val, 2, f'v_cndmask_b32 v{X1}, 2.0, v{vPRx}, s[{sKmask}:{sKmask+1}]')
        put(mem, gp + cfg.gps * w, vmem(f'buffer_store_dwordx4 {R(X0,4)}, v{X1}, {WS}, s{sKM} offen sc1'))
        put(mem, gp + cfg.gpd + cfg.gps * w, vmem(f'buffer_store_dwordx2 {R(vVp,2)}, v{X1+3}, {WS}, s{sKM} offen offset:2064 sc1'))
    if red:
        put(val, cfg.gpo - 2, f'v_mov_b32 v{X1+2}, -1'); put(val, 4, f'v_lshlrev_b32 v{X1+1}, 2, v{vL16}')
        put(mem, cfg.gpo + 2 * w, vmem(f'buffer_store_dword v{X1+2}, v{X1+1}, {WS}, s{sPo} offen {st}'))
        put(mem, cfg.gpo + 5, vmem(f'buffer_store_dword v{X1+2}, v{vM}, {WS}, s{sRingPo} offen {st}'))
    if cfg.novm: mem = {}
    vm.q = ['late'] + vm.q
    put(pre, lastuse[5] - cfg.zoff, lambda: (mark(a, cfg, 'z0'), vm.wait('late'), mark(a, cfg, 'late'), a('s_barrier'), mark(a, cfg, 'Bz')))
    nl = len(ldsm)
    pendW = []; nextw = 2; mq = []
    for f in mem.pop(-1, []): f()
    ds.wait(('A', 0)); mark(a, cfg, 'A0')
    for i, key in enumerate(seq):
        m, c = key
        B = R(plan[key][1], 8) if plan[key][0] == 'r' else R(Wbuf[ldsm.index(key) % 2], 8)
        acc = {'q': accq, 'k': acck, 'v': accv}[m]
        a(f'{SM} {R(acc,4)}, {R(abuf_of[c],4)}, {B}, v{vIdx}')
        if i + 1 < len(seq):
            assert ('W', seq[i+1]) not in [p[0] for p in pendW], (w, i)
            ds.wait(('A', seq[i+1][1]), ('W', seq[i+1]))
        for f in pre.pop(i, []): f()
        if plan[key][0] == 'l' and nextw < nl:
            for hf in range(2): pendW.append((('W', ldsm[nextw]), wr(Wbuf[nextw % 2], plan[ldsm[nextw]][1], hf)))
            nextw += 1
        for f in mem.pop(i, []): mq.append((i, f))
        isA = lambda j: j < len(seq) and lastuse[seq[j][1]] == j and seq[j][1] + 3 < 18
        if isA(i): aread(c + 3, abuf_of[c]); used = True
        else: used = False
        def w_can_wait():
            j = i
            for tag, _ in pendW:
                j += 1
                while isA(j): j += 1
                if j > seq.index(tag[1]) - cfg.wlat: return False
            return True
        if not cfg.smart:
            if not used and pendW: ds.issue(*pendW.pop(0))
            while mq: mq.pop(0)[1]()
        else:
            if not used and mq and w_can_wait(): mq.pop(0)[1]()
            else:
                if not used and pendW: ds.issue(*pendW.pop(0))
                if mq and (i - mq[0][0] >= cfg.mlate or len(seq) - 1 - i < len(mq)): mq.pop(0)[1]()
        for x in val.pop(i, []): a(x)
        mark(a, cfg, f'm{i}')
    assert not pendW and not pre and not mem and not val and not mq, (pendW, pre, mem, val, mq)
    mark(a, cfg, 'mainend')
    dq = list(cfg.deferred); nxt = 3
    held = []
    def refill():
        nonlocal nxt
        if held and nxt < len(cfg.deferred): aread(cfg.deferred[nxt], held.pop(0)); nxt += 1
    def defer(n, valu=(), other=(), hold=0):
        nonlocal nxt
        valu = list(valu); other = list(other)
        for k in range(n):
            c = dq.pop(0)
            ds.wait(('A', c))
            a(f'{SM} {R(accv,4)}, {R(abuf_of[c],4)}, {R(plan[("v",c)][1],8)}, v{vIdx}')
            if k + 1 < n: ds.wait(('A', dq[0]))
            if k >= n - hold: held.append(abuf_of[c])
            if k < n - hold and nxt < len(cfg.deferred): aread(cfg.deferred[nxt], abuf_of[c]); nxt += 1
            elif other: other.pop(0)()
            if valu: a(valu.pop(0))
        for x in other: x()
        for x in valu: a(x)
    sh = cfg.sh
    defer(sh[0], [f'v_cvt_pk_bf16_f32 v{accq}, v{accq}, v{accq+1}', f'v_cvt_pk_bf16_f32 v{accq+1}, v{accq+2}, v{accq+3}'])
    a(f'v_cvt_pk_bf16_f32 v{acck}, v{acck}, v{acck+1}\nv_cvt_pk_bf16_f32 v{acck+1}, v{acck+2}, v{acck+3}')
    ds.issue('wq', f'ds_write_b64 v{vQW}, {R(accq,2)} offset:{LD_Q}')
    ds.issue('wk', f'ds_write_b64 v{vQW}, {R(acck,2)} offset:{LD_K}')
    mark(a, cfg, 'wk')
    tpf(50)
    defer(sh[1], hold=cfg.hold1 if w < 3 else 0)
    ds.wait('wk'); mark(a, cfg, 'preB2')
    a('s_barrier')
    stamp(a, cfg, 1); mark(a, cfg, 'B2')
    delay(a, cfg.pad)
    Sc, E = accq, acck
    ones = X0; O = X1
    if w < 3:
        fr = [lambda c=c: ds.issue(('F', c), tr2(F[c], LD_Q, c, vTR)) for c in range(4)]
        if cfg.sint:
            for _ in range(4 - sh[2]): fr.pop(0)()
            defer(sh[2], other=fr, hold=sh[2])
        else:
            for f in fr: f()
            defer(sh[2])
        vm.wait('KX'); mark(a, cfg, 'kx')
        ds.wait(('F', 0))
        for c in range(4):
            a(f'v_mfma_f32_16x16x32_bf16 {R(Sc,4)}, {R(KXr[c] if w < 2 else F[c],4)}, {R(F[c],4)}, {"0" if c == 0 else R(Sc,4)}')
            if c < 3: ds.wait(('F', c + 1))
            refill()
        defer(sh[3])
        mark(a, cfg, 'sc')
        if w == 2:
            for i in range(4): a(f'v_mul_f32 v{Sc+i}, s{sCs}, v{Sc+i}')
        for i in range(4): a(f'v_exp_f32 v{E+i}, v{Sc+i}')
        if not cfg.dump: a(f's_mov_b64 exec, s[{sMask}:{sMask+1}]')
        a(f'v_cvt_pk_bf16_f32 v{E}, v{E}, v{E+1}\nv_cvt_pk_bf16_f32 v{E+1}, v{E+2}, v{E+3}')
        ds.issue('wp', f'ds_write_b64 v{vPW}, {R(E,2)}')
        if not cfg.dump: a('s_mov_b64 exec, -1')
        mark(a, cfg, 'wp')
    else:
        if cfg.integ: avail(1)
        tpf(51)
        defer(sh[2] + sh[3])
        tpf(52)
        if cfg.acc == 2: accumulate()
    Obuf = Wbuf + ([KXr[0], KXr[2]] if w < 2 else [VXr])
    npre = 4 if w < 2 else 2
    ldso = [k for k in plan if k[0] == 'o' and plan[k][0] == 'l']
    opre = [lambda i=i, hf=hf: ds.issue(ldso[i], wr(Obuf[i], plan[ldso[i]][1], hf)) for i in range(npre) for hf in range(2)]
    other = [lambda: ds.issue('one', cst(ones, LD_ONE))] + opre[:cfg.npw]
    opre = opre[cfg.npw:]
    mska = [f'v_cndmask_b32 v{E+2}, v{vPRx}, 0, s[{sKmask}:{sKmask+1}]', f'v_cndmask_b32 v{E+3}, 0, v{vPRx}, s[{sKmask}:{sKmask+1}]']
    defer(len(dq), valu=mska, other=other)
    if 53 in tail_pf: delay(a, 16); tpf(53)
    ds.wait('wp'); mark(a, cfg, 'preB2b')
    lab_fb = a.lab('L_fallback'); lab_back = a.lab('L_fbret'); lab_last = a.lab('L_last'); lab_cont = a.lab('L_cont')
    a('s_barrier')
    stamp(a, cfg, 2); mark(a, cfg, 'B2b')
    Px = Abuf[0]; Ls = Abuf[1]; Pm = Abuf[2]
    acc = [accv, acck, Ls, accq, accv]
    hpost = [f's_add_u32 s{sHv}, s{sRc}, 1\nv_mov_b32 v{VXr+1}, s{sHv}', f's_mov_b64 exec, s[{sHm}:{sHm+1}]', f'buffer_store_byte v{VXr+1}, v{vHA}, {WS}, s{sHn} offen {st}', 's_mov_b64 exec, -1']
    nvx = 0; lab_cont2 = a.lab('L_cont2')
    def pv(first):
        nonlocal opre
        M16 = 'v_mfma_f32_16x16x16_bf16'; M32_ = 'v_mfma_f32_16x16x32_bf16'
        ds.issue('pm', f'ds_read_b64 {R(Pm,2)}, v{vPRm} offset:{LD_PM}')
        ds.issue('px', f'ds_read_b128 {R(Px,4)}, v{vPRx} offset:{LD_PX - 16}')
        assert cfg.npw <= 2 and not any(cfg.fills[:3])
        Pe, Po = Wbuf[1], Wbuf[1] + 4
        ds.issue('pe', f'ds_read_b128 {R(Pe,4)}, v{E+2} offset:{LD_PX - 16}')
        ds.issue('po', f'ds_read_b128 {R(Po,4)}, v{E+3} offset:{LD_PX - 16}')
        if first: a(f'v_cvt_pk_bf16_f32 v{vVp}, v{accv}, v{accv+1}\nv_cvt_pk_bf16_f32 v{vVp+1}, v{accv+2}, v{accv+3}')
        if first:
            nonlocal nvx
            nvx = len(vm.q) - 1 - max([i for i, x in enumerate(vm.q) if x == 'VX'] + [-1])
            if cfg.integ: a(f's_cmp_ge_u32 s{sStep}, {cfg.early}\ns_cbranch_scc1 {lab_last}\n{lab_cont}:')
            mark(a, cfg, 'v0'); vm.wait('VX'); mark(a, cfg, 'v1')
            if cfg.integ: a(f'{lab_cont2}:')
        op = opre if first else []
        def fill(n):
            for _ in range(n):
                if op: op.pop(0)()
        ds.wait('pm'); mark(a, cfg, 'px')
        a(f'{M16} {R(Ls,4)}, {R(ones,2)}, {R(Pm,2)}, 0')
        a(f'{M16} {R(O,4)}, {R(vVp,2)}, {R(Pm,2)}, 0')
        ds.wait('px'); fill(cfg.fills[0])
        a(f'{M32_} {R(Ls,4)}, {R(ones,4)}, {R(Px,4)}, {R(Ls,4)}')
        ds.wait('pe'); fill(cfg.fills[1])
        a(f'{M32_} {R(O,4)}, {R(VXr,4)}, {R(Pe,4)}, {R(O,4)}')
        ds.wait('po'); fill(cfg.fills[2])
        a(f'{M32_} {R(O,4)}, {R(VXr+4,4)}, {R(Po,4)}, {R(O,4)}')
        a(f'v_rcp_f32 v{Ls}, v{Ls}')
        for r in (acck, accv): a(f'v_mov_b64 {R(r,2)}, 0\nv_mov_b64 {R(r+2,2)}, 0')
        fill(cfg.fills[3])
        mark(a, cfg, 'rcp')
        for i in range(4): a(f'v_mul_f32 v{O+i}, v{O+i}, v{Ls}')
        a(f'v_cvt_pk_bf16_f32 v{Pm}, v{O}, v{O+1}\nv_cvt_pk_bf16_f32 v{Pm+1}, v{O+2}, v{O+3}')
        ds.issue('wo', f'ds_write_b64 v{vTO}, {R(Pm,2)} offset:{LD_O + 512*w}')
        mark(a, cfg, 'wo')
        fill(cfg.fills[4])
    pv(True)
    lo, hi = fbits(2.0 ** -60), fbits(2.0 ** 60)
    a(f'v_subrev_u32 v{Ls+1}, {hex(lo)}, v{Ls+1}\nv_cmp_lt_u32 vcc, {hex(hi - lo)}, v{Ls+1}')
    a(f'v_mov_b64 {R(Ls,2)}, 0\nv_mov_b64 {R(Ls+2,2)}, 0\ns_cbranch_vccnz {lab_fb}\n{lab_back}:')
    if cfg.hpos == -2 and w == 1 - cfg.poller and not cfg.noexch: a('\n'.join(hpost))
    a(f'v_mov_b64 {R(accq,2)}, 0\nv_mov_b64 {R(accq+2,2)}, 0')
    ds.wait('wo'); a('s_barrier')
    stamp(a, cfg, 3); mark(a, cfg, 'B3')
    Fo = [Abuf[0], Abuf[2], X0, X1]
    def fo(c): return (('F', c), f'ds_read_b128 {R(Fo[c],4)}, v{vPRx} offset:{LD_O + 512*c - 16}')
    for c in range(cfg.nfo): ds.issue(*fo(c))
    nexto = npre; gapq = []; pendW = [fo(c) for c in range(cfg.nfo, 4)]
    ndone = 2 * npre - len(opre)
    pendW += [(ldso[i // 2], wr(Obuf[i // 2], plan[ldso[i // 2]][1], i & 1)) for i in range(ndone, 2 * npre)]
    nb = len(Obuf)
    if npre < nb:
        for hf in range(2): pendW.append((ldso[nexto], wr(Obuf[nexto % nb], plan[ldso[nexto]][1], hf)))
        nexto += 1
    def finish(sl):
        ac = acc[sl]
        return [[f'v_cvt_pk_bf16_f32 v{ac}, v{ac}, v{ac+1}'], [f'v_cvt_pk_bf16_f32 v{ac+1}, v{ac+2}, v{ac+3}'],
                [f'buffer_store_dwordx2 {R(ac,2)}, v{vP}, {WS}, s{sP+sl} offen {st}']]
    zero = {}
    if NT[w] == 5: zero[8] = [f'v_mov_b64 {R(acc[4]+2,2)}, 0']; zero[12] = [f'v_mov_b64 {R(acc[4],2)}, 0']
    oseq = [('o', sl, c) for sl in range(NT[w]) for c in range(4)]
    hint = not cfg.noexch
    hr = VXr; ha = VXr + 7
    hload = f'buffer_load_dword v{hr}, v{ha}, {WS}, s{sHn} offen sc1'
    hq = {}
    if hint and w == 1 - cfg.poller:
        if cfg.hpos >= 0: hq[cfg.hpos] = hpost[1:]; a(hpost[0])
        elif cfg.hpos == -1: a('\n'.join(hpost))
    if hint and w == cfg.poller:
        zero[0] = [f'v_bfe_u32 v{ha}, v{vL16}, 2, 5']
        a(f'v_mov_b32 v{hr}, 0x00ff00ff')
        for gp_ in cfg.hgaps: hq[gp_] = [hload]
    ds.wait(('F', 0), oseq[0]); mark(a, cfg, 'F0')
    for i, key in enumerate(oseq):
        _, sl, c = key
        B = R(Obuf[ldso.index(key) % nb], 8) if plan[key][0] == 'l' else R(plan[key][1], 8)
        a(f'{SM} {R(acc[sl],4)}, {R(Fo[c],4)}, {B}, v{vIdx}')
        if i + 1 < len(oseq):
            assert oseq[i+1] not in [p[0] for p in pendW], (w, i)
            ds.wait(('F', oseq[i+1][2]), oseq[i+1])
        if plan[key][0] == 'l' and nexto < len(ldso):
            for hf in range(2): pendW.append((ldso[nexto], wr(Obuf[nexto % nb], plan[ldso[nexto]][1], hf)))
            nexto += 1
        busy = cfg.smart and (i in hq or (c == 3 and sl >= 1))
        if pendW and (not busy or pendW[0][0][0] == 'F' or oseq.index(pendW[0][0]) - i <= cfg.wlat): ds.issue(*pendW.pop(0))
        if c == 1 and sl >= 1: gapq += finish(sl - 1)
        for x in hq.get(i, []): a(x)
        if gapq:
            for x in gapq.pop(0): a(x)
        for x in zero.get(i, []): a(x)
        mark(a, cfg, f'o{i}')
    assert not pendW and not gapq
    mark(a, cfg, 'woend')
    Sel = X0; D = X1; ck = Abuf[2]
    a(f"""
    s_add_u32 s{sStep}, s{sStep}, 1
    s_add_u32 s{sRc}, s{sRc}, 1
    s_and_b32 s{sTmp}, s{sRc}, 3
    s_mul_i32 s{sGat}, s{sTmp}, 9216
    s_add_u32 s{sGat}, s{sGat}, {L.MR}
    s_add_u32 s{sRing}, s{sGat}, s{sUnit}
    s_add_u32 s{sGat}, s{sGat}, {g0*1024}
    """)
    if red: a(f'v_and_b32 v{ck}, 127, v{vL16}')
    if hint and w == cfg.poller: a(hload)
    for g in finish(NT[w] - 1):
        for x in g: a(x)
    stamp(a, cfg, 4); mark(a, cfg, 'pst')
    def scalars():
        if red:
            a(f"""
            s_xor_b32 s{sTmp}, s{sTmp}, 2
            s_mul_i32 s{sTmp}, s{sTmp}, 9216
            s_add_u32 s{sTmp}, s{sTmp}, {L.MR}
            s_add_u32 s{sRingPo}, s{sTmp}, s{sUnit}
            s_mov_b32 s{sPo}, s{sRed}
            """)
        for i in range(NT[w]): a(f's_add_u32 s{sP+i}, s{sP+i}, s{sPar}')
        a(f"""
        s_mov_b32 s{sKM}, s{sKMn}
        s_add_u32 s{sKMn}, s{sKMn}, 131072
        """)
    def rolling(dep, nld, loads, consume, gap, between=None):
        ok = a.lab('L_ok'); nx = a.lab('L_next')
        for k in range(dep):
            loads()
            if k == 0 and between: between()
            elif k + 1 < dep: delay(a, gap)
        consume(nld * (dep - 1))
        a(f's_cbranch_vccnz {nx}\n{ok}:')
        def rest():
            a(f'{nx}:'); loads(); budget(); consume(nld * (dep - 1)); a(f's_cbranch_vccz {ok}\ns_branch {nx}')
        cold.append(rest)
    def hint_wait(load, reg, comp=0):
        go = a.lab('L_go'); hl = a.lab('L_hint')
        A_, B_ = f's[{sTmp+2}:{sTmp+3}]', f's[{sTmp+4}:{sTmp+5}]'
        a(f's_and_b32 s{sHv}, s{sRc}, 255\ns_mul_i32 s{sHv}, s{sHv}, 0x01010101\ns_mov_b32 s{sHc}, {cfg.htry}\ns_mov_b64 {B_}, -1')
        def tries(n, tgt):
            nonlocal A_, B_
            for k in range(n):
                a(load if k % cfg.hun == 0 else 's_nop 0')
                a(f'v_cmp_ne_u32 {A_}, s{sHv}, v{reg}\ns_cmp_eq_u64 {B_}, 0\ns_cbranch_scc1 {tgt}')
                A_, B_ = B_, A_
        gc = a.lab('L_goc')
        if comp: tries(cfg.ncomp, go)
        a(f'{hl}:'); tries(8, gc)
        a(f's_sub_u32 s{sHc}, s{sHc}, 1\ns_cbranch_scc0 {hl}\n{gc}:')
        delay(a, comp)
        a(f'{go}:')
    def prep():
        a(f's_sub_u32 s{sPar}, 0, s{sPar}\ns_add_u32 s{sVX}, s{sVX}, 262144')
        if w < 2 and cfg.kpos[w] == 2: a(f's_add_u32 s{sKX}, s{sKX}, 262144')
        pre_step()
        a(tr2(X0, LD_Q, w, vTR))
    if red and not cfg.noexch:
        S_ = [Wbuf[0] + 4*i for i in range(4)]
        def loads():
            for i in range(4): a(f'buffer_load_dwordx4 {R(S_[i],4)}, v{vL16}, {WS}, s{sRed} offen offset:{i*1024} sc1')
        def consume(nafter):
            for i in range(4):
                a(f's_waitcnt vmcnt({3-i+nafter})' + (' lgkmcnt(0)' if i == 0 else ''))
                mark(a, cfg, f'r{i}')
                a(f'v_mfma_f32_16x16x32_bf16 {R(D,4)}, {R(S_[i],4)}, {R(Sel,4)}, {"0" if i == 0 else R(D,4)}')
                if i == 2: a(f'v_max3_u32 v{ck}, v{S_[0]}, v{S_[1]}, v{S_[2]}')
                if i == 3: a(f'v_max_u32 v{ck}, v{ck}, v{S_[3]}')
            a(f"""
            v_cmp_eq_u32 vcc, -1, v{ck}
            v_permlane32_swap_b32 v{D}, v{D+2}
            v_permlane32_swap_b32 v{D+1}, v{D+3}
            v_add_f32 v{D}, v{D}, v{D+2}
            v_add_f32 v{D+1}, v{D+1}, v{D+3}
            v_cvt_pk_bf16_f32 v{ck}, v{D}, v{D+1}
            """)
        a(f'ds_read_b128 {R(Sel,4)}, v{ck} offset:{LD_SEL}')
        post2 = f's_mov_b64 exec, s[{sHm}:{sHm+1}]\nbuffer_store_byte v{hr+1}, v{vHA}, {WS}, s{sH2} offen {st}\ns_mov_b64 exec, -1'
        if w == cfg.poller:
            a(f'v_mov_b32 v{hr+1}, s{sRc}')
            hint_wait(hload, hr, cfg.d_comp)
        if w == 0 and cfg.poller == 0:
            mark(a, cfg, 'go')
            if cfg.h2first: a(post2)
            loads()
            if not cfg.h2first: a(post2)
            a('s_barrier')
            scalars()
            ok = a.lab('L_ok'); nx = a.lab('L_next')
            consume(0 if cfg.h2first else 1)
            a(f's_cbranch_vccnz {nx}\n{ok}:')
            def rest(ok=ok, nx=nx):
                a(f'{nx}:'); loads(); budget(); consume(0); a(f's_cbranch_vccz {ok}\ns_branch {nx}')
            cold.append(rest)
        else:
            if w == cfg.poller:
                a('s_barrier'); a(post2); mark(a, cfg, 'go'); scalars()
            else:
                scalars(); a('s_barrier'); mark(a, cfg, 'go')
            delay(a, [cfg.d_redA, cfg.d_red, cfg.d_redC][w])
            mark(a, cfg, 'rstart')
            rolling(1, 4, loads, consume, 0)
        a(f'buffer_store_dword v{ck}, v{vM}, {WS}, s{sRing} offen {st}')
        stamp(a, cfg, 5); mark(a, cfg, 'ring')
        if w < 2 and cfg.kpos[w] == 1: kloads()
        a(f's_add_u32 s{sRed}, s{sRed}, s{sPar}')
    else:
        if hint: a('s_barrier'); mark(a, cfg, 'go')
        if cfg.trace and w == 3:
            a(f's_memtime s[{sTmp+4}:{sTmp+5}]\ns_waitcnt lgkmcnt(0)\nv_writelane_b32 v{X1}, s{sTmp+4}, 1\ns_lshl_b32 s{sTmp+5}, s{sH}, 8\ns_lshl_b32 s{sTmp+4}, s{sStep}, 2\ns_add_u32 s{sTmp+4}, s{sTmp+4}, s{sTmp+5}\ns_add_u32 s{sTmp+4}, s{sTmp+4}, {L.STAMP+16384-4}')
            a(f's_mov_b64 exec, 2\nbuffer_store_dword v{X1}, v{vZ}, {WS}, s{sTmp+4} offen\ns_mov_b64 exec, -1')
        scalars()
        if cfg.integ and w == 3:
            sk = a.lab('L_nolv')
            a(f's_cmp_eq_u32 s{sFl}, 0\ns_cbranch_scc1 {sk}\ns_waitcnt vmcnt({NT[w]})'); level(); a(f'{sk}:')
    prep()
    if cfg.acc == 1: accumulate()
    if getattr(cfg, 'dbgmark', None) and w == 2 and not red:
        for word, val in ((6, 1), (7, 8), (8, 63), (9, 64), (10, 71), (11, 126)):
            sk_ = a.lab('L_dm')
            a(f's_lshl_b32 s99, s{sH}, 8\ns_add_u32 s99, s99, s{sRc}\ns_cmp_lg_u32 s99, {16*256 + val}\ns_cbranch_scc1 {sk_}')
            cfg.dbgmark(a, word, VXr)
            if val in (8, 63): cfg.dbgmark(a, 12 if val == 8 else 13, VXr + 2, 's_memtime')
            a(f'{sk_}:')
    if cfg.log and w == 2:
        import workers
        a(f's_add_u32 s99, s{sStep}, s{sLv}\ns_lshl_b32 s{sFh}, s{sH}, 7\ns_add_u32 s{sFh}, s{sFh}, {L.F_HEAD}')
        workers.logtime(a, sFh, 99, vKX, vZ, 52)
        workers.logtime(a, sFh, 99, vKX, vZ, 56, 's_memtime')
    lab_join = a.lab('L_join')
    if not cfg.noexch:
        a(f's_mov_b32 s{sVer}, 0')
        if w == 3:
            a(f'v_bfe_u32 v{ha}, v{vL16}, 2, 5\nv_mov_b32 v{hr}, 0x00ff00ff\ns_mov_b32 m0, {LD_MEM}\ns_sub_u32 s{sTmp}, s{sGat}, {g0*1024}')
            if cfg.d_idle: a(f's_sleep {cfg.d_idle}')
            hint_wait(f'buffer_load_dword v{hr}, v{ha}, {WS}, s{sH2} offen sc1', hr)
            mark(a, cfg, 'go2')
            cw = a.lab('L_cw'); cb = a.lab('L_cb')
            a(f's_cmp_le_u32 s{sRc}, {cfg.ncold}\ns_cbranch_scc1 {cw}\n{cb}:')
            cold.append(lambda cw=cw, cb=cb: a(f'{cw}:\ns_sleep {cfg.scold}\ns_branch {cb}'))
            delay(a, cfg.d_go2 - 2)
            mark(a, cfg, 'gstart')
            for i in range(4): a(f'buffer_load_dwordx4 v{vL16}, {WS}, s{sTmp} offen offset:{i*1024} sc1 lds')
        l0, ln = LATE[w]
        a(f's_mov_b32 m0, {LD_MEM + 1024*l0}\ns_add_u32 s{sTmp}, s{sGat}, {(l0 - g0)*1024 & 0xffffffff}')
        a('s_waitcnt vmcnt(0) lgkmcnt(0)' if w == 3 else 's_waitcnt lgkmcnt(0)')
        mark(a, cfg, 'gok')
    else: a('s_waitcnt lgkmcnt(0)')
    ds.clear(); vm.clear()
    head(0 if cfg.noexch else LATE[w][1])
    ds.clear()
    if cfg.trace and w == 3 and False:
        a(f's_memtime s[{sTmp+4}:{sTmp+5}]\ns_waitcnt lgkmcnt(0)\nv_writelane_b32 v{vM}, s{sTmp+4}, 1\ns_lshl_b32 s{sTmp+5}, s{sH}, 8\ns_lshl_b32 s{sTmp+4}, s{sStep}, 2\ns_add_u32 s{sTmp+4}, s{sTmp+4}, s{sTmp+5}\ns_add_u32 s{sTmp+4}, s{sTmp+4}, {L.STAMP+16384-4}')
        a(f's_mov_b64 exec, 2\nbuffer_store_dword v{vM}, v{vZ}, {WS}, s{sTmp+4} offen\ns_mov_b64 exec, -1')
    if cfg.integ: a(f's_sub_u32 s{sBud}, s{sBud}, 1\ns_cbranch_scc0 {loop}\ns_branch {exit_label}')
    else: a(f's_cmp_lt_u32 s{sStep}, {cfg.nsteps}\ns_cbranch_scc1 {loop}\ns_branch {lab_join}')
    for f in cold: f()
    lab_tm = a.lab('L_truemax'); lp = a.lab('L_regather')
    a(f'{lab_fb}:\ns_cmp_lg_u32 s{sVer}, 0\ns_cbranch_scc1 {lab_tm}\ns_mov_b32 s{sVer}, 1\ns_mov_b32 s{sKM}, {OOB}')
    if cfg.stamps or cfg.trace: a(f's_add_u32 s{sSt+2}, s{sSt+2}, 64')
    if cfg.acc: a(f's_add_u32 s{sSt+1}, s{sSt+1}, 1')
    if w == 3: a(f's_sub_u32 s{sPf}, s{sPf}, 262144')
    a(f's_waitcnt lgkmcnt(0)\n{lp}:'); gloads(); budget(); a('s_waitcnt vmcnt(0)')
    regs = [r + j for r in GL for j in range(4)]
    a(f'v_max_u32 v{X1}, v{regs[0]}, v{regs[1]}')
    for i in range(2, len(regs), 2): a(f'v_max3_u32 v{X1}, v{X1}, v{regs[i]}, v{regs[i+1]}')
    a(f'v_cmp_eq_u32 vcc, -1, v{X1}\ns_cbranch_vccnz {lp}')
    for i in range(gn): a(gwrite(i))
    pre_step()
    a('s_waitcnt lgkmcnt(0)'); ds.clear(); head(); ds.clear(); a(f's_branch {loop}')
    a(f'{lab_tm}:\ns_waitcnt lgkmcnt(0)\ns_barrier')
    saved = list(ds.q); ds.clear()
    m0, m1 = E, E + 1
    if w < 3:
        a(f"""
        v_max3_f32 v{m0}, v{Sc}, v{Sc+1}, v{Sc+2}
        v_max_f32 v{m0}, v{m0}, v{Sc+3}
        v_mov_b32 v{m1}, v{m0}
        s_mov_b64 exec, s[{sMask}:{sMask+1}]
        ds_write_b64 v{vPW}, {R(m0,2)}
        s_mov_b64 exec, -1
        """)
    a('s_waitcnt lgkmcnt(0)\ns_barrier')
    if w < 3:
        a(f"""
        v_subrev_u32 v{m0}, 16, v{vPRx}
        v_lshrrev_b32 v{m0}, 1, v{m0}
        v_and_b32 v{m0}, 127, v{m0}
        ds_read_b128 {R(Px,4)}, v{vPRx} offset:{LD_PX - 16}
        ds_read_b64 {R(Pm,2)}, v{m0} offset:{LD_PM}
        s_waitcnt lgkmcnt(0)
        v_max3_f32 v{m0}, v{Px}, v{Px+2}, v{Pm}
        v_mov_b32 v{m1}, v{m0}
        v_permlane32_swap_b32 v{m0}, v{m1}
        v_max_f32 v{m0}, v{m0}, v{m1}
        v_mov_b32 v{m1}, v{m0}
        v_permlane16_swap_b32 v{m0}, v{m1}
        v_max_f32 v{Px}, v{m0}, v{m1}
        """)
        for i in range(4): a(f'v_sub_f32 v{E+i}, v{Sc+i}, v{Px}')
        for i in range(4): a(f'v_exp_f32 v{E+i}, v{E+i}')
        a(f'v_cvt_pk_bf16_f32 v{E}, v{E}, v{E+1}\nv_cvt_pk_bf16_f32 v{E+1}, v{E+2}, v{E+3}')
    a('s_barrier')
    if w < 3: a(f's_mov_b64 exec, s[{sMask}:{sMask+1}]\nds_write_b64 v{vPW}, {R(E,2)}\ns_mov_b64 exec, -1')
    a(cst(ones, LD_ONE)); a('\n'.join(mska))
    a('s_waitcnt lgkmcnt(0)\ns_barrier')
    fine_save = cfg.fine; cfg.fine = []
    pv(False)
    cfg.fine = fine_save
    ds.clear()
    a(f'v_mov_b64 {R(Ls,2)}, 0\nv_mov_b64 {R(Ls+2,2)}, 0\ns_waitcnt lgkmcnt(0)\ns_branch {lab_back}')
    if cfg.integ:
        a(f"""
        {lab_last}:
        {tr2(Ls, LD_Q, w, vTR)}
        v_lshlrev_b32 v{X1}, 16, v{vVp}
        v_lshlrev_b32 v{X1+1}, 16, v{vVp+1}
        v_and_b32 v{X1+2}, 0xffff0000, v{vVp}
        v_and_b32 v{X1+3}, 0xffff0000, v{vVp+1}
        v_cmp_u_f32 vcc, v{X1}, v{X1+1}
        v_cmp_u_f32 s[{sTmp}:{sTmp+1}], v{X1+2}, v{X1+3}
        v_lshrrev_b32 v{X1+3}, 1, v{vL16}
        s_or_b64 vcc, vcc, s[{sTmp}:{sTmp+1}]
        s_cselect_b32 s{sTmp}, s{sVer}, 1
        s_cmp_eq_u32 s{sTmp}, 0
        s_waitcnt lgkmcnt(0)
        s_cbranch_scc1 {lab_cont}
        s_waitcnt vmcnt({nvx})
        buffer_store_dwordx2 {R(vVp,2)}, v{X1+3}, {WS}, s{sKMn} offen offset:2064 sc1
        s_waitcnt lgkmcnt(0)
        s_mov_b64 exec, s[{sKmask}:{sKmask+1}]
        buffer_store_dwordx4 {R(Ls,4)}, v{vPRx}, {WS}, s{sKMn} offen sc1
        s_mov_b64 exec, -1
        s_cmp_lt_u32 s{sStep}, 63
        s_cbranch_scc1 {lab_cont2}
        s_waitcnt vmcnt(0)
        s_barrier
        """)
    else:
        a(f"""
        {lab_join}:
        s_waitcnt vmcnt(0) lgkmcnt(0)
        {tr2(X0, LD_Q, w, vTR)}
        v_lshrrev_b32 v{X1+3}, 1, v{vL16}
        s_waitcnt lgkmcnt(0)
        s_mov_b64 exec, s[{sKmask}:{sKmask+1}]
        buffer_store_dwordx4 {R(X0,4)}, v{vPRx}, {WS}, s{sKM} offen sc1
        s_mov_b64 exec, -1
        buffer_store_dwordx2 {R(vVp,2)}, v{X1+3}, {WS}, s{sKM} offen offset:2064 sc1
        s_waitcnt vmcnt(0)
        s_barrier
        """)

VARIANTS = [(0, True), (1, True), (2, True), (2, False), (3, False)]

def emit_dispatch(a, labels):
    a(f'''
    s_cmp_eq_u32 s{sW}, 0
    s_cbranch_scc1 {labels[0]}
    s_cmp_eq_u32 s{sW}, 1
    s_cbranch_scc1 {labels[1]}
    s_cmp_eq_u32 s{sW}, 3
    s_cbranch_scc1 {labels[4]}
    s_cmp_lt_u32 s{sH}, 8
    s_cbranch_scc1 {labels[2]}
    s_branch {labels[3]}
    ''')
```

```python
from asmdsl import *
import layout as L
from chain import Q, srd, fbits, SCALE_LOG2E, OOB

SCALE_B = (18 ** -0.5) * 1.4426950408889634
sWS = 8; sT = 12; sRole = 16; sW = 17; sBud = 19
sLv = 48
sLay = 49
sX = 20
sY = 24
sS = 28; sNeed = 29; sKnown = 30; sOut = 31; sSig = 32; sPoll = 33; sSrc = 34; sM0 = 35; sDel = 36; sFv = 37
sTmp = 38
sId = 50; sPar = 51; sMul = 52; sStride = 53; sA = 54; sB = 55; sC = 56; sD = 57; sTeam = 58; sSigPrev = 59
sE = 60
sFlag = 62; sN = 63; sJ = 64; sI = 65
sL1 = 70
sKd = 71; sLev = 72; sAct = 73; sTile = 74; sFoT = 75
WS = f's[{sWS}:{sWS+3}]'
vL16 = 0; vLane = 1; vF = 2; vFa = 3

def base_regs(a):
    a(f'v_mbcnt_lo_u32_b32 v{vLane}, -1, 0\nv_mbcnt_hi_u32_b32 v{vLane}, -1, v{vLane}\nv_lshlrev_b32 v{vL16}, 4, v{vLane}')

def budget(a, ex): a(f's_sub_u32 s{sBud}, s{sBud}, 1\ns_cbranch_scc1 {ex}')

def poll(a, ex, mask, vaddr, soff, need, x2=False, sleep=2, vtmp=vF, allload=False):
    lp = a.lab('L_poll'); dn = a.lab('L_polled')
    if isinstance(mask, int): a(f's_mov_b32 exec_lo, {hex(mask & 0xffffffff)}\ns_mov_b32 exec_hi, {hex(mask >> 32)}')
    else: a(f's_mov_b64 exec, {mask}')
    a(f'{lp}:')
    if x2:
        if allload: a('s_mov_b32 exec_hi, -1')
        a(f'buffer_load_dwordx2 {R(vtmp,2)}, v{vaddr}, {WS}, s{soff} offen sc1\ns_waitcnt vmcnt(0)\nv_min_u32 v{vtmp}, v{vtmp}, v{vtmp+1}')
        if allload: a(f's_mov_b32 exec_hi, {hex(mask >> 32)}')
    else:
        a(f'buffer_load_dword v{vtmp}, v{vaddr}, {WS}, s{soff} offen sc1\ns_waitcnt vmcnt(0)')
    a(f'v_cmp_gt_u32 vcc, s{need}, v{vtmp}\ns_cbranch_vccz {dn}\ns_sleep {sleep}')
    budget(a, ex)
    a(f's_branch {lp}\n{dn}:\ns_mov_b64 exec, -1')

def signal(a, soff, sval, vtmp=vF, mask=1, vaddr=vL16):
    a(f'v_mov_b32 v{vtmp}, s{sval}\ns_mov_b64 exec, {mask}\nbuffer_store_dword v{vtmp}, v{vaddr}, {WS}, s{soff} offen sc1\ns_mov_b64 exec, -1')
    if DEBUG: logtime(a, soff, sval, vtmp, vL16)

DEBUG = False
TOT = False
DBGM = None
PROF = False
def prof(a, i):
    if PROF: a(f's_memtime s[94:95]\ns_waitcnt lgkmcnt(0)\ns_sub_u32 s95, s94, s79\ns_mov_b32 s79, s94\ns_add_u32 s{80+i}, s{80+i}, s95')
def prof_dump(a, slot):
    if not PROF: return
    for i in range(12): a(f'v_writelane_b32 v2, s{80+i}, {i}\ns_mov_b32 s{80+i}, 0')
    a(f'''
    s_lshl_b32 s94, s{sRole}, 2
    s_add_u32 s94, s94, s{sW}
    s_lshl_b32 s94, s94, 2
    s_lshr_b32 s95, s{sLv}, 5
    s_add_u32 s94, s94, s95
    s_add_u32 s94, s94, {slot}
    s_lshl_b32 s94, s94, 6
    s_add_u32 s94, s94, {L.STAMP + 8*1024*1024}
    v_lshlrev_b32 v3, 2, v{vLane}
    s_mov_b64 exec, 0xfff
    buffer_store_dword v2, v3, {WS}, s94 offen
    s_mov_b64 exec, -1
    s_waitcnt vmcnt(0)
    ''')
def logtime(a, soff, sval, vtmp, vzero, extra=0, clk='s_memrealtime'):
    a(f'''
    {clk} s[96:97]
    s_sub_u32 s98, s{soff}, {L.FLAGS - extra}
    s_cmp_lt_u32 s98, 16384
    s_cselect_b32 s98, s98, 16384
    s_lshl_b32 s98, s98, 6
    s_add_u32 s98, s98, s{sval}
    s_lshl_b32 s98, s98, 2
    s_add_u32 s98, s98, {L.STAMP}
    s_waitcnt lgkmcnt(0)
    v_mov_b32 v{vtmp}, s96
    s_mov_b64 exec, 1
    buffer_store_dword v{vtmp}, v{vzero}, {WS}, s98 offen
    s_mov_b64 exec, -1
    ''')

def load_ptr_srd(a, s, karg, size):
    a(f's_load_dwordx2 s[{sTmp+6}:{sTmp+7}], s[0:1], {karg}\ns_waitcnt lgkmcnt(0)')
    srd(a, s, sTmp + 6, size)

def ws_srd(a, s, off_sgpr, off_const, size):
    a(f's_add_u32 s{sTmp+6}, s{off_sgpr}, {off_const}\ns_add_u32 s{s}, s{sWS}, s{sTmp+6}\ns_addc_u32 s{s+1}, s{sWS+1}, 0\ns_mov_b32 s{s+2}, {size}\ns_mov_b32 s{s+3}, 0x20000')

WA = lambda ks: 256 + 4 * ks
WF = lambda ks: 400 + 4 * ks if ks < 28 else 224 + 4 * (ks - 28)
CS = 208
LD_PV = 0
LD_X = 1024
M32 = 'v_mfma_f32_32x32x16_bf16'

def one_wave(a, fn):
    sk = a.lab('L_ow')
    a(f's_cmp_lg_u32 s{sW}, 0\ns_cbranch_scc1 {sk}'); fn(); a(f'{sk}:\ns_barrier')

def gemm_load_weights(a, fo, rowstride, pair=False):
    t = 4
    lp = a.lab('L_wl')
    a(f"""
    v_lshrrev_b32 v{t}, 2, v{vLane}
    v_mul_u32_u24 v{t}, {rowstride}, v{t}
    v_and_b32 v{t+1}, 3, v{vLane}
    v_lshl_add_u32 v{t}, v{t+1}, 4, v{t}
    {f'v_lshrrev_b32 v{t+2}, 1, v{t+1}' if pair else ''}
    {f'v_lshl_add_u32 v{t}, v{t+2}, 2, v{t}' if pair else ''}
    s_mul_i32 s{sM0}, s{sW}, 36864
    s_mov_b32 s{sB}, s{sM0}
    s_mov_b32 s{sC}, 36
    {lp}:
    s_mov_b32 m0, s{sM0}
    s_add_u32 s{sM0}, s{sM0}, 1024
    buffer_load_dwordx4 v{t}, s[{sT}:{sT+3}], s{sA} offen lds
    s_add_u32 s{sA}, s{sA}, {16*rowstride}
    s_sub_u32 s{sC}, s{sC}, 1
    s_cmp_lg_u32 s{sC}, 0
    s_cbranch_scc1 {lp}
    v_bfe_u32 v{t+3}, v{vLane}, 4, 1
    v_lshlrev_b32 v{t+3}, 5, v{t+3}
    v_lshl_add_u32 v{t+3}, v{t+1}, 3, v{t+3}
    v_add_u32 v{t+3}, s{sB}, v{t+3}
    v_lshrrev_b32 v{t+2}, 5, v{vLane}           ; kh
    v_bfe_u32 v{t+4}, v{vLane}, 2, 2            ; r'
    v_lshl_add_u32 v{t+5}, v{t+2}, {2 if fo else 3}, v{t+4}
    v_lshl_add_u32 v{t+5}, v{t+5}, 6, v{t+3}
    """)
    if fo:
        a(f"""
        v_lshrrev_b32 v{t+6}, 1, v{t+4}
        v_lshl_add_u32 v{t+6}, v{t+2}, 2, v{t+6}
        v_mul_u32_u24 v{t+6}, 18, v{t+6}
        v_and_b32 v{t+4}, 1, v{t+4}
        v_add3_u32 v{t+6}, v{t+6}, v{t+4}, 16
        v_lshl_add_u32 v{t+6}, v{t+6}, 6, v{t+3}
        """)
    a('s_waitcnt vmcnt(0)')
    for ks in range(36):
        for hf in range(2):
            if not fo: dst, va, off = WA(ks), t + 5, (16*ks + 4*hf) * 64
            elif ks < 32: dst, va, off = WF(ks), t + 5, (18*ks + 8*hf) * 64
            else: dst, va, off = WF(ks), t + 6, 18 * (8*(ks-32) + 2*hf) * 64
            a(f'ds_read_b64_tr_b16 {R(dst+2*hf,2)}, v{va} offset:{off}')
        if ks % 4 == 3: a('s_waitcnt lgkmcnt(0)')
    a('s_barrier')

def bv_load_weights(a):
    t = 4
    a(f"""
    v_lshrrev_b32 v{t}, 3, v{vLane}
    v_mul_u32_u24 v{t}, 3456, v{t}
    v_and_b32 v{t+1}, 7, v{vLane}
    v_lshlrev_b32 v{t+2}, 4, v{t+1}
    v_add_u32 v{t+2}, 2304, v{t+2}
    v_mov_b32 v{t+3}, {1152 + 32}
    v_cmp_eq_u32 vcc, 3, v{t+1}
    v_cndmask_b32 v{t+2}, v{t+2}, 32, vcc
    v_cmp_lt_u32 vcc, 3, v{t+1}
    v_cndmask_b32 v{t+2}, v{t+2}, v{t+3}, vcc
    v_add_u32 v{t}, v{t}, v{t+2}
    v_bfe_u32 v{t+2}, v{vLane}, 4, 1
    v_and_b32 v{t+3}, 3, v{vLane}
    v_lshl_add_u32 v{t+2}, v{t+2}, 2, v{t+3}
    v_cmp_eq_u32 vcc, 7, v{t+2}
    v_cndmask_b32 v{t+2}, v{t+2}, 8, vcc
    v_lshrrev_b32 v{t+3}, 5, v{vLane}
    v_bfe_u32 v{t+4}, v{vLane}, 2, 2
    v_lshl_add_u32 v{t+3}, v{t+3}, 3, v{t+4}
    v_lshlrev_b32 v{t+3}, 7, v{t+3}
    v_lshl_add_u32 v{t+2}, v{t+2}, 3, v{t+3}
    s_mul_i32 s{sB}, s{sW}, 36864
    v_add_u32 v{t+2}, s{sB}, v{t+2}
    s_mul_i32 s{sA}, s{sId}, 36
    """)
    for ps in range(2):
        lp = a.lab('L_bvl')
        a(f"""
        s_mov_b32 s{sM0}, s{sB}
        s_mov_b32 s{sC}, 36
        {lp}:
        s_mov_b32 m0, s{sM0}
        s_add_u32 s{sM0}, s{sM0}, 1024
        buffer_load_dwordx4 v{t}, s[{sT}:{sT+3}], s{sA} offen lds
        s_add_u32 s{sA}, s{sA}, {8*3456}
        s_sub_u32 s{sC}, s{sC}, 1
        s_cmp_lg_u32 s{sC}, 0
        s_cbranch_scc1 {lp}
        s_waitcnt vmcnt(0)
        """)
        for ks in range(18):
            for hf in range(2): a(f'ds_read_b64_tr_b16 {R(WA(18*ps+ks)+2*hf,2)}, v{t+2} offset:{(16*ks + 4*hf) * 128}')
            if ks % 3 == 2: a('s_waitcnt lgkmcnt(0)')
    a('s_barrier')

def stat_addr(a, dst, tmp):
    a(f'v_bfe_u32 v{tmp}, v{vLane}, 4, 1\nv_lshrrev_b32 v{dst}, 5, v{vLane}\nv_lshl_add_u32 v{dst}, v{tmp}, 1, v{dst}\nv_and_b32 v{tmp}, 15, v{vLane}\nv_lshlrev_b32 v{tmp}, 2, v{tmp}\nv_lshl_add_u32 v{dst}, v{dst}, 6, v{tmp}')

def add_residual(a, PK, RES, n, T):
    for i in range(n):
        a(f"""
        v_lshlrev_b32 v{T}, 16, v{RES+i}
        v_and_b32 v{T+1}, 0xffff0000, v{RES+i}
        v_lshlrev_b32 v{T+2}, 16, v{PK+i}
        v_and_b32 v{T+3}, 0xffff0000, v{PK+i}
        v_add_f32 v{T}, v{T}, v{T+2}
        v_add_f32 v{T+1}, v{T+1}, v{T+3}
        v_cvt_pk_bf16_f32 v{PK+i}, v{T}, v{T+1}
        """)

def row_stats(a, PK, n, T):
    a(f's_mov_b32 s{sTmp}, 0x3f803f80')
    for i in range(n):
        a(f'v_dot2_f32_bf16 v{T}, v{PK+i}, s{sTmp}, {"0" if i == 0 else f"v{T}"}\nv_dot2_f32_bf16 v{T+1}, v{PK+i}, v{PK+i}, {"0" if i == 0 else f"v{T+1}"}')
    a(f'v_permlane32_swap_b32 v{T}, v{T+1}\nv_add_f32 v{T}, v{T}, v{T+1}')

vR = 4; vSt = 5; vSa = 6; vPo = 7; vTl = 8; vOut = 9; vGo = 10
FB = [12 + 4 * i for i in range(4)]
ACC = 28; TMP = 44; PKR = 84; RES = 92; SP = 100

def mfma_loop(a, kind, wreg, gap, c0='0'):
    ds = Q(a, 'lgkmcnt', 15)
    def rd(ks):
        if kind == 'FO' and ks >= 32:
            for hf in range(2): ds.issue(ks, f'ds_read2_b32 {R(FB[ks%4]+2*hf,2)}, v{vTl} offset0:{64*hf} offset1:{64*hf+32}')
            if ks < 35: a(f'v_add_u32 v{vTl}, 1024, v{vTl}')
        else: ds.issue(ks, f'ds_read_b128 {R(FB[ks%4],4)}, v{vR} offset:{ks*1024}')
    for ks in range(3): rd(ks)
    ds.wait(0)
    for ks in range(36):
        W_, F_ = R(wreg(ks), 4), R(FB[ks % 4], 4)
        x, y = (W_, F_) if kind in ('T', 'BT', 'FO') else (F_, W_)
        a(f'{M32} {R(ACC,16)}, {x}, {y}, {c0 if ks == 0 else R(ACC,16)}')
        if ks + 1 < 36: ds.wait(ks + 1)
        if ks + 3 < 36: rd(ks + 3)
        gap(ks, ds)

def ln_phase(a, kind, ex):
    lead = kind in ('T', 'N')
    nd = 11 if lead else 12
    npart = 18 if lead else 36
    mean, rs = TMP + 32, TMP + 33
    for i in range(4): a(f'v_mov_b32 v{FB[0]+i}, 0x3f803f80')
    for ks in range(36):
        W_, O_ = R(WA(ks), 4), R(FB[0], 4)
        x, y = (W_, O_) if kind in ('T', 'BT') else (O_, W_)
        a(f'{M32} {R(CS,16)}, {x}, {y}, {"0" if ks == 0 else R(CS,16)}')
    stat_addr(a, vSt, TMP)
    a(f"""
    v_add_u32 v{vSt}, {LD_X + 36864}, v{vSt}
    v_add_u32 v{vR}, {LD_X}, v{vL16}
    v_lshlrev_b32 v{vFa}, 2, v{vLane}
    s_lshl_b32 s{sTmp}, s{sW}, 8
    v_add_u32 v{vSa}, s{sTmp}, v{vFa}
    v_lshrrev_b32 v{TMP}, 5, v{vLane}
    v_lshl_add_u32 v{vPo}, v{TMP}, 4, s{sTmp}
    s_mul_i32 s{sTmp}, s{sW}, 3072
    v_add_u32 v{vTl}, s{sTmp}, v{vL16}
    s_add_u32 s{sM0}, s{sTmp}, {LD_X}
    s_mov_b32 s{sX+2}, {36864 + 256*npart}
    s_mov_b32 s{sX+3}, 0x20000
    s_mov_b32 s{sDel}, 49152
    s_mov_b32 s{sSigPrev}, {OOB}
    s_mov_b32 s{sS}, {0 if lead else f's{sPar}'}
    s_mov_b32 s{sKnown}, 0
    s_mov_b32 s{sFv}, 0
    s_mul_i32 s{sTile}, s{sW}, {(nd - 12) * 1024 & 0xffffffff}
    s_add_u32 s{sTile}, s{sTile}, 36864
    """)
    nst = nd - 9
    def dma(i):
        st_, j = (3, i) if i < nst else divmod(i - nst, 3)
        o = []
        if j == 0:
            if st_ == 3: o = [f's_add_u32 m0, s{sM0}, s{sTile}']
            else: o = [f's_add_u32 m0, s{sM0}, {12288*st_}'] + ([f's_movk_i32 s{sA}, {12288*st_}'] if st_ else [])
        so = f's{sTile}' if st_ == 3 else (f's{sA}' if st_ else '0')
        return o + [f'buffer_load_dwordx4 v{vTl}, s[{sX}:{sX+3}], {so} offen offset:{1024*j} sc1 lds']
    def seg_srd(seg): a(f's_mul_i32 s{sD}, s{seg}, {L.XSEG}\ns_add_u32 s{sD}, s{sD}, s{sSrc}\ns_add_u32 s{sX}, s{sWS}, s{sD}\ns_addc_u32 s{sX+1}, s{sWS+1}, 0')
    LD_GO = LD_X + 2 * 49152
    nsig = 2 if DEBUG else 1
    def sig():
        signal(a, sSigPrev, sFv, mask=15 if lead else 0x101 if kind == 'BT' else 1, vaddr=vFa if lead else vL16)
        a(f's_mov_b32 s{sSigPrev}, {OOB}')
    def look(seg):
        if lead: a(f's_lshl_b32 s{sPoll}, s{seg}, 5\ns_add_u32 s{sPoll}, s{sPoll}, s{sFlag}\nbuffer_load_dword v{vOut}, v{vFa}, {WS}, s{sPoll} offen sc1')
        else: a(f'buffer_load_dword v{vOut}, v{vFa}, {WS}, s{sFlag} offen sc1')
    def judge(seg):
        if lead:
            a(f"""
            v_cmp_gt_u32 vcc, s{sL1}, v{vOut}
            s_and_b64 vcc, vcc, s[{sE}:{sE+1}]
            s_ff1_i32_b64 s{sTmp}, vcc
            s_lshr_b32 s{sTmp}, s{sTmp}, 3
            s_min_u32 s{sTmp}, s{sTmp}, 8
            s_add_u32 s{sTmp}, s{sTmp}, s{seg}
            s_max_u32 s{sKnown}, s{sKnown}, s{sTmp}
            s_min_u32 s{sKnown}, s{sKnown}, 64
            """)
        else:
            a(f's_add_u32 s{sTmp}, s{seg}, s{sLv}\nv_cmp_ge_u32 vcc, s{sTmp}, v{vOut}\ns_add_u32 s{sTmp}, s{seg}, 1\ns_and_b64 vcc, vcc, s[{sE}:{sE+1}]\ns_cselect_b32 s{sKnown}, 0, s{sTmp}')
    def share(): a(f'v_mov_b32 v{vF}, s{sKnown}\nds_write_b32 v{vGo}, v{vF}\ns_waitcnt lgkmcnt(0)')
    loop = a.lab('L_seg'); slow = a.lab('L_slow'); fetch = a.lab('L_fetch'); plain = a.lab('L_plain'); epi = a.lab('L_epi')
    a(f"""
    v_mov_b32 v{vGo}, {LD_GO}
    s_mov_b32 s{sE}, {0x1f1f1f1f if lead else 0xffffff}
    s_mov_b32 s{sE+1}, {0x1f1f1f1f if lead else 0}
    s_lshl_b32 s{sFlag}, s{sPar}, 7
    s_add_u32 s{sFlag}, s{sFlag}, {L.F_X if lead else L.F_WO}
    s_cmp_eq_u32 s{sW}, 0
    s_cselect_b32 s{sFlag}, s{sFlag}, {OOB}
    s_cselect_b32 s{sSig}, s{sSig}, {OOB}
    """)
    vXw, vXr = 108, 109; PO = 112
    one_wave(a, lambda: wait_marks(a, ex, None if lead else 1))
    if kind == 'BN':
        a(f"""
        s_lshl_b32 s{sTmp}, s{sW}, 9
        s_add_u32 s{sTmp}, s{sTmp}, {LD_GO + 64}
        v_bfe_u32 v{TMP}, v{vLane}, 2, 1
        v_and_b32 v{TMP+1}, 1, v{vLane}
        v_lshl_add_u32 v{TMP}, v{TMP}, 1, v{TMP+1}
        v_lshrrev_b32 v{TMP+1}, 5, v{vLane}
        v_lshl_add_u32 v{vXw}, v{TMP+1}, 4, s{sTmp}
        v_lshl_add_u32 v{vXw}, v{TMP}, 7, v{vXw}
        v_lshl_add_u32 v{vXr}, v{TMP+1}, 7, v{vFa}
        v_add_u32 v{vXr}, s{sTmp}, v{vXr}
        """)
    seg_srd(sS)
    a(f'{slow}:'); prof(a, 0)
    look(sS)
    a('s_waitcnt vmcnt(0)\ns_barrier'); sig()
    def block():
        lp = a.lab('L_bl'); dn = a.lab('L_bld')
        a(f'{lp}:'); judge(sS)
        a(f's_cmp_lt_u32 s{sS}, s{sKnown}\ns_cbranch_scc1 {dn}\ns_sleep 1'); look(sS); budget(a, ex)
        a(f's_waitcnt vmcnt(0)\ns_branch {lp}\n{dn}:'); share()
    one_wave(a, block)
    a(f'ds_read_b32 v{vF}, v{vGo}\ns_mov_b32 s{sAct}, 2')
    prof(a, 1)
    a(f'{fetch}:')
    for i in range(nd): a('\n'.join(dma(i)))
    a(f's_waitcnt vmcnt(6) lgkmcnt(0)\nv_readfirstlane_b32 s{sKnown}, v{vF}\ns_cmp_eq_u32 s{sAct}, 2\ns_cbranch_scc1 {loop}\ns_barrier'); sig()
    a(f'{loop}:\ns_barrier\ns_add_u32 s{sN}, s{sS}, {1 if lead else 2}')
    prof(a, 2)
    nr = npart // 2
    nout = 16
    def body(pre):
        fin = f"""v_add_f32 v{mean}, v{mean}, v{rs}
            v_mul_f32 v{mean}, {hex(fbits(1.0/576))}, v{mean}
            v_mov_b32 v{rs}, v{mean}
            -
            v_permlane32_swap_b32 v{mean}, v{rs}
            v_fma_f32 v{rs}, -v{mean}, v{mean}, v{rs}
            v_max_f32 v{rs}, 0, v{rs}
            -
            v_add_f32 v{rs}, {hex(fbits(1e-5))}, v{rs}
            v_rsq_f32 v{rs}, v{rs}
            -""".split('\n')
        per = 3 if lead else 2 if kind == 'BT' else 4
        if kind in ('T', 'BT'):
            fin += [f'v_mul_f32 v{rs}, s{sC}, v{rs}', f'v_mul_f32 v{mean}, v{mean}, v{rs}']
            for r in range(nout): fin += (['-'] if r % per == 0 else []) + [f'v_mul_f32 v{TMP+16+r}, v{mean}, v{CS+r}']
        else:
            fin += [f'v_mul_f32 v{mean}, v{mean}, v{rs}', f'v_cmp_gt_u32 vcc, 32, v{vLane}', '-', f'v_cndmask_b32 v{mean}, v{mean}, v{rs}, vcc', f'*ds_write_b32 v{vSa}, v{mean} offset:{LD_PV}']
            for g in (4, 5, 6, 7, 0, 1, 2, 3): fin += (['-'] if g % 2 == 0 or lead else []) + [f'*ds_read_b128 {R(TMP+4*g,4)}, v{vPo} offset:{LD_PV + 32*g}']
            for r in range(16): fin += (['-', '!'] if r == 0 else ['-'] if r % per == 0 else []) + [f'v_mul_f32 v{TMP+16+r}, v{CS}, v{TMP+16+r}']
        fin = [x.strip() for x in fin]
        nv = 0
        def gap(ks, ds):
            nonlocal nv
            if ks < nr: ds.issue(('s', ks), f'ds_read2st64_b32 {R(SP+2*(ks%4),2)}, v{vSt} offset0:{2*ks} offset1:{2*ks+1}')
            if ks == 0: seg_srd(sN)
            if ks == 1: a(f's_add_u32 s{sM0}, s{sM0}, s{sDel}')
            if pre and ks >= 9 and ks % 2 == 1 and (ks - 9) // 2 < nd: a('\n'.join(dma((ks - 9) // 2))); nv += 1
            k = ks - 3
            if 0 <= k < nr:
                ds.wait(('s', k))
                if k == 0: a(f'v_mov_b64 {R(mean,2)}, {R(SP,2)}')
                else: a(f'v_add_f32 v{mean}, v{mean}, v{SP+2*(k%4)}\nv_add_f32 v{rs}, v{rs}, v{SP+2*(k%4)+1}')
            if k >= nr:
                while fin:
                    x = fin.pop(0)
                    if x == '-': break
                    if x == '!': ds.wait('pv')
                    elif x[0] == '*': ds.issue('pv', x[1:])
                    else: a(x)
            if ks in (8, 20): a(f's_waitcnt vmcnt({(3 if ks == 8 else 0) + nv})\ns_barrier')
            if lead and ks == 22: look(sN); nv = 0
            if lead and ks == 24: sig(); nv += nsig
        mfma_loop(a, kind, WA, gap)
        assert not fin, fin
        return nv
    if lead:
        a(f's_cmp_lt_u32 s{sN}, s{sKnown}\ns_cselect_b32 s{sAct}, 1, 0\ns_cbranch_scc0 {plain}')
        nvp = body(True)
        a(f's_branch {epi}\n{plain}:')
    body(False)
    a(f'{epi}:')
    prof(a, 5)
    a(f's_mul_i32 s{sD}, s{sS}, s{sMul}\ns_add_u32 s{sD}, s{sD}, s{sOut}\ns_add_u32 s{sA}, s{sD}, s{sB}')
    a(f's_add_u32 s{sFv}, s{sS}, s{sLv}\ns_add_u32 s{sFv}, s{sFv}, 1')
    if kind == 'BN': a(f's_mul_i32 s{sTmp+1}, s{sS}, 1152\ns_add_u32 s{sTmp+1}, s{sTmp+1}, s{sStride}')
    a(f's_mov_b32 s{sS}, s{sN}')
    a(f'v_add_u32 v{vR}, s{sDel}, v{vR}\nv_add_u32 v{vSt}, s{sDel}, v{vSt}\ns_sub_u32 s{sDel}, 0, s{sDel}\ns_mov_b32 s{sSigPrev}, s{sSig}')
    for G in range(2):
        rr = range(8 * G, 8 * G + 8)
        for r in rr: a(f'v_fma_f32 v{ACC+r}, v{ACC+r}, v{rs if kind in ("T", "BT") else TMP+r}, -v{TMP+16+r}')
        if kind == 'BN':
            a('s_mov_b32 exec_lo, 0x33000000\ns_mov_b32 exec_hi, 0x33000000')
            for g in (2 * G, 2 * G + 1): a(f'ds_write_b128 v{vXw}, {R(ACC+4*g,4)} offset:{32*g}')
            a('s_mov_b64 exec, -1')
            if G: a(f'ds_read2_b32 {R(TMP,2)}, v{vXr} offset0:0 offset1:32')
        for r in rr[::2]: a(f'v_cvt_pk_bf16_f32 v{PKR+r//2}, v{ACC+r}, v{ACC+r+1}')
        if kind == 'BN':
            a(f's_mov_b32 exec_lo, {1 << 18}\ns_mov_b32 exec_hi, {1 << 18}')
            for i in range(4): a(f'v_mov_b32 v{PKR+4*G+i}, 0x3f803f80')
            a('s_mov_b64 exec, -1')
        a(f'buffer_store_dwordx4 {R(PKR+4*G,4)}, v{vL16}, {WS}, s{sA if G else sD} offen sc1')
    if kind == 'BN':
        a(f"""
        s_mov_b32 exec_lo, 0
        s_waitcnt lgkmcnt(0)
        v_mul_f32 v{TMP}, s{sC}, v{TMP}
        v_mul_f32 v{TMP+1}, s{sC}, v{TMP+1}
        v_cvt_pk_bf16_f32 v{TMP+2}, v{TMP}, v{TMP+1}
        buffer_store_dword v{TMP+2}, v{vFa}, {WS}, s{sD} offen offset:{2048 - 128} sc1
        s_not_b64 exec, exec
        v_cvt_pk_bf16_f32 v{TMP+3}, v{TMP}, v{TMP+1}
        buffer_store_dword v{TMP+3}, v{vFa}, {WS}, s{sTmp+1} offen offset:1024 sc1
        s_mov_b64 exec, -1
        """)
    prof(a, 6)
    if lead:
        np_ = a.lab('L_np'); jd = a.lab('L_jd')
        a(f's_cmp_eq_u32 s{sAct}, 0\ns_cbranch_scc1 {np_}\ns_add_u32 s{sTmp}, s{sS}, 1\ns_cmp_lt_u32 s{sTmp}, s{sKnown}\ns_waitcnt vmcnt({nvp + 2})\ns_cbranch_scc1 {loop}\ns_branch {jd}')
        a(f'{np_}:\ns_waitcnt vmcnt({nsig + 2})\n{jd}:')
        one_wave(a, lambda: (judge(sS), share()))
        a(f'ds_read_b32 v{vF}, v{vGo}\ns_waitcnt lgkmcnt(0)\nv_readfirstlane_b32 s{sKnown}, v{vF}')
        a(f's_cmp_lg_u32 s{sAct}, 0\ns_cbranch_scc1 {loop}\ns_cmp_lt_u32 s{sS}, s{sKnown}\ns_cbranch_scc1 {fetch}')
    a(f's_cmp_lt_u32 s{sS}, 64\ns_cbranch_scc1 {slow}')
    a('s_waitcnt vmcnt(0)\ns_barrier'); sig()
    a('s_waitcnt vmcnt(0)\ns_barrier')

def natural_order(a, PK):
    for G in range(2):
        for i in range(2): a(f'v_permlane32_swap_b32 v{PK+4*G+i}, v{PK+4*G+2+i}')

def fo_phase(a, ex):
    stat_addr(a, vSt, TMP)
    a(f"""
    v_add_u32 v{vR}, {LD_X}, v{vL16}
    v_and_b32 v{TMP}, 31, v{vLane}
    v_lshrrev_b32 v{TMP+1}, 5, v{vLane}
    v_lshlrev_b32 v{vSa}, 2, v{TMP}
    v_lshl_add_u32 v{vSa}, v{TMP+1}, 9, v{vSa}
    v_add_u32 v{vSa}, {LD_X + 32768}, v{vSa}
    v_mul_u32_u24 v{vOut}, 1152, v{TMP}
    v_lshl_add_u32 v{vOut}, v{TMP+1}, 4, v{vOut}
    v_and_b32 v{TMP}, 15, v{vLane}
    v_lshrrev_b32 v{TMP+1}, 4, v{vLane}
    v_lshlrev_b32 v{vFa}, 3, v{TMP}
    v_lshl_add_u32 v{vFa}, v{TMP+1}, 11, v{vFa}
    s_lshl_b32 s{sPoll}, s{sTeam}, 7
    s_add_u32 s{sPoll}, s{sPoll}, {L.F_OB}
    s_lshl_b32 s{sTmp}, s{sW}, 10
    s_add_u32 s{sM0}, s{sTmp}, {LD_X}
    s_mul_i32 s{sSrc}, s{sTeam}, 36864
    s_add_u32 s{sOut}, s{sSrc}, 0
    s_add_u32 s{sSrc}, s{sSrc}, s{sTmp}
    s_add_u32 s{sSrc}, s{sSrc}, s{sLay}
    s_add_u32 s{sSrc}, s{sSrc}, {L.OB}
    s_lshl_b32 s{sTmp}, s{sFoT}, 6
    s_add_u32 s{sOut}, s{sOut}, s{sTmp}
    s_mul_i32 s{sB}, s{sTeam}, {L.XSEG}
    s_lshl_b32 s{sTmp}, s{sFoT}, 8
    s_add_u32 s{sC}, s{sB}, s{sTmp}
    s_lshl_b32 s{sTmp}, s{sFoT}, 11
    s_add_u32 s{sB}, s{sB}, s{sTmp}
    s_cmp_ge_u32 s{sFoT}, 18
    s_cselect_b32 s{sOut}, {OOB}, s{sOut}
    s_cselect_b32 s{sB}, {OOB}, s{sB}
    s_cselect_b32 s{sC}, {OOB}, s{sC}
    s_lshl_b32 s{sSig}, s{sTeam}, 3
    s_lshr_b32 s{sTmp}, s{sFoT}, 2
    s_add_u32 s{sSig}, s{sSig}, s{sTmp}
    s_lshl_b32 s{sSig}, s{sSig}, 2
    s_add_u32 s{sSig}, s{sSig}, {L.F_X}
    s_add_u32 s{sTmp}, s{sW}, {0 if DEBUG else f's{sLv}'}
    s_cmp_eq_u32 s{sTmp}, 0
    s_cselect_b32 s{sSig}, s{sSig}, {OOB}
    s_add_u32 s{sFv}, s{sL1}, 1
    """)
    vm = Q(a, 'vmcnt', 63)
    def dma(r, i):
        a(f's_add_u32 m0, s{sM0}, {36864*r + 4096*i}\ns_add_u32 s{sA}, s{sSrc}, {16*36864*r + 4096*i}')
        vm.issue(('d', r, i // 3), f'buffer_load_dwordx4 v{vL16}, {WS}, s{sA} offen sc1 lds')
    def res(r):
        a(f's_add_u32 s{sA}, s{sB}, s{sLay}\ns_add_u32 s{sA}, s{sA}, {L.X1 + 16*L.XSEG*r}')
        for G in range(2): vm.issue(('r', r), f'buffer_load_dwordx4 {R(RES+4*G,4)}, v{vL16}, {WS}, s{sA} offen offset:{1024*G} sc1')
    def sig(r):
        vm.wait('o'); a('s_barrier')
        a(f's_add_u32 s{sTmp+1}, s{sSig}, {16*32*r}'); signal(a, sTmp + 1, sFv)
        vm.q += ['s'] * (2 if DEBUG else 1)
    LD_GO = LD_X + 4 * 36864
    a(f'v_mov_b32 v{vGo}, {LD_GO}')
    def first():
        poll(a, ex, (1 << 48) - 1, vFa, sPoll, sL1, x2=True, sleep=1, vtmp=TMP, allload=True)
        a(f'v_cmp_gt_u32 vcc, s{sL1}, v{TMP}\nv_mov_b32 v{vF}, vcc_hi\nds_write_b32 v{vGo}, v{vF}\ns_waitcnt lgkmcnt(0)')
    CI = 108
    def unpack():
        o = [f'v_permlane32_swap_b32 v{RES+4*G+i}, v{RES+4*G+2+i}' for G in range(2) for i in range(2)]
        for i in range(8): o += [f'v_lshlrev_b32 v{CI+2*i}, 16, v{RES+i}', f'v_and_b32 v{CI+2*i+1}, 0xffff0000, v{RES+i}']
        return o
    def rnd(r, pre):
        prof(a, 0)
        fresh = r == 0 or (r == 3 and not pre)
        if fresh:
            if r == 3: sig(2)
            one_wave(a, first if r == 0 else lambda: poll(a, ex, 0xffff << 48, vFa, sPoll, sL1, x2=True, sleep=1, vtmp=TMP))
            prof(a, 1)
            if r == 0: res(0)
            for i in range(9): dma(r, i)
            if r == 0:
                a(f'ds_read_b32 v{vF}, v{vGo}\ns_waitcnt lgkmcnt(0)\nv_readfirstlane_b32 s{sAct}, v{vF}')
                vm.wait(('r', 0)); a('\n'.join(unpack()))
            vm.wait(('d', r, 0))
        else:
            vm.wait(('d', r, 2))
        a(f's_barrier\nv_mov_b32 v{vTl}, v{vSa}')
        prof(a, 2)
        up = unpack() if r < 3 else []
        def gap(ks, ds):
            if ks == 1 and r < 3: res(r + 1)
            if fresh and ks in (8, 20): vm.wait(('d', r, 1 if ks == 8 else 2)); a('s_barrier')
            if (r in (0, 1) or (r == 2 and pre)) and ks >= 6 and ks % 3 == 0 and ks < 33: dma(r + 1, ks // 3 - 2)
            if ks == 22 and not fresh: sig(r - 1)
            if ks >= 25:
                vm.wait(('r', r + 1))
                for _ in range(2):
                    if up: a(up.pop(0))
        mfma_loop(a, 'FO', WF, gap, R(CI, 16))
        assert not up
        prof(a, 5)
        a(f'v_add_u32 v{vR}, 36864, v{vR}\nv_add_u32 v{vSa}, 36864, v{vSa}')
        a(f's_add_u32 s{sA}, s{sB}, {L.LSTRIDE + L.X0 + 16*L.XSEG*r}\ns_add_u32 s{sD}, s{sOut}, {16*36864*r}')
        for i in range(8): a(f'v_cvt_pk_bf16_f32 v{PKR+i}, v{ACC+2*i}, v{ACC+2*i+1}')
        natural_order(a, PKR)
        last = a.lab('L_folast'); dn = a.lab('L_fodn')
        a(f's_cmp_lg_u32 s{sLv}, 0\ns_cbranch_scc1 {last}')
        for G in range(2): a(f'buffer_store_dwordx4 {R(PKR+4*G,4)}, v{vL16}, {WS}, s{sA} offen offset:{1024*G} sc1')
        row_stats(a, PKR, 8, TMP)
        a(f's_add_u32 s{sA}, s{sC}, {L.LSTRIDE + L.X0 + 16*L.XSEG*r + 36864}\ns_branch {dn}')
        a(f'{last}:')
        for G in range(2): a(f'buffer_store_dwordx4 {R(PKR+4*G,4)}, v{vOut}, s[{sY}:{sY+3}], s{sD} offen offset:{32*G}')
        a(f's_mov_b32 s{sA}, {OOB}\n{dn}:\nbuffer_store_dword v{TMP}, v{vSt}, {WS}, s{sA} offen sc1')
        vm.q += ['o', 'o', 'o']
        prof(a, 7)
    rnd(0, False); rnd(1, False)
    late = a.lab('L_folate'); fin = a.lab('L_fofin')
    a(f's_cmp_lg_u32 s{sAct}, 0\ns_cbranch_scc1 {late}')
    q0 = list(vm.q)
    rnd(2, True); rnd(3, True)
    a(f's_branch {fin}\n{late}:')
    vm.q = q0
    rnd(2, False); rnd(3, False)
    a(f'{fin}:')
    sig(3)
    a('s_waitcnt vmcnt(0)\ns_barrier')

def pre_phase(a):
    stat_addr(a, vSt, TMP)
    a(f"""
    v_and_b32 v{TMP}, 31, v{vLane}
    v_lshrrev_b32 v{TMP+1}, 5, v{vLane}
    v_mul_u32_u24 v{vOut}, 1152, v{TMP}
    v_lshl_add_u32 v{vOut}, v{TMP+1}, 4, v{vOut}
    s_lshr_b32 s{sTmp}, s{sW}, 1
    s_lshl_b32 s{sTmp}, s{sTmp}, 5
    s_add_u32 s{sS}, s{sId}, s{sTmp}
    s_and_b32 s{sTmp}, s{sW}, 1
    s_mul_i32 s{sTile}, s{sTmp}, 9
    s_mul_i32 s{sA}, s{sS}, 36864
    s_lshl_b32 s{sTmp}, s{sTile}, 6
    s_add_u32 s{sA}, s{sA}, s{sTmp}
    s_mul_i32 s{sB}, s{sS}, {L.XSEG}
    s_add_u32 s{sB}, s{sB}, {L.X0}
    s_lshl_b32 s{sTmp}, s{sTile}, 8
    s_add_u32 s{sC}, s{sB}, s{sTmp}
    s_add_u32 s{sC}, s{sC}, 36864
    s_lshl_b32 s{sTmp}, s{sTile}, 11
    s_add_u32 s{sB}, s{sB}, s{sTmp}
    """)
    D = 48
    for i in range(18): a(f'buffer_load_dwordx4 {R(D+4*i,4)}, v{vOut}, s[{sX}:{sX+3}], s{sA} offen offset:{32*i}')
    a('s_waitcnt vmcnt(0)')
    for tl in range(9):
        for G in range(2): a(f'buffer_store_dwordx4 {R(D+8*tl+4*G,4)}, v{vL16}, {WS}, s{sB} offen offset:{1024*G} sc1')
        row_stats(a, D + 8 * tl, 8, 12 + 2 * tl)
        a(f'buffer_store_dword v{12+2*tl}, v{vSt}, {WS}, s{sC} offen offset:{256*tl} sc1\ns_add_u32 s{sB}, s{sB}, 2048')
    a(f"""
    s_waitcnt vmcnt(0)
    s_barrier
    s_lshl_b32 s{sA}, s{sS}, 5
    s_add_u32 s{sA}, s{sA}, {L.F_X}
    s_cmp_eq_u32 s{sTile}, 0
    s_cselect_b32 s{sA}, s{sA}, {OOB}
    v_mov_b32 v{vF}, 1
    v_lshlrev_b32 v{vFa}, 2, v{vLane}
    s_mov_b64 exec, 31
    buffer_store_dword v{vF}, v{vFa}, {WS}, s{sA} offen sc1
    s_mov_b64 exec, -1
    """)

NPOIS = 48; NPOIS2 = 32; POI_WAIT = True
SENT = 4
def poison_phase(a, part):
    load_ptr_srd(a, sT, 88, 256)
    a(f"""
    v_mov_b64 v[4:5], -1
    v_mov_b64 v[6:7], -1
    s_lshl_b32 s{sA}, s{sTile}, 2
    s_add_u32 s{sA}, s{sA}, s{sW}
    s_lshl_b32 s{sA}, s{sA}, 12
    """)
    def region(base, n):
        lp = a.lab('L_poi')
        a(f's_add_u32 s{sB}, s{sA}, {base}\n{lp}:')
        for i in range(4): a(f'buffer_store_dwordx4 v[4:7], v{vL16}, {WS}, s{sB} offen offset:{1024*i} sc1')
        a(f's_add_u32 s{sB}, s{sB}, {(NPOIS, NPOIS2, NPOIS2)[part]*4*4096}\ns_cmp_lt_u32 s{sB}, {base + n}\ns_cbranch_scc1 {lp}')
    if part == 0: region(L.KM, 2048 * 4096)
    elif part == 1: region(L.QB, 2048 * 1152); region(L.KVB, 2048 * L.KVT)
    else:
        for base, n in ((L.KM, 2048 * 4096), (L.QB, 2048 * 1152), (L.KVB, 2048 * L.KVT)): region(L.LSTRIDE + base, n)
    a(f"""
    s_waitcnt vmcnt(0)
    s_barrier
    v_mov_b32 v8, 1
    s_cmp_eq_u32 s{sW}, 0
    s_cselect_b32 s{sB}, 0, {OOB}
    s_add_u32 s{sC}, s{sB}, {L.F_POI + 128 * part}
    s_mov_b64 exec, 1
    {f'buffer_atomic_add v8, v{vL16}, s[{sT}:{sT+3}], s{sB} offen offset:{L.D_POI}' if part == 0 else ''}
    buffer_atomic_add v8, v{vL16}, {WS}, s{sC} offen
    s_mov_b64 exec, -1
    """)

def wait_marks(a, ex, part):
    a(f's_mov_b32 s{sTmp}, {L.F_POI + 128 * (part or 0)}\ns_cmp_eq_u32 s{sLv}, 0\ns_cselect_b32 s{sTmp}, s{sTmp}, {L.F_POI + 256}\ns_cselect_b32 s{sNeed}, {0 if part is None else (NPOIS, NPOIS2)[part]}, {NPOIS2}')
    poll(a, ex, 1, vL16, sTmp, sNeed, sleep=32)

def att_phase(a, ex):
    vKa = 4; vVa = 5; m0 = 6; m1 = 7; vWr = 202
    MK = 8; KMr = 120; VMr = 152; Sx = 160; Sm = 176; Px = 192; Pm = 200; PO = 204
    Qr = 256; Kr = 288; Vr = 320
    O = [24, 40, 56, 72]; PKo = 88; LDm = 24
    a(f"""
    v_lshlrev_b32 v{vFa}, 2, v{vLane}
    s_lshl_b32 s{sTmp}, s{sW}, 12
    v_add_u32 v{vWr}, s{sTmp}, v{vL16}
    v_lshrrev_b32 v{m0}, 5, v{vLane}
    v_and_b32 v{m1}, 7, v{vLane}
    v_lshlrev_b32 v{m1}, 4, v{m1}
    v_lshl_add_u32 v{vKa}, v{m0}, 7, v{m1}
    v_add_u32 v{vKa}, s{sTmp}, v{vKa}
    v_and_b32 v{m1}, 1, v{vLane}
    v_lshl_add_u32 v{m1}, v{m1}, 1, v{m0}
    v_lshlrev_b32 v{m1}, 4, v{m1}
    v_bfe_u32 v{vVa}, v{vLane}, 1, 4
    v_add_lshl_u32 v{vVa}, v{vVa}, v{m1}, 3
    v_add_u32 v{vVa}, s{sTmp}, v{vVa}
    v_and_b32 v{m1}, 31, v{vLane}
    v_lshlrev_b32 v{m0}, 2, v{m0}
    v_sub_u32 v{m1}, v{m1}, v{m0}
    v_mov_b32 v{m0}, 0xff800000
    v_mov_b64 {R(PO,2)}, -1
    v_mov_b64 {R(PO+2,2)}, -1
    """)
    for r in range(16):
        a(f'v_cmp_le_i32 vcc, {8*(r>>2) + (r&3)}, v{m1}\nv_cndmask_b32 v{MK+r}, v{m0}, 0, vcc')
    a(f"""
    s_mov_b32 s{sS}, s{sPar}
    s_lshl_b32 s{sPoll}, s{sId}, 7
    s_add_u32 s{sPoll}, s{sPoll}, {L.F_HEAD}
    s_lshl_b32 s{sSig}, s{sPar}, 5
    s_add_u32 s{sSig}, s{sSig}, s{sId}
    s_lshl_b32 s{sSig}, s{sSig}, 2
    s_add_u32 s{sSig}, s{sSig}, {L.F_ATT}
    s_mov_b32 s{sC}, {fbits(SCALE_LOG2E)}
    s_mov_b32 s{sKnown}, 0
    s_mov_b32 s{sSigPrev}, {OOB}
    s_mov_b32 s{sFv}, 0
    """)
    one_wave(a, lambda: wait_marks(a, ex, 0))
    loop = a.lab('L_att')
    a(f'{loop}:\ns_add_u32 s{sNeed}, s{sS}, s{sLv}\ns_add_u32 s{sNeed}, s{sNeed}, 1')
    prof(a, 0)
    hv = a.lab('L_ahv')
    a(f's_cmp_le_u32 s{sNeed}, s{sKnown}\ns_cbranch_scc1 {hv}\ns_waitcnt vmcnt(0)')
    signal(a, sSigPrev, sFv)
    poll(a, ex, 0xfff, vFa, sPoll, sNeed)
    a(f's_mov_b32 s{sSigPrev}, {OOB}\ns_mov_b64 exec, 0xfff')
    for d in (2, 4, 8, 16, 32):
        a(f's_add_u32 s{sTmp}, s{sNeed}, {d}\nv_cmp_gt_u32 vcc, s{sTmp}, v{vF}\ns_cmp_eq_u64 vcc, 0\ns_cselect_b32 s{sKnown}, s{sTmp}, s{sKnown}')
    a(f's_add_u32 s{sTmp}, s{sLv}, 64\nv_cmp_gt_u32 vcc, s{sTmp}, v{vF}\ns_cmp_eq_u64 vcc, 0\ns_cselect_b32 s{sKnown}, s{sTmp}, s{sKnown}\ns_mov_b64 exec, -1\n{hv}:')
    prof(a, 1)
    a(f"""
    s_lshl_b32 s{sTmp}, s{sS}, 5
    s_add_u32 s{sTmp}, s{sTmp}, s{sId}
    s_lshl_b32 s{sA}, s{sTmp}, 13
    s_add_u32 s{sA}, s{sA}, s{sLay}
    s_lshl_b32 s{sB}, s{sTmp}, 12
    s_add_u32 s{sB}, s{sB}, s{sLay}
    s_add_u32 s{sB}, s{sB}, {L.KM}
    """)
    for base, reg in ((L.QX, Qr), (L.KX, Kr), (L.VX, Vr)):
        for hf in range(2):
            a(f's_add_u32 s{sTmp}, s{sA}, {base + 4096*hf}')
            for i in range(4): a(f'buffer_load_dwordx4 {R(reg+16*hf+4*i,4)}, v{vL16}, {WS}, s{sTmp} offen offset:{1024*i} sc1')
        if reg == Qr:
            a('s_waitcnt vmcnt(8)'); signal(a, sSigPrev, sFv)
    a('s_waitcnt vmcnt(8)')
    for f in range(8): a(f'{M32} {R(Sx,16)}, {R(Kr+4*f,4)}, {R(Qr+4*f,4)}, {R(MK,16) if f == 0 else R(Sx,16)}')
    a(f'v_max3_f32 v{m0}, v{Sx}, v{Sx+1}, v{Sx+2}')
    for r in range(3, 15, 2): a(f'v_max3_f32 v{m0}, v{m0}, v{Sx+r}, v{Sx+r+1}')
    a(f'v_max_f32 v{m0}, v{m0}, v{Sx+15}')
    prof(a, 2)
    lp = a.lab('L_km'); dn = a.lab('L_kmd'); sp = a.lab('L_kms')
    if SENT:
        a(f's_cmp_ge_u32 s{sS}, 63\ns_cbranch_scc1 {lp}\ns_mov_b64 exec, 1\n{sp}:\ns_sleep {SENT}\nbuffer_load_dword v{m1}, v{vL16}, {WS}, s{sB} offen offset:4092 sc1')
        budget(a, ex)
        a(f's_waitcnt vmcnt(0)\nv_cmp_eq_u32 vcc, -1, v{m1}\ns_cbranch_vccnz {sp}\ns_mov_b64 exec, -1')
    a(f'{lp}:')
    for i in range(4): a(f'buffer_load_dwordx4 {R(LDm+4*i,4)}, v{vL16}, {WS}, s{sB} offen offset:{1024*i} sc1')
    budget(a, ex)
    a(f's_waitcnt vmcnt(0)\nv_max3_u32 v{m1}, v{LDm}, v{LDm+1}, v{LDm+2}')
    for i in range(3, 15, 2): a(f'v_max3_u32 v{m1}, v{m1}, v{LDm+i}, v{LDm+i+1}')
    a(f'v_max_u32 v{m1}, v{m1}, v{LDm+15}\nv_cmp_eq_u32 vcc, -1, v{m1}\ns_cbranch_vccz {dn}\ns_sleep 2\ns_branch {lp}\n{dn}:')
    prof(a, 3)
    for i in range(4): a(f'ds_write_b128 v{vWr}, {R(LDm+4*i,4)} offset:{1024*i}')
    for f in range(8): a(f'ds_read_b128 {R(KMr+4*f,4)}, v{vKa} offset:{256*f}')
    for f in range(8):
        a(f's_waitcnt lgkmcnt({7 - f + min(f, 4)})\n{M32} {R(Sm,16)}, {R(KMr+4*f,4)}, {R(Qr+4*f,4)}, {"0" if f == 0 else R(Sm,16)}')
        if f < 4: a(f'ds_read_b64 {R(VMr+2*f,2)}, v{vVa} offset:{2048 + 512*f}')
    prof(a, 4)
    for i in range(4): a(f'v_mul_f32 v{Sm+i}, s{sC}, v{Sm+i}')
    a(f"""
    v_max3_f32 v{m0}, v{m0}, v{Sm}, v{Sm+1}
    v_max3_f32 v{m0}, v{m0}, v{Sm+2}, v{Sm+3}
    v_mov_b32 v{m1}, v{m0}
    v_permlane32_swap_b32 v{m0}, v{m1}
    v_max_f32 v{m0}, v{m0}, v{m1}
    """)
    for r in range(20): a(f'v_sub_f32 v{Sx+r}, v{Sx+r}, v{m0}')
    for r in range(20): a(f'v_exp_f32 v{Sx+r}, v{Sx+r}')
    a(f'v_add_f32 v{m0}, v{Sx}, v{Sx+1}\nv_add_f32 v{m1}, v{Sx+2}, v{Sx+3}')
    for r in range(4, 20, 2): a(f'v_add_f32 v{m0}, v{m0}, v{Sx+r}\nv_add_f32 v{m1}, v{m1}, v{Sx+r+1}')
    a(f"""
    v_add_f32 v{m0}, v{m0}, v{m1}
    v_mov_b32 v{m1}, v{m0}
    v_permlane32_swap_b32 v{m0}, v{m1}
    v_add_f32 v{m0}, v{m0}, v{m1}
    v_rcp_f32 v{m0}, v{m0}
    """)
    for r in range(20): a(f'v_mul_f32 v{Sx+r}, v{m0}, v{Sx+r}')
    for r in range(0, 20, 2): a(f'v_cvt_pk_bf16_f32 v{Px+r//2}, v{Sx+r}, v{Sx+r+1}')
    a(f's_waitcnt lgkmcnt(0)\ns_add_u32 s{sA}, s{sA}, {L.OA}\ns_add_u32 s{sD}, s{sA}, 4096')
    def out(e):
        for G in range(2):
            for r in range(8*G, 8*G + 8, 2): a(f'v_cvt_pk_bf16_f32 v{PKo+8*e+r//2}, v{O[e]+r}, v{O[e]+r+1}')
            a(f'buffer_store_dwordx4 {R(PKo+8*e+4*G,4)}, v{vL16}, {WS}, s{sA if e < 2 else sD} offen offset:{2048*(e&1) + 1024*G} sc1')
    m8 = lambda e: a(f'v_mfma_f32_32x32x8_bf16 {R(O[e],16)}, {R(VMr+2*e,2)}, {R(Pm,2)}, 0')
    m8(0); m8(1)
    for e in range(4):
        for G in range(2): a(f'{M32} {R(O[e],16)}, {R(Vr+8*e+4*G,4)}, {R(Px+4*G,4)}, {R(O[e],16)}')
        if e + 2 < 4: m8(e + 2)
        if e >= 1: out(e - 1)
    out(3)
    prof(a, 5)
    a(f's_mov_b32 s{sFv}, s{sNeed}\ns_mov_b32 s{sSigPrev}, s{sSig}\ns_add_u32 s{sS}, s{sS}, 2\ns_cmp_lt_u32 s{sS}, 64\ns_cbranch_scc1 {loop}\ns_waitcnt vmcnt(0)')
    signal(a, sSig, sFv)
    a('s_waitcnt vmcnt(0)\ns_barrier')

def wo_reg(f, ct):
    i = ct * 32 + f
    return 256 + 4 * i if i < 64 else 128 + 4 * (i - 64)

def wo_load_weights(a):
    t = 4
    a(f"""
    v_lshrrev_b32 v{t}, 3, v{vLane}
    v_mul_u32_u24 v{t}, 1152, v{t}
    v_and_b32 v{t+1}, 7, v{vLane}
    v_min_u32 v{t+1}, 5, v{t+1}
    v_lshl_add_u32 v{t}, v{t+1}, 4, v{t}
    v_lshrrev_b32 v{t+2}, 5, v{vLane}
    v_bfe_u32 v{t+3}, v{vLane}, 4, 1
    v_lshl_add_u32 v{t+2}, v{t+2}, 2, v{t+3}
    v_bfe_u32 v{t+3}, v{vLane}, 2, 2
    v_lshl_add_u32 v{t+2}, v{t+2}, 2, v{t+3}
    v_and_b32 v{t+3}, 3, v{vLane}
    v_lshlrev_b32 v{t+3}, 3, v{t+3}
    v_lshl_add_u32 v{t+2}, v{t+2}, 7, v{t+3}
    s_lshl_b32 s{sB}, s{sW}, 15
    v_add_u32 v{t+2}, s{sB}, v{t+2}
    s_mul_i32 s{sA}, s{sW}, {1024*1152}
    s_mul_i32 s{sC}, s{sId}, 96
    s_add_u32 s{sA}, s{sA}, s{sC}
    """)
    for ps in range(4):
        lp = a.lab('L_wol')
        a(f"""
        s_mov_b32 s{sM0}, s{sB}
        s_mov_b32 s{sC}, 32
        {lp}:
        s_mov_b32 m0, s{sM0}
        s_add_u32 s{sM0}, s{sM0}, 1024
        buffer_load_dwordx4 v{t}, s[{sT}:{sT+3}], s{sA} offen lds
        s_add_u32 s{sA}, s{sA}, {8*1152}
        s_sub_u32 s{sC}, s{sC}, 1
        s_cmp_lg_u32 s{sC}, 0
        s_cbranch_scc1 {lp}
        s_waitcnt vmcnt(0)
        """)
        for f in range(8):
            for ct in range(3):
                for hf in range(2): a(f'ds_read_b64_tr_b16 {R(wo_reg(8*ps+f,ct)+2*hf,2)}, v{t+2} offset:{f*4096 + 1024*hf + 32*ct}')
            if f % 2 == 1: a('s_waitcnt lgkmcnt(0)')
    a('s_barrier')

WO_NB = 14
def wo_phase(a, ex):
    ACC = 4; LB = [16 + 4 * i for i in range(WO_NB)]; RES = 116; vOa = 120; vXa = 121; vSt_ = 122; vRa = 123; vWr = 124; vRd = 125
    NB = len(LB)
    a(f"""
    v_lshlrev_b32 v{vFa}, 2, v{vLane}
    v_and_b32 v{vSt_}, 15, v{vLane}
    v_lshrrev_b32 v{vWr}, 4, v{vLane}
    v_lshrrev_b32 v{vRd}, 5, v{vLane}
    s_lshl_b32 s{sTmp}, s{sTeam}, 4
    v_add_lshl_u32 v{vXa}, v{vSt_}, s{sTmp}, 4
    v_lshl_add_u32 v{vOa}, v{vWr}, 9, v{vXa}
    v_lshl_add_u32 v{vXa}, v{vRd}, 9, v{vXa}
    v_and_b32 v{vRa}, 1, v{vWr}
    v_lshl_add_u32 v{vRa}, v{vRa}, 3, v{vXa}
    v_lshlrev_b32 v{vSt_}, 2, v{vSt_}
    v_lshl_add_u32 v{vSt_}, v{vRd}, 6, v{vSt_}
    s_mul_i32 s{sTmp}, s{sW}, 3072
    v_add_u32 v{vWr}, s{sTmp}, v{vL16}
    s_lshl_b32 s{sTmp}, s{sW}, 10
    v_add_u32 v{vRd}, s{sTmp}, v{vL16}
    s_mul_i32 s{sTmp}, s{sId}, 3
    s_add_u32 s{sTmp}, s{sTmp}, s{sW}
    s_lshl_b32 s{sOut}, s{sTmp}, 10
    s_add_u32 s{sOut}, s{sOut}, s{sLay}
    s_lshl_b32 s{sC}, s{sTmp}, 8
    s_lshl_b32 s{sTmp}, s{sTeam}, 7
    s_add_u32 s{sC}, s{sC}, s{sTmp}
    s_add_u32 s{sC}, s{sC}, s{sLay}
    s_add_u32 s{sC}, s{sC}, {L.X1 + 36864}
    s_cmp_eq_u32 s{sW}, 3
    s_cselect_b32 s{sOut}, {OOB}, s{sOut}
    s_cselect_b32 s{sC}, {OOB}, s{sC}
    s_mov_b32 s{sS}, s{sPar}
    s_lshl_b32 s{sPoll}, s{sPar}, 7
    s_add_u32 s{sPoll}, s{sPoll}, {L.F_ATT}
    s_mul_i32 s{sSig}, s{sTeam}, 12
    s_add_u32 s{sSig}, s{sSig}, s{sId}
    s_lshl_b32 s{sTmp}, s{sPar}, 5
    s_add_u32 s{sSig}, s{sSig}, s{sTmp}
    s_lshl_b32 s{sSig}, s{sSig}, 2
    s_add_u32 s{sSig}, s{sSig}, {L.F_WO}
    s_cmp_eq_u32 s{sW}, 0
    s_cselect_b32 s{sSig}, s{sSig}, {OOB}
    s_mov_b32 s{sE}, 0xffff
    s_mov_b32 s{sE+1}, 0xffff
    """)
    loop = a.lab('L_wo')
    a(f"""
    {loop}:
    s_add_u32 s{sNeed}, s{sS}, s{sLv}
    s_add_u32 s{sNeed}, s{sNeed}, 1
    s_lshl_b32 s{sA}, s{sS}, 18
    s_lshl_b32 s{sTmp}, s{sW}, 16
    s_add_u32 s{sA}, s{sA}, s{sTmp}
    s_add_u32 s{sA}, s{sA}, s{sLay}
    s_add_u32 s{sA}, s{sA}, {L.OA}
    s_mul_i32 s{sD}, s{sS}, {L.XSEG}
    s_add_u32 s{sB}, s{sD}, s{sC}
    s_add_u32 s{sD}, s{sD}, s{sOut}
    s_add_u32 s{sSrc}, s{sD}, {L.X0}
    s_add_u32 s{sD}, s{sD}, {L.X1}
    """)
    prof(a, 0)
    one_wave(a, lambda: poll(a, ex, 0xffffffff, vFa, sPoll, sNeed, sleep=1))
    prof(a, 1)
    vm = Q(a, 'vmcnt', 63)
    def ld(f):
        vm.issue(f, f'buffer_load_dwordx4 {R(LB[f%NB],4)}, v{vOa}, {WS}, s{sA} offen offset:{2048*(f&1)} sc1')
        if f & 1: a(f's_add_u32 s{sA}, s{sA}, 4096')
    for f in range(NB): ld(f)
    for f in range(32):
        vm.wait(f)
        if f == 0: prof(a, 2)
        for ct in range(3):
            a(f'v_mfma_f32_16x16x32_bf16 {R(ACC+4*ct,4)}, {R(wo_reg(f,ct),4)}, {R(LB[f%NB],4)}, {"0" if f == 0 else R(ACC+4*ct,4)}')
        if f + NB < 32: ld(f + NB)
        if f == 4: vm.issue('r', f'buffer_load_dwordx2 {R(RES,2)}, v{vRa}, {WS}, s{sSrc} offen sc1')
        if f == 24:
            vm.wait('r')
            a(f'v_and_b32 v{RES+3}, 0xffff0000, v{RES+1}\nv_lshlrev_b32 v{RES+2}, 16, v{RES+1}\nv_and_b32 v{RES+1}, 0xffff0000, v{RES}\nv_lshlrev_b32 v{RES}, 16, v{RES}')
    prof(a, 3)
    for ct in range(3): a(f'ds_write_b128 v{vWr}, {R(ACC+4*ct,4)} offset:{1024*ct}')
    a('s_waitcnt lgkmcnt(0)\ns_barrier')
    for ww in range(4): a(f'ds_read_b128 {R(16+4*ww,4)}, v{vRd} offset:{3072*ww}')
    for ww in range(4):
        a(f's_waitcnt lgkmcnt({3-ww})')
        for i in range(4): a(f'v_add_f32 v{RES+i}, v{RES+i}, v{16+4*ww+i}')
    a(f'v_cvt_pk_bf16_f32 v32, v{RES}, v{RES+1}\nv_cvt_pk_bf16_f32 v33, v{RES+2}, v{RES+3}\nv_permlane16_swap_b32 v32, v34\nv_permlane16_swap_b32 v33, v35')
    a(f's_mov_b64 exec, s[{sE}:{sE+1}]\nbuffer_store_dwordx4 {R(32,4)}, v{vXa}, {WS}, s{sD} offen sc1\ns_mov_b64 exec, -1')
    row_stats(a, 32, 4, 36)
    a(f's_mov_b64 exec, s[{sE}:{sE+1}]\nbuffer_store_dword v36, v{vSt_}, {WS}, s{sB} offen sc1\ns_mov_b64 exec, -1')
    prof(a, 4)
    a('s_waitcnt vmcnt(0)\ns_barrier')
    prof(a, 5)
    signal(a, sSig, sNeed)
    a(f's_add_u32 s{sS}, s{sS}, 2\ns_cmp_lt_u32 s{sS}, 64\ns_cbranch_scc1 {loop}\ns_waitcnt vmcnt(0)\ns_barrier')

BA_SLEEP = 3; BA_FINE = 57; BA_DEFER = 62
def ba_phase(a, ex):
    O = [12 + 16 * u for u in range(4)]; Qs = [76 + 8 * u for u in range(4)]
    S = [108, 124]; P = 140; OC = 148; QC = 164; ST = [172, 186]; CI = 200; T = 216
    vH = 4; vK0 = 5; vK1 = 6; vV0 = 7; vWr = 8; vRd = 9; vSg = 10
    K1 = lambda b: ST[b]; K0 = lambda b: ST[b] + 2; V = lambda b, G: ST[b] + 6 + 4 * G
    KV = f's[{sX}:{sX+3}]'
    a(f"""
    v_lshlrev_b32 v{vFa}, 2, v{vLane}
    v_mov_b32 v{T}, {OOB}
    v_cmp_gt_u32 vcc, 32, v{vLane}
    v_cndmask_b32 v{vH}, v{T}, v{vFa}, vcc
    s_mul_i32 s{sTmp}, s{sW}, 3072
    v_add_u32 v{vWr}, s{sTmp}, v{vL16}
    v_mov_b32 v{vRd}, v{vL16}
    v_lshlrev_b32 v{vSg}, 11, v{vLane}
    s_lshr_b32 s{sPoll}, s{sJ}, 2
    s_lshl_b32 s{sPoll}, s{sPoll}, 7
    s_add_u32 s{sPoll}, s{sPoll}, {L.F_BQ}
    s_mul_i32 s{sTmp}, s{sJ}, {64*L.KVT}
    s_add_u32 s{sTmp}, s{sTmp}, s{sLay}
    """)
    ws_srd(a, sX, sTmp, L.KVB, 0)
    a(f"""
    s_mul_i32 s{sSrc}, s{sJ}, {64*1152}
    s_add_u32 s{sSrc}, s{sSrc}, s{sLay}
    s_add_u32 s{sSrc}, s{sSrc}, {L.QB}
    s_sub_u32 s{sStride}, 3, s{sI}
    s_lshl_b32 s{sTmp}, s{sW}, 2
    s_add_u32 s{sTmp}, s{sTmp}, s{sI}
    s_cmp_eq_u32 s{sW}, 0
    s_cselect_b32 s{sTmp}, s{sStride}, s{sTmp}
    s_mov_b32 s{sC}, s{sTmp}
    s_lshl_b32 s{sSig}, s{sTmp}, 5
    s_add_u32 s{sSig}, s{sSig}, s{sJ}
    s_lshl_b32 s{sSig}, s{sSig}, 2
    s_add_u32 s{sSig}, s{sSig}, {L.F_OB}
    s_mul_i32 s{sOut}, s{sTmp}, 36864
    s_add_u32 s{sOut}, s{sOut}, s{sLay}
    s_add_u32 s{sOut}, s{sOut}, {L.OB}
    s_lshl_b32 s{sTmp}, s{sJ}, 7
    s_add_u32 s{sB}, s{sOut}, s{sTmp}
    s_add_u32 s{sB}, s{sB}, 32768
    s_lshl_b32 s{sTmp}, s{sJ}, 10
    s_add_u32 s{sOut}, s{sOut}, s{sTmp}
    s_mov_b32 s{sKd}, 0
    s_mov_b32 s{sKnown}, 0
    s_mov_b32 s{sAct}, 0
    s_mov_b32 s{sS}, s{sI}
    s_mov_b32 s{sDel}, 12288
    """)
    for r in [q + i for q in Qs + [QC] for i in (5, 6, 7)] + [ST[0] + 1, ST[1] + 1] + list(range(CI, CI + 16)): a(f'v_mov_b32 v{r}, 0')
    def set_stride(n):
        a(f's_mov_b32 s{sMul}, {n*L.KVT}\nv_add_u32 v{vK0}, {2*n*L.KVT}, v{vL16}\nv_add_u32 v{vK1}, {2*n*L.KVT}, v{vH}\nv_add_u32 v{vV0}, {n*L.KVT}, v{vL16}')
    set_stride(4)
    def ldk(b, so, k0=vL16, k1=vH): return f'buffer_load_dwordx4 {R(K0(b),4)}, v{k0}, {KV}, s{so} offen sc1\nbuffer_load_dword v{K1(b)}, v{k1}, {KV}, s{so} offen offset:3072 sc1'
    def ldv(b, G, so, va=vL16): return f'buffer_load_dwordx4 {R(V(b,G),4)}, v{va}, {KV}, s{so} offen offset:{1024*(G+1)} sc1'
    def qk0(sb, b, q, c='0'): return f'{M32} {R(S[sb],16)}, {R(K0(b),4)}, {R(q,4)}, {c}'
    def qk1(sb, b, q): return f'{M32} {R(S[sb],16)}, {R(K1(b),4)}, {R(q+4,4)}, {R(S[sb],16)}'
    def pv(o, b, G): return f'{M32} {R(o,16)}, {R(V(b,G),4)}, {R(P+4*G,4)}, {R(o,16)}'
    def body(sb, ms):
        s_ = S[sb]
        for g in range(4):
            if ms[g]: a(ms[g])
            for i in range(4): a(f'v_exp_f32 v{s_+4*g+i}, v{s_+4*g+i}')
            a(f'v_cvt_pk_bf16_f32 v{P+2*g}, v{s_+4*g}, v{s_+4*g+1}\nv_cvt_pk_bf16_f32 v{P+2*g+1}, v{s_+4*g+2}, v{s_+4*g+3}')
    def sweep(hook=None, check=None):
        lp = a.lab('L_sw')
        a(ldk(0, sA)); a(ldv(0, 0, sA)); a(ldv(0, 1, sA))
        a(f's_add_u32 s{sA}, s{sA}, s{sMul}')
        a(ldk(1, sA)); a(ldv(1, 0, sA))
        for i in range(0, 16, 2): a(f'v_mov_b64 {R(OC+i,2)}, 0')
        a(f's_add_u32 s{sTmp}, s{sA}, s{sMul}\ns_waitcnt vmcnt(5)')
        if hook: hook()
        if check: check()
        for i in range(0, 4, 2): a(f'v_mov_b64 {R(P+4+i,2)}, 0\nv_mov_b64 {R(V(1,1)+i,2)}, 0')
        a(qk0(0, 0, QC, R(CI, 16))); a(qk1(0, 0, QC))
        a(ldk(0, sTmp))
        a('s_waitcnt vmcnt(2)')
        a(f'{lp}:')
        for b in range(2):
            body(b, [qk0(1-b, 1-b, QC, R(CI, 16)), qk1(1-b, 1-b, QC) + '\n' + ldk(1-b, sA, vK0, vK1),
                     pv(OC, 1-b, 1) + '\n' + ldv(1-b, 1, sA), pv(OC, b, 0) + '\n' + ldv(b, 0, sA, vV0)])
            a(f's_add_u32 s{sA}, s{sA}, s{sMul}\ns_waitcnt vmcnt(4)')
        a(f's_sub_u32 s{sN}, s{sN}, 1\ns_cmp_lg_u32 s{sN}, 0\ns_cbranch_scc1 {lp}')
        a(pv(OC, 1, 1))
    def finalize(u):
        fb = a.lab('L_fb'); ok = a.lab('L_fok')
        lo, hi = fbits(2.0 ** -60), fbits(2.0 ** 60)
        o = O[u]
        def getl(): a(f'v_mov_b32 v{T}, v{o+10}\nv_mov_b32 v{T+1}, v{o+10}\nv_permlane32_swap_b32 v{T}, v{T+1}')
        getl()
        a(f'v_subrev_u32 v{T+1}, {hex(lo)}, v{T}\nv_cmp_lt_u32 vcc, {hex(hi - lo)}, v{T+1}\ns_cbranch_vccnz {fb}\n{ok}:\nv_rcp_f32 v{T}, v{T}')
        for r in range(10): a(f'v_mul_f32 v{o+r}, v{T}, v{o+r}')
        for r in range(0, 10, 2): a(f'v_cvt_pk_bf16_f32 v{o+r//2}, v{o+r}, v{o+r+1}')
        a(f"""
        s_add_u32 s{sTmp}, s{sOut}, {16*36864*u}
        s_add_u32 s{sTmp+1}, s{sB}, {16*36864*u}
        buffer_store_dwordx4 {R(o,4)}, v{vL16}, {WS}, s{sTmp} offen sc1
        buffer_store_dword v{o+4}, v{vH}, {WS}, s{sTmp+1} offen sc1
        """)
        def cold():
            ret = a.lab('L_fbr')
            a(f'{fb}:')
            for i in range(0, 6, 2): a(f'v_mov_b64 {R(QC+i,2)}, {R(Qs[u]+i,2)}')
            a(f's_mov_b32 s{sFlag}, {len(rets)}\ns_branch {redo}\n{ret}:')
            for i in range(0, 12, 2): a(f'v_mov_b64 {R(o+i,2)}, {R(OC+i,2)}')
            getl(); a(f's_branch {ok}')
            rets.append(ret)
        colds.append(cold)
    colds = []; rets = []; redo = a.lab('L_redo')
    def publish(mask, wait=True):
        if wait: a('s_waitcnt vmcnt(0)')
        a(f'v_mov_b32 v{vF}, s{sL1}\ns_mov_b64 exec, {mask}\nbuffer_store_dword v{vF}, v{vSg}, {WS}, s{sSig} offen sc1\ns_mov_b64 exec, -1')
        if DEBUG: logtime(a, sSig, sL1, vF, vL16, 2048 * (3 if mask == 8 else 0))
    level = a.lab('L_lev'); nokeys = a.lab('L_nokeys'); nocatch = a.lab('L_nocatch'); end = a.lab('L_baend')
    LD_KN = 24576
    def w0():
        wait_marks(a, ex, 1)
        a(f'buffer_load_dword v{vF}, v{vFa}, {WS}, s{sPoll} offen sc1\ns_waitcnt vmcnt(0)')
        a(f'ds_write_b32 v{vFa}, v{vF} offset:{LD_KN}\ns_waitcnt lgkmcnt(0)')
    one_wave(a, w0)
    a(f'ds_read_b32 v{vF}, v{vFa} offset:{LD_KN}\ns_waitcnt lgkmcnt(0)\nv_readlane_b32 s{sKnown}, v{vF}, 0')
    for i in (1, 2, 4, 5, 6): a(f'v_readlane_b32 s{sTmp}, v{vF}, {i}\ns_min_u32 s{sKnown}, s{sKnown}, s{sTmp}')
    a(f's_cmp_gt_u32 s{sKnown}, s{sLv}\ns_cselect_b32 s{sKnown}, s{sKnown}, s{sLv}\ns_addc_u32 s{sKnown}, s{sKnown}, 0\ns_sub_u32 s{sKnown}, s{sKnown}, s{sLv}')
    a(f's_min_u32 s{sLev}, s{sKnown}, 60\ns_and_b32 s{sLev}, s{sLev}, -4\ns_mov_b32 s{sTile}, s{sC}')
    jd = a.lab('L_jd')
    for u in range(4):
        a(f"""
        s_cmp_ge_u32 s{sTile}, s{sLev}
        s_cbranch_scc1 {jd}
        s_mul_i32 s{sTmp}, s{sTile}, 1152
        s_add_u32 s{sTmp}, s{sTmp}, s{sSrc}
        buffer_load_dwordx4 {R(Qs[u],4)}, v{vL16}, {WS}, s{sTmp} offen sc1
        buffer_load_dword v{Qs[u]+4}, v{vH}, {WS}, s{sTmp} offen offset:1024 sc1
        s_add_u32 s{sAct}, s{sAct}, 1
        s_add_u32 s{sTile}, s{sTile}, 16
        """)
        for i in range(0, 12, 2): a(f'v_mov_b64 {R(O[u]+i,2)}, 0')
    a(f"""
    {jd}:
    s_mov_b32 s{sS}, s{sLev}
    {level}:
    s_and_b32 s{sS}, s{sS}, -4
    s_and_b32 s{sTmp}, s{sS}, 12
    s_cselect_b32 s{sTmp}, s{sI}, s{sStride}
    s_add_u32 s{sS}, s{sS}, s{sTmp}
    s_add_u32 s{sTile}, s{sS}, 1
    s_max_u32 s{sTmp}, s{sTile}, 64
    s_cmp_ge_u32 s{sS}, {BA_DEFER}
    s_cselect_b32 s{sTile}, s{sTmp}, s{sTile}
    s_min_u32 s{sLev}, s{sTile}, 64
    s_mul_i32 s{sX+2}, s{sLev}, {L.KVT}
    s_min_u32 s{sD}, s{sS}, 63
    s_mul_i32 s{sD}, s{sD}, 1152
    s_add_u32 s{sD}, s{sD}, s{sSrc}
    """)
    prof(a, 0)
    kl = [a.lab('L_k') for _ in range(5)]
    a(f's_sub_u32 s{sN}, s{sLev}, s{sKd}\ns_mul_i32 s{sA}, s{sKd}, {L.KVT}\ns_mov_b32 s{sKd}, s{sLev}')
    def ldall(b): a(ldk(b, sA)); a(ldv(b, 0, sA)); a(ldv(b, 1, sA))
    def ldq(): a(f'buffer_load_dwordx4 {R(QC,4)}, v{vL16}, {WS}, s{sD} offen sc1\nbuffer_load_dword v{QC+4}, v{vH}, {WS}, s{sD} offen offset:1024 sc1')
    def arrived(b):
        ok = a.lab('L_arr'); re = a.lab('L_rea')
        test = f's_waitcnt vmcnt(0)\nv_max3_u32 v{T}, v{K1(b)}, v{K0(b)}, v{V(b,0)}\nv_max_u32 v{T}, v{T}, v{V(b,1)}\nv_cmp_eq_u32 vcc, -1, v{T}'
        a(f'{test}\ns_cbranch_vccnz {re}\n{ok}:')
        def cold():
            sh = a.lab('L_sh')
            a(f'{re}:\ns_cmp_ge_u32 s{sA}, {BA_FINE * L.KVT}\ns_cbranch_scc1 {sh}\ns_sleep 12\n{sh}:\ns_sleep {BA_SLEEP}'); ldall(b); budget(a, ex); a(f'{test}\ns_cbranch_vccnz {re}\ns_branch {ok}')
        colds.append(cold)
    ldall(0)
    for n in range(4): a(f's_cmp_eq_u32 s{sAct}, {n}\ns_cbranch_scc1 {kl[n]}')
    for n in (4, 3, 2, 1, 0):
        a(f'{kl[n]}:')
        for b in range(2):
            arrived(b)
            if n: a(qk0(0, b, Qs[0])); a(qk1(0, b, Qs[0]))
            a(f's_add_u32 s{sA}, s{sA}, {L.KVT}'); ldall(1 - b)
            for u in range(n):
                nx = u + 1 < n
                body(u & 1, [qk0(1-(u&1), b, Qs[u+1]) if nx else None, qk1(1-(u&1), b, Qs[u+1]) if nx else None, pv(O[u-1], b, 1) if u else None, pv(O[u], b, 0)])
            if n: a(pv(O[n-1], b, 1))
            a(f's_sub_u32 s{sN}, s{sN}, 1\ns_cmp_eq_u32 s{sN}, 0\ns_cbranch_scc1 {nokeys}')
        a(f's_branch {kl[n]}')
    a(f'{nokeys}:')
    prof(a, 2)
    notlast = a.lab('L_nl'); three = a.lab('L_f3')
    a(f's_cmp_lg_u32 s{sLev}, 64\ns_cbranch_scc1 {notlast}')
    for u in range(3): finalize(u)
    a(f's_cmp_lg_u32 s{sAct}, 4\ns_cbranch_scc1 {three}')
    finalize(3)
    a(f'{three}:\ns_cmp_eq_u32 s{sTile}, 64\ns_cbranch_scc1 {notlast}'); publish(15)
    a(f'{notlast}:')
    prof(a, 3)
    a(f"""
    s_cmp_lg_u32 s{sTile}, s{sLev}
    s_cbranch_scc1 {nocatch}
    s_mul_i32 s{sA}, s{sW}, {L.KVT}
    s_add_u32 s{sN}, s{sLev}, 7
    s_lshr_b32 s{sN}, s{sN}, 3
    """)
    ldq()
    def qcheck():
        ok = a.lab('L_qok'); re = a.lab('L_qre')
        test = f'v_max_u32 v{T}, v{QC}, v{QC+4}\nv_cmp_eq_u32 vcc, -1, v{T}'
        a(f'{test}\ns_cbranch_vccnz {re}\n{ok}:')
        def cold():
            a(f'{re}:\ns_sleep 1'); ldq(); budget(a, ex); a(f's_waitcnt vmcnt(0)\n{test}\ns_cbranch_vccnz {re}\ns_branch {ok}')
        colds.append(cold)
    def hook():
        sk = a.lab('L_hk')
        a(f's_cmp_lg_u32 s{sLev}, 64\ns_cbranch_scc1 {sk}\ns_lshl_b32 s{sE}, 1, s{sAct}\ns_sub_u32 s{sE}, s{sE}, 1\ns_mov_b32 s{sE+1}, 0')
        publish(f's[{sE}:{sE+1}]', wait=False)
        a(f'{sk}:')
    sweep(hook, qcheck)
    prof(a, 4)
    for g in range(3): a(f'ds_write_b128 v{vWr}, {R(OC+4*g,4)} offset:{1024*g}')
    notmine = a.lab('L_nm')
    a(f"""
    s_lshr_b32 s{sTmp}, s{sS}, 2
    s_and_b32 s{sTmp}, s{sTmp}, 3
    s_add_u32 s{sS}, s{sS}, 4
    s_waitcnt vmcnt(0) lgkmcnt(0)
    s_barrier
    s_cmp_lg_u32 s{sTmp}, s{sW}
    s_cbranch_scc1 {notmine}
    """)
    RD = S[0]
    for ww in range(4):
        for g in range(3): a(f'ds_read_b128 {R(RD+12*ww+4*g,4)}, v{vRd} offset:{3072*ww + 1024*g}')
    a('s_waitcnt lgkmcnt(6)')
    for r in range(11): a(f'v_add_f32 v{RD+r}, v{RD+r}, v{RD+12+r}')
    a('s_waitcnt lgkmcnt(0)')
    for r in range(11): a(f'v_add_f32 v{RD+24+r}, v{RD+24+r}, v{RD+36+r}')
    sl = [a.lab('L_sl') for _ in range(4)]; sd = a.lab('L_sld')
    for u in range(1, 4): a(f's_cmp_eq_u32 s{sAct}, {u}\ns_cbranch_scc1 {sl[u]}')
    for u in range(4):
        a(f'{sl[u]}:')
        for r in range(11): a(f'v_add_f32 v{O[u]+r}, v{RD+r}, v{RD+24+r}')
        for i in range(0, 6, 2): a(f'v_mov_b64 {R(Qs[u]+i,2)}, {R(QC+i,2)}')
        if u < 3: a(f's_branch {sd}')
    a(f'{sd}:\ns_add_u32 s{sAct}, s{sAct}, 1\ns_cmp_lg_u32 s{sLev}, 64\ns_cbranch_scc1 {notmine}')
    finalize(3); publish(8)
    a(f'{notmine}:\nv_add_u32 v{vWr}, s{sDel}, v{vWr}\nv_add_u32 v{vRd}, s{sDel}, v{vRd}\ns_sub_u32 s{sDel}, 0, s{sDel}')
    prof(a, 5)
    a(f'{nocatch}:\ns_cmp_lt_u32 s{sKd}, 64\ns_cbranch_scc1 {level}\ns_branch {end}')
    for c in colds: c()
    mx = a.lab('L_mx')
    a(f'{redo}:\ns_waitcnt vmcnt(0)\ns_mov_b32 s{sA}, 0\nv_mov_b32 v{T}, 0xff800000\n{mx}:')
    a(ldk(0, sA)); a('s_waitcnt vmcnt(0)'); a(qk0(0, 0, QC)); a(qk1(0, 0, QC))
    for r in range(0, 16, 2): a(f'v_max3_f32 v{T}, v{T}, v{S[0]+r}, v{S[0]+r+1}')
    a(f"""
    s_add_u32 s{sA}, s{sA}, {L.KVT}
    s_cmp_lt_u32 s{sA}, {64*L.KVT}
    s_cbranch_scc1 {mx}
    v_mov_b32 v{T+1}, v{T}
    v_permlane32_swap_b32 v{T}, v{T+1}
    v_max_f32 v{T}, v{T}, v{T+1}
    s_mov_b32 s{sA}, 0
    s_mov_b32 s{sN}, 32
    """)
    for i in range(16): a(f'v_sub_f32 v{CI+i}, 0, v{T}')
    set_stride(1)
    sweep()
    a('s_waitcnt vmcnt(0)')
    set_stride(4)
    for i in range(16): a(f'v_mov_b32 v{CI+i}, 0')
    for i, r in enumerate(rets[:-1]): a(f's_cmp_eq_u32 s{sFlag}, {i}\ns_cbranch_scc1 {r}')
    a(f's_branch {rets[-1]}\n{end}:\ns_waitcnt vmcnt(0)\ns_barrier')

C_PT, C_PN, C_WO, C_AT, C_BT, C_BN, C_SP = range(7)
sCls = 66; sM = 67; sBa = 68; sFo = 69; sFoSkip = 76

def worker_program(a):
    ex = 'L_wexit'
    if PROF:
        for i in range(13): a(f's_mov_b32 s{79+i}, 0')
    base_regs(a)
    if DEBUG: a(f's_mov_b32 s99, {L.FLAGS + 64}'); logtime(a, 99, sRole, vF, vL16)
    lab = {c: f'L_init{c}' for c in range(7)}
    X = sTmp; r5 = sTmp + 1
    a(f"""
    s_lshr_b32 s{X}, s{sRole}, 5
    s_and_b32 s{r5}, s{sRole}, 31
    s_mov_b32 s{sPar}, 0
    s_mov_b32 s{sId}, 0
    s_mov_b32 s{sTeam}, 0
    s_mov_b32 s{sM}, 0
    s_mov_b32 s{sL1}, 1
    s_mov_b32 s{sBa}, -1
    s_mov_b32 s{sFo}, -1
    s_mov_b32 s{sFoSkip}, 0
    s_mov_b32 s{sKd}, 0
    s_cmp_ge_u32 s{X}, 5
    s_cbranch_scc1 L_x567
    s_sub_u32 s{X}, s{X}, 1
    s_mul_i32 s{sTmp+2}, s{X}, 20
    s_add_u32 s{sTmp+2}, s{sTmp+2}, s{r5}
    s_cmp_lt_u32 s{r5}, 20
    s_cbranch_scc1 L_heavy
    s_sub_u32 s{sId}, s{r5}, 20
    s_and_b32 s{sTeam}, s{X}, 1
    s_lshr_b32 s{sPar}, s{X}, 1
    s_branch {lab[C_WO]}
    L_x567:
    s_lshl_b32 s{sTmp+2}, s{X}, 4
    s_add_u32 s{sTmp+2}, s{sTmp+2}, s{r5}
    s_cmp_lt_u32 s{r5}, 16
    s_cbranch_scc1 L_heavy
    s_sub_u32 s{sFo}, s{sTmp+2}, 96
    s_cmp_ge_u32 s{sFo}, 16
    s_cbranch_scc1 L_clsbq
    s_mov_b32 s{sCls}, {C_AT}
    s_lshr_b32 s{sPar}, s{sFo}, 3
    s_and_b32 s{sId}, s{sFo}, 7
    s_lshl_b32 s{sId}, s{sId}, 2
    s_add_u32 s{sId}, s{sId}, s{sW}
    s_add_u32 s{sTile}, s{sFo}, 32
    s_branch L_poison
    L_heavy:
    s_mov_b32 s{sBa}, s{sTmp+2}
    s_lshr_b32 s{sId}, s{sBa}, 2
    s_and_b32 s{sM}, s{sBa}, 3
    s_cmp_eq_u32 s{sM}, 3
    s_cbranch_scc1 L_cls7
    s_add_u32 s{sM}, s{sM}, 1
    s_cmp_eq_u32 s{sM}, 3
    s_cselect_b32 s{sM}, 0, s{sM}
    s_add_u32 s{sTmp+2}, s{sId}, 48
    s_cmp_eq_u32 s{sM}, 2
    s_cselect_b32 s{sFo}, -1, s{sTmp+2}
    s_sub_u32 s{sFoSkip}, 2, s{sM}
    s_branch {lab[C_PT]}
    L_clsbq:
    s_lshr_b32 s{sPar}, s{sFo}, 5
    s_and_b32 s{r5}, s{sFo}, 15
    s_lshl_b32 s{sId}, s{r5}, 2
    s_add_u32 s{sId}, s{sId}, s{sW}
    """)
    load_ptr_srd(a, sT, 64, 576 * 3456)
    a(f"""
    s_cmp_ge_u32 s{sId}, 32
    s_cbranch_scc1 L_clsbv
    s_mov_b32 s{sCls}, {C_BT}
    s_lshr_b32 s{sM}, s{sId}, 4
    s_and_b32 s{sId}, s{sId}, 15
    s_lshl_b32 s{sId}, s{sId}, 1
    s_mul_i32 s{sA}, s{sM}, 1152
    s_mul_i32 s{sTmp}, s{sId}, 36
    s_add_u32 s{sA}, s{sA}, s{sTmp}
    """)
    gemm_load_weights(a, False, 3456, pair=True)
    a(f's_branch L_initfo\nL_clsbv:\ns_mov_b32 s{sCls}, {C_BN}\ns_mov_b32 s{sM}, 2\ns_sub_u32 s{sId}, s{sId}, 32')
    bv_load_weights(a)
    a(f"""
    s_branch L_initfo
    L_cls7:
    s_mov_b32 s{sCls}, {C_SP}
    """)
    load_ptr_srd(a, sX, 0, L.XBYTES)
    pre_phase(a)
    a(f's_mov_b32 s{sTile}, s{sId}\nL_poison:')
    poison_phase(a, 0)
    a(f's_cmp_lt_u32 s{sTile}, {NPOIS2}\ns_cselect_b32 s{sKd}, 1, 0\ns_branch L_initfo')
    a(f'{lab[C_PN]}:\n{lab[C_PT]}:\ns_cmp_eq_u32 s{sM}, 2\ns_cselect_b32 s{sCls}, {C_PN}, {C_PT}')
    a(f"""
    s_load_dwordx4 s[{sTmp+2}:{sTmp+5}], s[0:1], 16
    s_load_dwordx2 s[{sTmp+6}:{sTmp+7}], s[0:1], 32
    s_waitcnt lgkmcnt(0)
    s_cmp_eq_u32 s{sM}, 0
    s_cselect_b32 s{sTmp+6}, s{sTmp+2}, s{sTmp+6}
    s_cselect_b32 s{sTmp+7}, s{sTmp+3}, s{sTmp+7}
    s_cmp_eq_u32 s{sM}, 1
    s_cselect_b32 s{sTmp+6}, s{sTmp+4}, s{sTmp+6}
    s_cselect_b32 s{sTmp+7}, s{sTmp+5}, s{sTmp+7}
    """)
    srd(a, sT, sTmp + 6, 576 * 8192)
    a(f's_lshl_b32 s{sA}, s{sId}, 8\ns_lshl_b32 s{sTmp}, s{sW}, 6\ns_add_u32 s{sA}, s{sA}, s{sTmp}')
    gemm_load_weights(a, False, 8192)
    a(f"""
    s_cmp_eq_u32 s{sFoSkip}, 1
    s_cbranch_scc1 L_layer
    L_initfo:
    s_cmp_ge_u32 s{sFo}, 80
    s_cbranch_scc1 L_initp
    s_mul_i32 s{sTeam}, s{sFo}, 205
    s_lshr_b32 s{sTeam}, s{sTeam}, 10
    s_mul_i32 s{sTmp}, s{sTeam}, 5
    s_sub_u32 s{sTmp}, s{sFo}, s{sTmp}
    s_lshl_b32 s{sFoT}, s{sTmp}, 2
    s_add_u32 s{sFoT}, s{sFoT}, s{sW}
    """)
    load_ptr_srd(a, sT, 72, 576 * 1152)
    a(f's_lshl_b32 s{sA}, s{sFoT}, 6')
    gemm_load_weights(a, True, 1152)
    a(f's_cmp_eq_u32 s{sFoSkip}, 1\ns_cbranch_scc1 L_second2\nL_initp:\ns_cmp_eq_u32 s{sKd}, 0\ns_cbranch_scc1 L_layer')
    def started():
        lp = a.lab('L_st')
        wait_marks(a, ex, 0)
        a(f's_lshl_b32 s{sA}, s{sTile}, 12\ns_add_u32 s{sA}, s{sA}, {L.KM}\ns_mov_b64 exec, 1\n{lp}:\ns_sleep 16\nbuffer_load_dword v{vF}, v{vL16}, {WS}, s{sA} offen sc1')
        budget(a, ex)
        a(f's_waitcnt vmcnt(0)\nv_cmp_eq_u32 vcc, -1, v{vF}\ns_cbranch_vccnz {lp}\ns_mov_b64 exec, -1')
    if POI_WAIT: one_wave(a, started)
    poison_phase(a, 1)
    poison_phase(a, 2)
    a('s_branch L_layer')
    a(f'{lab[C_WO]}:\ns_mov_b32 s{sCls}, {C_WO}')
    load_ptr_srd(a, sT, 40, 4096 * 1152)
    wo_load_weights(a)
    a('L_layer:')
    if DEBUG: a(f's_lshr_b32 s99, s{sLv}, 4\ns_add_u32 s99, s99, {L.FLAGS + 68}'); logtime(a, 99, sRole, vF, vL16)
    prof(a, 11)
    for c in range(6): a(f's_cmp_eq_u32 s{sCls}, {c}\ns_cbranch_scc1 L_run{c}')
    a('s_branch L_second')
    for c, kind in ((C_PT, 'T'), (C_PN, 'N')):
        a(f"""
        L_run{c}:
        s_add_u32 s{sSrc}, s{sLay}, {L.X0}
        s_mov_b32 s{sMul}, 262144
        s_mov_b32 s{sB}, 1024
        s_lshl_b32 s{sOut}, s{sId}, 13
        s_lshl_b32 s{sTmp}, s{sW}, 11
        s_add_u32 s{sOut}, s{sOut}, s{sTmp}
        s_add_u32 s{sOut}, s{sOut}, s{sLay}
        s_lshl_b32 s{sSig}, s{sId}, 5
        s_lshl_b32 s{sTmp}, s{sM}, 2
        s_add_u32 s{sSig}, s{sSig}, s{sTmp}
        s_add_u32 s{sSig}, s{sSig}, s{sW}
        s_lshl_b32 s{sSig}, s{sSig}, 2
        s_add_u32 s{sSig}, s{sSig}, {L.F_HEAD}
        """)
        if c == C_PT:
            a(f's_cmp_eq_u32 s{sM}, 0\ns_cselect_b32 s{sTmp}, {L.QX}, {L.KX}\ns_cselect_b32 s{sC}, 1.0, {fbits(SCALE_LOG2E)}\ns_add_u32 s{sOut}, s{sOut}, s{sTmp}')
        else: a(f's_add_u32 s{sOut}, s{sOut}, {L.VX}')
        ln_phase(a, kind, ex)
        a('s_branch L_second')
    for c, kind in ((C_BT, 'BT'), (C_BN, 'BN')):
        a(f"""
        L_run{c}:
        s_add_u32 s{sSrc}, s{sLay}, {L.X1}
        s_lshr_b32 s{sSig}, s{sId}, 2
        s_lshl_b32 s{sSig}, s{sSig}, 3
        s_add_u32 s{sSig}, s{sSig}, s{sPar}
        s_lshl_b32 s{sSig}, s{sSig}, 2
        s_add_u32 s{sSig}, s{sSig}, s{sM}
        s_lshl_b32 s{sSig}, s{sSig}, 2
        s_add_u32 s{sSig}, s{sSig}, {L.F_BQ}
        s_mov_b32 s{sMul}, {L.KVT}
        s_mov_b32 s{sTmp}, {L.KVB + (1024 if c == C_BN else 0)}
        s_mov_b32 s{sC}, {fbits(SCALE_B)}
        """)
        if c == C_BT:
            a(f's_cmp_eq_u32 s{sM}, 0\ns_cselect_b32 s{sMul}, 1152, s{sMul}\ns_cselect_b32 s{sTmp}, {L.QB}, s{sTmp}\ns_cselect_b32 s{sC}, 1.0, s{sC}\ns_lshl_b32 s{sB}, s{sMul}, 6')
        else:
            a(f's_mov_b32 s{sB}, 1024\ns_mul_i32 s{sStride}, s{sId}, {64*1152}\ns_add_u32 s{sStride}, s{sStride}, s{sLay}\ns_add_u32 s{sStride}, s{sStride}, {L.QB}')
        a(f's_mul_i32 s{sOut}, s{sId}, s{sMul}\ns_lshl_b32 s{sOut}, s{sOut}, 6\ns_add_u32 s{sOut}, s{sOut}, s{sTmp}\ns_add_u32 s{sOut}, s{sOut}, s{sLay}')
        ln_phase(a, kind, ex)
        a('s_branch L_second')
    a(f'L_run{C_WO}:')
    wo_phase(a, ex)
    a(f's_branch L_second\nL_run{C_AT}:')
    att_phase(a, ex)
    a(f'L_second:\ns_add_u32 s{sTmp}, s{sFoSkip}, s{sLv}\ns_cmp_eq_u32 s{sTmp}, 1\ns_cbranch_scc1 L_initfo\nL_second2:')
    prof_dump(a, 0)
    a(f's_cmp_eq_u32 s{sBa}, -1\ns_cbranch_scc1 L_third\ns_lshr_b32 s{sJ}, s{sBa}, 2\ns_and_b32 s{sI}, s{sBa}, 3')
    ba_phase(a, ex)
    prof_dump(a, 1)
    a(f'L_third:\ns_cmp_ge_u32 s{sFo}, 80\ns_cbranch_scc1 L_next\ns_cmp_eq_u32 s{sFoSkip}, s{sL1}\ns_cbranch_scc1 L_next')
    load_ptr_srd(a, sY, 80, L.XBYTES)
    fo_phase(a, ex)
    if PROF:
        a(f's_cmp_lg_u32 s{sBa}, -1\ns_cbranch_scc1 L_next'); prof_dump(a, 1)
    a(f"""
    L_next:
    s_add_u32 s{sLv}, s{sLv}, 64
    s_add_u32 s{sL1}, s{sL1}, 1
    s_add_u32 s{sLay}, s{sLay}, {L.LSTRIDE}
    s_cmp_lt_u32 s{sLv}, 128
    s_cbranch_scc1 L_layer
    """)
    if TOT: a(f's_mov_b32 s99, {L.FLAGS + 64}'); logtime(a, 99, sRole, vF, vL16)
    if DBGM:
        a(f's_cmp_lg_u32 s{sW}, 0\ns_cbranch_scc1 {ex}'); DBGM(a, 14, 4)
    a(f"""
    {ex}:
    s_endpgm
    """)
```

```python
import sys, re
sys.path.insert(0, 'gen')
from asmdsl import *
import layout as L, chain as C, workers as W

NAME = 'interleave_layers__memory_aug_recurrent_mem_tr__softmax_full_mha__prompt'
WARM = True
BUDGET = 200000

def sum16(a, v, tmp, s):
    a(f'v_mov_b32 v{tmp}, v{v}')
    for sh in (1, 2, 4, 8): a(f'v_add_u32_dpp v{tmp}, v{tmp}, v{tmp} row_shr:{sh} row_mask:0xf bank_mask:0xf bound_ctrl:1')
    a(f'v_readlane_b32 s{s}, v{tmp}, 15')

def dbgmark(a, word, v, clk='s_memrealtime', inv=False):
    a(f'{clk} s[100:101]\ns_waitcnt lgkmcnt(0)\n{"s_not_b32 s100, s100" if inv else ""}\nv_mov_b32 v{v}, s100\nv_mov_b32 v{v+1}, 0\ns_mov_b64 exec, 1\nglobal_atomic_umax v{v+1}, v{v}, s[4:5] offset:{4*word}\ns_mov_b64 exec, -1')

def prologue(a, force=None):
    a(f'''
    s_cmp_ge_u32 s2, 256
    s_cbranch_scc1 L_exit0
    s_load_dwordx4 s[4:7], s[0:1], 88
    s_getreg_b32 s20, hwreg(HW_REG_XCC_ID, 0, 4)
    v_lshrrev_b32 v1, 6, v0
    v_and_b32 v2, 63, v0
    v_readfirstlane_b32 s{C.sW}, v1
    s_mov_b32 s{C.sBud}, {BUDGET}
    s_mov_b32 s{C.sLv}, 0
    s_mov_b32 s{C.sLay}, 0
    s_waitcnt lgkmcnt(0)
    ''')
    if force == 'spread': a('s_lshr_b32 s20, s2, 4\ns_and_b32 s20, s20, 15')
    C.srd(a, C.sWS, 6, L.WS_BYTES)
    C.srd(a, C.sT, 4, 256)
    C.srd(a, W.sY, 6, L.WS_BYTES)
    D = f's[{C.sT}:{C.sT+3}]'
    if W.DBGM:
        a(f's_lshl_b32 s21, s2, 2\ns_add_u32 s21, s21, s{C.sW}\ns_and_b32 s21, s21, 127\ns_cbranch_scc1 L_nm0'); dbgmark(a, 4, 6, inv=True); a('L_nm0:')
    if W.DEBUG or W.TOT:
        a(f'v_mov_b32 v7, 0\ns_mov_b32 s99, {L.FLAGS + 60}')
        W.logtime(a, 99, 2, 6, 7)
    a(f'''
    s_cmp_lg_u32 s{C.sW}, 0
    s_cbranch_scc1 L_p1
    s_lshl_b32 s21, s20, 2
    v_mov_b32 v3, 1
    v_mov_b32 v6, 1
    v_mov_b32 v4, 0
    v_lshlrev_b32 v5, 2, v2
    s_lshl_b32 s22, s2, 7
    s_add_u32 s22, s22, {L.FLAGS}
    s_cmp_lg_u32 s20, 0
    s_cbranch_scc1 L_p0
    s_mov_b64 exec, 1
    buffer_atomic_add v3, v4, {D}, 0 offen offset:{L.D_RANK0} sc0
    s_mov_b32 exec_lo, -1
    buffer_store_dword v4, v5, s[{C.sWS}:{C.sWS+3}], s22 offen sc1
    s_mov_b64 exec, 1
    s_waitcnt vmcnt(1)
    ds_write_b32 v4, v3
    s_waitcnt lgkmcnt(0)
    s_barrier
    s_waitcnt vmcnt(0)
    buffer_atomic_add v6, v4, {D}, 0 offen offset:{L.D_CNT}
    s_mov_b64 exec, -1
    s_branch L_p2
    L_p0:
    s_mov_b32 exec_hi, 0
    buffer_store_dword v4, v5, s[{C.sWS}:{C.sWS+3}], s22 offen sc1
    s_mov_b64 exec, 1
    s_waitcnt vmcnt(0)
    buffer_atomic_add v3, v4, {D}, s21 offen offset:{L.D_CNT} sc0
    s_waitcnt vmcnt(0)
    ds_write_b32 v4, v3
    s_waitcnt lgkmcnt(0)
    s_mov_b64 exec, -1
    L_p1:
    s_barrier
    L_p2:
    v_mov_b32 v4, 0
    ds_read_b32 v3, v4
    s_waitcnt lgkmcnt(0)
    v_readfirstlane_b32 s{C.sH}, v3
    s_barrier
    s_cmp_lg_u32 s20, 0
    s_cbranch_scc1 L_p3
    s_cmp_lt_u32 s{C.sH}, 32
    s_cbranch_scc1 L_chain
    L_p3:
    ''')
    if WARM:
        a(f'''
        s_cmp_eq_u32 s{C.sW}, 0
        s_cbranch_scc1 L_nowarm
        s_load_dwordx8 s[40:47], s[0:1], 16
        v_lshlrev_b32 v7, 6, v2
        s_mul_i32 s21, s2, 3
        s_add_u32 s21, s21, s{C.sW}
        s_sub_u32 s21, s21, 1
        s_mul_i32 s21, s21, 6144
        s_add_u32 s22, s21, 2048
        s_waitcnt lgkmcnt(0)
        ''')
        for i in WARM:
            C.srd(a, 28, 40 + 2 * i, 576 * 8192)
            a('buffer_load_dwordx2 v[8:9], v7, s[28:31], s21 offen\nbuffer_load_dwordx2 v[8:9], v7, s[28:31], s22 offen')
        a('L_nowarm:')
    a(f'''
    v_lshlrev_b32 v5, 2, v2
    s_cmp_lg_u32 s{C.sW}, 0
    s_cbranch_scc1 L_p5
    L_p4:
    s_sleep 12
    buffer_load_dword v3, v5, {D}, 0 offen offset:{L.D_CNT} sc1
    s_sub_u32 s{C.sBud}, s{C.sBud}, 1
    s_cbranch_scc1 L_exit0
    s_waitcnt vmcnt(0)
    ''')
    sum16(a, 3, 6, 21)
    a(f'''
    s_cmp_lt_u32 s21, 256
    s_cbranch_scc1 L_p4
    ds_write_b32 v5, v3
    s_waitcnt lgkmcnt(0)
    L_p5:
    s_barrier
    ds_read_b32 v3, v5
    s_waitcnt vmcnt(0) lgkmcnt(0)
    s_barrier
    ''')
    for i in range(15):
        a(f'v_readlane_b32 s21, v3, {i}\ns_cmp_gt_u32 s20, {i}\ns_cselect_b32 s21, s21, 0\ns_add_u32 s{C.sH}, s{C.sH}, s21')
    C.srd(a, W.sX, 6, L.WS_BYTES)
    a(f'''
    s_cmp_lt_u32 s{C.sH}, 32
    s_cbranch_scc1 L_chain
    s_branch L_worker
    L_exit0:
    s_endpgm
    ''')

def chain_program(cfg):
    out = []
    a = Asm(); a.uid = 1000
    a('L_chain:')
    for w in range(3): a(f's_cmp_eq_u32 s{C.sW}, {w}\ns_cbranch_scc1 L_cw{w}')
    a('s_branch L_cw3')
    for lab in ('L_cw0', 'L_cw1', 'L_cw2', 'L_cw3'): a.l.append(None)
    a.l = [x for x in a.l if x]
    out.append('\n'.join(a.l) + '\n')
    macros = []
    for w in range(4):
        a = Asm(); a.uid = 2000 + 1000 * w
        ex = f'L_cx{w}'
        a(f'L_cw{w}:')
        C.emit_setup(a, cfg, w)
        D = f's[{C.sT}:{C.sT+3}]'
        t = C.T0
        if W.DEBUG and w == 0: a(f's_mov_b32 s99, {L.FLAGS + 64}'); W.logtime(a, 99, C.sH, t, C.vZ)
        dl = f'v_lshrrev_b32 v{t+21}, 2, v{C.vL16}\nbuffer_load_dword v{t+20}, v{t+21}, {D}, 0 offen sc1'
        def start():
            if w == 2:
                a(f's_cmp_ge_u32 s{C.sH}, 8\ns_cbranch_scc1 L_cnp')
                C.emit_poison_init(a, True, w, t + 48, False)
                a('L_cnp:')
            else: C.emit_poison_init(a, w < 2, w, t + 48, False)
            C.emit_mem0(a, w, t + 8); C.srd(a, C.sT, 4, 256)
            a('s_barrier')
            if w == 1: a(f'v_mov_b32 v{t+8}, 1\ns_mov_b64 exec, 1\nbuffer_atomic_add v{t+8}, v{C.vZ}, {D}, 0 offen offset:{L.D_TEAM}\ns_mov_b64 exec, -1')
        def warm():
            if w == 2:
                a(f's_cmp_ge_u32 s{C.sH}, 8\ns_cbranch_scc1 L_cnw'); C.emit_warm(a, w, True, t + 24); a('L_cnw:')
            else: C.emit_warm(a, w, w < 2, t + 24)
        hooks = {13: lambda: a(dl)}
        if getattr(cfg, 'xwarm', True): hooks[5] = warm
        if getattr(cfg, 'inload', True): hooks['start'] = start
        else: start()
        if w == 3: hooks[3] = lambda: a(f's_lshl_b32 s{C.sFh}, s{C.sH}, 7\ns_add_u32 s{C.sFh}, s{C.sFh}, {L.F_HEAD}\n' + C.flag_load())
        C.emit_load_weights(a, cfg, w, hooks)
        if W.DEBUG and w == 0: a(f's_mov_b32 s99, {L.FLAGS + 68}'); W.logtime(a, 99, C.sH, t, C.vZ)
        if cfg.acc:
            for i in list(range(52, 64)) + list(range(80, 102)): a(f's_mov_b32 s{i}, 0')
        if W.DBGM and w == 2: dbgmark(a, 5, t + 30)
        a('s_waitcnt vmcnt(0)')
        if w == 3: C.flag_level(a)
        a(f'''
        s_branch L_cb{w}
        L_ca{w}:
        s_mov_b32 s{C.sKn}, 0
        {dl}
        s_sub_u32 s{C.sBud}, s{C.sBud}, 1
        s_cbranch_scc1 {ex}
        s_waitcnt vmcnt(0)
        L_cb{w}:
        v_readlane_b32 s{C.sTmp}, v{t+20}, {L.D_TEAM // 4}
        v_readlane_b32 s{C.sTmp+1}, v{t+20}, {L.D_POI // 4}
        v_readlane_b32 s{C.sFast}, v{t+20}, {L.D_CNT // 4}
        s_add_u32 s{C.sTmp}, s{C.sTmp}, s{C.sTmp+1}
        s_cmp_lt_u32 s{C.sTmp}, {32 + W.NPOIS}
        s_cbranch_scc1 L_ca{w}
        ''')
        names = [(f'{w}', w < 2)] if w != 2 else [('2r', True), ('2n', False)]
        tail = []
        if w == 2: tail.append(f's_cmp_ge_u32 s{C.sH}, 8\ns_cbranch_scc1 L_sel2n')
        for nm, red in names:
            tail.append(f'L_sel{nm}:\ns_cmp_ge_u32 s{C.sFast}, 32\ns_cbranch_scc1 L_run{nm}f\ns_branch L_run{nm}s')
        a(f's_branch L_ct{w}\n{ex}:\ns_endpgm\nL_ct{w}:')
        out.append(a.text() + '\n'.join(tail) + '\n')
        for nm, red in names:
            b = Asm(); b.uid = 0
            b('L_run:')
            C.emit_layer(b, cfg, w, red, 'L_x', '@ST@')
            b(f'''
            s_add_u32 s{C.sLv}, s{C.sLv}, 64
            s_add_u32 s{C.sLay}, s{C.sLay}, {L.LSTRIDE}
            s_cmp_ge_u32 s{C.sLv}, 128
            s_cbranch_scc1 L_fin
            ''')
            C.emit_mem0(b, w)
            b('s_branch L_run\nL_fin:')
            if getattr(cfg, 'wb', False) and w == 3: b(f's_cmp_lg_u32 s{C.sH}, 0\ns_cbranch_scc1 L_x\ns_sleep 32\nbuffer_wbl2 sc1\ns_waitcnt vmcnt(0)')
            if cfg.acc:
                for i in range(11): b(f'v_writelane_b32 v20, s{C.sSt+1+i}, {i}')
                b(f's_lshl_b32 s40, s{C.sH}, 8\ns_add_u32 s40, s40, {L.STAMP + 12*1024*1024 + 64*w}\nv_lshrrev_b32 v21, 2, v{C.vL16}\ns_mov_b64 exec, 0x7ff\nbuffer_store_dword v20, v21, s[8:11], s40 offen\ns_waitcnt vmcnt(0)')
            b(f'''
            L_x:
            s_endpgm
            ''')
            body = b.text()
            body = re.sub(r'\b(L_\w+)', lambda m: m.group(1) + nm + '\\id', body).replace('@ST@', '\\st')
            macros.append((nm, body))
    for nm, body in macros: out.append(f'.macro chain{nm} id, st\n{body}.endm\n')
    for nm, _ in macros: out.append(f'chain{nm} f\n')
    for nm, _ in macros: out.append(f'chain{nm} s, sc1\n')
    return ''.join(out)

def build(cfg=None, force=None, name=NAME + '_kernel'):
    cfg = cfg or C.ChainCfg(); cfg.integ = True
    global WARM; WARM = getattr(cfg, 'warm', [1, 2, 3])
    W.SENT = getattr(cfg, 'sent', 4)
    for k_, v_ in dict(H_ATT=2, H_WO=1, H_BA=1, H_FO=1, OUTMOD='', POI_WAIT=True, BA_SLEEP=3, BA_FINE=63, BA_DEFER=62).items(): setattr(W, k_, getattr(cfg, k_, v_))
    W.TOT = getattr(cfg, 'tot', False)
    W.DBGM = dbgmark if getattr(cfg, 'dbgm', False) else None; cfg.dbgmark = W.DBGM
    W.DEBUG = cfg.log; W.PROF = getattr(cfg, 'prof', False)
    a = Asm(); prologue(a, force)
    a('L_chain:\nL_worker:')
    pro = a.text().replace('L_chain:\n', '').replace('L_worker:\n', '')
    w = Asm(); w.uid = 10000
    w('L_worker:'); W.worker_program(w)
    ref = open('cdna_kernels/' + NAME + '.s.ref').read()
    hdr = ''.join(l + '\n' for l in ref.split('\n') if l.startswith(';') and '@launch' not in l and 'Override' not in l and 'grid=ceil' not in l)
    txt = hdr + f'''; @launch grid=(256,1,1) block=(256,1,1) lds=163840
; One persistent workgroup per CU.  32 CUs run the recurrent memory chain (one head each, weights resident in
; registers and LDS); the other 224 run the projections and attentions around it, linked by progress words.
.amdgcn_target "amdgcn-amd-amdhsa--gfx950"
.text
.globl {name}
.p2align 8
.type {name},@function
{name}:
''' + pro + w.text() + chain_program(cfg) + f'''.section .rodata,"a"
.p2align 6
.amdhsa_kernel {name}
  .amdhsa_next_free_vgpr 512
  .amdhsa_next_free_sgpr 102
  .amdhsa_accum_offset 256
  .amdhsa_group_segment_fixed_size 0
  .amdhsa_kernarg_size 104
  .amdhsa_user_sgpr_count 2
  .amdhsa_user_sgpr_kernarg_segment_ptr 1
  .amdhsa_system_sgpr_workgroup_id_x 1
.end_amdhsa_kernel
'''
    txt = '\n'.join(l.strip() if not l.startswith(';') else l for l in txt.split('\n'))
    return txt

if __name__ == '__main__':
    t = build()
    p = sys.argv[1] if len(sys.argv) > 1 else 'cdna_kernels/' + NAME + '.s'
    open(p, 'w').write(t)
    print(len(t), 'bytes')
```

```python
from asmdsl import *
import layout as L
import struct
def fbits(x): return struct.unpack('<I', struct.pack('<f', x))[0]
SCALE_LOG2E = (128 ** -0.5) * 1.4426950408889634
OOB = 0x40000000

LD_MEM = 0
LD_Q   = 9216
LD_K   = LD_Q + 2048 + 32
LD_O   = LD_K + 2048
LD_PX  = LD_O + 2048 + 16
LD_PM  = LD_PX + 512
LD_Z   = LD_PM + 128
LD_ONE = LD_Z + 16
LD_SEL = LD_ONE + 16
LD_DUMP = 16240
LD_W   = 16384
NT   = [4, 4, 5, 5]
NLDS = [17, 17, 19, 19]
WBASE = [LD_W + 2048 * sum(NLDS[:w]) for w in range(4)]
def tile_of(w, slot):
    if slot == 4: return 14 + w
    return 4 * slot + w

sWS = 8
sT  = 12
sH = 16; sW = 17; sStep = 18; sBud = 19
sKX = 20; sVX = 21; sKM = 22; sVM = 23
sP = 24
sRed = 29; sPo = 30; sRing = 31; sRingPo = 32; sGat = 33
sMask = 34
sRc = 36
sPf = 37
sTmp = 38
sPar = 46
sLay = 49
sCs = 50
sSt = 52
sKMn = 64; sVMn = 65; sKX2 = 66; sUnit = 67; sKmask = 68; sHn = 44; sHv = 45; sHc = 47; sLv = 48; sFh = 70; sPfe = 71; sNd = 72; sFast = 73; sHm = 74; sKn = 76; sFc = 77; sFl = 51; sVer = 23; sH2 = 65; sLd = 76

vL16 = 0; vWl = 1; vA = 2; vIdx = 3; vQW = 4; vTR = 5; vP = 6; vPRx = 7; vPRm = 8; vTO = 9; vVp = 10
vM = 12; vKX = 13
vPW = 14; vZ = 15
vHv = vPW
vHA = vP
T0 = 16
LATE = [(4, 1), (5, 1), (6, 2), (8, 1)]
def WREG(w): return list(range(88 if w < 2 else 72, 512, 8))
GATH = [(0, 4), (4, 1), (5, 2), (7, 2)]

class ChainCfg:
    deferred = [15, 16, 17, 14, 13, 12, 11, 10, 9, 8, 7, 6]
    sh = [2, 3, 2, 2]
    nm = [12, 12, 12, 12]; smart = True; wlat = 5; mlate = 0; ostart = 4
    stamps = False
    nsteps = 64
    d_redA = 0; d_red = 24; d_redC = 12
    pos = [0, 3, 7, 10, 14, 17, 21, 25, 29, 33, 37, 41]; zoff = 0; hd = [1, 2]; nfirst = 4; pad = 0; sint = True; hold1 = 0; dump = True; gfl = 18; flah = 4; poller = 1; h2first = True; ncold = 2; scold = 9; d_comp = 24; ncomp = 16; gv = [10, 9, 7, 8]; gps = 1; gpd = 4; gk = [22, 28, 34, 40]; gp = 22; kpos = [2, 2]; gkx = [0, 1, 3, 4]; d_go2 = 15; gsh = 2; d_idle = 1
    gdep = 2; ggap = 32; gdepA = 1
    hpos = 2; htry = 60; hgaps = [4, 6, 8, 10, 12, 14]; hun = 2
    vdirect = True
    lddw = 0; lddep = 8; ldbar = 1
    early = 59
    fills = [0, 0, 0, 0, 0]; nfo = 4; npw = 2
    novm = False
    gpo = 35
    hrep = 4; pfd = 1
    perm = [0, 1, 2, 3]
    pf = True
    pub = True
    noexch = False
    log = False
    integ = False
    trace = False
    fine = []
    acc = False
    stampsel = None

def main_seq(cfg):
    seq = []
    for c in range(18):
        seq += [('q', c), ('k', c)]
        if c not in cfg.deferred: seq.append(('v', c))
    return seq

def frag_plan(cfg, w):
    plan = {}; r = iter(WREG(w)); slot = 0
    seq = main_seq(cfg)
    nm = cfg.nm[w]
    span = len(seq) - 2
    pos = sorted(set(int(round(i * span / (nm - 1))) for i in range(nm)))
    if cfg.pos: pos = cfg.pos[:nm]
    assert len(pos) == nm
    for i, key in enumerate(seq):
        if i in pos: plan[key] = ('l', slot); slot += 1
        else: plan[key] = ('r', next(r))
    for c in cfg.deferred: plan[('v', c)] = ('r', next(r))
    no = NLDS[w] - nm
    n = 4 * NT[w]
    opos = sorted(set(int(round(cfg.ostart + i * (n - 1 - cfg.ostart) / (no - 1))) for i in range(no)))
    assert len(opos) == no
    for i in range(n):
        key = ('o', i // 4, i % 4)
        if i in opos: plan[key] = ('l', slot); slot += 1
        else: plan[key] = ('r', next(r))
    assert slot == NLDS[w], slot
    return plan

def srd(a, s, lo, size):
    a(f's_mov_b32 s{s}, s{lo}\ns_and_b32 s{s+1}, s{lo+1}, 0xffff\ns_mov_b32 s{s+2}, {size}\ns_mov_b32 s{s+3}, 0x20000')

def emit_setup(a, cfg, w):
    t = T0
    a(f'''
    v_and_b32 v{t+1}, 63, v0          ; lane
    v_and_b32 v{t+2}, 15, v{t+1}      ; n
    v_lshrrev_b32 v{t+3}, 4, v{t+1}   ; g
    v_and_b32 v{t+4}, 1, v{t+3}       ; g&1
    v_lshrrev_b32 v{t+5}, 1, v{t+3}   ; g>>1
    v_lshlrev_b32 v{vL16}, 4, v{t+1}
    v_add_u32 v{vWl}, {WBASE[w]}, v{vL16}
    v_mov_b32 v{vZ}, 0
    v_and_b32 v{t+6}, 3, v{t+1}
    v_lshlrev_b32 v{t+6}, 4, v{t+6}
    v_lshl_add_u32 v{t+6}, v{t+4}, 6, v{t+6}
    v_lshl_add_u32 v{t+6}, v{t+5}, 8, v{t+6}
    v_bfe_u32 v{t+7}, v{t+1}, 2, 1
    v_lshl_add_u32 v{vA}, v{t+7}, 7, v{t+6}
    v_and_b32 v{t+6}, 8, v{t+1}
    v_cmp_eq_u32 vcc, 0, v{t+6}
    v_mov_b32 v{t+7}, 0xEEEEDDDD
    v_mov_b32 v{t+8}, 0x44448888
    v_cndmask_b32 v{vIdx}, v{t+7}, v{t+8}, vcc
    v_lshlrev_b32 v{t+6}, 4, v{t+2}
    v_lshl_add_u32 v{t+6}, v{t+4}, 3, v{t+6}
    v_lshl_add_u32 v{t+6}, v{t+5}, 2, v{t+6}
    v_mov_b32 v{t+7}, {OOB}
    v_cndmask_b32 v{vM}, v{t+7}, v{t+6}, vcc
    v_lshlrev_b32 v{t+6}, 3, v{t+5}
    v_xor_b32 v{t+6}, v{t+6}, v{t+2}
    v_lshlrev_b32 v{t+6}, 3, v{t+6}
    v_lshl_add_u32 v{t+6}, v{t+3}, 7, v{t+6}
    v_add_u32 v{vQW}, {512*w}, v{t+6}
    v_bfe_u32 v{t+6}, v{t+1}, 2, 1
    v_xor_b32 v{t+7}, v{t+6}, v{t+5}
    v_lshlrev_b32 v{t+6}, 8, v{t+6}
    v_lshl_add_u32 v{t+6}, v{t+7}, 6, v{t+6}
    v_and_b32 v{t+7}, 1, v{t+1}
    v_lshl_add_u32 v{t+6}, v{t+7}, 7, v{t+6}
    v_lshl_add_u32 v{t+6}, v{t+4}, 4, v{t+6}
    v_bfe_u32 v{t+7}, v{t+1}, 3, 1
    v_lshl_add_u32 v{vTO}, v{t+7}, 3, v{t+6}
    v_bfe_u32 v{t+7}, v{t+1}, 1, 1
    v_mul_u32_u24 v{t+7}, {LD_K - LD_Q}, v{t+7}
    v_add_u32 v{vTR}, v{vTO}, v{t+7}
    v_mul_u32_u24 v{t+6}, {L.PB_UNIT}, v{t+3}
    v_lshl_add_u32 v{vP}, v{t+2}, 3, v{t+6}
    v_lshrrev_b32 v{t+7}, 3, v{t+2}
    v_lshlrev_b32 v{t+6}, 8, v{t+7}
    v_and_b32 v{t+8}, 7, v{t+2}
    v_lshl_add_u32 v{t+6}, v{t+8}, 4, v{t+6}
    v_lshl_add_u32 v{vKX}, v{t+3}, 9, v{t+6}
    v_and_b32 v{t+8}, 7, v{t+1}
    v_lshl_add_u32 v{t+9}, v{t+3}, 3, v{t+8}
    v_lshlrev_b32 v{vPRx}, 4, v{t+9}                ; (g*8+q)*16
    v_lshl_add_u32 v{vTO}, v{t+7}, 3, v{vPRx}
    v_lshl_add_u32 v{t+9}, v{t+4}, 3, v{t+8}
    v_lshlrev_b32 v{t+9}, 3, v{t+9}                 ; ((g&1)*8+q)*8
    v_cmp_eq_u32 vcc, v{t+7}, v{t+5}
    v_mov_b32 v{t+10}, 128
    v_cndmask_b32 v{vPRm}, v{t+10}, v{t+9}, vcc
    ''')
    if w < 2: a(f'v_add_u32 v{vPW}, {LD_PX + 8*w}, v{vPRx}\ns_mov_b32 s{sMask}, 0x00ff00ff\ns_mov_b32 s{sMask+1}, 0x00ff00ff')
    elif w == 2: a(f'v_add_u32 v{vPW}, {LD_PM}, v{t+9}\ns_mov_b32 s{sMask}, 0\ns_mov_b32 s{sMask+1}, 0x00ff00ff')
    if w < 3:
        a(f'v_lshlrev_b32 v{t+10}, {4 if w < 2 else 3}, v{t+8}\nv_add_u32 v{t+10}, {LD_DUMP + (8 * (1 - w) if w < 2 else 64)}, v{t+10}\nv_cndmask_b32 v{vPW}, v{t+10}, v{vPW}, s[{sMask}:{sMask+1}]')
    a(f's_mov_b32 s{sHm}, 0x00010001\ns_mov_b32 s{sHm+1}, 0x00010001')
    a(f'''
    v_mov_b64 {R(t+12,2)}, 0
    v_mov_b64 {R(t+14,2)}, 0
    ds_write_b128 v{vZ}, {R(t+12,4)} offset:{LD_Z}
    ds_write_b128 v{vZ}, {R(t+12,4)} offset:{LD_PX - 16}
    v_add_u32 v{vPRx}, 16, v{vPRx}
    v_lshlrev_b32 v{t}, 4, v{t+8}
    ds_write_b128 v{t}, {R(t+12,4)} offset:{LD_SEL}
    v_mov_b32 v{t+16}, 0x3f803f80
    v_mov_b32 v{t+17}, 0x3f803f80
    ds_write_b64 v{vZ}, {R(t+16,2)} offset:{LD_ONE}
    ds_write_b64 v{vZ}, {R(t+16,2)} offset:{LD_ONE+8}
    s_waitcnt lgkmcnt(0)
    s_barrier
    v_mul_u32_u24 v{t}, 18, v{t+8}
    ds_write_b16 v{t}, v{t+16} offset:{LD_SEL}
    s_mov_b32 s{sCs}, {fbits(SCALE_LOG2E)}
    s_lshl_b32 s{sTmp+2}, s{sH}, 7
    ''')
    for i in range(NT[w]): a(f's_add_u32 s{sP+i}, s{sTmp+2}, {L.PB + tile_of(w, i)*4*L.PB_UNIT}')
    a(f'''
    s_add_u32 s{sUnit}, s{sH}, {[0, 40, 32, 0][w]}
    s_mul_i32 s{sRed}, s{sUnit}, {L.PB_UNIT}
    s_add_u32 s{sRed}, s{sRed}, {L.PB}
    s_add_u32 s{sHn}, s{sH}, {L.HN}
    s_lshl_b32 s{sUnit}, s{sUnit}, 7
    s_mov_b32 s{sPar}, {L.PB_PAR}
    s_mov_b32 s{sRc}, 0
    s_mov_b32 s{sPo}, {OOB}
    {f's_and_b32 s{sHn}, s{sH}, {cfg.hrep-1}' if w == cfg.poller else ''}
    {f's_mul_i32 s{sHn}, s{sHn}, {L.PB_UNIT}' if w == cfg.poller else ''}
    {f's_add_u32 s{sHn}, s{sHn}, {L.HN}' if w == cfg.poller else ''}
    {f's_add_u32 s{sH2}, s{sH}, {L.HN + 2048}' if w == cfg.poller else ''}
    {f's_and_b32 s{sH2}, s{sH}, {cfg.hrep-1}' if w == 3 else ''}
    {f's_mul_i32 s{sH2}, s{sH2}, {L.PB_UNIT}' if w == 3 else ''}
    {f's_add_u32 s{sH2}, s{sH2}, {L.HN + 2048}' if w == 3 else ''}
    s_mov_b32 s{sRingPo}, {OOB}
    s_waitcnt lgkmcnt(0)
    ''')

def emit_load_weights_dw(a, cfg, w):
    plan = frag_plan(cfg, w)
    t = T0
    a(f'''
    v_bfe_u32 v{t+2}, v{vL16}, 4, 4           ; n
    v_bfe_u32 v{t+4}, v{vL16}, 8, 1           ; gB&1
    v_bfe_u32 v{t+5}, v{vL16}, 9, 1           ; gB>>1
    v_lshlrev_b32 v{t+3}, 17, v{t+4}
    v_lshl_add_u32 v{t+3}, v{t+5}, 14, v{t+3}
    v_lshl_add_u32 v{t+3}, v{t+2}, 2, v{t+3}
    s_lshl_b32 s{sTmp}, s{sH}, 8
    s_add_u32 s{sTmp}, s{sTmp}, {64*w}
    v_add_u32 v{t}, s{sTmp}, v{t+3}
    v_lshl_add_u32 v{t+4}, v{t+5}, 3, v{t+4}
    v_mul_u32_u24 v{t+4}, 1152, v{t+4}
    v_lshl_add_u32 v{t+4}, v{t+2}, 2, v{t+4}
    s_mul_i32 s{sTmp}, s{sH}, {128*1152}
    v_add_u32 v{t+1}, s{sTmp}, v{t+4}
    ''')
    stage = [t + 8 + 8 * i for i in range(6)]
    pend = []; nload = 0; si = 0
    def flush(upto):
        while pend and len(pend) > upto:
            reg, slot, last = pend.pop(0)
            a(f's_waitcnt vmcnt({min(nload - last - 1, 63)})')
            a(f'ds_write_b128 v{vWl}, {R(reg,4)} offset:{slot*2048}\nds_write_b128 v{vWl}, {R(reg+4,4)} offset:{slot*2048+1024}')
            a('s_waitcnt lgkmcnt(0)')
    def load_frag(dst, voff, offs):
        nonlocal nload, si
        kind, x = dst
        if kind == 'l':
            flush(len(stage) - 1); reg = stage[si % len(stage)]; si += 1
        else: reg = x
        cur = None
        for rho in range(8):
            o = offs[rho]
            if cur is None or not (0 <= o - cur < 4096):
                cur = o; a(f's_mov_b32 s{sTmp+3}, {o}')
            a(f'buffer_load_dword {R(reg+rho)}, v{voff}, s[{sT}:{sT+3}], s{sTmp+3} offen offset:{o-cur}')
            nload += 1
        if kind == 'l': pend.append((reg, x, nload - 1))
        a(f's_waitcnt vmcnt({cfg.lddw})')
    for m, karg in (('q', 16), ('k', 24), ('v', 32)):
        a(f's_load_dwordx2 s[{sTmp+4}:{sTmp+5}], s[0:1], {karg}\ns_waitcnt lgkmcnt(0)')
        srd(a, sT, sTmp + 4, 576 * 8192)
        for c in range(18):
            load_frag(plan[(m, c)], t, [(32*c + 4*(r & 3) + (r >> 2)) * 8192 for r in range(8)])
    a(f's_load_dwordx2 s[{sTmp+4}:{sTmp+5}], s[0:1], 40\ns_waitcnt lgkmcnt(0)')
    srd(a, sT, sTmp + 4, 4096 * 1152)
    for sl in range(NT[w]):
        for c in range(4):
            load_frag(plan[('o', sl, c)], t + 1, [(32*c + 16*(r >> 2) + 2*(r & 3)) * 1152 + 64*tile_of(w, sl) for r in range(8)])
    flush(0)
    a('s_waitcnt vmcnt(0)')

def emit_load_weights(a, cfg, w, hooks={}):
    if cfg.lddw: return emit_load_weights_dw(a, cfg, w)
    plan = frag_plan(cfg, w)
    t = T0
    vq, vo, rq, ro = t, t + 1, t + 2, t + 3
    a(f"""
    v_bfe_u32 v{t+4}, v{vL16}, 6, 4
    v_and_b32 v{t+5}, 48, v{vL16}
    v_lshl_add_u32 v{vq}, v{t+4}, 13, v{t+5}
    s_lshl_b32 s{sTmp}, s{sH}, 8
    s_add_u32 s{sTmp}, s{sTmp}, {64*w}
    v_add_u32 v{vq}, s{sTmp}, v{vq}
    v_mul_u32_u24 v{vo}, 1152, v{t+4}
    s_mul_i32 s{sTmp}, s{sH}, {128*1152}
    v_add3_u32 v{vo}, v{vo}, v{t+5}, s{sTmp}
    v_bfe_u32 v{t+4}, v{vL16}, 4, 4           ; n
    v_bfe_u32 v{t+5}, v{vL16}, 8, 1           ; gB&1
    v_bfe_u32 v{t+6}, v{vL16}, 9, 1           ; gB>>1
    v_lshlrev_b32 v{t+4}, 2, v{t+4}
    v_add_u32 v{t+4}, {WBASE[w]}, v{t+4}
    v_lshl_add_u32 v{rq}, v{t+5}, 10, v{t+4}
    v_lshl_add_u32 v{rq}, v{t+6}, 7, v{rq}
    v_lshl_add_u32 v{ro}, v{t+5}, 6, v{t+4}
    v_lshl_add_u32 v{ro}, v{t+6}, 9, v{ro}
    s_load_dwordx8 s[{sLd}:{sLd+7}], s[0:1], 16
    s_waitcnt lgkmcnt(0)
    """)
    for i in range(4): srd(a, sLd + 8 + 4 * i, sLd + 2 * i, 576 * 8192)
    keys = [(m, c) for m in 'qkv' for c in range(18)] + [('o', sl, c) for sl in range(NT[w]) for c in range(4)]
    ns = NLDS[w]
    regk = [k for k in keys if plan[k][0] == 'r']
    bys = {plan[k][1]: k for k in keys if plan[k][0] == 'l'}
    order = regk + [bys[(len(regk) + i) % ns] for i in range(ns)]
    def dma(i):
        k = order[i]; slot = i % ns
        for hf in range(2):
            if k[0] == 'o': off, v, sr = (32*k[2] + 16*hf) * 1152 + 64*tile_of(w, k[1]), vo, sLd + 20
            else: off, v, sr = (32*k[1] + 16*hf) * 8192, vq, sLd + 8 + 4 * 'qkv'.index(k[0])
            a(f's_mov_b32 m0, {WBASE[w] + slot*2048 + 1024*hf}\ns_mov_b32 s{sTmp}, {off}\nbuffer_load_dwordx4 v{v}, s[{sr}:{sr+3}], s{sTmp} offen lds')
    dp = min(cfg.lddep, ns)
    for i in range(dp): dma(i)
    if 'start' in hooks: hooks['start']()
    for i, k in enumerate(order):
        slot = i % ns
        a(f's_waitcnt vmcnt({2 * (min(i + dp, len(order)) - i - 1)})')
        dst = plan[k][1] if plan[k][0] == 'r' else t + 8
        for rho in range(8):
            row = 16*(rho >> 2) + 2*(rho & 3) if k[0] == 'o' else 4*(rho & 3) + (rho >> 2)
            a(f'ds_read_b32 {R(dst+rho)}, v{ro if k[0] == "o" else rq} offset:{slot*2048 + row*64}')
        a('s_waitcnt lgkmcnt(0)')
        if plan[k][0] == 'l':
            assert plan[k][1] == slot
            a(f'ds_write_b128 v{vWl}, {R(dst,4)} offset:{slot*2048}\nds_write_b128 v{vWl}, {R(dst+4,4)} offset:{slot*2048+1024}\ns_waitcnt lgkmcnt(0)')
        if cfg.ldbar and i % cfg.ldbar == 0 and i < 40: a('s_barrier')
        if i + dp < len(order): dma(i + dp)
        if len(order) - i in hooks: hooks[len(order) - i]()

def emit_poison_init(a, red, w=None, t=T0, wait=True):
    WS = f's[{sWS}:{sWS+3}]'
    if w == 3:
        a(f's_mov_b64 exec, s[{sHm}:{sHm+1}]\nbuffer_store_byte v{vZ}, v{vHA}, {WS}, s{sHn} offen sc1\nbuffer_store_byte v{vZ}, v{vHA}, {WS}, s{sHn} offen offset:2048 sc1\ns_mov_b64 exec, -1')
        if wait: a('s_waitcnt vmcnt(0)')
    if not red: return
    a(f'v_mov_b64 {R(t,2)}, -1\nv_mov_b64 {R(t+2,2)}, -1\ns_add_u32 s{sTmp}, s{sRed}, {L.PB_PAR}')
    for s in (sRed, sTmp):
        for i in range(4): a(f'buffer_store_dwordx4 {R(t,4)}, v{vL16}, {WS}, s{s} offen offset:{i*1024} sc1')
    for i in range(4):
        a(f's_add_u32 s{sTmp+1}, s{sUnit}, {L.MR + i*9216}\nbuffer_store_dword v{t}, v{vM}, {WS}, s{sTmp+1} offen sc1')
    if wait: a('s_waitcnt vmcnt(0)')

def stamp(a, cfg, i):
    if not cfg.stamps or (cfg.stampsel is not None and i not in cfg.stampsel): return
    a(f'''
    s_memtime s[{sTmp+4}:{sTmp+5}]
    s_waitcnt lgkmcnt(0)
    s_sub_u32 s{sTmp+5}, s{sTmp+4}, s{sSt}
    s_mov_b32 s{sSt}, s{sTmp+4}
    s_add_u32 s{sSt+2+i}, s{sSt+2+i}, s{sTmp+5}
    ''')

def mark(a, cfg, name):
    if name in cfg.fine:
        i = cfg.fine.index(name)
        a(f's_memtime s[{80+2*i}:{81+2*i}]')

class Q:
    def __init__(self, a, cnt, cap): self.a = a; self.q = []; self.cnt = cnt; self.cap = cap
    def issue(self, tag, text):
        for x in text.split('\n'):
            self.a(x); self.q.append(tag)
        assert len(self.q) <= self.cap, self.q
    def wait(self, *tags):
        idx = [i for i, x in enumerate(self.q) if x in tags]
        if not idx: return
        last = idx[-1]
        self.a(f's_waitcnt {self.cnt}({len(self.q)-last-1})')
        del self.q[:last + 1]
    def clear(self): self.q = []

def delay(a, n):
    while n > 0:
        k = min(n, 16); a(f's_nop {k-1}'); n -= k

def emit_mem0(a, w, t=T0):
    g0, gn = GATH[w]
    Wbuf = [t + 20, t + 28]; GL = [t + 4, t + 8, t + 12, t + 16]
    def gwrite(i): return f'ds_write_b128 v{vL16}, {R(GL[i],4)} offset:{LD_MEM + (g0+i)*1024}'
    a(f's_load_dwordx2 s[{sTmp+4}:{sTmp+5}], s[0:1], 8\ns_waitcnt lgkmcnt(0)')
    srd(a, sT, sTmp + 4, 9216)
    a(f"""
    v_bfe_u32 v{t}, v{vL16}, 4, 2            ; i
    v_bfe_u32 v{t+1}, v{vL16}, 7, 1          ; rh
    v_lshl_add_u32 v{t}, v{t+1}, 2, v{t}
    v_mul_u32_u24 v{t}, 1152, v{t}
    v_bfe_u32 v{t+1}, v{vL16}, 9, 1
    v_lshl_add_u32 v{t}, v{t+1}, 6, v{t}
    v_bfe_u32 v{t+1}, v{vL16}, 6, 1          ; b
    v_lshl_add_u32 v{t}, v{t+1}, 2, v{t}
    v_bfe_u32 v{t+1}, v{vL16}, 8, 1          ; par
    v_lshl_add_u32 v{t}, v{t+1}, 1, v{t}
    """)
    for it in range(gn):
        for j in range(8): a(f'buffer_load_ushort v{t+4+8*it+j}, v{t}, s[{sT}:{sT+3}], 0 offen offset:{(g0+it)*128 + j*8}')
    a('s_waitcnt vmcnt(0)')
    for it in range(gn):
        for j in range(4): a(f'v_lshl_or_b32 v{GL[it]+j}, v{t+4+8*it+2*j+1}, 16, v{t+4+8*it+2*j}')
    for it in range(gn): a(gwrite(it))
    a('s_waitcnt lgkmcnt(0)')

def flag_load(): return f's_mov_b64 exec, 3\nbuffer_load_dword v{vPW}, v{vL16}, s[{sWS}:{sWS+3}], s{sFh} offen offset:16 sc1\ns_mov_b64 exec, -1'
def flag_level(a):
    a(f'v_readlane_b32 s{sTmp}, v{vPW}, 0\nv_readlane_b32 s{sKn}, v{vPW}, 1\ns_min_u32 s{sKn}, s{sKn}, s{sTmp}')

def emit_warm(a, w, red, t):
    WS = f's[{sWS}:{sWS+3}]'
    a(f'v_lshlrev_b32 v{t}, 2, v{vL16}')
    if red:
        a(f's_add_u32 s{sTmp}, s{sRed}, {L.PB_PAR}')
        for so in (sRed, sTmp): a(f'buffer_load_dwordx2 {R(t+2,2)}, v{t}, {WS}, s{so} offen sc1')
    if w == 3:
        a(f's_mul_i32 s{sTmp}, s{sH}, 1152\ns_add_u32 s{sTmp}, s{sTmp}, {L.MR}\ns_mov_b32 exec_hi, 0\nbuffer_load_dwordx2 {R(t+2,2)}, v{t}, {WS}, s{sTmp} offen sc1')
        a(f's_mov_b32 s{sTmp}, {L.HN}\ns_mov_b64 exec, s[{sHm}:{sHm+1}]\nbuffer_load_dword v{t+2}, v{vHA}, {WS}, s{sTmp} offen sc1\nbuffer_load_dword v{t+2}, v{vHA}, {WS}, s{sTmp} offen offset:2048 sc1\ns_mov_b64 exec, -1')

def emit_layer(a, cfg, w, red, exit_label, st=''):
    plan = frag_plan(cfg, w)
    WS = f's[{sWS}:{sWS+3}]'
    t = T0
    ds = Q(a, 'lgkmcnt', 15); vm = Q(a, 'vmcnt', 63)
    accq, acck, accv = t, t + 4, t + 8
    Abuf = [t + 12 + 4 * i for i in range(3)]
    X0 = t + 24; X1 = t + 28
    Wbuf = [t + 32, t + 40]
    VXr = t + 48
    KXr = [t + 56 + 4 * i for i in range(4)]
    SM = 'v_smfmac_f32_16x16x64_bf16'
    g0, gn = GATH[w]
    GL = (Abuf + [X0])[:gn]
    cold = []
    def budget(): a(f's_sub_u32 s{sBud}, s{sBud}, 1\ns_cbranch_scc1 {exit_label}')
    def gloads():
        for i in range(gn): a(f'buffer_load_dwordx4 {R(GL[i],4)}, v{vL16}, {WS}, s{sGat} offen offset:{i*1024} sc1')
    def gwrite(i): return f'ds_write_b128 v{vL16}, {R(GL[i],4)} offset:{LD_MEM + (g0+i)*1024}'
    def kloads():
        a(f's_add_u32 s{sKX2}, s{sKX}, 4096')
        for c in range(4): a(f'buffer_load_dwordx4 {R(KXr[c],4)}, v{vKX}, {WS}, s{sKX if c < 2 else sKX2} offen offset:{2048*(c&1)} sc1')
        a(f's_add_u32 s{sKX}, s{sKX}, 262144')
    fload = flag_load()
    def level(): flag_level(a)
    def avail(ahead):
        lp = a.lab('L_av'); ok = a.lab('L_avok')
        a(f's_add_u32 s{sNd}, s{sStep}, {ahead + 1}\ns_min_u32 s{sNd}, s{sNd}, 64\ns_add_u32 s{sNd}, s{sNd}, s{sLv}\ns_cmp_lt_u32 s{sKn}, s{sNd}\ns_cbranch_scc1 {lp}\n{ok}:')
        def rest():
            a(f'{lp}:\n{fload}'); budget(); a('s_waitcnt vmcnt(0)'); level()
            a(f's_cmp_lt_u32 s{sKn}, s{sNd}\ns_cbranch_scc1 {lp}\ns_branch {ok}')
        cold.append(rest)
    def accumulate():
        sk_ = a.lab('L_noacc')
        a(f's_waitcnt lgkmcnt(0)\ns_sub_u32 s{sTmp+2}, s{sStep}, 9\ns_cmp_ge_u32 s{sTmp+2}, 48\ns_cbranch_scc1 {sk_}')
        for i in range(len(cfg.fine) - 1): a(f's_sub_u32 s{sTmp+2}, s{82+2*i}, s{80+2*i}\ns_add_u32 s{sSt+2+i}, s{sSt+2+i}, s{sTmp+2}')
        a(f'{sk_}:')
    a(f"""
    s_mov_b32 s{sStep}, 0
    s_mov_b32 s{sVer}, 1
    s_lshl_b32 s{sTmp}, s{sH}, 13
    s_add_u32 s{sTmp}, s{sTmp}, s{sLay}
    s_add_u32 s{sPf}, s{sTmp}, {L.KX + cfg.pfd*262144}
    s_add_u32 s{sKX}, s{sTmp}, {L.KX + 128*w}
    s_add_u32 s{sVX}, s{sTmp}, {L.VX + 2048*w}
    s_lshl_b32 s{sTmp+1}, s{sH}, 12
    s_add_u32 s{sTmp+1}, s{sTmp+1}, s{sLay}
    s_add_u32 s{sKMn}, s{sTmp+1}, {L.KM + 512*w - 16}
    s_mov_b32 s{sKM}, {OOB}
    s_mov_b32 s{sKmask}, 0xff00ff00
    s_mov_b32 s{sKmask+1}, 0xff00ff00
    """)
    seq = main_seq(cfg)
    ldsm = [k for k in seq if plan[k][0] == 'l']
    def wr(buf, slot, half): return f'ds_read_b128 {R(buf+4*half,4)}, v{vWl} offset:{slot*2048+1024*half}'
    def tr2(dst, base, c, vreg): return '\n'.join(f'ds_read_b64_tr_b16 {R(dst+2*hf,2)}, v{vreg} offset:{base + c*512 + 32*hf}' for hf in range(2))
    def cst(dst, off): return f'ds_read_b128 {R(dst,4)}, v{vZ} offset:{off}'
    def pre_step():
        for i in range(2):
            for hf in range(2): a(wr(Wbuf[i], plan[ldsm[i]][1], hf))
        for i in range(0, 12, 2): a(f'v_mov_b64 {R(t+i,2)}, 0')
        a(f'v_lshlrev_b32 v{X1+2}, 1, v{vL16}\nv_lshrrev_b32 v{X1+3}, 1, v{vL16}')
        if w < 2 and cfg.kpos[w] == 2: a(f's_add_u32 s{sKX2}, s{sKX}, 4096')
        if w == 3:
            a(f'v_lshlrev_b32 v{X1+1}, 2, v{vL16}')
            if not cfg.integ: a(f's_mov_b32 s{sPfe}, s{sPf}')
            else:
                a(f"""
                s_add_u32 s{sTmp+2}, s{sStep}, s{sLv}
                s_add_u32 s{sTmp+3}, s{sTmp+2}, 2
                s_cmp_ge_u32 s{sKn}, s{sTmp+3}
                s_cselect_b32 s{sPfe}, s{sPf}, {OOB}
                s_add_u32 s{sTmp+2}, s{sTmp+2}, {cfg.flah}
                s_add_u32 s{sTmp+3}, s{sLv}, 64
                s_min_u32 s{sTmp+2}, s{sTmp+2}, s{sTmp+3}
                s_cmp_lt_u32 s{sKn}, s{sTmp+2}
                s_cselect_b32 s{sFl}, 1, 0
                """)
            a(f's_add_u32 s{sKX2}, s{sPfe}, 4096\ns_add_u32 s{sKX}, s{sPfe}, {L.VX - L.KX}\ns_add_u32 s{sRed}, s{sPfe}, {L.VX - L.KX + 4096}\ns_add_u32 s{sPf}, s{sPf}, 262144')
    if cfg.integ:
        if w == 3:
            a(f's_lshl_b32 s{sFh}, s{sH}, 7\ns_add_u32 s{sFh}, s{sFh}, {L.F_HEAD}')
            avail(0)
        if min(cfg.kpos) < 2: a('s_barrier')
    if w < 2 and cfg.kpos[w] < 2: kloads()
    pre_step()
    loop = a.lab('L_step')
    abuf_of = {}
    def aread(c, buf):
        abuf_of[c] = buf
        ds.issue(('A', c), f'ds_read_b128 {R(buf,4)}, v{vA} offset:{LD_MEM + c*512}')
    def head(nlate=0):
        a('s_barrier')
        stamp(a, cfg, 0); mark(a, cfg, 'B1')
        for c in range(cfg.hd[0]): aread(c, Abuf[c])
        for i in range(nlate): a(f'buffer_load_dwordx4 v{vL16}, {WS}, s{sTmp} offen offset:{i*1024} sc1 lds')
        for c in range(cfg.hd[0], cfg.hd[1]): aread(c, Abuf[c])
    a('s_waitcnt vmcnt(0) lgkmcnt(0)')
    if cfg.log and w == 3:
        import workers
        workers.logtime(a, sFh, sLv, vM, vZ, 52)
    head()
    a(f'{loop}:')
    F = [Wbuf[0], Wbuf[0] + 4, Wbuf[1], Wbuf[1] + 4]
    lastuse = {}
    for i, key in enumerate(seq): lastuse[key[1]] = i
    pre = {}; mem = {}; val = {}
    def put(d, g, x):
        while d is not pre and g in d and g >= 0: g += 1
        d.setdefault(g, []).append(x); return g
    def vmem(x, tag='m'):
        def f():
            for y in x.split('|'):
                if y.startswith('buffer'): vm.issue(tag, y)
                else: a(y)
        return f
    vxl = [vmem(f'buffer_load_dwordx4 {R(VXr+4*i,4)}, v{X1+2}, {WS}, s{sVX} offen offset:{16*i} sc1', 'VX') for i in range(2)]
    if w < 2 and cfg.kpos[w] == 2:
        for c in range(4): put(mem, cfg.gkx[c], vmem(f'buffer_load_dwordx4 {R(KXr[c],4)}, v{vKX}, {WS}, s{sKX if c < 2 else sKX2} offen offset:{2048*(c&1)} sc1', 'KX'))
    for i, x in enumerate(vxl): put(mem, cfg.gv[w] + i, x)
    tail_pf = {}
    def tpf(k):
        for x in tail_pf.pop(k, []): x()
    if w == 3:
        g = cfg.gp + 9
        if cfg.pf:
            for i in range(4):
                x = vmem(f'buffer_load_dwordx2 {R(vM,2)}, v{X1+2}, {WS}, s{[sPfe, sKX2][i >> 1]} offen offset:{2048*(i&1)} sc1')
                if cfg.gk[i] < len(seq): put(mem, cfg.gk[i], x)
                else: tail_pf.setdefault(cfg.gk[i], []).append(x)
        if cfg.integ:
            sk = a.lab('L_nofl'); nf = a.lab('L_fl')
            put(pre, cfg.gfl, vmem(f's_cmp_lg_u32 s{sFl}, 0|s_cbranch_scc1 {nf}|{sk}:'))
            cold.append(lambda nf=nf, sk=sk: a(f'{nf}:\n{fload}\ns_branch {sk}'))
    gp = cfg.gp
    if cfg.pub:
        put(val, 2, f'v_cndmask_b32 v{X1}, 2.0, v{vPRx}, s[{sKmask}:{sKmask+1}]')
        put(mem, gp + cfg.gps * w, vmem(f'buffer_store_dwordx4 {R(X0,4)}, v{X1}, {WS}, s{sKM} offen sc1'))
        put(mem, gp + cfg.gpd + cfg.gps * w, vmem(f'buffer_store_dwordx2 {R(vVp,2)}, v{X1+3}, {WS}, s{sKM} offen offset:2064 sc1'))
    if red:
        put(val, cfg.gpo - 2, f'v_mov_b32 v{X1+2}, -1'); put(val, 4, f'v_lshlrev_b32 v{X1+1}, 2, v{vL16}')
        put(mem, cfg.gpo + 2 * w, vmem(f'buffer_store_dword v{X1+2}, v{X1+1}, {WS}, s{sPo} offen {st}'))
        put(mem, cfg.gpo + 5, vmem(f'buffer_store_dword v{X1+2}, v{vM}, {WS}, s{sRingPo} offen {st}'))
    if cfg.novm: mem = {}
    vm.q = ['late'] + vm.q
    if cfg.nfirst < 4:
        if w == 3: vm.q = ['mid'] + vm.q
        put(pre, lastuse[2 * cfg.nfirst - 3], lambda: (vm.wait('mid'), a('s_barrier')))
    put(pre, lastuse[5] - cfg.zoff, lambda: (mark(a, cfg, 'z0'), vm.wait('late'), mark(a, cfg, 'late'), a('s_barrier'), mark(a, cfg, 'Bz')))
    nl = len(ldsm)
    pendW = []; nextw = 2; mq = []
    agap = {}
    for c in range(3, 18):
        g = lastuse[c - 3]
        if c >= 8: g = max(g, lastuse[5] - cfg.zoff)
        while g in agap: g += 1
        agap[g] = c
    for f in mem.pop(-1, []): f()
    ds.wait(('A', 0)); mark(a, cfg, 'A0')
    for i, key in enumerate(seq):
        m, c = key
        B = R(plan[key][1], 8) if plan[key][0] == 'r' else R(Wbuf[ldsm.index(key) % 2], 8)
        acc = {'q': accq, 'k': acck, 'v': accv}[m]
        a(f'{SM} {R(acc,4)}, {R(abuf_of[c],4)}, {B}, v{vIdx}')
        if i + 1 < len(seq):
            assert ('W', seq[i+1]) not in [p[0] for p in pendW], (w, i)
            ds.wait(('A', seq[i+1][1]), ('W', seq[i+1]))
        for f in pre.pop(i, []): f()
        if plan[key][0] == 'l' and nextw < nl:
            for hf in range(2): pendW.append((('W', ldsm[nextw]), wr(Wbuf[nextw % 2], plan[ldsm[nextw]][1], hf)))
            nextw += 1
        for f in mem.pop(i, []): mq.append((i, f))
        isA = lambda j: j in agap
        if isA(i): aread(agap[i], abuf_of[agap[i] - 3]); used = True
        elif i + cfg.hd[1] < 3: aread(i + cfg.hd[1], Abuf[i + cfg.hd[1]]); used = True
        else: used = False
        def w_can_wait():
            j = i
            for tag, _ in pendW:
                j += 1
                while isA(j): j += 1
                if j > seq.index(tag[1]) - cfg.wlat: return False
            return True
        if not cfg.smart:
            if not used and pendW: ds.issue(*pendW.pop(0))
            while mq: mq.pop(0)[1]()
        else:
            if not used and mq and w_can_wait(): mq.pop(0)[1]()
            else:
                if not used and pendW: ds.issue(*pendW.pop(0))
                if mq and (i - mq[0][0] >= cfg.mlate or len(seq) - 1 - i < len(mq)): mq.pop(0)[1]()
        for x in val.pop(i, []): a(x)
        mark(a, cfg, f'm{i}')
    assert not pendW and not pre and not mem and not val and not mq, (pendW, pre, mem, val, mq)
    mark(a, cfg, 'mainend')
    dq = list(cfg.deferred); nxt = 3
    held = []
    def refill():
        nonlocal nxt
        if held and nxt < len(cfg.deferred): aread(cfg.deferred[nxt], held.pop(0)); nxt += 1
    def defer(n, valu=(), other=(), hold=0):
        nonlocal nxt
        valu = list(valu); other = list(other)
        for k in range(n):
            c = dq.pop(0)
            ds.wait(('A', c))
            a(f'{SM} {R(accv,4)}, {R(abuf_of[c],4)}, {R(plan[("v",c)][1],8)}, v{vIdx}')
            if k + 1 < n: ds.wait(('A', dq[0]))
            if k >= n - hold: held.append(abuf_of[c])
            if k < n - hold and nxt < len(cfg.deferred): aread(cfg.deferred[nxt], abuf_of[c]); nxt += 1
            elif other: other.pop(0)()
            if valu: a(valu.pop(0))
        for x in other: x()
        for x in valu: a(x)
    sh = cfg.sh
    defer(sh[0], [f'v_cvt_pk_bf16_f32 v{accq}, v{accq}, v{accq+1}', f'v_cvt_pk_bf16_f32 v{accq+1}, v{accq+2}, v{accq+3}'])
    a(f'v_cvt_pk_bf16_f32 v{acck}, v{acck}, v{acck+1}\nv_cvt_pk_bf16_f32 v{acck+1}, v{acck+2}, v{acck+3}')
    ds.issue('wq', f'ds_write_b64 v{vQW}, {R(accq,2)} offset:{LD_Q}')
    ds.issue('wk', f'ds_write_b64 v{vQW}, {R(acck,2)} offset:{LD_K}')
    mark(a, cfg, 'wk')
    tpf(50)
    defer(sh[1], hold=cfg.hold1 if w < 3 else 0)
    ds.wait('wk'); mark(a, cfg, 'preB2')
    a('s_barrier')
    stamp(a, cfg, 1); mark(a, cfg, 'B2')
    delay(a, cfg.pad)
    Sc, E = accq, acck
    ones = X0; O = X1
    if w < 3:
        fr = [lambda c=c: ds.issue(('F', c), tr2(F[c], LD_Q, c, vTR)) for c in range(4)]
        if cfg.sint:
            for _ in range(4 - sh[2]): fr.pop(0)()
            defer(sh[2], other=fr, hold=sh[2])
        else:
            for f in fr: f()
            defer(sh[2])
        vm.wait('KX'); mark(a, cfg, 'kx')
        ds.wait(('F', 0))
        for c in range(4):
            a(f'v_mfma_f32_16x16x32_bf16 {R(Sc,4)}, {R(KXr[c] if w < 2 else F[c],4)}, {R(F[c],4)}, {"0" if c == 0 else R(Sc,4)}')
            if c < 3: ds.wait(('F', c + 1))
            refill()
        defer(sh[3])
        mark(a, cfg, 'sc')
        if w == 2:
            for i in range(4): a(f'v_mul_f32 v{Sc+i}, s{sCs}, v{Sc+i}')
        for i in range(4): a(f'v_exp_f32 v{E+i}, v{Sc+i}')
        if not cfg.dump: a(f's_mov_b64 exec, s[{sMask}:{sMask+1}]')
        a(f'v_cvt_pk_bf16_f32 v{E}, v{E}, v{E+1}\nv_cvt_pk_bf16_f32 v{E+1}, v{E+2}, v{E+3}')
        ds.issue('wp', f'ds_write_b64 v{vPW}, {R(E,2)}')
        if not cfg.dump: a('s_mov_b64 exec, -1')
        mark(a, cfg, 'wp')
    else:
        if cfg.integ: avail(1)
        tpf(51)
        defer(sh[2] + sh[3])
        tpf(52)
        if cfg.acc == 2: accumulate()
    Obuf = Wbuf + ([KXr[0], KXr[2]] if w < 2 else [VXr])
    npre = 4 if w < 2 else 2
    ldso = [k for k in plan if k[0] == 'o' and plan[k][0] == 'l']
    opre = [lambda i=i, hf=hf: ds.issue(ldso[i], wr(Obuf[i], plan[ldso[i]][1], hf)) for i in range(npre) for hf in range(2)]
    other = [lambda: ds.issue('one', cst(ones, LD_ONE))] + opre[:cfg.npw]
    opre = opre[cfg.npw:]
    mska = [f'v_cndmask_b32 v{E+2}, v{vPRx}, 0, s[{sKmask}:{sKmask+1}]', f'v_cndmask_b32 v{E+3}, 0, v{vPRx}, s[{sKmask}:{sKmask+1}]']
    defer(len(dq), valu=mska, other=other)
    if 53 in tail_pf: delay(a, 16); tpf(53)
    ds.wait('wp'); mark(a, cfg, 'preB2b')
    lab_fb = a.lab('L_fallback'); lab_back = a.lab('L_fbret'); lab_last = a.lab('L_last'); lab_cont = a.lab('L_cont')
    a('s_barrier')
    stamp(a, cfg, 2); mark(a, cfg, 'B2b')
    Px = Abuf[0]; Ls = Abuf[1]; Pm = Abuf[2]
    acc = [accv, acck, Ls, accq, accv]
    hpost = [f's_add_u32 s{sHv}, s{sRc}, 1\nv_mov_b32 v{VXr+1}, s{sHv}', f's_mov_b64 exec, s[{sHm}:{sHm+1}]', f'buffer_store_byte v{VXr+1}, v{vHA}, {WS}, s{sHn} offen {st}', 's_mov_b64 exec, -1']
    nvx = 0; lab_cont2 = a.lab('L_cont2')
    def pv(first):
        nonlocal opre
        M16 = 'v_mfma_f32_16x16x16_bf16'; M32_ = 'v_mfma_f32_16x16x32_bf16'
        ds.issue('pm', f'ds_read_b64 {R(Pm,2)}, v{vPRm} offset:{LD_PM}')
        ds.issue('px', f'ds_read_b128 {R(Px,4)}, v{vPRx} offset:{LD_PX - 16}')
        assert cfg.npw <= 2 and not any(cfg.fills[:3])
        Pe, Po = Wbuf[1], Wbuf[1] + 4
        ds.issue('pe', f'ds_read_b128 {R(Pe,4)}, v{E+2} offset:{LD_PX - 16}')
        ds.issue('po', f'ds_read_b128 {R(Po,4)}, v{E+3} offset:{LD_PX - 16}')
        if first: a(f'v_cvt_pk_bf16_f32 v{vVp}, v{accv}, v{accv+1}\nv_cvt_pk_bf16_f32 v{vVp+1}, v{accv+2}, v{accv+3}')
        if first:
            nonlocal nvx
            nvx = len(vm.q) - 1 - max([i for i, x in enumerate(vm.q) if x == 'VX'] + [-1])
            if cfg.integ: a(f's_cmp_ge_u32 s{sStep}, {cfg.early}\ns_cbranch_scc1 {lab_last}\n{lab_cont}:')
            mark(a, cfg, 'v0'); vm.wait('VX'); mark(a, cfg, 'v1')
            if cfg.integ: a(f'{lab_cont2}:')
        op = opre if first else []
        def fill(n):
            for _ in range(n):
                if op: op.pop(0)()
        ds.wait('pm'); mark(a, cfg, 'px')
        a(f'{M16} {R(Ls,4)}, {R(ones,2)}, {R(Pm,2)}, 0')
        a(f'{M16} {R(O,4)}, {R(vVp,2)}, {R(Pm,2)}, 0')
        ds.wait('px'); fill(cfg.fills[0])
        a(f'{M32_} {R(Ls,4)}, {R(ones,4)}, {R(Px,4)}, {R(Ls,4)}')
        ds.wait('pe'); fill(cfg.fills[1])
        a(f'{M32_} {R(O,4)}, {R(VXr,4)}, {R(Pe,4)}, {R(O,4)}')
        ds.wait('po'); fill(cfg.fills[2])
        a(f'{M32_} {R(O,4)}, {R(VXr+4,4)}, {R(Po,4)}, {R(O,4)}')
        a(f'v_rcp_f32 v{Ls}, v{Ls}')
        for r in (acck, accv): a(f'v_mov_b64 {R(r,2)}, 0\nv_mov_b64 {R(r+2,2)}, 0')
        fill(cfg.fills[3])
        mark(a, cfg, 'rcp')
        for i in range(4): a(f'v_mul_f32 v{O+i}, v{O+i}, v{Ls}')
        a(f'v_cvt_pk_bf16_f32 v{Pm}, v{O}, v{O+1}\nv_cvt_pk_bf16_f32 v{Pm+1}, v{O+2}, v{O+3}')
        ds.issue('wo', f'ds_write_b64 v{vTO}, {R(Pm,2)} offset:{LD_O + 512*w}')
        mark(a, cfg, 'wo')
        fill(cfg.fills[4])
    pv(True)
    lo, hi = fbits(2.0 ** -60), fbits(2.0 ** 60)
    a(f'v_subrev_u32 v{Ls+1}, {hex(lo)}, v{Ls+1}\nv_cmp_lt_u32 vcc, {hex(hi - lo)}, v{Ls+1}')
    a(f'v_mov_b64 {R(Ls,2)}, 0\nv_mov_b64 {R(Ls+2,2)}, 0\ns_cbranch_vccnz {lab_fb}\n{lab_back}:')
    if cfg.hpos == -2 and w == 1 - cfg.poller and not cfg.noexch: a('\n'.join(hpost))
    a(f'v_mov_b64 {R(accq,2)}, 0\nv_mov_b64 {R(accq+2,2)}, 0')
    ds.wait('wo'); a('s_barrier')
    stamp(a, cfg, 3); mark(a, cfg, 'B3')
    Fo = [Abuf[0], Abuf[2], X0, X1]
    def fo(c): return (('F', c), f'ds_read_b128 {R(Fo[c],4)}, v{vPRx} offset:{LD_O + 512*c - 16}')
    for c in range(cfg.nfo): ds.issue(*fo(c))
    nexto = npre; gapq = []; pendW = [fo(c) for c in range(cfg.nfo, 4)]
    ndone = 2 * npre - len(opre)
    pendW += [(ldso[i // 2], wr(Obuf[i // 2], plan[ldso[i // 2]][1], i & 1)) for i in range(ndone, 2 * npre)]
    nb = len(Obuf)
    if npre < nb:
        for hf in range(2): pendW.append((ldso[nexto], wr(Obuf[nexto % nb], plan[ldso[nexto]][1], hf)))
        nexto += 1
    def finish(sl):
        ac = acc[sl]
        return [[f'v_cvt_pk_bf16_f32 v{ac}, v{ac}, v{ac+1}'], [f'v_cvt_pk_bf16_f32 v{ac+1}, v{ac+2}, v{ac+3}'],
                [f'buffer_store_dwordx2 {R(ac,2)}, v{vP}, {WS}, s{sP+sl} offen {st}']]
    zero = {}
    if NT[w] == 5: zero[8] = [f'v_mov_b64 {R(acc[4]+2,2)}, 0']; zero[12] = [f'v_mov_b64 {R(acc[4],2)}, 0']
    oseq = [('o', sl, c) for sl in range(NT[w]) for c in range(4)]
    hint = not cfg.noexch
    hr = VXr; ha = VXr + 7
    hload = f'buffer_load_dword v{hr}, v{ha}, {WS}, s{sHn} offen sc1'
    hq = {}
    if hint and w == 1 - cfg.poller:
        if cfg.hpos >= 0: hq[cfg.hpos] = hpost[1:]; a(hpost[0])
        elif cfg.hpos == -1: a('\n'.join(hpost))
    if hint and w == cfg.poller:
        zero[0] = [f'v_bfe_u32 v{ha}, v{vL16}, 2, 5']
        a(f'v_mov_b32 v{hr}, 0x00ff00ff')
        for gp_ in cfg.hgaps: hq[gp_] = [hload]
    ds.wait(('F', 0), oseq[0]); mark(a, cfg, 'F0')
    for i, key in enumerate(oseq):
        _, sl, c = key
        B = R(Obuf[ldso.index(key) % nb], 8) if plan[key][0] == 'l' else R(plan[key][1], 8)
        a(f'{SM} {R(acc[sl],4)}, {R(Fo[c],4)}, {B}, v{vIdx}')
        if i + 1 < len(oseq):
            assert oseq[i+1] not in [p[0] for p in pendW], (w, i)
            ds.wait(('F', oseq[i+1][2]), oseq[i+1])
        if plan[key][0] == 'l' and nexto < len(ldso):
            for hf in range(2): pendW.append((ldso[nexto], wr(Obuf[nexto % nb], plan[ldso[nexto]][1], hf)))
            nexto += 1
        busy = cfg.smart and (i in hq or (c == 3 and sl >= 1))
        if pendW and (not busy or pendW[0][0][0] == 'F' or oseq.index(pendW[0][0]) - i <= cfg.wlat): ds.issue(*pendW.pop(0))
        if c == 1 and sl >= 1: gapq += finish(sl - 1)
        for x in hq.get(i, []): a(x)
        if gapq:
            for x in gapq.pop(0): a(x)
        for x in zero.get(i, []): a(x)
        mark(a, cfg, f'o{i}')
    assert not pendW and not gapq
    mark(a, cfg, 'woend')
    Sel = X0; D = X1; ck = Abuf[2]
    a(f"""
    s_add_u32 s{sStep}, s{sStep}, 1
    s_add_u32 s{sRc}, s{sRc}, 1
    s_and_b32 s{sTmp}, s{sRc}, 3
    s_mul_i32 s{sGat}, s{sTmp}, 9216
    s_add_u32 s{sGat}, s{sGat}, {L.MR}
    s_add_u32 s{sRing}, s{sGat}, s{sUnit}
    s_add_u32 s{sGat}, s{sGat}, {g0*1024}
    """)
    if red: a(f'v_and_b32 v{ck}, 127, v{vL16}')
    if hint and w == cfg.poller: a(hload)
    for g in finish(NT[w] - 1):
        for x in g: a(x)
    stamp(a, cfg, 4); mark(a, cfg, 'pst')
    def scalars():
        if red:
            a(f"""
            s_xor_b32 s{sTmp}, s{sTmp}, 2
            s_mul_i32 s{sTmp}, s{sTmp}, 9216
            s_add_u32 s{sTmp}, s{sTmp}, {L.MR}
            s_add_u32 s{sRingPo}, s{sTmp}, s{sUnit}
            s_mov_b32 s{sPo}, s{sRed}
            """)
        for i in range(NT[w]): a(f's_add_u32 s{sP+i}, s{sP+i}, s{sPar}')
        a(f"""
        s_mov_b32 s{sKM}, s{sKMn}
        s_add_u32 s{sKMn}, s{sKMn}, 131072
        """)
    def rolling(dep, nld, loads, consume, gap, between=None):
        ok = a.lab('L_ok'); nx = a.lab('L_next')
        for k in range(dep):
            loads()
            if k == 0 and between: between()
            elif k + 1 < dep: delay(a, gap)
        consume(nld * (dep - 1))
        a(f's_cbranch_vccnz {nx}\n{ok}:')
        def rest():
            a(f'{nx}:'); loads(); budget(); consume(nld * (dep - 1)); a(f's_cbranch_vccz {ok}\ns_branch {nx}')
        cold.append(rest)
    def hint_wait(load, reg, comp=0):
        go = a.lab('L_go'); hl = a.lab('L_hint')
        A_, B_ = f's[{sTmp+2}:{sTmp+3}]', f's[{sTmp+4}:{sTmp+5}]'
        a(f's_and_b32 s{sHv}, s{sRc}, 255\ns_mul_i32 s{sHv}, s{sHv}, 0x01010101\ns_mov_b32 s{sHc}, {cfg.htry}\ns_mov_b64 {B_}, -1')
        def tries(n, tgt):
            nonlocal A_, B_
            for k in range(n):
                a(load if k % cfg.hun == 0 else 's_nop 0')
                a(f'v_cmp_ne_u32 {A_}, s{sHv}, v{reg}\ns_cmp_eq_u64 {B_}, 0\ns_cbranch_scc1 {tgt}')
                A_, B_ = B_, A_
        gc = a.lab('L_goc')
        if comp: tries(cfg.ncomp, go)
        a(f'{hl}:'); tries(8, gc)
        a(f's_sub_u32 s{sHc}, s{sHc}, 1\ns_cbranch_scc0 {hl}\n{gc}:')
        delay(a, comp)
        a(f'{go}:')
    def prep():
        a(f's_sub_u32 s{sPar}, 0, s{sPar}\ns_add_u32 s{sVX}, s{sVX}, 262144')
        if w < 2 and cfg.kpos[w] == 2: a(f's_add_u32 s{sKX}, s{sKX}, 262144')
        pre_step()
        a(tr2(X0, LD_Q, w, vTR))
    if red and not cfg.noexch:
        S_ = [Wbuf[0] + 4*i for i in range(4)]
        def loads():
            for i in range(4): a(f'buffer_load_dwordx4 {R(S_[i],4)}, v{vL16}, {WS}, s{sRed} offen offset:{i*1024} sc1')
        def consume(nafter):
            for i in range(4):
                a(f's_waitcnt vmcnt({3-i+nafter})' + (' lgkmcnt(0)' if i == 0 else ''))
                mark(a, cfg, f'r{i}')
                a(f'v_mfma_f32_16x16x32_bf16 {R(D,4)}, {R(S_[i],4)}, {R(Sel,4)}, {"0" if i == 0 else R(D,4)}')
                if i == 2: a(f'v_max3_u32 v{ck}, v{S_[0]}, v{S_[1]}, v{S_[2]}')
                if i == 3: a(f'v_max_u32 v{ck}, v{ck}, v{S_[3]}')
            a(f"""
            v_cmp_eq_u32 vcc, -1, v{ck}
            v_permlane32_swap_b32 v{D}, v{D+2}
            v_permlane32_swap_b32 v{D+1}, v{D+3}
            v_add_f32 v{D}, v{D}, v{D+2}
            v_add_f32 v{D+1}, v{D+1}, v{D+3}
            v_cvt_pk_bf16_f32 v{ck}, v{D}, v{D+1}
            """)
        a(f'ds_read_b128 {R(Sel,4)}, v{ck} offset:{LD_SEL}')
        post2 = f's_mov_b64 exec, s[{sHm}:{sHm+1}]\nbuffer_store_byte v{hr+1}, v{vHA}, {WS}, s{sH2} offen {st}\ns_mov_b64 exec, -1'
        if w == cfg.poller:
            a(f'v_mov_b32 v{hr+1}, s{sRc}')
            hint_wait(hload, hr, cfg.d_comp)
        if w == 0 and cfg.poller == 0:
            mark(a, cfg, 'go')
            if cfg.h2first: a(post2)
            loads()
            if not cfg.h2first: a(post2)
            a('s_barrier')
            scalars()
            ok = a.lab('L_ok'); nx = a.lab('L_next')
            consume(0 if cfg.h2first else 1)
            a(f's_cbranch_vccnz {nx}\n{ok}:')
            def rest(ok=ok, nx=nx):
                a(f'{nx}:'); loads(); budget(); consume(0); a(f's_cbranch_vccz {ok}\ns_branch {nx}')
            cold.append(rest)
        else:
            if w == cfg.poller:
                a('s_barrier'); a(post2); mark(a, cfg, 'go'); scalars()
            else:
                scalars(); a('s_barrier'); mark(a, cfg, 'go')
            delay(a, [cfg.d_redA, cfg.d_red, cfg.d_redC][w])
            mark(a, cfg, 'rstart')
            rolling(1, 4, loads, consume, 0)
        a(f'buffer_store_dword v{ck}, v{vM}, {WS}, s{sRing} offen {st}')
        stamp(a, cfg, 5); mark(a, cfg, 'ring')
        if w < 2 and cfg.kpos[w] == 1: kloads()
        a(f's_add_u32 s{sRed}, s{sRed}, s{sPar}')
    else:
        if hint: a('s_barrier'); mark(a, cfg, 'go')
        if cfg.trace and w == 3:
            a(f's_memtime s[{sTmp+4}:{sTmp+5}]\ns_waitcnt lgkmcnt(0)\nv_writelane_b32 v{X1}, s{sTmp+4}, 1\ns_lshl_b32 s{sTmp+5}, s{sH}, 8\ns_lshl_b32 s{sTmp+4}, s{sStep}, 2\ns_add_u32 s{sTmp+4}, s{sTmp+4}, s{sTmp+5}\ns_add_u32 s{sTmp+4}, s{sTmp+4}, {L.STAMP+16384-4}')
            a(f's_mov_b64 exec, 2\nbuffer_store_dword v{X1}, v{vZ}, {WS}, s{sTmp+4} offen\ns_mov_b64 exec, -1')
        scalars()
        if cfg.integ and w == 3:
            sk = a.lab('L_nolv')
            a(f's_cmp_eq_u32 s{sFl}, 0\ns_cbranch_scc1 {sk}\ns_waitcnt vmcnt({NT[w]})'); level(); a(f'{sk}:')
    prep()
    if cfg.acc == 1: accumulate()
    if getattr(cfg, 'dbgmark', None) and w == 2 and not red:
        for word, val in ((6, 1), (7, 8), (8, 63), (9, 64), (10, 71), (11, 126)):
            sk_ = a.lab('L_dm')
            a(f's_lshl_b32 s99, s{sH}, 8\ns_add_u32 s99, s99, s{sRc}\ns_cmp_lg_u32 s99, {16*256 + val}\ns_cbranch_scc1 {sk_}')
            cfg.dbgmark(a, word, VXr)
            if val in (8, 63): cfg.dbgmark(a, 12 if val == 8 else 13, VXr + 2, 's_memtime')
            a(f'{sk_}:')
    if cfg.log and w == 2:
        import workers
        a(f's_add_u32 s99, s{sStep}, s{sLv}\ns_lshl_b32 s{sFh}, s{sH}, 7\ns_add_u32 s{sFh}, s{sFh}, {L.F_HEAD}')
        workers.logtime(a, sFh, 99, vKX, vZ, 52)
        workers.logtime(a, sFh, 99, vKX, vZ, 56, 's_memtime')
    lab_join = a.lab('L_join')
    if not cfg.noexch:
        a(f's_mov_b32 s{sVer}, 0')
        if w == 3:
            a(f'v_bfe_u32 v{ha}, v{vL16}, 2, 5\nv_mov_b32 v{hr}, 0x00ff00ff\ns_mov_b32 m0, {LD_MEM}\ns_sub_u32 s{sTmp}, s{sGat}, {g0*1024}')
            if cfg.d_idle: a(f's_sleep {cfg.d_idle}')
            hint_wait(f'buffer_load_dword v{hr}, v{ha}, {WS}, s{sH2} offen sc1', hr)
            mark(a, cfg, 'go2')
            cw = a.lab('L_cw'); cb = a.lab('L_cb')
            a(f's_cmp_le_u32 s{sRc}, {cfg.ncold}\ns_cbranch_scc1 {cw}\n{cb}:')
            cold.append(lambda cw=cw, cb=cb: a(f'{cw}:\ns_sleep {cfg.scold}\ns_branch {cb}'))
            delay(a, cfg.d_go2 - 2)
            mark(a, cfg, 'gstart')
            for i in range(4): a(f'buffer_load_dwordx4 v{vL16}, {WS}, s{sTmp} offen offset:{i*1024} sc1 lds')
        l0, ln = LATE[w]
        a(f's_mov_b32 m0, {LD_MEM + 1024*l0}\ns_add_u32 s{sTmp}, s{sGat}, {(l0 - g0)*1024 & 0xffffffff}')
        a(f's_waitcnt vmcnt({4 - cfg.nfirst}) lgkmcnt(0)' if w == 3 else 's_waitcnt lgkmcnt(0)')
        mark(a, cfg, 'gok')
    else: a('s_waitcnt lgkmcnt(0)')
    ds.clear(); vm.clear()
    head(0 if cfg.noexch else LATE[w][1])
    ds.clear()
    if cfg.trace and w == 3 and False:
        a(f's_memtime s[{sTmp+4}:{sTmp+5}]\ns_waitcnt lgkmcnt(0)\nv_writelane_b32 v{vM}, s{sTmp+4}, 1\ns_lshl_b32 s{sTmp+5}, s{sH}, 8\ns_lshl_b32 s{sTmp+4}, s{sStep}, 2\ns_add_u32 s{sTmp+4}, s{sTmp+4}, s{sTmp+5}\ns_add_u32 s{sTmp+4}, s{sTmp+4}, {L.STAMP+16384-4}')
        a(f's_mov_b64 exec, 2\nbuffer_store_dword v{vM}, v{vZ}, {WS}, s{sTmp+4} offen\ns_mov_b64 exec, -1')
    if cfg.integ: a(f's_sub_u32 s{sBud}, s{sBud}, 1\ns_cbranch_scc0 {loop}\ns_branch {exit_label}')
    else: a(f's_cmp_lt_u32 s{sStep}, {cfg.nsteps}\ns_cbranch_scc1 {loop}\ns_branch {lab_join}')
    for f in cold: f()
    lab_tm = a.lab('L_truemax'); lp = a.lab('L_regather')
    a(f'{lab_fb}:\ns_cmp_lg_u32 s{sVer}, 0\ns_cbranch_scc1 {lab_tm}\ns_mov_b32 s{sVer}, 1\ns_mov_b32 s{sKM}, {OOB}')
    if cfg.stamps or cfg.trace: a(f's_add_u32 s{sSt+2}, s{sSt+2}, 64')
    if cfg.acc: a(f's_add_u32 s{sSt+1}, s{sSt+1}, 1')
    if w == 3: a(f's_sub_u32 s{sPf}, s{sPf}, 262144')
    if getattr(cfg, 'tot', False) and w == 3:
        a(f's_lshr_b32 s98, s{sRc}, 5\ns_lshl_b32 s98, s98, 2\ns_lshl_b32 s99, 1, s{sRc}\nv_mov_b32 v{X1}, s98\nv_mov_b32 v{X1+1}, s99\ns_mov_b64 exec, 1\nglobal_atomic_or v{X1}, v{X1+1}, s[4:5] offset:32\ns_mov_b64 exec, -1')
    a(f's_waitcnt lgkmcnt(0)\n{lp}:'); gloads(); budget(); a('s_waitcnt vmcnt(0)')
    regs = [r + j for r in GL for j in range(4)]
    a(f'v_max_u32 v{X1}, v{regs[0]}, v{regs[1]}')
    for i in range(2, len(regs), 2): a(f'v_max3_u32 v{X1}, v{X1}, v{regs[i]}, v{regs[i+1]}')
    a(f'v_cmp_eq_u32 vcc, -1, v{X1}\ns_cbranch_vccnz {lp}')
    for i in range(gn): a(gwrite(i))
    pre_step()
    a('s_waitcnt lgkmcnt(0)'); ds.clear(); head(); ds.clear(); a(f's_branch {loop}')
    a(f'{lab_tm}:\ns_waitcnt lgkmcnt(0)\ns_barrier')
    saved = list(ds.q); ds.clear()
    m0, m1 = E, E + 1
    if w < 3:
        a(f"""
        v_max3_f32 v{m0}, v{Sc}, v{Sc+1}, v{Sc+2}
        v_max_f32 v{m0}, v{m0}, v{Sc+3}
        v_mov_b32 v{m1}, v{m0}
        s_mov_b64 exec, s[{sMask}:{sMask+1}]
        ds_write_b64 v{vPW}, {R(m0,2)}
        s_mov_b64 exec, -1
        """)
    a('s_waitcnt lgkmcnt(0)\ns_barrier')
    if w < 3:
        a(f"""
        v_subrev_u32 v{m0}, 16, v{vPRx}
        v_lshrrev_b32 v{m0}, 1, v{m0}
        v_and_b32 v{m0}, 127, v{m0}
        ds_read_b128 {R(Px,4)}, v{vPRx} offset:{LD_PX - 16}
        ds_read_b64 {R(Pm,2)}, v{m0} offset:{LD_PM}
        s_waitcnt lgkmcnt(0)
        v_max3_f32 v{m0}, v{Px}, v{Px+2}, v{Pm}
        v_mov_b32 v{m1}, v{m0}
        v_permlane32_swap_b32 v{m0}, v{m1}
        v_max_f32 v{m0}, v{m0}, v{m1}
        v_mov_b32 v{m1}, v{m0}
        v_permlane16_swap_b32 v{m0}, v{m1}
        v_max_f32 v{Px}, v{m0}, v{m1}
        """)
        for i in range(4): a(f'v_sub_f32 v{E+i}, v{Sc+i}, v{Px}')
        for i in range(4): a(f'v_exp_f32 v{E+i}, v{E+i}')
        a(f'v_cvt_pk_bf16_f32 v{E}, v{E}, v{E+1}\nv_cvt_pk_bf16_f32 v{E+1}, v{E+2}, v{E+3}')
    a('s_barrier')
    if w < 3: a(f's_mov_b64 exec, s[{sMask}:{sMask+1}]\nds_write_b64 v{vPW}, {R(E,2)}\ns_mov_b64 exec, -1')
    a(cst(ones, LD_ONE)); a('\n'.join(mska))
    a('s_waitcnt lgkmcnt(0)\ns_barrier')
    fine_save = cfg.fine; cfg.fine = []
    pv(False)
    cfg.fine = fine_save
    ds.clear()
    a(f'v_mov_b64 {R(Ls,2)}, 0\nv_mov_b64 {R(Ls+2,2)}, 0\ns_waitcnt lgkmcnt(0)\ns_branch {lab_back}')
    if cfg.integ:
        a(f"""
        {lab_last}:
        {tr2(Ls, LD_Q, w, vTR)}
        v_lshlrev_b32 v{X1}, 16, v{vVp}
        v_lshlrev_b32 v{X1+1}, 16, v{vVp+1}
        v_and_b32 v{X1+2}, 0xffff0000, v{vVp}
        v_and_b32 v{X1+3}, 0xffff0000, v{vVp+1}
        v_cmp_u_f32 vcc, v{X1}, v{X1+1}
        v_cmp_u_f32 s[{sTmp}:{sTmp+1}], v{X1+2}, v{X1+3}
        v_lshrrev_b32 v{X1+3}, 1, v{vL16}
        s_or_b64 vcc, vcc, s[{sTmp}:{sTmp+1}]
        s_cselect_b32 s{sTmp}, s{sVer}, 1
        s_cmp_eq_u32 s{sTmp}, 0
        s_waitcnt lgkmcnt(0)
        s_cbranch_scc1 {lab_cont}
        s_waitcnt vmcnt({nvx})
        buffer_store_dwordx2 {R(vVp,2)}, v{X1+3}, {WS}, s{sKMn} offen offset:2064 sc1
        s_waitcnt lgkmcnt(0)
        s_mov_b64 exec, s[{sKmask}:{sKmask+1}]
        buffer_store_dwordx4 {R(Ls,4)}, v{vPRx}, {WS}, s{sKMn} offen sc1
        s_mov_b64 exec, -1
        s_cmp_lt_u32 s{sStep}, 63
        s_cbranch_scc1 {lab_cont2}
        s_waitcnt vmcnt(0)
        s_barrier
        """)
    else:
        a(f"""
        {lab_join}:
        s_waitcnt vmcnt(0) lgkmcnt(0)
        {tr2(X0, LD_Q, w, vTR)}
        v_lshrrev_b32 v{X1+3}, 1, v{vL16}
        s_waitcnt lgkmcnt(0)
        s_mov_b64 exec, s[{sKmask}:{sKmask+1}]
        buffer_store_dwordx4 {R(X0,4)}, v{vPRx}, {WS}, s{sKM} offen sc1
        s_mov_b64 exec, -1
        buffer_store_dwordx2 {R(vVp,2)}, v{X1+3}, {WS}, s{sKM} offen offset:2064 sc1
        s_waitcnt vmcnt(0)
        s_barrier
        """)

VARIANTS = [(0, True), (1, True), (2, True), (2, False), (3, False)]

def emit_dispatch(a, labels):
    a(f'''
    s_cmp_eq_u32 s{sW}, 0
    s_cbranch_scc1 {labels[0]}
    s_cmp_eq_u32 s{sW}, 1
    s_cbranch_scc1 {labels[1]}
    s_cmp_eq_u32 s{sW}, 3
    s_cbranch_scc1 {labels[4]}
    s_cmp_lt_u32 s{sH}, 8
    s_cbranch_scc1 {labels[2]}
    s_branch {labels[3]}
    ''')
```

```python
from asmdsl import *
import layout as L
from chain import Q, srd, fbits, SCALE_LOG2E, OOB

SCALE_B = (18 ** -0.5) * 1.4426950408889634
sWS = 8; sT = 12; sRole = 16; sW = 17; sBud = 19
sLv = 48
sLay = 49
sX = 20
sY = 24
sS = 28; sNeed = 29; sKnown = 30; sOut = 31; sSig = 32; sPoll = 33; sSrc = 34; sM0 = 35; sDel = 36; sFv = 37
sTmp = 38
sId = 50; sPar = 51; sMul = 52; sStride = 53; sA = 54; sB = 55; sC = 56; sD = 57; sTeam = 58; sSigPrev = 59
sE = 60
sFlag = 62; sN = 63; sJ = 64; sI = 65
sL1 = 70
sKd = 71; sLev = 72; sAct = 73; sTile = 74; sFoT = 75
WS = f's[{sWS}:{sWS+3}]'
vL16 = 0; vLane = 1; vF = 2; vFa = 3

def base_regs(a):
    a(f'v_mbcnt_lo_u32_b32 v{vLane}, -1, 0\nv_mbcnt_hi_u32_b32 v{vLane}, -1, v{vLane}\nv_lshlrev_b32 v{vL16}, 4, v{vLane}')

def miss(a, k):
    if TOT: a(f'v_mov_b32 v{vF}, 1\ns_mov_b64 exec, 1\nglobal_atomic_add v{vL16}, v{vF}, s[4:5] offset:{48 + 4*k}\ns_mov_b64 exec, -1')

def budget(a, ex): a(f's_sub_u32 s{sBud}, s{sBud}, 1\ns_cbranch_scc1 {ex}')

def poll(a, ex, mask, vaddr, soff, need, x2=False, sleep=2, vtmp=vF, allload=False):
    lp = a.lab('L_poll'); dn = a.lab('L_polled')
    if isinstance(mask, int): a(f's_mov_b32 exec_lo, {hex(mask & 0xffffffff)}\ns_mov_b32 exec_hi, {hex(mask >> 32)}')
    else: a(f's_mov_b64 exec, {mask}')
    a(f'{lp}:')
    if x2:
        if allload: a('s_mov_b32 exec_hi, -1')
        a(f'buffer_load_dwordx2 {R(vtmp,2)}, v{vaddr}, {WS}, s{soff} offen sc1\ns_waitcnt vmcnt(0)\nv_min_u32 v{vtmp}, v{vtmp}, v{vtmp+1}')
        if allload: a(f's_mov_b32 exec_hi, {hex(mask >> 32)}')
    else:
        a(f'buffer_load_dword v{vtmp}, v{vaddr}, {WS}, s{soff} offen sc1\ns_waitcnt vmcnt(0)')
    a(f'v_cmp_gt_u32 vcc, s{need}, v{vtmp}\ns_cbranch_vccz {dn}\ns_sleep {sleep}')
    budget(a, ex)
    a(f's_branch {lp}\n{dn}:\ns_mov_b64 exec, -1')

def signal(a, soff, sval, vtmp=vF, mask=1, vaddr=vL16):
    a(f'v_mov_b32 v{vtmp}, s{sval}\ns_mov_b64 exec, {mask}\nbuffer_store_dword v{vtmp}, v{vaddr}, {WS}, s{soff} offen sc1\ns_mov_b64 exec, -1')
    if DEBUG: logtime(a, soff, sval, vtmp, vL16)

DEBUG = False
TOT = False
OUTMOD = ''
DBGM = None
PROF = False
def prof(a, i):
    if PROF: a(f's_memtime s[94:95]\ns_waitcnt lgkmcnt(0)\ns_sub_u32 s95, s94, s79\ns_mov_b32 s79, s94\ns_add_u32 s{80+i}, s{80+i}, s95')
def prof_dump(a, slot):
    if not PROF: return
    for i in range(12): a(f'v_writelane_b32 v2, s{80+i}, {i}\ns_mov_b32 s{80+i}, 0')
    a(f'''
    s_lshl_b32 s94, s{sRole}, 2
    s_add_u32 s94, s94, s{sW}
    s_lshl_b32 s94, s94, 2
    s_lshr_b32 s95, s{sLv}, 5
    s_add_u32 s94, s94, s95
    s_add_u32 s94, s94, {slot}
    s_lshl_b32 s94, s94, 6
    s_add_u32 s94, s94, {L.STAMP + 8*1024*1024}
    v_lshlrev_b32 v3, 2, v{vLane}
    s_mov_b64 exec, 0xfff
    buffer_store_dword v2, v3, {WS}, s94 offen
    s_mov_b64 exec, -1
    s_waitcnt vmcnt(0)
    ''')
def logtime(a, soff, sval, vtmp, vzero, extra=0, clk='s_memrealtime'):
    a(f'''
    {clk} s[96:97]
    s_sub_u32 s98, s{soff}, {L.FLAGS - extra}
    s_cmp_lt_u32 s98, 16384
    s_cselect_b32 s98, s98, 16384
    s_lshl_b32 s98, s98, 6
    s_add_u32 s98, s98, s{sval}
    s_lshl_b32 s98, s98, 2
    s_add_u32 s98, s98, {L.STAMP}
    s_waitcnt lgkmcnt(0)
    v_mov_b32 v{vtmp}, s96
    s_mov_b64 exec, 1
    buffer_store_dword v{vtmp}, v{vzero}, {WS}, s98 offen
    s_mov_b64 exec, -1
    ''')

def load_ptr_srd(a, s, karg, size):
    a(f's_load_dwordx2 s[{sTmp+6}:{sTmp+7}], s[0:1], {karg}\ns_waitcnt lgkmcnt(0)')
    srd(a, s, sTmp + 6, size)

def ws_srd(a, s, off_sgpr, off_const, size):
    a(f's_add_u32 s{sTmp+6}, s{off_sgpr}, {off_const}\ns_add_u32 s{s}, s{sWS}, s{sTmp+6}\ns_addc_u32 s{s+1}, s{sWS+1}, 0\ns_mov_b32 s{s+2}, {size}\ns_mov_b32 s{s+3}, 0x20000')

WA = lambda ks: 256 + 4 * ks
WF = lambda ks: 400 + 4 * ks if ks < 28 else 224 + 4 * (ks - 28)
CS = 208
LD_PV = 0
LD_X = 1024
M32 = 'v_mfma_f32_32x32x16_bf16'

def one_wave(a, fn):
    sk = a.lab('L_ow')
    a(f's_cmp_lg_u32 s{sW}, 0\ns_cbranch_scc1 {sk}'); fn(); a(f'{sk}:\ns_barrier')

def gemm_load_weights(a, fo, rowstride, pair=False):
    t = 4
    lp = a.lab('L_wl')
    a(f"""
    v_lshrrev_b32 v{t}, 2, v{vLane}
    v_mul_u32_u24 v{t}, {rowstride}, v{t}
    v_and_b32 v{t+1}, 3, v{vLane}
    v_lshl_add_u32 v{t}, v{t+1}, 4, v{t}
    {f'v_lshrrev_b32 v{t+2}, 1, v{t+1}' if pair else ''}
    {f'v_lshl_add_u32 v{t}, v{t+2}, 2, v{t}' if pair else ''}
    s_mul_i32 s{sM0}, s{sW}, 36864
    s_mov_b32 s{sB}, s{sM0}
    s_mov_b32 s{sC}, 36
    {lp}:
    s_mov_b32 m0, s{sM0}
    s_add_u32 s{sM0}, s{sM0}, 1024
    buffer_load_dwordx4 v{t}, s[{sT}:{sT+3}], s{sA} offen lds
    s_add_u32 s{sA}, s{sA}, {16*rowstride}
    s_sub_u32 s{sC}, s{sC}, 1
    s_cmp_lg_u32 s{sC}, 0
    s_cbranch_scc1 {lp}
    v_bfe_u32 v{t+3}, v{vLane}, 4, 1
    v_lshlrev_b32 v{t+3}, 5, v{t+3}
    v_lshl_add_u32 v{t+3}, v{t+1}, 3, v{t+3}
    v_add_u32 v{t+3}, s{sB}, v{t+3}
    v_lshrrev_b32 v{t+2}, 5, v{vLane}           ; kh
    v_bfe_u32 v{t+4}, v{vLane}, 2, 2            ; r'
    v_lshl_add_u32 v{t+5}, v{t+2}, {2 if fo else 3}, v{t+4}
    v_lshl_add_u32 v{t+5}, v{t+5}, 6, v{t+3}
    """)
    if fo:
        a(f"""
        v_lshrrev_b32 v{t+6}, 1, v{t+4}
        v_lshl_add_u32 v{t+6}, v{t+2}, 2, v{t+6}
        v_mul_u32_u24 v{t+6}, 18, v{t+6}
        v_and_b32 v{t+4}, 1, v{t+4}
        v_add3_u32 v{t+6}, v{t+6}, v{t+4}, 16
        v_lshl_add_u32 v{t+6}, v{t+6}, 6, v{t+3}
        """)
    a('s_waitcnt vmcnt(0)')
    for ks in range(36):
        for hf in range(2):
            if not fo: dst, va, off = WA(ks), t + 5, (16*ks + 4*hf) * 64
            elif ks < 32: dst, va, off = WF(ks), t + 5, (18*ks + 8*hf) * 64
            else: dst, va, off = WF(ks), t + 6, 18 * (8*(ks-32) + 2*hf) * 64
            a(f'ds_read_b64_tr_b16 {R(dst+2*hf,2)}, v{va} offset:{off}')
        if ks % 4 == 3: a('s_waitcnt lgkmcnt(0)')
    a('s_barrier')

def bv_load_weights(a):
    t = 4
    a(f"""
    v_lshrrev_b32 v{t}, 3, v{vLane}
    v_mul_u32_u24 v{t}, 3456, v{t}
    v_and_b32 v{t+1}, 7, v{vLane}
    v_lshlrev_b32 v{t+2}, 4, v{t+1}
    v_add_u32 v{t+2}, 2304, v{t+2}
    v_mov_b32 v{t+3}, {1152 + 32}
    v_cmp_eq_u32 vcc, 3, v{t+1}
    v_cndmask_b32 v{t+2}, v{t+2}, 32, vcc
    v_cmp_lt_u32 vcc, 3, v{t+1}
    v_cndmask_b32 v{t+2}, v{t+2}, v{t+3}, vcc
    v_add_u32 v{t}, v{t}, v{t+2}
    v_bfe_u32 v{t+2}, v{vLane}, 4, 1
    v_and_b32 v{t+3}, 3, v{vLane}
    v_lshl_add_u32 v{t+2}, v{t+2}, 2, v{t+3}
    v_cmp_eq_u32 vcc, 7, v{t+2}
    v_cndmask_b32 v{t+2}, v{t+2}, 8, vcc
    v_lshrrev_b32 v{t+3}, 5, v{vLane}
    v_bfe_u32 v{t+4}, v{vLane}, 2, 2
    v_lshl_add_u32 v{t+3}, v{t+3}, 3, v{t+4}
    v_lshlrev_b32 v{t+3}, 7, v{t+3}
    v_lshl_add_u32 v{t+2}, v{t+2}, 3, v{t+3}
    s_mul_i32 s{sB}, s{sW}, 36864
    v_add_u32 v{t+2}, s{sB}, v{t+2}
    s_mul_i32 s{sA}, s{sId}, 36
    """)
    for ps in range(2):
        lp = a.lab('L_bvl')
        a(f"""
        s_mov_b32 s{sM0}, s{sB}
        s_mov_b32 s{sC}, 36
        {lp}:
        s_mov_b32 m0, s{sM0}
        s_add_u32 s{sM0}, s{sM0}, 1024
        buffer_load_dwordx4 v{t}, s[{sT}:{sT+3}], s{sA} offen lds
        s_add_u32 s{sA}, s{sA}, {8*3456}
        s_sub_u32 s{sC}, s{sC}, 1
        s_cmp_lg_u32 s{sC}, 0
        s_cbranch_scc1 {lp}
        s_waitcnt vmcnt(0)
        """)
        for ks in range(18):
            for hf in range(2): a(f'ds_read_b64_tr_b16 {R(WA(18*ps+ks)+2*hf,2)}, v{t+2} offset:{(16*ks + 4*hf) * 128}')
            if ks % 3 == 2: a('s_waitcnt lgkmcnt(0)')
    a('s_barrier')

def stat_addr(a, dst, tmp):
    a(f'v_bfe_u32 v{tmp}, v{vLane}, 4, 1\nv_lshrrev_b32 v{dst}, 5, v{vLane}\nv_lshl_add_u32 v{dst}, v{tmp}, 1, v{dst}\nv_and_b32 v{tmp}, 15, v{vLane}\nv_lshlrev_b32 v{tmp}, 2, v{tmp}\nv_lshl_add_u32 v{dst}, v{dst}, 6, v{tmp}')

def add_residual(a, PK, RES, n, T):
    for i in range(n):
        a(f"""
        v_lshlrev_b32 v{T}, 16, v{RES+i}
        v_and_b32 v{T+1}, 0xffff0000, v{RES+i}
        v_lshlrev_b32 v{T+2}, 16, v{PK+i}
        v_and_b32 v{T+3}, 0xffff0000, v{PK+i}
        v_add_f32 v{T}, v{T}, v{T+2}
        v_add_f32 v{T+1}, v{T+1}, v{T+3}
        v_cvt_pk_bf16_f32 v{PK+i}, v{T}, v{T+1}
        """)

def row_stats(a, PK, n, T):
    a(f's_mov_b32 s{sTmp}, 0x3f803f80')
    for i in range(n):
        a(f'v_dot2_f32_bf16 v{T}, v{PK+i}, s{sTmp}, {"0" if i == 0 else f"v{T}"}\nv_dot2_f32_bf16 v{T+1}, v{PK+i}, v{PK+i}, {"0" if i == 0 else f"v{T+1}"}')
    a(f'v_permlane32_swap_b32 v{T}, v{T+1}\nv_add_f32 v{T}, v{T}, v{T+1}')

vR = 4; vSt = 5; vSa = 6; vPo = 7; vTl = 8; vOut = 9; vGo = 10
FB = [12 + 4 * i for i in range(4)]
ACC = 28; TMP = 44; PKR = 84; RES = 92; SP = 100

def mfma_loop(a, kind, wreg, gap, c0='0'):
    ds = Q(a, 'lgkmcnt', 15)
    def rd(ks):
        if kind == 'FO' and ks >= 32:
            for hf in range(2): ds.issue(ks, f'ds_read2_b32 {R(FB[ks%4]+2*hf,2)}, v{vTl} offset0:{64*hf} offset1:{64*hf+32}')
            if ks < 35: a(f'v_add_u32 v{vTl}, 1024, v{vTl}')
        else: ds.issue(ks, f'ds_read_b128 {R(FB[ks%4],4)}, v{vR} offset:{ks*1024}')
    for ks in range(3): rd(ks)
    ds.wait(0)
    for ks in range(36):
        W_, F_ = R(wreg(ks), 4), R(FB[ks % 4], 4)
        x, y = (W_, F_) if kind in ('T', 'BT', 'FO') else (F_, W_)
        a(f'{M32} {R(ACC,16)}, {x}, {y}, {c0 if ks == 0 else R(ACC,16)}')
        if ks + 1 < 36: ds.wait(ks + 1)
        if ks + 3 < 36: rd(ks + 3)
        gap(ks, ds)

def ln_phase(a, kind, ex):
    lead = kind in ('T', 'N')
    nd = 11 if lead else 12
    npart = 18 if lead else 36
    mean, rs = TMP + 32, TMP + 33
    for i in range(4): a(f'v_mov_b32 v{FB[0]+i}, 0x3f803f80')
    for ks in range(36):
        W_, O_ = R(WA(ks), 4), R(FB[0], 4)
        x, y = (W_, O_) if kind in ('T', 'BT') else (O_, W_)
        a(f'{M32} {R(CS,16)}, {x}, {y}, {"0" if ks == 0 else R(CS,16)}')
    stat_addr(a, vSt, TMP)
    a(f"""
    v_add_u32 v{vSt}, {LD_X + 36864}, v{vSt}
    v_add_u32 v{vR}, {LD_X}, v{vL16}
    v_lshlrev_b32 v{vFa}, 2, v{vLane}
    s_lshl_b32 s{sTmp}, s{sW}, 8
    v_add_u32 v{vSa}, s{sTmp}, v{vFa}
    v_lshrrev_b32 v{TMP}, 5, v{vLane}
    v_lshl_add_u32 v{vPo}, v{TMP}, 4, s{sTmp}
    s_mul_i32 s{sTmp}, s{sW}, 3072
    v_add_u32 v{vTl}, s{sTmp}, v{vL16}
    s_add_u32 s{sM0}, s{sTmp}, {LD_X}
    s_mov_b32 s{sX+2}, {36864 + 256*npart}
    s_mov_b32 s{sX+3}, 0x20000
    s_mov_b32 s{sDel}, 49152
    s_mov_b32 s{sSigPrev}, {OOB}
    s_mov_b32 s{sS}, {0 if lead else f's{sPar}'}
    s_mov_b32 s{sKnown}, 0
    s_mov_b32 s{sFv}, 0
    s_mul_i32 s{sTile}, s{sW}, {(nd - 12) * 1024 & 0xffffffff}
    s_add_u32 s{sTile}, s{sTile}, 36864
    """)
    nst = nd - 9
    def dma(i):
        st_, j = (3, i) if i < nst else divmod(i - nst, 3)
        o = []
        if j == 0:
            if st_ == 3: o = [f's_add_u32 m0, s{sM0}, s{sTile}']
            else: o = [f's_add_u32 m0, s{sM0}, {12288*st_}'] + ([f's_movk_i32 s{sA}, {12288*st_}'] if st_ else [])
        so = f's{sTile}' if st_ == 3 else (f's{sA}' if st_ else '0')
        return o + [f'buffer_load_dwordx4 v{vTl}, s[{sX}:{sX+3}], {so} offen offset:{1024*j} sc1 lds']
    def seg_srd(seg): a(f's_mul_i32 s{sD}, s{seg}, {L.XSEG}\ns_add_u32 s{sD}, s{sD}, s{sSrc}\ns_add_u32 s{sX}, s{sWS}, s{sD}\ns_addc_u32 s{sX+1}, s{sWS+1}, 0')
    LD_GO = LD_X + 2 * 49152
    nsig = 2 if DEBUG else 1
    def sig():
        signal(a, sSigPrev, sFv, mask=15 if lead else 0x101 if kind == 'BT' else 1, vaddr=vFa if lead else vL16)
        a(f's_mov_b32 s{sSigPrev}, {OOB}')
    def look(seg):
        if lead: a(f's_lshl_b32 s{sPoll}, s{seg}, 5\ns_add_u32 s{sPoll}, s{sPoll}, s{sFlag}\nbuffer_load_dword v{vOut}, v{vFa}, {WS}, s{sPoll} offen sc1')
        else: a(f'buffer_load_dword v{vOut}, v{vFa}, {WS}, s{sFlag} offen sc1')
    def judge(seg):
        if lead:
            a(f"""
            v_cmp_gt_u32 vcc, s{sL1}, v{vOut}
            s_and_b64 vcc, vcc, s[{sE}:{sE+1}]
            s_ff1_i32_b64 s{sTmp}, vcc
            s_lshr_b32 s{sTmp}, s{sTmp}, 3
            s_min_u32 s{sTmp}, s{sTmp}, 8
            s_add_u32 s{sTmp}, s{sTmp}, s{seg}
            s_max_u32 s{sKnown}, s{sKnown}, s{sTmp}
            s_min_u32 s{sKnown}, s{sKnown}, 64
            """)
        else:
            a(f's_add_u32 s{sTmp}, s{seg}, s{sLv}\nv_cmp_ge_u32 vcc, s{sTmp}, v{vOut}\ns_add_u32 s{sTmp}, s{seg}, 1\ns_and_b64 vcc, vcc, s[{sE}:{sE+1}]\ns_cselect_b32 s{sKnown}, 0, s{sTmp}')
    def share(): a(f'v_mov_b32 v{vF}, s{sKnown}\nds_write_b32 v{vGo}, v{vF}\ns_waitcnt lgkmcnt(0)')
    loop = a.lab('L_seg'); slow = a.lab('L_slow'); fetch = a.lab('L_fetch'); plain = a.lab('L_plain'); epi = a.lab('L_epi')
    a(f"""
    v_mov_b32 v{vGo}, {LD_GO}
    s_mov_b32 s{sE}, {0x1f1f1f1f if lead else 0xffffff}
    s_mov_b32 s{sE+1}, {0x1f1f1f1f if lead else 0}
    s_lshl_b32 s{sFlag}, s{sPar}, 7
    s_add_u32 s{sFlag}, s{sFlag}, {L.F_X if lead else L.F_WO}
    s_cmp_eq_u32 s{sW}, 0
    s_cselect_b32 s{sFlag}, s{sFlag}, {OOB}
    s_cselect_b32 s{sSig}, s{sSig}, {OOB}
    """)
    vXw, vXr = 108, 109; PO = 112
    one_wave(a, lambda: wait_marks(a, ex, None if lead else 1))
    if kind == 'BN':
        a(f"""
        s_lshl_b32 s{sTmp}, s{sW}, 9
        s_add_u32 s{sTmp}, s{sTmp}, {LD_GO + 64}
        v_bfe_u32 v{TMP}, v{vLane}, 2, 1
        v_and_b32 v{TMP+1}, 1, v{vLane}
        v_lshl_add_u32 v{TMP}, v{TMP}, 1, v{TMP+1}
        v_lshrrev_b32 v{TMP+1}, 5, v{vLane}
        v_lshl_add_u32 v{vXw}, v{TMP+1}, 4, s{sTmp}
        v_lshl_add_u32 v{vXw}, v{TMP}, 7, v{vXw}
        v_lshl_add_u32 v{vXr}, v{TMP+1}, 7, v{vFa}
        v_add_u32 v{vXr}, s{sTmp}, v{vXr}
        """)
    seg_srd(sS)
    retry = a.lab('L_retry'); early = a.lab('L_early'); okl = a.lab('L_lnok')
    a(f's_sub_u32 s{sKd}, s{sL1}, {1 if lead else 0}\n{slow}:')
    if lead: a(f's_sub_u32 s{sTmp}, s{sLv}, s{sS}\ns_cmp_eq_u32 s{sTmp}, 64\ns_cselect_b32 s{sLev}, 1, 0')
    else: a(f's_cmp_ge_u32 s{sS}, 62\ns_cselect_b32 s{sLev}, 1, 0')
    a(f'{retry}:'); prof(a, 0)
    look(sS)
    a('s_waitcnt vmcnt(0)\ns_barrier'); sig()
    def block():
        lp = a.lab('L_bl'); dn = a.lab('L_bld')
        a(f's_cmp_eq_u32 s{sLev}, 0\ns_cbranch_scc1 {lp}\ns_add_u32 s{sTmp+2}, s{sFlag}, {HINT}')
        poll(a, ex, 0x1f if lead else 0xffffff, vFa, sTmp + 2, sKd, sleep=1)
        a(f's_add_u32 s{sKnown}, s{sS}, 1\ns_branch {dn}')
        a(f'{lp}:'); judge(sS)
        a(f's_cmp_lt_u32 s{sS}, s{sKnown}\ns_cbranch_scc1 {dn}\ns_sleep 1'); look(sS); budget(a, ex)
        a(f's_waitcnt vmcnt(0)\ns_branch {lp}\n{dn}:'); share()
    one_wave(a, block)
    a(f'ds_read_b32 v{vF}, v{vGo}\ns_mov_b32 s{sAct}, 2')
    prof(a, 1)
    a(f'{fetch}:')
    for i in range(nd): a('\n'.join(dma(i)))
    a(f's_waitcnt vmcnt(6) lgkmcnt(0)\nv_readfirstlane_b32 s{sKnown}, v{vF}\ns_cmp_eq_u32 s{sAct}, 2\ns_cbranch_scc1 {loop}\ns_barrier'); sig()
    a(f'{loop}:\ns_barrier\ns_add_u32 s{sN}, s{sS}, {1 if lead else 2}')
    prof(a, 2)
    nr = npart // 2
    nout = 16
    def body(pre):
        fin = f"""v_add_f32 v{mean}, v{mean}, v{rs}
            v_mul_f32 v{mean}, {hex(fbits(1.0/576))}, v{mean}
            v_mov_b32 v{rs}, v{mean}
            -
            v_permlane32_swap_b32 v{mean}, v{rs}
            v_fma_f32 v{rs}, -v{mean}, v{mean}, v{rs}
            v_max_f32 v{rs}, 0, v{rs}
            -
            v_add_f32 v{rs}, {hex(fbits(1e-5))}, v{rs}
            v_rsq_f32 v{rs}, v{rs}
            -""".split('\n')
        per = 3 if lead else 2 if kind == 'BT' else 4
        if kind in ('T', 'BT'):
            fin += [f'v_mul_f32 v{rs}, s{sC}, v{rs}', f'v_mul_f32 v{mean}, v{mean}, v{rs}']
            for r in range(nout): fin += (['-'] if r % per == 0 else []) + [f'v_mul_f32 v{TMP+16+r}, v{mean}, v{CS+r}']
        else:
            fin += [f'v_mul_f32 v{mean}, v{mean}, v{rs}', f'v_cmp_gt_u32 vcc, 32, v{vLane}', '-', f'v_cndmask_b32 v{mean}, v{mean}, v{rs}, vcc', f'*ds_write_b32 v{vSa}, v{mean} offset:{LD_PV}']
            for g in (4, 5, 6, 7, 0, 1, 2, 3): fin += (['-'] if g % 2 == 0 or lead else []) + [f'*ds_read_b128 {R(TMP+4*g,4)}, v{vPo} offset:{LD_PV + 32*g}']
            for r in range(16): fin += (['-', '!'] if r == 0 else ['-'] if r % per == 0 else []) + [f'v_mul_f32 v{TMP+16+r}, v{CS}, v{TMP+16+r}']
        fin = [x.strip() for x in fin]
        nv = 0
        def gap(ks, ds):
            nonlocal nv
            if ks < nr: ds.issue(('s', ks), f'ds_read2st64_b32 {R(SP+2*(ks%4),2)}, v{vSt} offset0:{2*ks} offset1:{2*ks+1}')
            if ks == 0: seg_srd(sN)
            if ks == 1: a(f's_add_u32 s{sM0}, s{sM0}, s{sDel}')
            if pre and ks >= 9 and ks % 2 == 1 and (ks - 9) // 2 < nd: a('\n'.join(dma((ks - 9) // 2))); nv += 1
            k = ks - 3
            if 0 <= k < nr:
                ds.wait(('s', k))
                if k == 0: a(f'v_mov_b64 {R(mean,2)}, {R(SP,2)}')
                else: a(f'v_add_f32 v{mean}, v{mean}, v{SP+2*(k%4)}\nv_add_f32 v{rs}, v{rs}, v{SP+2*(k%4)+1}')
            if k >= nr:
                while fin:
                    x = fin.pop(0)
                    if x == '-': break
                    if x == '!': ds.wait('pv')
                    elif x[0] == '*': ds.issue('pv', x[1:])
                    else: a(x)
            if ks in (8, 20): a(f's_waitcnt vmcnt({(3 if ks == 8 else 0) + nv})\ns_barrier')
            if lead and ks == 22: look(sN); nv = 0
            if lead and ks == 24: sig(); nv += nsig
        mfma_loop(a, kind, WA, gap)
        assert not fin, fin
        return nv
    if lead:
        a(f's_cmp_lt_u32 s{sN}, s{sKnown}\ns_cselect_b32 s{sAct}, 1, 0\ns_cbranch_scc0 {plain}')
        nvp = body(True)
        a(f's_branch {epi}\n{plain}:')
    body(False)
    a(f'{epi}:\ns_cmp_lg_u32 s{sLev}, 0\ns_cbranch_scc1 {early}\n{okl}:')
    prof(a, 5)
    a(f's_mul_i32 s{sD}, s{sS}, s{sMul}\ns_add_u32 s{sD}, s{sD}, s{sOut}\ns_add_u32 s{sA}, s{sD}, s{sB}')
    a(f's_add_u32 s{sFv}, s{sS}, s{sLv}\ns_add_u32 s{sFv}, s{sFv}, 1')
    if kind == 'BN': a(f's_mul_i32 s{sTmp+1}, s{sS}, 1152\ns_add_u32 s{sTmp+1}, s{sTmp+1}, s{sStride}')
    a(f's_mov_b32 s{sS}, s{sN}')
    a(f'v_add_u32 v{vR}, s{sDel}, v{vR}\nv_add_u32 v{vSt}, s{sDel}, v{vSt}\ns_sub_u32 s{sDel}, 0, s{sDel}\ns_mov_b32 s{sSigPrev}, s{sSig}')
    for G in range(2):
        rr = range(8 * G, 8 * G + 8)
        for r in rr: a(f'v_fma_f32 v{ACC+r}, v{ACC+r}, v{rs if kind in ("T", "BT") else TMP+r}, -v{TMP+16+r}')
        if kind == 'BN':
            a('s_mov_b32 exec_lo, 0x33000000\ns_mov_b32 exec_hi, 0x33000000')
            for g in (2 * G, 2 * G + 1): a(f'ds_write_b128 v{vXw}, {R(ACC+4*g,4)} offset:{32*g}')
            a('s_mov_b64 exec, -1')
            if G: a(f'ds_read2_b32 {R(TMP,2)}, v{vXr} offset0:0 offset1:32')
        for r in rr[::2]: a(f'v_cvt_pk_bf16_f32 v{PKR+r//2}, v{ACC+r}, v{ACC+r+1}')
        if kind == 'BN':
            a(f's_mov_b32 exec_lo, {1 << 18}\ns_mov_b32 exec_hi, {1 << 18}')
            for i in range(4): a(f'v_mov_b32 v{PKR+4*G+i}, 0x3f803f80')
            a('s_mov_b64 exec, -1')
        a(f'buffer_store_dwordx4 {R(PKR+4*G,4)}, v{vL16}, {WS}, s{sA if G else sD} offen sc1')
    if kind == 'BN':
        a(f"""
        s_mov_b32 exec_lo, 0
        s_waitcnt lgkmcnt(0)
        v_mul_f32 v{TMP}, s{sC}, v{TMP}
        v_mul_f32 v{TMP+1}, s{sC}, v{TMP+1}
        v_cvt_pk_bf16_f32 v{TMP+2}, v{TMP}, v{TMP+1}
        buffer_store_dword v{TMP+2}, v{vFa}, {WS}, s{sD} offen offset:{2048 - 128} sc1
        s_not_b64 exec, exec
        v_cvt_pk_bf16_f32 v{TMP+3}, v{TMP}, v{TMP+1}
        buffer_store_dword v{TMP+3}, v{vFa}, {WS}, s{sTmp+1} offen offset:1024 sc1
        s_mov_b64 exec, -1
        """)
    prof(a, 6)
    if lead:
        np_ = a.lab('L_np'); jd = a.lab('L_jd')
        a(f's_cmp_eq_u32 s{sAct}, 0\ns_cbranch_scc1 {np_}\ns_add_u32 s{sTmp}, s{sS}, 1\ns_cmp_lt_u32 s{sTmp}, s{sKnown}\ns_waitcnt vmcnt({nvp + 2})\ns_cbranch_scc1 {loop}\ns_branch {jd}')
        a(f'{np_}:\ns_waitcnt vmcnt({nsig + 2})\n{jd}:')
        one_wave(a, lambda: (judge(sS), share()))
        a(f'ds_read_b32 v{vF}, v{vGo}\ns_waitcnt lgkmcnt(0)\nv_readfirstlane_b32 s{sKnown}, v{vF}')
        a(f's_cmp_lg_u32 s{sAct}, 0\ns_cbranch_scc1 {loop}\ns_cmp_lt_u32 s{sS}, s{sKnown}\ns_cbranch_scc1 {fetch}')
    a(f's_cmp_lt_u32 s{sS}, 64\ns_cbranch_scc1 {slow}')
    fin_ = a.lab('L_lnfin')
    a('s_waitcnt vmcnt(0)\ns_barrier'); sig()
    a(f's_branch {fin_}\n{early}:\ns_mov_b32 s{sLev}, 0')
    if kind in ('T', 'BT'): a(f'v_cmp_u_f32 vcc, v{ACC}, v{TMP+16}')
    else:
        a(f'v_add_f32 v{SP}, v{ACC}, v{TMP+16}')
        for r in range(1, 16): a(f'v_add_f32 v{SP+1}, v{ACC+r}, v{TMP+16+r}\nv_fma_f32 v{SP}, v{SP+1}, 0, v{SP}')
        a(f'v_cmp_u_f32 vcc, v{SP}, v{SP}\ns_and_b32 vcc_lo, vcc_lo, 1\ns_and_b32 vcc_hi, vcc_hi, 1')
    a(f's_cmp_eq_u64 vcc, 0\ns_cbranch_scc1 {okl}\ns_sub_u32 s{sM0}, s{sM0}, s{sDel}\ns_mov_b32 s{sKnown}, s{sS}')
    miss(a, 1 if lead else 2)
    seg_srd(sS)
    a(f's_branch {retry}\n{fin_}:\ns_waitcnt vmcnt(0)\ns_barrier')

def natural_order(a, PK):
    for G in range(2):
        for i in range(2): a(f'v_permlane32_swap_b32 v{PK+4*G+i}, v{PK+4*G+2+i}')

def fo_phase(a, ex):
    top = a.lab('L_fotop'); early = a.lab('L_foearly')
    a(f's_mov_b32 s{sLev}, {HINT}\n{top}:')
    stat_addr(a, vSt, TMP)
    a(f"""
    v_add_u32 v{vR}, {LD_X}, v{vL16}
    v_and_b32 v{TMP}, 31, v{vLane}
    v_lshrrev_b32 v{TMP+1}, 5, v{vLane}
    v_lshlrev_b32 v{vSa}, 2, v{TMP}
    v_lshl_add_u32 v{vSa}, v{TMP+1}, 9, v{vSa}
    v_add_u32 v{vSa}, {LD_X + 32768}, v{vSa}
    v_mul_u32_u24 v{vOut}, 1152, v{TMP}
    v_lshl_add_u32 v{vOut}, v{TMP+1}, 4, v{vOut}
    v_and_b32 v{TMP}, 15, v{vLane}
    v_lshrrev_b32 v{TMP+1}, 4, v{vLane}
    v_lshlrev_b32 v{vFa}, 3, v{TMP}
    v_lshl_add_u32 v{vFa}, v{TMP+1}, 11, v{vFa}
    s_lshl_b32 s{sPoll}, s{sTeam}, 7
    s_add_u32 s{sPoll}, s{sPoll}, {L.F_OB}
    s_add_u32 s{sPoll}, s{sPoll}, s{sLev}
    s_lshl_b32 s{sTmp}, s{sW}, 10
    s_add_u32 s{sM0}, s{sTmp}, {LD_X}
    s_mul_i32 s{sSrc}, s{sTeam}, 36864
    s_add_u32 s{sOut}, s{sSrc}, 0
    s_add_u32 s{sSrc}, s{sSrc}, s{sTmp}
    s_add_u32 s{sSrc}, s{sSrc}, s{sLay}
    s_add_u32 s{sSrc}, s{sSrc}, {L.OB}
    s_lshl_b32 s{sTmp}, s{sFoT}, 6
    s_add_u32 s{sOut}, s{sOut}, s{sTmp}
    s_mul_i32 s{sB}, s{sTeam}, {L.XSEG}
    s_lshl_b32 s{sTmp}, s{sFoT}, 8
    s_add_u32 s{sC}, s{sB}, s{sTmp}
    s_lshl_b32 s{sTmp}, s{sFoT}, 11
    s_add_u32 s{sB}, s{sB}, s{sTmp}
    s_cmp_ge_u32 s{sFoT}, 18
    s_cselect_b32 s{sOut}, {OOB}, s{sOut}
    s_cselect_b32 s{sB}, {OOB}, s{sB}
    s_cselect_b32 s{sC}, {OOB}, s{sC}
    s_lshl_b32 s{sSig}, s{sTeam}, 3
    s_lshr_b32 s{sTmp}, s{sFoT}, 2
    s_add_u32 s{sSig}, s{sSig}, s{sTmp}
    s_lshl_b32 s{sSig}, s{sSig}, 2
    s_add_u32 s{sSig}, s{sSig}, {L.F_X}
    s_add_u32 s{sTmp}, s{sW}, {0 if DEBUG else f's{sLv}'}
    s_cmp_eq_u32 s{sTmp}, 0
    s_cselect_b32 s{sSig}, s{sSig}, {OOB}
    s_add_u32 s{sFv}, s{sL1}, 1
    """)
    vm = Q(a, 'vmcnt', 63)
    def dma(r, i):
        a(f's_add_u32 m0, s{sM0}, {36864*r + 4096*i}\ns_add_u32 s{sA}, s{sSrc}, {16*36864*r + 4096*i}')
        vm.issue(('d', r, i // 3), f'buffer_load_dwordx4 v{vL16}, {WS}, s{sA} offen sc1 lds')
    def res(r):
        a(f's_add_u32 s{sA}, s{sB}, s{sLay}\ns_add_u32 s{sA}, s{sA}, {L.X1 + 16*L.XSEG*r}')
        for G in range(2): vm.issue(('r', r), f'buffer_load_dwordx4 {R(RES+4*G,4)}, v{vL16}, {WS}, s{sA} offen offset:{1024*G} sc1')
    def sig(r):
        vm.wait('o'); a('s_barrier')
        a(f's_add_u32 s{sTmp+1}, s{sSig}, {16*32*r}'); signal(a, sTmp + 1, sFv)
        vm.q += ['s'] * (2 if DEBUG else 1)
    LD_GO = LD_X + 4 * 36864
    a(f'v_mov_b32 v{vGo}, {LD_GO}')
    def first():
        poll(a, ex, (1 << 48) - 1, vFa, sPoll, sL1, x2=True, sleep=1, vtmp=TMP, allload=True)
        a(f'v_cmp_gt_u32 vcc, s{sL1}, v{TMP}\nv_mov_b32 v{vF}, vcc_hi\nds_write_b32 v{vGo}, v{vF}\ns_waitcnt lgkmcnt(0)')
    CI = 108
    def unpack():
        o = [f'v_permlane32_swap_b32 v{RES+4*G+i}, v{RES+4*G+2+i}' for G in range(2) for i in range(2)]
        for i in range(8): o += [f'v_lshlrev_b32 v{CI+2*i}, 16, v{RES+i}', f'v_and_b32 v{CI+2*i+1}, 0xffff0000, v{RES+i}']
        return o
    def rnd(r, pre):
        prof(a, 0)
        fresh = r == 0 or (r == 3 and not pre)
        if fresh:
            if r == 3: sig(2)
            one_wave(a, first if r == 0 else lambda: poll(a, ex, 0xffff << 48, vFa, sPoll, sL1, x2=True, sleep=1, vtmp=TMP))
            prof(a, 1)
            if r == 0: res(0)
            for i in range(9): dma(r, i)
            if r == 0:
                a(f'ds_read_b32 v{vF}, v{vGo}\ns_waitcnt lgkmcnt(0)\nv_readfirstlane_b32 s{sAct}, v{vF}')
                vm.wait(('r', 0)); a('\n'.join(unpack()))
            vm.wait(('d', r, 0))
        else:
            vm.wait(('d', r, 2))
        a(f's_barrier\nv_mov_b32 v{vTl}, v{vSa}')
        prof(a, 2)
        up = unpack() if r < 3 else []
        def gap(ks, ds):
            if ks == 1 and r < 3: res(r + 1)
            if fresh and ks in (8, 20): vm.wait(('d', r, 1 if ks == 8 else 2)); a('s_barrier')
            if (r in (0, 1) or (r == 2 and pre)) and ks >= 6 and ks % 3 == 0 and ks < 33: dma(r + 1, ks // 3 - 2)
            if ks == 22 and not fresh: sig(r - 1)
            if r == 0 and H_FO > 1 and ks == H_FO: hint(a, sSig); vm.q.append('h')
            if ks >= 25:
                vm.wait(('r', r + 1))
                for _ in range(2):
                    if up: a(up.pop(0))
        mfma_loop(a, 'FO', WF, gap, R(CI, 16))
        assert not up
        prof(a, 5)
        a(f'v_add_u32 v{vR}, 36864, v{vR}\nv_add_u32 v{vSa}, 36864, v{vSa}')
        a(f's_add_u32 s{sA}, s{sB}, {L.LSTRIDE + L.X0 + 16*L.XSEG*r}\ns_add_u32 s{sD}, s{sOut}, {16*36864*r}')
        if r == 0 and H_FO == 1: hint(a, sSig); vm.q.append('h')
        a(f'v_cmp_u_f32 vcc, v{ACC}, v{ACC}')
        for i in range(8): a(f'v_cvt_pk_bf16_f32 v{PKR+i}, v{ACC+2*i}, v{ACC+2*i+1}')
        a(f's_cmp_lg_u64 vcc, 0\ns_cselect_b32 s{sTmp}, s{sLev}, 0\ns_cmp_lg_u32 s{sTmp}, 0\ns_cbranch_scc1 {early}')
        natural_order(a, PKR)
        last = a.lab('L_folast'); dn = a.lab('L_fodn')
        a(f's_cmp_lg_u32 s{sLv}, 0\ns_cbranch_scc1 {last}')
        for G in range(2): a(f'buffer_store_dwordx4 {R(PKR+4*G,4)}, v{vL16}, {WS}, s{sA} offen offset:{1024*G} sc1')
        row_stats(a, PKR, 8, TMP)
        a(f's_add_u32 s{sA}, s{sC}, {L.LSTRIDE + L.X0 + 16*L.XSEG*r + 36864}\ns_branch {dn}')
        a(f'{last}:')
        for G in range(2): a(f'buffer_store_dwordx4 {R(PKR+4*G,4)}, v{vOut}, s[{sY}:{sY+3}], s{sD} offen offset:{32*G} {OUTMOD}')
        a(f's_mov_b32 s{sA}, {OOB}\n{dn}:\nbuffer_store_dword v{TMP}, v{vSt}, {WS}, s{sA} offen sc1')
        vm.q += ['o', 'o', 'o']
        prof(a, 7)
    rnd(0, False); rnd(1, False)
    late = a.lab('L_folate'); fin = a.lab('L_fofin')
    a(f's_cmp_lg_u32 s{sAct}, 0\ns_cbranch_scc1 {late}')
    q0 = list(vm.q)
    rnd(2, True); rnd(3, True)
    a(f's_branch {fin}\n{late}:')
    vm.q = q0
    rnd(2, False); rnd(3, False)
    a(f's_branch {fin}\n{early}:\ns_mov_b32 s{sLev}, 0')
    miss(a, 3)
    a(f's_waitcnt vmcnt(0)\ns_barrier\ns_branch {top}\n{fin}:')
    sig(3)
    a('s_waitcnt vmcnt(0)\ns_barrier')

def pre_phase(a):
    stat_addr(a, vSt, TMP)
    a(f"""
    v_and_b32 v{TMP}, 31, v{vLane}
    v_lshrrev_b32 v{TMP+1}, 5, v{vLane}
    v_mul_u32_u24 v{vOut}, 1152, v{TMP}
    v_lshl_add_u32 v{vOut}, v{TMP+1}, 4, v{vOut}
    s_lshr_b32 s{sTmp}, s{sW}, 1
    s_lshl_b32 s{sTmp}, s{sTmp}, 5
    s_add_u32 s{sS}, s{sId}, s{sTmp}
    s_and_b32 s{sTmp}, s{sW}, 1
    s_mul_i32 s{sTile}, s{sTmp}, 9
    s_mul_i32 s{sA}, s{sS}, 36864
    s_lshl_b32 s{sTmp}, s{sTile}, 6
    s_add_u32 s{sA}, s{sA}, s{sTmp}
    s_mul_i32 s{sB}, s{sS}, {L.XSEG}
    s_add_u32 s{sB}, s{sB}, {L.X0}
    s_lshl_b32 s{sTmp}, s{sTile}, 8
    s_add_u32 s{sC}, s{sB}, s{sTmp}
    s_add_u32 s{sC}, s{sC}, 36864
    s_lshl_b32 s{sTmp}, s{sTile}, 11
    s_add_u32 s{sB}, s{sB}, s{sTmp}
    """)
    D = 48
    for i in range(18): a(f'buffer_load_dwordx4 {R(D+4*i,4)}, v{vOut}, s[{sX}:{sX+3}], s{sA} offen offset:{32*i}')
    a('s_waitcnt vmcnt(0)')
    for tl in range(9):
        for G in range(2): a(f'buffer_store_dwordx4 {R(D+8*tl+4*G,4)}, v{vL16}, {WS}, s{sB} offen offset:{1024*G} sc1')
        row_stats(a, D + 8 * tl, 8, 12 + 2 * tl)
        a(f'buffer_store_dword v{12+2*tl}, v{vSt}, {WS}, s{sC} offen offset:{256*tl} sc1\ns_add_u32 s{sB}, s{sB}, 2048')
    a(f"""
    s_waitcnt vmcnt(0)
    s_barrier
    s_lshl_b32 s{sA}, s{sS}, 5
    s_add_u32 s{sA}, s{sA}, {L.F_X}
    s_cmp_eq_u32 s{sTile}, 0
    s_cselect_b32 s{sA}, s{sA}, {OOB}
    v_mov_b32 v{vF}, 1
    v_lshlrev_b32 v{vFa}, 2, v{vLane}
    s_mov_b64 exec, 31
    buffer_store_dword v{vF}, v{vFa}, {WS}, s{sA} offen sc1
    s_mov_b64 exec, -1
    """)

H_ATT = 2; H_WO = 1; H_BA = 1; H_FO = 1; NPOIS = 48; NPOIS2 = 32; POI_WAIT = True
SENT = 4
def poison_phase(a, part):
    load_ptr_srd(a, sT, 88, 256)
    a(f"""
    v_mov_b64 v[4:5], -1
    v_mov_b64 v[6:7], -1
    s_lshl_b32 s{sA}, s{sTile}, 2
    s_add_u32 s{sA}, s{sA}, s{sW}
    s_lshl_b32 s{sA}, s{sA}, 12
    """)
    def region(base, n):
        lp = a.lab('L_poi')
        dn = a.lab('L_poid')
        a(f's_add_u32 s{sB}, s{sA}, {base}\ns_cmp_ge_u32 s{sA}, {n}\ns_cbranch_scc1 {dn}\n{lp}:')
        for i in range(4): a(f'buffer_store_dwordx4 v[4:7], v{vL16}, {WS}, s{sB} offen offset:{1024*i} sc1')
        a(f's_add_u32 s{sB}, s{sB}, {(NPOIS, NPOIS2, NPOIS2)[part]*4*4096}\ns_cmp_lt_u32 s{sB}, {base + n}\ns_cbranch_scc1 {lp}\n{dn}:')
    if part == 0: region(L.KM, 2048 * 4096)
    elif part == 1: region(L.QB, 2048 * 1152); region(L.KVB, 2048 * L.KVT)
    else:
        for base, n in ((L.KM, 2048 * 4096), (L.QB, 2048 * 1152), (L.KVB, 2048 * L.KVT), (L.X0, L.XSEG)): region(L.LSTRIDE + base, n)
        for lay in (0, L.LSTRIDE):
            for base, n in ((L.OA + 62 * 262144, 2 * 262144), (L.X1 + 62 * L.XSEG, 2 * L.XSEG), (L.OB, 64 * 36864)): region(lay + base, n)
    a(f"""
    s_waitcnt vmcnt(0)
    s_barrier
    v_mov_b32 v8, 1
    s_cmp_eq_u32 s{sW}, 0
    s_cselect_b32 s{sB}, 0, {OOB}
    s_add_u32 s{sC}, s{sB}, {L.F_POI + 128 * part}
    s_mov_b64 exec, 1
    {f'buffer_atomic_add v8, v{vL16}, s[{sT}:{sT+3}], s{sB} offen offset:{L.D_POI}' if part == 0 else ''}
    buffer_atomic_add v8, v{vL16}, {WS}, s{sC} offen
    s_mov_b64 exec, -1
    """)

def wait_marks(a, ex, part):
    a(f's_mov_b32 s{sTmp}, {L.F_POI + 128 * (part or 0)}\ns_cmp_eq_u32 s{sLv}, 0\ns_cselect_b32 s{sTmp}, s{sTmp}, {L.F_POI + 256}\ns_cselect_b32 s{sNeed}, {0 if part is None else (NPOIS, NPOIS2)[part]}, {NPOIS2}')
    poll(a, ex, 1, vL16, sTmp, sNeed, sleep=32)

HINT = L.F_HINT - L.FLAGS
def hint(a, sig, cond=None, mask=1, vaddr=vL16):
    sk = a.lab('L_nh')
    if cond: a(f'{cond}\ns_cbranch_scc0 {sk}')
    a(f's_add_u32 s{sTmp+2}, s{sig}, {HINT}\nv_mov_b32 v{vF}, s{sL1}\ns_mov_b64 exec, {mask}\nbuffer_store_dword v{vF}, v{vaddr}, {WS}, s{sTmp+2} offen sc1\ns_mov_b64 exec, -1\n{sk}:')

def att_phase(a, ex):
    vKa = 4; vVa = 5; m0 = 6; m1 = 7; vWr = 202
    MK = 8; KMr = 120; VMr = 152; Sx = 160; Sm = 176; Px = 192; Pm = 200; PO = 204
    Qr = 256; Kr = 288; Vr = 320
    O = [24, 40, 56, 72]; PKo = 88; LDm = 24
    a(f"""
    v_lshlrev_b32 v{vFa}, 2, v{vLane}
    s_lshl_b32 s{sTmp}, s{sW}, 12
    v_add_u32 v{vWr}, s{sTmp}, v{vL16}
    v_lshrrev_b32 v{m0}, 5, v{vLane}
    v_and_b32 v{m1}, 7, v{vLane}
    v_lshlrev_b32 v{m1}, 4, v{m1}
    v_lshl_add_u32 v{vKa}, v{m0}, 7, v{m1}
    v_add_u32 v{vKa}, s{sTmp}, v{vKa}
    v_and_b32 v{m1}, 1, v{vLane}
    v_lshl_add_u32 v{m1}, v{m1}, 1, v{m0}
    v_lshlrev_b32 v{m1}, 4, v{m1}
    v_bfe_u32 v{vVa}, v{vLane}, 1, 4
    v_add_lshl_u32 v{vVa}, v{vVa}, v{m1}, 3
    v_add_u32 v{vVa}, s{sTmp}, v{vVa}
    v_and_b32 v{m1}, 31, v{vLane}
    v_lshlrev_b32 v{m0}, 2, v{m0}
    v_sub_u32 v{m1}, v{m1}, v{m0}
    v_mov_b32 v{m0}, 0xff800000
    v_mov_b64 {R(PO,2)}, -1
    v_mov_b64 {R(PO+2,2)}, -1
    """)
    for r in range(16):
        a(f'v_cmp_le_i32 vcc, {8*(r>>2) + (r&3)}, v{m1}\nv_cndmask_b32 v{MK+r}, v{m0}, 0, vcc')
    a(f"""
    s_mov_b32 s{sS}, s{sPar}
    s_lshl_b32 s{sPoll}, s{sId}, 7
    s_add_u32 s{sPoll}, s{sPoll}, {L.F_HEAD}
    s_lshl_b32 s{sSig}, s{sPar}, 5
    s_add_u32 s{sSig}, s{sSig}, s{sId}
    s_lshl_b32 s{sSig}, s{sSig}, 2
    s_add_u32 s{sSig}, s{sSig}, {L.F_ATT}
    s_mov_b32 s{sC}, {fbits(SCALE_LOG2E)}
    s_mov_b32 s{sKnown}, 0
    s_mov_b32 s{sSigPrev}, {OOB}
    s_mov_b32 s{sFv}, 0
    """)
    one_wave(a, lambda: wait_marks(a, ex, 0))
    loop = a.lab('L_att')
    a(f'{loop}:\ns_add_u32 s{sNeed}, s{sS}, s{sLv}\ns_add_u32 s{sNeed}, s{sNeed}, 1')
    prof(a, 0)
    hv = a.lab('L_ahv')
    a(f's_cmp_le_u32 s{sNeed}, s{sKnown}\ns_cbranch_scc1 {hv}\ns_waitcnt vmcnt(0)')
    signal(a, sSigPrev, sFv)
    poll(a, ex, 0xfff, vFa, sPoll, sNeed)
    a(f's_mov_b32 s{sSigPrev}, {OOB}\ns_mov_b64 exec, 0xfff')
    for d in (2, 4, 8, 16, 32):
        a(f's_add_u32 s{sTmp}, s{sNeed}, {d}\nv_cmp_gt_u32 vcc, s{sTmp}, v{vF}\ns_cmp_eq_u64 vcc, 0\ns_cselect_b32 s{sKnown}, s{sTmp}, s{sKnown}')
    a(f's_add_u32 s{sTmp}, s{sLv}, 64\nv_cmp_gt_u32 vcc, s{sTmp}, v{vF}\ns_cmp_eq_u64 vcc, 0\ns_cselect_b32 s{sKnown}, s{sTmp}, s{sKnown}\ns_mov_b64 exec, -1\n{hv}:')
    prof(a, 1)
    a(f"""
    s_lshl_b32 s{sTmp}, s{sS}, 5
    s_add_u32 s{sTmp}, s{sTmp}, s{sId}
    s_lshl_b32 s{sA}, s{sTmp}, 13
    s_add_u32 s{sA}, s{sA}, s{sLay}
    s_lshl_b32 s{sB}, s{sTmp}, 12
    s_add_u32 s{sB}, s{sB}, s{sLay}
    s_add_u32 s{sB}, s{sB}, {L.KM}
    """)
    for base, reg in ((L.QX, Qr), (L.KX, Kr), (L.VX, Vr)):
        for hf in range(2):
            a(f's_add_u32 s{sTmp}, s{sA}, {base + 4096*hf}')
            for i in range(4): a(f'buffer_load_dwordx4 {R(reg+16*hf+4*i,4)}, v{vL16}, {WS}, s{sTmp} offen offset:{1024*i} sc1')
        if reg == Qr:
            a('s_waitcnt vmcnt(8)'); signal(a, sSigPrev, sFv)
    a('s_waitcnt vmcnt(8)')
    for f in range(8): a(f'{M32} {R(Sx,16)}, {R(Kr+4*f,4)}, {R(Qr+4*f,4)}, {R(MK,16) if f == 0 else R(Sx,16)}')
    a(f'v_max3_f32 v{m0}, v{Sx}, v{Sx+1}, v{Sx+2}')
    for r in range(3, 15, 2): a(f'v_max3_f32 v{m0}, v{m0}, v{Sx+r}, v{Sx+r+1}')
    a(f'v_max_f32 v{m0}, v{m0}, v{Sx+15}')
    nm = a.lab('L_nm')
    a(f's_cmp_lt_u32 s{sS}, 62\ns_cbranch_scc1 {nm}\ns_mov_b32 s{sTmp}, {L.F_POI + 256}\ns_mov_b32 s{sTmp+1}, {NPOIS2}')
    poll(a, ex, 1, vL16, sTmp, sTmp + 1, sleep=32)
    a(f'{nm}:')
    prof(a, 2)
    lp = a.lab('L_km'); dn = a.lab('L_kmd'); sp = a.lab('L_kms')
    if SENT:
        a(f's_cmp_ge_u32 s{sS}, 63\ns_cbranch_scc1 {lp}\ns_mov_b64 exec, 1\n{sp}:\ns_sleep {SENT}\nbuffer_load_dword v{m1}, v{vL16}, {WS}, s{sB} offen offset:4092 sc1')
        budget(a, ex)
        a(f's_waitcnt vmcnt(0)\nv_cmp_eq_u32 vcc, -1, v{m1}\ns_cbranch_vccnz {sp}\ns_mov_b64 exec, -1')
    a(f'{lp}:')
    for i in range(4): a(f'buffer_load_dwordx4 {R(LDm+4*i,4)}, v{vL16}, {WS}, s{sB} offen offset:{1024*i} sc1')
    budget(a, ex)
    a(f's_waitcnt vmcnt(0)\nv_max3_u32 v{m1}, v{LDm}, v{LDm+1}, v{LDm+2}')
    for i in range(3, 15, 2): a(f'v_max3_u32 v{m1}, v{m1}, v{LDm+i}, v{LDm+i+1}')
    a(f'v_max_u32 v{m1}, v{m1}, v{LDm+15}\nv_cmp_eq_u32 vcc, -1, v{m1}\ns_cbranch_vccz {dn}\ns_sleep 2\ns_branch {lp}\n{dn}:')
    prof(a, 3)
    for i in range(4): a(f'ds_write_b128 v{vWr}, {R(LDm+4*i,4)} offset:{1024*i}')
    for f in range(8): a(f'ds_read_b128 {R(KMr+4*f,4)}, v{vKa} offset:{256*f}')
    for f in range(8):
        a(f's_waitcnt lgkmcnt({7 - f + min(f, 4)})\n{M32} {R(Sm,16)}, {R(KMr+4*f,4)}, {R(Qr+4*f,4)}, {"0" if f == 0 else R(Sm,16)}')
        if f < 4: a(f'ds_read_b64 {R(VMr+2*f,2)}, v{vVa} offset:{2048 + 512*f}')
    prof(a, 4)
    for i in range(4): a(f'v_mul_f32 v{Sm+i}, s{sC}, v{Sm+i}')
    a(f"""
    v_max3_f32 v{m0}, v{m0}, v{Sm}, v{Sm+1}
    v_max3_f32 v{m0}, v{m0}, v{Sm+2}, v{Sm+3}
    v_mov_b32 v{m1}, v{m0}
    v_permlane32_swap_b32 v{m0}, v{m1}
    v_max_f32 v{m0}, v{m0}, v{m1}
    """)
    for r in range(20): a(f'v_sub_f32 v{Sx+r}, v{Sx+r}, v{m0}')
    for r in range(20): a(f'v_exp_f32 v{Sx+r}, v{Sx+r}')
    a(f'v_add_f32 v{m0}, v{Sx}, v{Sx+1}\nv_add_f32 v{m1}, v{Sx+2}, v{Sx+3}')
    for r in range(4, 20, 2): a(f'v_add_f32 v{m0}, v{m0}, v{Sx+r}\nv_add_f32 v{m1}, v{m1}, v{Sx+r+1}')
    a(f"""
    v_add_f32 v{m0}, v{m0}, v{m1}
    v_mov_b32 v{m1}, v{m0}
    v_permlane32_swap_b32 v{m0}, v{m1}
    v_add_f32 v{m0}, v{m0}, v{m1}
    v_rcp_f32 v{m0}, v{m0}
    """)
    for r in range(20): a(f'v_mul_f32 v{Sx+r}, v{m0}, v{Sx+r}')
    for r in range(0, 20, 2): a(f'v_cvt_pk_bf16_f32 v{Px+r//2}, v{Sx+r}, v{Sx+r+1}')
    a(f's_waitcnt lgkmcnt(0)\ns_add_u32 s{sA}, s{sA}, {L.OA}\ns_add_u32 s{sD}, s{sA}, 4096')
    def out(e):
        for G in range(2):
            for r in range(8*G, 8*G + 8, 2): a(f'v_cvt_pk_bf16_f32 v{PKo+8*e+r//2}, v{O[e]+r}, v{O[e]+r+1}')
            a(f'buffer_store_dwordx4 {R(PKo+8*e+4*G,4)}, v{vL16}, {WS}, s{sA if e < 2 else sD} offen offset:{2048*(e&1) + 1024*G} sc1')
    m8 = lambda e: a(f'v_mfma_f32_32x32x8_bf16 {R(O[e],16)}, {R(VMr+2*e,2)}, {R(Pm,2)}, 0')
    m8(0); m8(1)
    for e in range(4):
        for G in range(2): a(f'{M32} {R(O[e],16)}, {R(Vr+8*e+4*G,4)}, {R(Px+4*G,4)}, {R(O[e],16)}')
        if e + 2 < 4: m8(e + 2)
        if e == H_ATT: hint(a, sSig, f's_cmp_ge_u32 s{sS}, 62')
        if e >= 1: out(e - 1)
    if H_ATT == 4: hint(a, sSig, f's_cmp_ge_u32 s{sS}, 62')
    out(3)
    if H_ATT == 5: hint(a, sSig, f's_cmp_ge_u32 s{sS}, 62')
    prof(a, 5)
    a(f's_mov_b32 s{sFv}, s{sNeed}\ns_mov_b32 s{sSigPrev}, s{sSig}\ns_add_u32 s{sS}, s{sS}, 2\ns_cmp_lt_u32 s{sS}, 64\ns_cbranch_scc1 {loop}\ns_waitcnt vmcnt(0)')
    signal(a, sSig, sFv)
    a('s_waitcnt vmcnt(0)\ns_barrier')

def wo_reg(f, ct):
    i = ct * 32 + f
    return 256 + 4 * i if i < 64 else 128 + 4 * (i - 64)

def wo_load_weights(a):
    t = 4
    a(f"""
    v_lshrrev_b32 v{t}, 3, v{vLane}
    v_mul_u32_u24 v{t}, 1152, v{t}
    v_and_b32 v{t+1}, 7, v{vLane}
    v_min_u32 v{t+1}, 5, v{t+1}
    v_lshl_add_u32 v{t}, v{t+1}, 4, v{t}
    v_lshrrev_b32 v{t+2}, 5, v{vLane}
    v_bfe_u32 v{t+3}, v{vLane}, 4, 1
    v_lshl_add_u32 v{t+2}, v{t+2}, 2, v{t+3}
    v_bfe_u32 v{t+3}, v{vLane}, 2, 2
    v_lshl_add_u32 v{t+2}, v{t+2}, 2, v{t+3}
    v_and_b32 v{t+3}, 3, v{vLane}
    v_lshlrev_b32 v{t+3}, 3, v{t+3}
    v_lshl_add_u32 v{t+2}, v{t+2}, 7, v{t+3}
    s_lshl_b32 s{sB}, s{sW}, 15
    v_add_u32 v{t+2}, s{sB}, v{t+2}
    s_mul_i32 s{sA}, s{sW}, {1024*1152}
    s_mul_i32 s{sC}, s{sId}, 96
    s_add_u32 s{sA}, s{sA}, s{sC}
    """)
    for ps in range(4):
        lp = a.lab('L_wol')
        a(f"""
        s_mov_b32 s{sM0}, s{sB}
        s_mov_b32 s{sC}, 32
        {lp}:
        s_mov_b32 m0, s{sM0}
        s_add_u32 s{sM0}, s{sM0}, 1024
        buffer_load_dwordx4 v{t}, s[{sT}:{sT+3}], s{sA} offen lds
        s_add_u32 s{sA}, s{sA}, {8*1152}
        s_sub_u32 s{sC}, s{sC}, 1
        s_cmp_lg_u32 s{sC}, 0
        s_cbranch_scc1 {lp}
        s_waitcnt vmcnt(0)
        """)
        for f in range(8):
            for ct in range(3):
                for hf in range(2): a(f'ds_read_b64_tr_b16 {R(wo_reg(8*ps+f,ct)+2*hf,2)}, v{t+2} offset:{f*4096 + 1024*hf + 32*ct}')
            if f % 2 == 1: a('s_waitcnt lgkmcnt(0)')
    a('s_barrier')

WO_NB = 14
def wo_phase(a, ex):
    ACC = 4; LB = [16 + 4 * i for i in range(WO_NB)]; RES = 116; vOa = 120; vXa = 121; vSt_ = 122; vRa = 123; vWr = 124; vRd = 125
    NB = len(LB)
    a(f"""
    v_lshlrev_b32 v{vFa}, 2, v{vLane}
    v_and_b32 v{vSt_}, 15, v{vLane}
    v_lshrrev_b32 v{vWr}, 4, v{vLane}
    v_lshrrev_b32 v{vRd}, 5, v{vLane}
    s_lshl_b32 s{sTmp}, s{sTeam}, 4
    v_add_lshl_u32 v{vXa}, v{vSt_}, s{sTmp}, 4
    v_lshl_add_u32 v{vOa}, v{vWr}, 9, v{vXa}
    v_lshl_add_u32 v{vXa}, v{vRd}, 9, v{vXa}
    v_and_b32 v{vRa}, 1, v{vWr}
    v_lshl_add_u32 v{vRa}, v{vRa}, 3, v{vXa}
    v_lshlrev_b32 v{vSt_}, 2, v{vSt_}
    v_lshl_add_u32 v{vSt_}, v{vRd}, 6, v{vSt_}
    s_mul_i32 s{sTmp}, s{sW}, 3072
    v_add_u32 v{vWr}, s{sTmp}, v{vL16}
    s_lshl_b32 s{sTmp}, s{sW}, 10
    v_add_u32 v{vRd}, s{sTmp}, v{vL16}
    s_mul_i32 s{sTmp}, s{sId}, 3
    s_add_u32 s{sTmp}, s{sTmp}, s{sW}
    s_lshl_b32 s{sOut}, s{sTmp}, 10
    s_add_u32 s{sOut}, s{sOut}, s{sLay}
    s_lshl_b32 s{sC}, s{sTmp}, 8
    s_lshl_b32 s{sTmp}, s{sTeam}, 7
    s_add_u32 s{sC}, s{sC}, s{sTmp}
    s_add_u32 s{sC}, s{sC}, s{sLay}
    s_add_u32 s{sC}, s{sC}, {L.X1 + 36864}
    s_cmp_eq_u32 s{sW}, 3
    s_cselect_b32 s{sOut}, {OOB}, s{sOut}
    s_cselect_b32 s{sC}, {OOB}, s{sC}
    s_mov_b32 s{sS}, s{sPar}
    s_lshl_b32 s{sPoll}, s{sPar}, 7
    s_add_u32 s{sPoll}, s{sPoll}, {L.F_ATT}
    s_mul_i32 s{sSig}, s{sTeam}, 12
    s_add_u32 s{sSig}, s{sSig}, s{sId}
    s_lshl_b32 s{sTmp}, s{sPar}, 5
    s_add_u32 s{sSig}, s{sSig}, s{sTmp}
    s_lshl_b32 s{sSig}, s{sSig}, 2
    s_add_u32 s{sSig}, s{sSig}, {L.F_WO}
    s_cmp_eq_u32 s{sW}, 0
    s_cselect_b32 s{sSig}, s{sSig}, {OOB}
    s_mov_b32 s{sE}, 0xffff
    s_mov_b32 s{sE+1}, 0xffff
    """)
    loop = a.lab('L_wo')
    a(f"""
    {loop}:
    s_add_u32 s{sNeed}, s{sS}, s{sLv}
    s_add_u32 s{sNeed}, s{sNeed}, 1
    s_lshl_b32 s{sA}, s{sS}, 18
    s_lshl_b32 s{sTmp}, s{sW}, 16
    s_add_u32 s{sA}, s{sA}, s{sTmp}
    s_add_u32 s{sA}, s{sA}, s{sLay}
    s_add_u32 s{sA}, s{sA}, {L.OA}
    s_mul_i32 s{sD}, s{sS}, {L.XSEG}
    s_add_u32 s{sB}, s{sD}, s{sC}
    s_add_u32 s{sD}, s{sD}, s{sOut}
    s_add_u32 s{sSrc}, s{sD}, {L.X0}
    s_add_u32 s{sD}, s{sD}, {L.X1}
    """)
    prof(a, 0)
    again = a.lab('L_woag'); early = a.lab('L_woe'); okl = a.lab('L_wook')
    a(f's_mov_b32 s{sKd}, s{sA}\ns_add_u32 s{sTmp+2}, s{sPoll}, {HINT}\ns_cmp_ge_u32 s{sS}, 62\ns_cselect_b32 s{sFlag}, 1, 0\ns_cselect_b32 s{sTmp+2}, s{sTmp+2}, s{sPoll}\ns_cselect_b32 s{sTmp+3}, s{sL1}, s{sNeed}')
    one_wave(a, lambda: poll(a, ex, 0xffffffff, vFa, sTmp + 2, sTmp + 3, sleep=1))
    a(f'{again}:')
    prof(a, 1)
    vm = Q(a, 'vmcnt', 63)
    def ld(f):
        vm.issue(f, f'buffer_load_dwordx4 {R(LB[f%NB],4)}, v{vOa}, {WS}, s{sA} offen offset:{2048*(f&1)} sc1')
        if f & 1: a(f's_add_u32 s{sA}, s{sA}, 4096')
    for f in range(NB): ld(f)
    for f in range(32):
        vm.wait(f)
        if f == 0: prof(a, 2)
        for ct in range(3):
            a(f'v_mfma_f32_16x16x32_bf16 {R(ACC+4*ct,4)}, {R(wo_reg(f,ct),4)}, {R(LB[f%NB],4)}, {"0" if f == 0 else R(ACC+4*ct,4)}')
        if f + NB < 32: ld(f + NB)
        if f == 4: vm.issue('r', f'buffer_load_dwordx2 {R(RES,2)}, v{vRa}, {WS}, s{sSrc} offen sc1')
        if f == 24:
            vm.wait('r')
            a(f'v_and_b32 v{RES+3}, 0xffff0000, v{RES+1}\nv_lshlrev_b32 v{RES+2}, 16, v{RES+1}\nv_and_b32 v{RES+1}, 0xffff0000, v{RES}\nv_lshlrev_b32 v{RES}, 16, v{RES}')
    prof(a, 3)
    if H_WO == 0: hint(a, sSig, f's_cmp_ge_u32 s{sS}, 62')
    for ct in range(3): a(f'ds_write_b128 v{vWr}, {R(ACC+4*ct,4)} offset:{1024*ct}')
    a(f'v_cmp_u_f32 vcc, v{ACC}, v{ACC}\ns_waitcnt lgkmcnt(0)\ns_cbranch_vccnz {early}\n{okl}:\ns_barrier')
    for ww in range(4): a(f'ds_read_b128 {R(16+4*ww,4)}, v{vRd} offset:{3072*ww}')
    if H_WO == 1: hint(a, sSig, f's_cmp_ge_u32 s{sS}, 62')
    for ww in range(4):
        a(f's_waitcnt lgkmcnt({3-ww})')
        for i in range(4): a(f'v_add_f32 v{RES+i}, v{RES+i}, v{16+4*ww+i}')
    a(f'v_cvt_pk_bf16_f32 v32, v{RES}, v{RES+1}\nv_cvt_pk_bf16_f32 v33, v{RES+2}, v{RES+3}\nv_permlane16_swap_b32 v32, v34\nv_permlane16_swap_b32 v33, v35')
    a(f's_mov_b64 exec, s[{sE}:{sE+1}]\nbuffer_store_dwordx4 {R(32,4)}, v{vXa}, {WS}, s{sD} offen sc1\ns_mov_b64 exec, -1')
    row_stats(a, 32, 4, 36)
    a(f's_mov_b64 exec, s[{sE}:{sE+1}]\nbuffer_store_dword v36, v{vSt_}, {WS}, s{sB} offen sc1\ns_mov_b64 exec, -1')
    if H_WO == 2: hint(a, sSig, f's_cmp_ge_u32 s{sS}, 62')
    prof(a, 4)
    a('s_waitcnt vmcnt(0)\ns_barrier')
    prof(a, 5)
    signal(a, sSig, sNeed)
    end = a.lab('L_woend')
    a(f's_add_u32 s{sS}, s{sS}, 2\ns_cmp_lt_u32 s{sS}, 64\ns_cbranch_scc1 {loop}\ns_branch {end}')
    a(f'{early}:\ns_cmp_eq_u32 s{sFlag}, 0\ns_cbranch_scc1 {okl}\ns_mov_b32 s{sFlag}, 0\ns_mov_b32 s{sA}, s{sKd}')
    miss(a, 0)
    poll(a, ex, 0xffffffff, vFa, sPoll, sNeed, sleep=1)
    a(f's_branch {again}\n{end}:\ns_waitcnt vmcnt(0)\ns_barrier')

BA_SLEEP = 3; BA_FINE = 57; BA_DEFER = 62
def ba_phase(a, ex):
    O = [12 + 16 * u for u in range(4)]; Qs = [76 + 8 * u for u in range(4)]
    S = [108, 124]; P = 140; OC = 148; QC = 164; ST = [172, 186]; CI = 200; T = 216
    vH = 4; vK0 = 5; vK1 = 6; vV0 = 7; vWr = 8; vRd = 9; vSg = 10
    K1 = lambda b: ST[b]; K0 = lambda b: ST[b] + 2; V = lambda b, G: ST[b] + 6 + 4 * G
    KV = f's[{sX}:{sX+3}]'
    a(f"""
    v_lshlrev_b32 v{vFa}, 2, v{vLane}
    v_mov_b32 v{T}, {OOB}
    v_cmp_gt_u32 vcc, 32, v{vLane}
    v_cndmask_b32 v{vH}, v{T}, v{vFa}, vcc
    s_mul_i32 s{sTmp}, s{sW}, 3072
    v_add_u32 v{vWr}, s{sTmp}, v{vL16}
    v_mov_b32 v{vRd}, v{vL16}
    v_lshlrev_b32 v{vSg}, 11, v{vLane}
    s_lshr_b32 s{sPoll}, s{sJ}, 2
    s_lshl_b32 s{sPoll}, s{sPoll}, 7
    s_add_u32 s{sPoll}, s{sPoll}, {L.F_BQ}
    s_mul_i32 s{sTmp}, s{sJ}, {64*L.KVT}
    s_add_u32 s{sTmp}, s{sTmp}, s{sLay}
    """)
    ws_srd(a, sX, sTmp, L.KVB, 0)
    a(f"""
    s_mul_i32 s{sSrc}, s{sJ}, {64*1152}
    s_add_u32 s{sSrc}, s{sSrc}, s{sLay}
    s_add_u32 s{sSrc}, s{sSrc}, {L.QB}
    s_sub_u32 s{sStride}, 3, s{sI}
    s_lshl_b32 s{sTmp}, s{sW}, 2
    s_add_u32 s{sTmp}, s{sTmp}, s{sI}
    s_cmp_eq_u32 s{sW}, 0
    s_cselect_b32 s{sTmp}, s{sStride}, s{sTmp}
    s_mov_b32 s{sC}, s{sTmp}
    s_lshl_b32 s{sSig}, s{sTmp}, 5
    s_add_u32 s{sSig}, s{sSig}, s{sJ}
    s_lshl_b32 s{sSig}, s{sSig}, 2
    s_add_u32 s{sSig}, s{sSig}, {L.F_OB}
    s_mul_i32 s{sOut}, s{sTmp}, 36864
    s_add_u32 s{sOut}, s{sOut}, s{sLay}
    s_add_u32 s{sOut}, s{sOut}, {L.OB}
    s_lshl_b32 s{sTmp}, s{sJ}, 7
    s_add_u32 s{sB}, s{sOut}, s{sTmp}
    s_add_u32 s{sB}, s{sB}, 32768
    s_lshl_b32 s{sTmp}, s{sJ}, 10
    s_add_u32 s{sOut}, s{sOut}, s{sTmp}
    s_mov_b32 s{sKd}, 0
    s_mov_b32 s{sKnown}, 0
    s_mov_b32 s{sAct}, 0
    s_mov_b32 s{sS}, s{sI}
    s_mov_b32 s{sDel}, 12288
    """)
    for r in [q + i for q in Qs + [QC] for i in (5, 6, 7)] + [ST[0] + 1, ST[1] + 1] + list(range(CI, CI + 16)): a(f'v_mov_b32 v{r}, 0')
    def set_stride(n):
        a(f's_mov_b32 s{sMul}, {n*L.KVT}\nv_add_u32 v{vK0}, {2*n*L.KVT}, v{vL16}\nv_add_u32 v{vK1}, {2*n*L.KVT}, v{vH}\nv_add_u32 v{vV0}, {n*L.KVT}, v{vL16}')
    set_stride(4)
    def ldk(b, so, k0=vL16, k1=vH): return f'buffer_load_dwordx4 {R(K0(b),4)}, v{k0}, {KV}, s{so} offen sc1\nbuffer_load_dword v{K1(b)}, v{k1}, {KV}, s{so} offen offset:3072 sc1'
    def ldv(b, G, so, va=vL16): return f'buffer_load_dwordx4 {R(V(b,G),4)}, v{va}, {KV}, s{so} offen offset:{1024*(G+1)} sc1'
    def qk0(sb, b, q, c='0'): return f'{M32} {R(S[sb],16)}, {R(K0(b),4)}, {R(q,4)}, {c}'
    def qk1(sb, b, q): return f'{M32} {R(S[sb],16)}, {R(K1(b),4)}, {R(q+4,4)}, {R(S[sb],16)}'
    def pv(o, b, G): return f'{M32} {R(o,16)}, {R(V(b,G),4)}, {R(P+4*G,4)}, {R(o,16)}'
    def body(sb, ms):
        s_ = S[sb]
        for g in range(4):
            if ms[g]: a(ms[g])
            for i in range(4): a(f'v_exp_f32 v{s_+4*g+i}, v{s_+4*g+i}')
            a(f'v_cvt_pk_bf16_f32 v{P+2*g}, v{s_+4*g}, v{s_+4*g+1}\nv_cvt_pk_bf16_f32 v{P+2*g+1}, v{s_+4*g+2}, v{s_+4*g+3}')
    def sweep(hook=None, check=None):
        lp = a.lab('L_sw')
        a(ldk(0, sA)); a(ldv(0, 0, sA)); a(ldv(0, 1, sA))
        a(f's_add_u32 s{sA}, s{sA}, s{sMul}')
        a(ldk(1, sA)); a(ldv(1, 0, sA))
        for i in range(0, 16, 2): a(f'v_mov_b64 {R(OC+i,2)}, 0')
        a(f's_add_u32 s{sTmp}, s{sA}, s{sMul}\ns_waitcnt vmcnt(5)')
        if hook: hook()
        if check: check()
        for i in range(0, 4, 2): a(f'v_mov_b64 {R(P+4+i,2)}, 0\nv_mov_b64 {R(V(1,1)+i,2)}, 0')
        a(qk0(0, 0, QC, R(CI, 16))); a(qk1(0, 0, QC))
        a(ldk(0, sTmp))
        a('s_waitcnt vmcnt(2)')
        a(f'{lp}:')
        for b in range(2):
            body(b, [qk0(1-b, 1-b, QC, R(CI, 16)), qk1(1-b, 1-b, QC) + '\n' + ldk(1-b, sA, vK0, vK1),
                     pv(OC, 1-b, 1) + '\n' + ldv(1-b, 1, sA), pv(OC, b, 0) + '\n' + ldv(b, 0, sA, vV0)])
            a(f's_add_u32 s{sA}, s{sA}, s{sMul}\ns_waitcnt vmcnt(4)')
        a(f's_sub_u32 s{sN}, s{sN}, 1\ns_cmp_lg_u32 s{sN}, 0\ns_cbranch_scc1 {lp}')
        a(pv(OC, 1, 1))
    def finalize(u):
        fb = a.lab('L_fb'); ok = a.lab('L_fok')
        lo, hi = fbits(2.0 ** -60), fbits(2.0 ** 60)
        o = O[u]
        def getl(): a(f'v_mov_b32 v{T}, v{o+10}\nv_mov_b32 v{T+1}, v{o+10}\nv_permlane32_swap_b32 v{T}, v{T+1}')
        getl()
        a(f'v_subrev_u32 v{T+1}, {hex(lo)}, v{T}\nv_cmp_lt_u32 vcc, {hex(hi - lo)}, v{T+1}\ns_cbranch_vccnz {fb}\n{ok}:\nv_rcp_f32 v{T}, v{T}')
        for r in range(10): a(f'v_mul_f32 v{o+r}, v{T}, v{o+r}')
        for r in range(0, 10, 2): a(f'v_cvt_pk_bf16_f32 v{o+r//2}, v{o+r}, v{o+r+1}')
        a(f"""
        s_add_u32 s{sTmp}, s{sOut}, {16*36864*u}
        s_add_u32 s{sTmp+1}, s{sB}, {16*36864*u}
        buffer_store_dwordx4 {R(o,4)}, v{vL16}, {WS}, s{sTmp} offen sc1
        buffer_store_dword v{o+4}, v{vH}, {WS}, s{sTmp+1} offen sc1
        """)
        def cold():
            ret = a.lab('L_fbr')
            a(f'{fb}:')
            for i in range(0, 6, 2): a(f'v_mov_b64 {R(QC+i,2)}, {R(Qs[u]+i,2)}')
            a(f's_mov_b32 s{sFlag}, {len(rets)}\ns_branch {redo}\n{ret}:')
            for i in range(0, 12, 2): a(f'v_mov_b64 {R(o+i,2)}, {R(OC+i,2)}')
            getl(); a(f's_branch {ok}')
            rets.append(ret)
        colds.append(cold)
    colds = []; rets = []; redo = a.lab('L_redo')
    def publish(mask, wait=True):
        if wait: a('s_waitcnt vmcnt(0)')
        a(f'v_mov_b32 v{vF}, s{sL1}\ns_mov_b64 exec, {mask}\nbuffer_store_dword v{vF}, v{vSg}, {WS}, s{sSig} offen sc1\ns_mov_b64 exec, -1')
        if DEBUG: logtime(a, sSig, sL1, vF, vL16, 2048 * (3 if mask == 8 else 0))
    level = a.lab('L_lev'); nokeys = a.lab('L_nokeys'); nocatch = a.lab('L_nocatch'); end = a.lab('L_baend')
    LD_KN = 24576
    def w0():
        wait_marks(a, ex, 1)
        a(f'buffer_load_dword v{vF}, v{vFa}, {WS}, s{sPoll} offen sc1\ns_waitcnt vmcnt(0)')
        a(f'ds_write_b32 v{vFa}, v{vF} offset:{LD_KN}\ns_waitcnt lgkmcnt(0)')
    one_wave(a, w0)
    a(f'ds_read_b32 v{vF}, v{vFa} offset:{LD_KN}\ns_waitcnt lgkmcnt(0)\nv_readlane_b32 s{sKnown}, v{vF}, 0')
    for i in (1, 2, 4, 5, 6): a(f'v_readlane_b32 s{sTmp}, v{vF}, {i}\ns_min_u32 s{sKnown}, s{sKnown}, s{sTmp}')
    a(f's_cmp_gt_u32 s{sKnown}, s{sLv}\ns_cselect_b32 s{sKnown}, s{sKnown}, s{sLv}\ns_addc_u32 s{sKnown}, s{sKnown}, 0\ns_sub_u32 s{sKnown}, s{sKnown}, s{sLv}')
    a(f's_min_u32 s{sLev}, s{sKnown}, 60\ns_and_b32 s{sLev}, s{sLev}, -4\ns_mov_b32 s{sTile}, s{sC}')
    jd = a.lab('L_jd')
    for u in range(4):
        a(f"""
        s_cmp_ge_u32 s{sTile}, s{sLev}
        s_cbranch_scc1 {jd}
        s_mul_i32 s{sTmp}, s{sTile}, 1152
        s_add_u32 s{sTmp}, s{sTmp}, s{sSrc}
        buffer_load_dwordx4 {R(Qs[u],4)}, v{vL16}, {WS}, s{sTmp} offen sc1
        buffer_load_dword v{Qs[u]+4}, v{vH}, {WS}, s{sTmp} offen offset:1024 sc1
        s_add_u32 s{sAct}, s{sAct}, 1
        s_add_u32 s{sTile}, s{sTile}, 16
        """)
        for i in range(0, 12, 2): a(f'v_mov_b64 {R(O[u]+i,2)}, 0')
    a(f"""
    {jd}:
    s_mov_b32 s{sS}, s{sLev}
    {level}:
    s_and_b32 s{sS}, s{sS}, -4
    s_and_b32 s{sTmp}, s{sS}, 12
    s_cselect_b32 s{sTmp}, s{sI}, s{sStride}
    s_add_u32 s{sS}, s{sS}, s{sTmp}
    s_add_u32 s{sTile}, s{sS}, 1
    s_max_u32 s{sTmp}, s{sTile}, 64
    s_cmp_ge_u32 s{sS}, {BA_DEFER}
    s_cselect_b32 s{sTile}, s{sTmp}, s{sTile}
    s_min_u32 s{sLev}, s{sTile}, 64
    s_mul_i32 s{sX+2}, s{sLev}, {L.KVT}
    s_min_u32 s{sD}, s{sS}, 63
    s_mul_i32 s{sD}, s{sD}, 1152
    s_add_u32 s{sD}, s{sD}, s{sSrc}
    """)
    prof(a, 0)
    kl = [a.lab('L_k') for _ in range(5)]
    a(f's_sub_u32 s{sN}, s{sLev}, s{sKd}\ns_mul_i32 s{sA}, s{sKd}, {L.KVT}\ns_mov_b32 s{sKd}, s{sLev}')
    def ldall(b): a(ldk(b, sA)); a(ldv(b, 0, sA)); a(ldv(b, 1, sA))
    def ldq(): a(f'buffer_load_dwordx4 {R(QC,4)}, v{vL16}, {WS}, s{sD} offen sc1\nbuffer_load_dword v{QC+4}, v{vH}, {WS}, s{sD} offen offset:1024 sc1')
    def arrived(b):
        ok = a.lab('L_arr'); re = a.lab('L_rea')
        test = f's_waitcnt vmcnt(0)\nv_max3_u32 v{T}, v{K1(b)}, v{K0(b)}, v{V(b,0)}\nv_max_u32 v{T}, v{T}, v{V(b,1)}\nv_cmp_eq_u32 vcc, -1, v{T}'
        a(f'{test}\ns_cbranch_vccnz {re}\n{ok}:')
        def cold():
            sh = a.lab('L_sh')
            a(f'{re}:\ns_cmp_ge_u32 s{sA}, {BA_FINE * L.KVT}\ns_cbranch_scc1 {sh}\ns_sleep 12\n{sh}:\ns_sleep {BA_SLEEP}'); ldall(b); budget(a, ex); a(f'{test}\ns_cbranch_vccnz {re}\ns_branch {ok}')
        colds.append(cold)
    ldall(0)
    for n in range(4): a(f's_cmp_eq_u32 s{sAct}, {n}\ns_cbranch_scc1 {kl[n]}')
    for n in (4, 3, 2, 1, 0):
        a(f'{kl[n]}:')
        for b in range(2):
            arrived(b)
            if n: a(qk0(0, b, Qs[0])); a(qk1(0, b, Qs[0]))
            a(f's_add_u32 s{sA}, s{sA}, {L.KVT}'); ldall(1 - b)
            for u in range(n):
                nx = u + 1 < n
                body(u & 1, [qk0(1-(u&1), b, Qs[u+1]) if nx else None, qk1(1-(u&1), b, Qs[u+1]) if nx else None, pv(O[u-1], b, 1) if u else None, pv(O[u], b, 0)])
            if n: a(pv(O[n-1], b, 1))
            a(f's_sub_u32 s{sN}, s{sN}, 1\ns_cmp_eq_u32 s{sN}, 0\ns_cbranch_scc1 {nokeys}')
        a(f's_branch {kl[n]}')
    a(f'{nokeys}:')
    prof(a, 2)
    notlast = a.lab('L_nl'); three = a.lab('L_f3')
    def bhint():
        a(f's_lshl_b32 s{sE}, 1, s{sAct}\ns_sub_u32 s{sE}, s{sE}, 1\ns_mov_b32 s{sE+1}, 0')
        hint(a, sSig, None, f's[{sE}:{sE+1}]', vSg)
    a(f's_cmp_lg_u32 s{sLev}, 64\ns_cbranch_scc1 {notlast}')
    for u in range(3):
        if u == H_BA: bhint()
        finalize(u)
    a(f's_cmp_lg_u32 s{sAct}, 4\ns_cbranch_scc1 {three}')
    finalize(3)
    a(f'{three}:\ns_cmp_eq_u32 s{sTile}, 64\ns_cbranch_scc1 {notlast}'); publish(15)
    a(f'{notlast}:')
    prof(a, 3)
    a(f"""
    s_cmp_lg_u32 s{sTile}, s{sLev}
    s_cbranch_scc1 {nocatch}
    s_mul_i32 s{sA}, s{sW}, {L.KVT}
    s_add_u32 s{sN}, s{sLev}, 7
    s_lshr_b32 s{sN}, s{sN}, 3
    """)
    ldq()
    def qcheck():
        ok = a.lab('L_qok'); re = a.lab('L_qre')
        test = f'v_max_u32 v{T}, v{QC}, v{QC+4}\nv_cmp_eq_u32 vcc, -1, v{T}'
        a(f'{test}\ns_cbranch_vccnz {re}\n{ok}:')
        def cold():
            a(f'{re}:\ns_sleep 1'); ldq(); budget(a, ex); a(f's_waitcnt vmcnt(0)\n{test}\ns_cbranch_vccnz {re}\ns_branch {ok}')
        colds.append(cold)
    def hook():
        sk = a.lab('L_hk')
        a(f's_cmp_lg_u32 s{sLev}, 64\ns_cbranch_scc1 {sk}\ns_lshl_b32 s{sE}, 1, s{sAct}\ns_sub_u32 s{sE}, s{sE}, 1\ns_mov_b32 s{sE+1}, 0')
        publish(f's[{sE}:{sE+1}]', wait=False)
        a(f'{sk}:')
    sweep(hook, qcheck)
    prof(a, 4)
    for g in range(3): a(f'ds_write_b128 v{vWr}, {R(OC+4*g,4)} offset:{1024*g}')
    notmine = a.lab('L_nm')
    a(f"""
    s_lshr_b32 s{sTmp}, s{sS}, 2
    s_and_b32 s{sTmp}, s{sTmp}, 3
    s_add_u32 s{sS}, s{sS}, 4
    s_waitcnt vmcnt(0) lgkmcnt(0)
    s_barrier
    s_cmp_lg_u32 s{sTmp}, s{sW}
    s_cbranch_scc1 {notmine}
    """)
    RD = S[0]
    for ww in range(4):
        for g in range(3): a(f'ds_read_b128 {R(RD+12*ww+4*g,4)}, v{vRd} offset:{3072*ww + 1024*g}')
    a('s_waitcnt lgkmcnt(6)')
    for r in range(11): a(f'v_add_f32 v{RD+r}, v{RD+r}, v{RD+12+r}')
    a('s_waitcnt lgkmcnt(0)')
    for r in range(11): a(f'v_add_f32 v{RD+24+r}, v{RD+24+r}, v{RD+36+r}')
    sl = [a.lab('L_sl') for _ in range(4)]; sd = a.lab('L_sld')
    for u in range(1, 4): a(f's_cmp_eq_u32 s{sAct}, {u}\ns_cbranch_scc1 {sl[u]}')
    for u in range(4):
        a(f'{sl[u]}:')
        for r in range(11): a(f'v_add_f32 v{O[u]+r}, v{RD+r}, v{RD+24+r}')
        for i in range(0, 6, 2): a(f'v_mov_b64 {R(Qs[u]+i,2)}, {R(QC+i,2)}')
        if u < 3: a(f's_branch {sd}')
    a(f'{sd}:\ns_add_u32 s{sAct}, s{sAct}, 1\ns_cmp_lg_u32 s{sLev}, 64\ns_cbranch_scc1 {notmine}')
    hint(a, sSig, None, 8, vSg)
    finalize(3); publish(8)
    a(f'{notmine}:\nv_add_u32 v{vWr}, s{sDel}, v{vWr}\nv_add_u32 v{vRd}, s{sDel}, v{vRd}\ns_sub_u32 s{sDel}, 0, s{sDel}')
    prof(a, 5)
    a(f'{nocatch}:\ns_cmp_lt_u32 s{sKd}, 64\ns_cbranch_scc1 {level}\ns_branch {end}')
    for c in colds: c()
    mx = a.lab('L_mx')
    a(f'{redo}:\ns_waitcnt vmcnt(0)\ns_mov_b32 s{sA}, 0\nv_mov_b32 v{T}, 0xff800000\n{mx}:')
    a(ldk(0, sA)); a('s_waitcnt vmcnt(0)'); a(qk0(0, 0, QC)); a(qk1(0, 0, QC))
    for r in range(0, 16, 2): a(f'v_max3_f32 v{T}, v{T}, v{S[0]+r}, v{S[0]+r+1}')
    a(f"""
    s_add_u32 s{sA}, s{sA}, {L.KVT}
    s_cmp_lt_u32 s{sA}, {64*L.KVT}
    s_cbranch_scc1 {mx}
    v_mov_b32 v{T+1}, v{T}
    v_permlane32_swap_b32 v{T}, v{T+1}
    v_max_f32 v{T}, v{T}, v{T+1}
    s_mov_b32 s{sA}, 0
    s_mov_b32 s{sN}, 32
    """)
    for i in range(16): a(f'v_sub_f32 v{CI+i}, 0, v{T}')
    set_stride(1)
    sweep()
    a('s_waitcnt vmcnt(0)')
    set_stride(4)
    for i in range(16): a(f'v_mov_b32 v{CI+i}, 0')
    for i, r in enumerate(rets[:-1]): a(f's_cmp_eq_u32 s{sFlag}, {i}\ns_cbranch_scc1 {r}')
    a(f's_branch {rets[-1]}\n{end}:\ns_waitcnt vmcnt(0)\ns_barrier')

C_PT, C_PN, C_WO, C_AT, C_BT, C_BN, C_SP = range(7)
sCls = 66; sM = 67; sBa = 68; sFo = 69; sFoSkip = 76

def worker_program(a):
    ex = 'L_wexit'
    if PROF:
        for i in range(13): a(f's_mov_b32 s{79+i}, 0')
    base_regs(a)
    if DEBUG: a(f's_mov_b32 s99, {L.FLAGS + 64}'); logtime(a, 99, sRole, vF, vL16)
    lab = {c: f'L_init{c}' for c in range(7)}
    X = sTmp; r5 = sTmp + 1
    a(f"""
    s_lshr_b32 s{X}, s{sRole}, 5
    s_and_b32 s{r5}, s{sRole}, 31
    s_mov_b32 s{sPar}, 0
    s_mov_b32 s{sId}, 0
    s_mov_b32 s{sTeam}, 0
    s_mov_b32 s{sM}, 0
    s_mov_b32 s{sL1}, 1
    s_mov_b32 s{sBa}, -1
    s_mov_b32 s{sFo}, -1
    s_mov_b32 s{sFoSkip}, 0
    s_mov_b32 s{sKd}, 0
    s_cmp_ge_u32 s{X}, 5
    s_cbranch_scc1 L_x567
    s_sub_u32 s{X}, s{X}, 1
    s_mul_i32 s{sTmp+2}, s{X}, 20
    s_add_u32 s{sTmp+2}, s{sTmp+2}, s{r5}
    s_cmp_lt_u32 s{r5}, 20
    s_cbranch_scc1 L_heavy
    s_sub_u32 s{sId}, s{r5}, 20
    s_and_b32 s{sTeam}, s{X}, 1
    s_lshr_b32 s{sPar}, s{X}, 1
    s_branch {lab[C_WO]}
    L_x567:
    s_lshl_b32 s{sTmp+2}, s{X}, 4
    s_add_u32 s{sTmp+2}, s{sTmp+2}, s{r5}
    s_cmp_lt_u32 s{r5}, 16
    s_cbranch_scc1 L_heavy
    s_sub_u32 s{sFo}, s{sTmp+2}, 96
    s_cmp_ge_u32 s{sFo}, 16
    s_cbranch_scc1 L_clsbq
    s_mov_b32 s{sCls}, {C_AT}
    s_lshr_b32 s{sPar}, s{sFo}, 3
    s_and_b32 s{sId}, s{sFo}, 7
    s_lshl_b32 s{sId}, s{sId}, 2
    s_add_u32 s{sId}, s{sId}, s{sW}
    s_add_u32 s{sTile}, s{sFo}, 32
    s_branch L_poison
    L_heavy:
    s_mov_b32 s{sBa}, s{sTmp+2}
    s_lshr_b32 s{sId}, s{sBa}, 2
    s_and_b32 s{sM}, s{sBa}, 3
    s_cmp_eq_u32 s{sM}, 3
    s_cbranch_scc1 L_cls7
    s_add_u32 s{sM}, s{sM}, 1
    s_cmp_eq_u32 s{sM}, 3
    s_cselect_b32 s{sM}, 0, s{sM}
    s_add_u32 s{sTmp+2}, s{sId}, 48
    s_cmp_eq_u32 s{sM}, 2
    s_cselect_b32 s{sFo}, -1, s{sTmp+2}
    s_sub_u32 s{sFoSkip}, 2, s{sM}
    s_branch {lab[C_PT]}
    L_clsbq:
    s_lshr_b32 s{sPar}, s{sFo}, 5
    s_and_b32 s{r5}, s{sFo}, 15
    s_lshl_b32 s{sId}, s{r5}, 2
    s_add_u32 s{sId}, s{sId}, s{sW}
    """)
    load_ptr_srd(a, sT, 64, 576 * 3456)
    a(f"""
    s_cmp_ge_u32 s{sId}, 32
    s_cbranch_scc1 L_clsbv
    s_mov_b32 s{sCls}, {C_BT}
    s_lshr_b32 s{sM}, s{sId}, 4
    s_and_b32 s{sId}, s{sId}, 15
    s_lshl_b32 s{sId}, s{sId}, 1
    s_mul_i32 s{sA}, s{sM}, 1152
    s_mul_i32 s{sTmp}, s{sId}, 36
    s_add_u32 s{sA}, s{sA}, s{sTmp}
    """)
    gemm_load_weights(a, False, 3456, pair=True)
    a(f's_branch L_initfo\nL_clsbv:\ns_mov_b32 s{sCls}, {C_BN}\ns_mov_b32 s{sM}, 2\ns_sub_u32 s{sId}, s{sId}, 32')
    bv_load_weights(a)
    a(f"""
    s_branch L_initfo
    L_cls7:
    s_mov_b32 s{sCls}, {C_SP}
    """)
    load_ptr_srd(a, sX, 0, L.XBYTES)
    pre_phase(a)
    a(f's_mov_b32 s{sTile}, s{sId}\nL_poison:')
    poison_phase(a, 0)
    a(f's_cmp_lt_u32 s{sTile}, {NPOIS2}\ns_cselect_b32 s{sKd}, 1, 0\ns_branch L_initfo')
    a(f'{lab[C_PN]}:\n{lab[C_PT]}:\ns_cmp_eq_u32 s{sM}, 2\ns_cselect_b32 s{sCls}, {C_PN}, {C_PT}')
    a(f"""
    s_load_dwordx4 s[{sTmp+2}:{sTmp+5}], s[0:1], 16
    s_load_dwordx2 s[{sTmp+6}:{sTmp+7}], s[0:1], 32
    s_waitcnt lgkmcnt(0)
    s_cmp_eq_u32 s{sM}, 0
    s_cselect_b32 s{sTmp+6}, s{sTmp+2}, s{sTmp+6}
    s_cselect_b32 s{sTmp+7}, s{sTmp+3}, s{sTmp+7}
    s_cmp_eq_u32 s{sM}, 1
    s_cselect_b32 s{sTmp+6}, s{sTmp+4}, s{sTmp+6}
    s_cselect_b32 s{sTmp+7}, s{sTmp+5}, s{sTmp+7}
    """)
    srd(a, sT, sTmp + 6, 576 * 8192)
    a(f's_lshl_b32 s{sA}, s{sId}, 8\ns_lshl_b32 s{sTmp}, s{sW}, 6\ns_add_u32 s{sA}, s{sA}, s{sTmp}')
    gemm_load_weights(a, False, 8192)
    a(f"""
    s_cmp_eq_u32 s{sFoSkip}, 1
    s_cbranch_scc1 L_layer
    L_initfo:
    s_cmp_ge_u32 s{sFo}, 80
    s_cbranch_scc1 L_initp
    s_mul_i32 s{sTeam}, s{sFo}, 205
    s_lshr_b32 s{sTeam}, s{sTeam}, 10
    s_mul_i32 s{sTmp}, s{sTeam}, 5
    s_sub_u32 s{sTmp}, s{sFo}, s{sTmp}
    s_lshl_b32 s{sFoT}, s{sTmp}, 2
    s_add_u32 s{sFoT}, s{sFoT}, s{sW}
    """)
    load_ptr_srd(a, sT, 72, 576 * 1152)
    a(f's_lshl_b32 s{sA}, s{sFoT}, 6')
    gemm_load_weights(a, True, 1152)
    a(f's_cmp_eq_u32 s{sFoSkip}, 1\ns_cbranch_scc1 L_second2\nL_initp:\ns_cmp_eq_u32 s{sKd}, 0\ns_cbranch_scc1 L_layer')
    def started():
        lp = a.lab('L_st')
        wait_marks(a, ex, 0)
        a(f's_lshl_b32 s{sA}, s{sTile}, 12\ns_add_u32 s{sA}, s{sA}, {L.KM}\ns_mov_b64 exec, 1\n{lp}:\ns_sleep 16\nbuffer_load_dword v{vF}, v{vL16}, {WS}, s{sA} offen sc1')
        budget(a, ex)
        a(f's_waitcnt vmcnt(0)\nv_cmp_eq_u32 vcc, -1, v{vF}\ns_cbranch_vccnz {lp}\ns_mov_b64 exec, -1')
    if POI_WAIT: one_wave(a, started)
    poison_phase(a, 1)
    poison_phase(a, 2)
    a('s_branch L_layer')
    a(f'{lab[C_WO]}:\ns_mov_b32 s{sCls}, {C_WO}')
    load_ptr_srd(a, sT, 40, 4096 * 1152)
    wo_load_weights(a)
    a('L_layer:')
    if DEBUG: a(f's_lshr_b32 s99, s{sLv}, 4\ns_add_u32 s99, s99, {L.FLAGS + 68}'); logtime(a, 99, sRole, vF, vL16)
    prof(a, 11)
    for c in range(6): a(f's_cmp_eq_u32 s{sCls}, {c}\ns_cbranch_scc1 L_run{c}')
    a('s_branch L_second')
    for c, kind in ((C_PT, 'T'), (C_PN, 'N')):
        a(f"""
        L_run{c}:
        s_add_u32 s{sSrc}, s{sLay}, {L.X0}
        s_mov_b32 s{sMul}, 262144
        s_mov_b32 s{sB}, 1024
        s_lshl_b32 s{sOut}, s{sId}, 13
        s_lshl_b32 s{sTmp}, s{sW}, 11
        s_add_u32 s{sOut}, s{sOut}, s{sTmp}
        s_add_u32 s{sOut}, s{sOut}, s{sLay}
        s_lshl_b32 s{sSig}, s{sId}, 5
        s_lshl_b32 s{sTmp}, s{sM}, 2
        s_add_u32 s{sSig}, s{sSig}, s{sTmp}
        s_add_u32 s{sSig}, s{sSig}, s{sW}
        s_lshl_b32 s{sSig}, s{sSig}, 2
        s_add_u32 s{sSig}, s{sSig}, {L.F_HEAD}
        """)
        if c == C_PT:
            a(f's_cmp_eq_u32 s{sM}, 0\ns_cselect_b32 s{sTmp}, {L.QX}, {L.KX}\ns_cselect_b32 s{sC}, 1.0, {fbits(SCALE_LOG2E)}\ns_add_u32 s{sOut}, s{sOut}, s{sTmp}')
        else: a(f's_add_u32 s{sOut}, s{sOut}, {L.VX}')
        ln_phase(a, kind, ex)
        a('s_branch L_second')
    for c, kind in ((C_BT, 'BT'), (C_BN, 'BN')):
        a(f"""
        L_run{c}:
        s_add_u32 s{sSrc}, s{sLay}, {L.X1}
        s_lshr_b32 s{sSig}, s{sId}, 2
        s_lshl_b32 s{sSig}, s{sSig}, 3
        s_add_u32 s{sSig}, s{sSig}, s{sPar}
        s_lshl_b32 s{sSig}, s{sSig}, 2
        s_add_u32 s{sSig}, s{sSig}, s{sM}
        s_lshl_b32 s{sSig}, s{sSig}, 2
        s_add_u32 s{sSig}, s{sSig}, {L.F_BQ}
        s_mov_b32 s{sMul}, {L.KVT}
        s_mov_b32 s{sTmp}, {L.KVB + (1024 if c == C_BN else 0)}
        s_mov_b32 s{sC}, {fbits(SCALE_B)}
        """)
        if c == C_BT:
            a(f's_cmp_eq_u32 s{sM}, 0\ns_cselect_b32 s{sMul}, 1152, s{sMul}\ns_cselect_b32 s{sTmp}, {L.QB}, s{sTmp}\ns_cselect_b32 s{sC}, 1.0, s{sC}\ns_lshl_b32 s{sB}, s{sMul}, 6')
        else:
            a(f's_mov_b32 s{sB}, 1024\ns_mul_i32 s{sStride}, s{sId}, {64*1152}\ns_add_u32 s{sStride}, s{sStride}, s{sLay}\ns_add_u32 s{sStride}, s{sStride}, {L.QB}')
        a(f's_mul_i32 s{sOut}, s{sId}, s{sMul}\ns_lshl_b32 s{sOut}, s{sOut}, 6\ns_add_u32 s{sOut}, s{sOut}, s{sTmp}\ns_add_u32 s{sOut}, s{sOut}, s{sLay}')
        ln_phase(a, kind, ex)
        a('s_branch L_second')
    a(f'L_run{C_WO}:')
    wo_phase(a, ex)
    a(f's_branch L_second\nL_run{C_AT}:')
    att_phase(a, ex)
    a(f'L_second:\ns_add_u32 s{sTmp}, s{sFoSkip}, s{sLv}\ns_cmp_eq_u32 s{sTmp}, 1\ns_cbranch_scc1 L_initfo\nL_second2:')
    prof_dump(a, 0)
    a(f's_cmp_eq_u32 s{sBa}, -1\ns_cbranch_scc1 L_third\ns_lshr_b32 s{sJ}, s{sBa}, 2\ns_and_b32 s{sI}, s{sBa}, 3')
    ba_phase(a, ex)
    prof_dump(a, 1)
    a(f'L_third:\ns_cmp_ge_u32 s{sFo}, 80\ns_cbranch_scc1 L_next\ns_cmp_eq_u32 s{sFoSkip}, s{sL1}\ns_cbranch_scc1 L_next')
    load_ptr_srd(a, sY, 80, L.XBYTES)
    fo_phase(a, ex)
    if PROF:
        a(f's_cmp_lg_u32 s{sBa}, -1\ns_cbranch_scc1 L_next'); prof_dump(a, 1)
    a(f"""
    L_next:
    s_add_u32 s{sLv}, s{sLv}, 64
    s_add_u32 s{sL1}, s{sL1}, 1
    s_add_u32 s{sLay}, s{sLay}, {L.LSTRIDE}
    s_cmp_lt_u32 s{sLv}, 128
    s_cbranch_scc1 L_layer
    """)
    if TOT: a(f's_mov_b32 s99, {L.FLAGS + 64}'); logtime(a, 99, sRole, vF, vL16)
    if DBGM:
        a(f's_cmp_lg_u32 s{sW}, 0\ns_cbranch_scc1 {ex}'); DBGM(a, 14, 4)
    a(f"""
    {ex}:
    s_endpgm
    """)
```

```python
import sys
sys.path.insert(0,'gen'); sys.path.insert(0,'bench')
import main, chain
from hx import *
for kw in ({},{'log':True},{'prof':True},{'tot':True}):
    c=chain.ChainCfg()
    for k,v in kw.items(): setattr(c,k,v)
    co=compile_asm(main.build(c,None,'t_kernel'),'t_kernel',13); print(cl.address_register_problem(co,'t_kernel'))
```
